```python
import torch

def _softmax(x, axis=-1):
    return torch.softmax(x, dim=axis)

def _gelu(x):
    return torch.nn.functional.gelu(x, approximate='tanh')

def _silu(x):
    return torch.nn.functional.silu(x)

def _sigmoid(x):
    return torch.sigmoid(x)

def _layernorm(x, axis=-1, eps=1e-05):
    m = x.mean(dim=axis, keepdim=True)
    v = x.var(dim=axis, keepdim=True, unbiased=False)
    return (x - m) / torch.sqrt(v + eps)

def _scatter_add(tgt, idx, src, axis=0):
    return tgt.clone().index_add_(axis, idx, src)

def _segment_sum(src, seg, n):
    out = torch.zeros((n,) + src.shape[1:], dtype=src.dtype)
    return out.index_add_(0, seg, src)

def _pad(x, pw):
    flat = tuple((v for pair in reversed(pw) for v in pair))
    return torch.nn.functional.pad(x, flat)
kernel_name = 'adaLN_cond__sliding_block__glu_gated_bilinear__prompt'

def setup_inputs():

    _w = lambda a: (lambda t: t.to(torch.bfloat16) if t.is_floating_point() else t)(torch.as_tensor(a))

    def _A_setup():
        B, S, D = (1, 2048, 640)
        return {'x': _w((lambda *s: torch.randn(*s, dtype=torch.bfloat16) * 0.05)(B, S, D)), 'wqkv': _w((lambda *s: torch.randn(*s, dtype=torch.bfloat16) * 0.05)(D, 3 * D)), 'wo': _w((lambda *s: torch.randn(*s, dtype=torch.bfloat16) * 0.05)(D, D))}
    _A_in = _A_setup()

    def _B_setup():
        B, S, D, F = (1, 2048, 640, 1536)
        return {'x': _w((lambda *s: torch.randn(*s, dtype=torch.bfloat16) * 0.05)(B, S, D)), 'w_gate': _w((lambda *s: torch.randn(*s, dtype=torch.bfloat16) * 0.8)(D, F) * D ** (-0.5)), 'w_up': _w((lambda *s: torch.randn(*s, dtype=torch.bfloat16) * 0.8)(D, F) * D ** (-0.5)), 'w_down': _w((lambda *s: torch.randn(*s, dtype=torch.bfloat16) * 0.8)(F, D) * F ** (-0.5))}
    _B_in = _B_setup()
    return {'A_x': _A_in['x'], 'A_wqkv': _A_in['wqkv'], 'A_wo': _A_in['wo'], 'B_x': _B_in['x'], 'B_w_gate': _B_in['w_gate'], 'B_w_up': _B_in['w_up'], 'B_w_down': _B_in['w_down'], 'c': _w((lambda *s: torch.randn(*s, dtype=torch.bfloat16) * 0.1)(1, 640) * 8.0), 'w_mod': _w((lambda *s: torch.randn(*s, dtype=torch.bfloat16) * 0.1)(640, 6 * 640) * 640 ** (-0.5) * 8.0)}

def reference(A_x, A_wqkv, A_wo, B_x, B_w_gate, B_w_up, B_w_down, c, w_mod):

    def _A_ref(x, wqkv, wo):
        B, S, D = x.shape
        H = 32
        Dh = D // H
        W = 256
        qkv = (lambda x, *d: x.permute(*d))((x @ wqkv).reshape(B, S, 3, H, Dh), 2, 0, 3, 1, 4)
        q, k, v = (qkv[0], qkv[1], qkv[2])
        scores = torch.einsum('bhqd,bhkd->bhqk', q, k) * Dh ** (-0.5)
        idx = torch.arange(S)
        mask = (idx[:, None] - idx[None, :] >= 0) & (idx[:, None] - idx[None, :] < W)
        scores = torch.where(mask[None, None], scores, -1000000000.0)
        p = _softmax(scores, axis=-1)
        o = torch.einsum('bhqk,bhkd->bhqd', p, v)
        return (lambda x, *d: x.permute(*d))(o, 0, 2, 1, 3).reshape(B, S, D) @ wo

    def _B_ref(x, w_gate, w_up, w_down):
        g = torch.einsum('bsd,df->bsf', x, w_gate)
        u = torch.einsum('bsd,df->bsf', x, w_up)
        h = g * u
        return torch.einsum('bsf,fd->bsd', h, w_down)
    x = A_x
    mod = (_silu(c) @ w_mod).reshape(c.shape[0], 6, 1, -1)
    sa, ca, ga, sb, cb, gb = (mod[:, 0].clone(), mod[:, 1].clone(), mod[:, 2].clone(), mod[:, 3].clone(), mod[:, 4].clone(), mod[:, 5].clone())
    h = _layernorm(x, axis=-1) * (1 + ca) + sa
    x = x + ga * _A_ref(h, A_wqkv, A_wo)
    h = _layernorm(x, axis=-1) * (1 + cb) + sb
    x = x + gb * _B_ref(h, B_w_gate, B_w_up, B_w_down)
    return x
```

```python
import re

class Asm:
    def __init__(self):
        self.lines = []
        self.uid = 0
    def __call__(self, s):
        for l in s.strip('\n').split('\n'):
            l = l.strip()
            if l: self.lines.append('    ' + l)
    def label(self, l):
        self.lines.append(l + ':')
    def raw(self, s):
        self.lines.append(s)
    GUID = [0]
    def newlabel(self, p='L'):
        Asm.GUID[0] += 1
        return f'{p}_{Asm.GUID[0]}'
    def text(self):
        return '\n'.join(self.lines) + '\n'

_REG = re.compile(r'(?<![\w.])([vas])(?:\[(\d+):(\d+)\]|(\d+))(?![\w])')

def regs_of(op):
    out = []
    for m in _REG.finditer(op):
        k = m.group(1)
        if m.group(2) is not None:
            out += [(k, i) for i in range(int(m.group(2)), int(m.group(3)) + 1)]
        else:
            out.append((k, int(m.group(4))))
    for sp in ('vcc', 'exec', 'm0'):
        if re.search(r'(?<![\w])' + sp + r'(?![\w])', op): out.append((sp, 0))
    return out

TRANS = ('v_exp_f32', 'v_log_f32', 'v_rcp_f32', 'v_rsq_f32', 'v_sqrt_f32', 'v_sin_f32', 'v_cos_f32', 'v_rcp_iflag_f32', 'v_exp_f16', 'v_rcp_f16')

class Ins:
    __slots__ = ('text', 'op', 'kind', 'wr', 'rd', 'passes', 'srcC', 'srcAB', 'store_data', 'nop', 'dpp', 'ldst_lds', 'target')
    def __init__(self, text):
        self.text = text
        t = text.split(';')[0].strip()
        parts = t.split(None, 1)
        op = parts[0]; self.op = op
        rest = parts[1] if len(parts) > 1 else ''
        ops = [o.strip() for o in split_ops(rest)]
        self.wr = []; self.rd = []; self.passes = 0; self.srcC = []; self.srcAB = []
        self.store_data = []; self.nop = 0; self.dpp = False; self.ldst_lds = False; self.target = None
        base = re.sub(r'_(e32|e64|dpp|sdwa)$', '', op)
        if op == 's_nop':
            self.kind = 'nop'; self.nop = int(ops[0], 0) + 1
        elif op.startswith('v_mfma'):
            self.kind = 'mfma'
            self.passes = 8 if '32x32x16' in op else (4 if '16x16x32' in op else 16)
            self.wr = regs_of(ops[0]); self.srcAB = regs_of(ops[1]) + regs_of(ops[2]); self.srcC = regs_of(ops[3])
            self.rd = self.srcAB + self.srcC
        elif op.startswith('v_'):
            self.kind = 'trans' if base in TRANS else 'valu'
            self.dpp = ('row_' in rest or 'quad_perm' in rest or op.endswith('_dpp'))
            if base.startswith('v_cmpx'):
                self.wr = regs_of(ops[0]) + [('exec', 0)]; self.rd = sum((regs_of(o) for o in ops[1:]), [])
            elif base.startswith('v_cmp'):
                self.wr = regs_of(ops[0]); self.rd = sum((regs_of(o) for o in ops[1:]), [])
            elif base in ('v_add_co_u32', 'v_sub_co_u32', 'v_addc_co_u32', 'v_subb_co_u32', 'v_mad_u64_u32'):
                self.wr = regs_of(ops[0]) + regs_of(ops[1]); self.rd = sum((regs_of(o) for o in ops[2:]), [])
            elif base.startswith('v_permlane') and 'swap' in base:
                self.wr = regs_of(ops[0]) + regs_of(ops[1]); self.rd = list(self.wr)
            else:
                self.wr = regs_of(ops[0]); self.rd = sum((regs_of(o) for o in ops[1:]), [])
                if base in ('v_fmac_f32', 'v_pk_fmac_f16', 'v_dot2c_f32_bf16', 'v_writelane_b32', 'v_fmaak_f32', 'v_dot2c_f32_f16'):
                    if base != 'v_fmaak_f32': self.rd += regs_of(ops[0])
                if base == 'v_cndmask_b32' and len(ops) == 3: self.rd.append(('vcc', 0))
                if self.dpp: self.rd += regs_of(ops[0])
        elif op in ('buffer_wbl2', 'buffer_inv'):
            self.kind = 'misc'
        elif op.startswith(('buffer_', 'global_', 'flat_')):
            self.kind = 'vmem'
            lds = bool(re.search(r'\blds\b', rest)) or 'load_lds' in op
            self.ldst_lds = lds
            isload = '_load' in op
            isatomic = '_atomic' in op
            if op.startswith('buffer_'):
                if lds and isload:
                    self.rd = sum((regs_of(o) for o in ops), []) + [('m0', 0)]
                elif isload:
                    self.wr = regs_of(ops[0]); self.rd = sum((regs_of(o) for o in ops[1:]), [])
                else:
                    self.store_data = regs_of(ops[0]); self.rd = sum((regs_of(o) for o in ops), [])
                    if isatomic and 'sc0' in rest: self.wr = regs_of(ops[0])
            else:
                if lds:
                    self.rd = sum((regs_of(o) for o in ops), []) + [('m0', 0)]
                elif isload:
                    self.wr = regs_of(ops[0]); self.rd = sum((regs_of(o) for o in ops[1:]), [])
                elif isatomic and 'sc0' in rest:
                    self.wr = regs_of(ops[0]); self.rd = sum((regs_of(o) for o in ops[1:]), []); self.store_data = regs_of(ops[2])
                else:
                    self.store_data = regs_of(ops[1]); self.rd = sum((regs_of(o) for o in ops), [])
            self.rd = [r for r in self.rd if r[0] != 'exec']
        elif op.startswith('ds_'):
            self.kind = 'ds'
            if op.startswith(('ds_read', 'ds_bpermute', 'ds_permute', 'ds_swizzle')):
                self.wr = regs_of(ops[0]); self.rd = sum((regs_of(o) for o in ops[1:]), [])
            else:
                self.rd = sum((regs_of(o) for o in ops), [])
        elif op.startswith(('s_cbranch', 's_branch')):
            self.kind = 'branch'; self.target = ops[0]
        elif op in ('s_waitcnt', 's_barrier', 's_endpgm', 's_sleep', 's_setprio', 's_sethalt', 's_waitcnt_vscnt'):
            self.kind = 'misc'
        elif op.startswith('s_load') or op.startswith('s_buffer_load') or op in ('s_memtime', 's_memrealtime'):
            self.kind = 'smem'; self.wr = regs_of(ops[0]); self.rd = sum((regs_of(o) for o in ops[1:]), [])
        elif op.startswith('s_'):
            self.kind = 'salu'
            if op.startswith('s_cmp') or op.startswith('s_bitcmp'):
                self.rd = sum((regs_of(o) for o in ops), [])
            else:
                self.wr = regs_of(ops[0]); self.rd = sum((regs_of(o) for o in ops[1:]), [])
                if 'saveexec' in op: self.wr.append(('exec', 0))
        else:
            raise ValueError('unknown instruction: ' + text)

def split_ops(rest):
    out = []; depth = 0; cur = ''
    for ch in rest:
        if ch == '[': depth += 1
        if ch == ']': depth -= 1
        if ch == ',' and depth == 0:
            out.append(cur); cur = ''
        else: cur += ch
    if cur.strip(): out.append(cur)
    return out

MF_VALU = {2: 5, 4: 8, 8: 12, 16: 20}
MF_COVL = {2: 4, 4: 6, 8: 10, 16: 18}
MF_WARC = {2: 1, 4: 3, 8: 7, 16: 15}

class State:
    def __init__(self):
        self.clk = 0
        self.valu_w = {}
        self.trans_w = {}
        self.mfma_w = {}
        self.mfma_c = {}
        self.store_d = {}
        self.m0_w = -100
        self.exec_valu = -100
    def copy(self):
        s = State(); s.clk = self.clk
        for k in ('valu_w', 'trans_w', 'mfma_w', 'mfma_c', 'store_d'): setattr(s, k, dict(getattr(self, k)))
        s.m0_w = self.m0_w; s.exec_valu = self.exec_valu
        return s
    def merge(self, o):
        d = self.clk - o.clk
        for k in ('valu_w', 'trans_w', 'store_d'):
            a, b = getattr(self, k), getattr(o, k)
            for r, c in b.items():
                if r not in a or a[r] < c + d: a[r] = c + d
        for k in ('mfma_w', 'mfma_c'):
            a, b = getattr(self, k), getattr(o, k)
            for r, v in b.items():
                nv = (v[0] + d,) + tuple(v[1:])
                if r not in a: a[r] = nv
                else:
                    tbl = MF_VALU if k == 'mfma_w' else MF_WARC
                    if a[r][0] + tbl[a[r][1]] < nv[0] + tbl[nv[1]]: a[r] = nv
        self.m0_w = max(self.m0_w, o.m0_w + d); self.exec_valu = max(self.exec_valu, o.exec_valu + d)

def need(st, ins):
    n = 0
    def req(c, dist):
        nonlocal n
        n = max(n, dist - (st.clk - c - 1))
    isvalu = ins.kind in ('valu', 'trans')
    base = re.sub(r'_(e32|e64|dpp|sdwa)$', '', ins.op)
    if ins.kind == 'mfma':
        for r in ins.rd:
            if r in st.valu_w and r[0] in 'va': req(st.valu_w[r], 2)
        for r in ins.srcAB:
            if r in st.mfma_w: req(st.mfma_w[r][0], MF_VALU[st.mfma_w[r][1]])
        for r in ins.srcC:
            if r in st.mfma_w:
                c, p, D = st.mfma_w[r]
                if D == tuple(ins.srcC) and p == ins.passes and p > 2: pass
                else: req(c, MF_COVL[p])
        for r in ins.wr:
            if r in st.mfma_w and r not in ins.srcC:
                c, p, D = st.mfma_w[r]; req(c, MF_COVL[p])
        req(st.exec_valu, 4)
    if isvalu or ins.kind in ('vmem', 'ds'):
        for r in ins.rd + ins.wr:
            if r in st.mfma_w: req(st.mfma_w[r][0], MF_VALU[st.mfma_w[r][1]])
    if isvalu:
        for r in ins.wr:
            if r in st.mfma_c: req(st.mfma_c[r][0], MF_WARC[st.mfma_c[r][1]])
            if r in st.store_d: req(st.store_d[r], 2)
        for r in ins.rd:
            if r[0] in ('s', 'vcc') and r in st.valu_w:
                req(st.valu_w[r], 4 if base in ('v_readlane_b32', 'v_writelane_b32') else 2)
            if r in st.trans_w and ins.kind != 'trans': req(st.trans_w[r], 1)
            if r in st.trans_w and ins.kind == 'trans': req(st.trans_w[r], 1)
        if base in ('v_readlane_b32', 'v_readfirstlane_b32'):
            for r in ins.rd:
                if r[0] in 'va' and r in st.valu_w: req(st.valu_w[r], 1)
            req(st.exec_valu, 4)
        if base.startswith('v_permlane') or ins.dpp:
            for r in ins.rd:
                if r[0] in 'va' and r in st.valu_w: req(st.valu_w[r], 2)
            req(st.exec_valu, 5)
    if ins.kind in ('vmem', 'ds'):
        for r in ins.wr:
            if r in st.store_d: req(st.store_d[r], 1)
        for r in ins.rd:
            if r in st.trans_w: req(st.trans_w[r], 1)
    if ins.kind == 'vmem':
        for r in ins.rd:
            if r[0] in ('s', 'vcc') and r in st.valu_w: req(st.valu_w[r], 5)
        if ins.ldst_lds: req(st.m0_w, 1)
    return n

def apply(st, ins):
    c = st.clk
    if ins.kind == 'nop':
        st.clk += ins.nop; return
    if ins.kind in ('valu', 'trans'):
        for r in ins.wr:
            st.valu_w[r] = c
            st.mfma_w.pop(r, None)
            if r[0] == 'exec': st.exec_valu = c
            if ins.kind == 'trans': st.trans_w[r] = c
            else: st.trans_w.pop(r, None)
    elif ins.kind == 'mfma':
        D = tuple(ins.wr)
        for r in ins.wr:
            st.mfma_w[r] = (c, ins.passes, D); st.valu_w.pop(r, None); st.trans_w.pop(r, None)
        for r in ins.srcC: st.mfma_c[r] = (c, ins.passes)
    elif ins.kind in ('vmem', 'ds', 'smem', 'salu'):
        for r in ins.wr:
            st.valu_w.pop(r, None); st.trans_w.pop(r, None)
            if r[0] == 'm0': st.m0_w = c
        if ins.kind == 'vmem' and ins.store_data and ('x4' in ins.op or 'x3' in ins.op):
            for r in ins.store_data: st.store_d[r] = c
    st.clk += 1

def fix_hazards(text, verbose=False):
    lines = text.split('\n')
    items = []
    for l in lines:
        s = l.strip()
        if not s or s.startswith(';') or s.startswith('.') or s.startswith('//'):
            items.append(('raw', l, None))
        elif re.match(r'^[\w.$]+:\s*(;.*)?$', s):
            items.append(('label', l, s.split(':')[0]))
        else:
            items.append(('ins', l, Ins(s)))
    label_idx = {it[2]: i for i, it in enumerate(items) if it[0] == 'label'}
    out = []; st = State(); pend = {}; inserted = 0
    unreachable = False
    for i, it in enumerate(items):
        if it[0] == 'raw':
            out.append(it[1]); continue
        if it[0] == 'label':
            if it[2] in pend:
                for o in pend.pop(it[2]):
                    if unreachable:
                        clk = st.clk; st = o.copy(); unreachable = False
                    else: st.merge(o)
            unreachable = False
            out.append(it[1]); continue
        ins = it[2]
        n = need(st, ins)
        if n > 0:
            inserted += n
            while n > 0:
                k = min(n, 16); out.append(f'    s_nop {k-1}'); st.clk += k; n -= k
        if ins.kind == 'branch' and ins.target in label_idx:
            j = label_idx[ins.target]
            if j < i:
                sim = st.copy(); sim.clk += 1; extra = 0; cnt = 0
                for k in range(j, i):
                    if items[k][0] != 'ins': continue
                    x = items[k][2]
                    m = need(sim, x)
                    if m > extra: extra = m
                    apply(sim, x); cnt += 1
                    if cnt > 24: break
                if extra > 0:
                    inserted += extra
                    while extra > 0:
                        k = min(extra, 16); out.append(f'    s_nop {k-1}'); st.clk += k; extra -= k
            else:
                s2 = st.copy(); s2.clk += 1
                pend.setdefault(ins.target, []).append(s2)
        out.append(it[1])
        apply(st, ins)
        if ins.op in ('s_branch', 's_endpgm'): unreachable = True
    if verbose: print('hazard pass inserted', inserted, 'wait states')
    return '\n'.join(out)

def kernel_header(name):
    return f'.globl {name}\n.p2align 8\n.type {name},@function\n{name}:\n'

def kernel_desc(name, vgpr=256, agpr=0, sgpr=96):
    acc = (vgpr + 3) // 4 * 4
    nfv = acc + agpr if agpr else vgpr
    return f'''.p2align 6
.amdhsa_kernel {name}
  .amdhsa_next_free_vgpr {nfv}
  .amdhsa_next_free_sgpr {sgpr}
  .amdhsa_accum_offset {acc}
  .amdhsa_group_segment_fixed_size 0
  .amdhsa_kernarg_size 96
  .amdhsa_user_sgpr_count 2
  .amdhsa_user_sgpr_kernarg_segment_ptr 1
  .amdhsa_system_sgpr_workgroup_id_x 1
  .amdhsa_float_denorm_mode_32 3
.end_amdhsa_kernel
'''

def module(kernels, header_comments='', launches=None, hazards=True):
    s = header_comments
    for k in (launches or kernels):
        s += f"; @launch kernel={k['name']} grid=({k['grid']},1,1) block=({k['block']},1,1) lds={k['lds']}\n"
    s += '.amdgcn_target "amdgcn-amd-amdhsa--gfx950"\n.text\n'
    seen = set()
    for k in kernels:
        if k['name'] in seen: continue
        seen.add(k['name'])
        body = fix_hazards(k['body']) if hazards else k['body']
        s += kernel_header(k['name']) + body + '\n'
    s += '.section .rodata,"a"\n'
    seen = set()
    for k in kernels:
        if k['name'] in seen: continue
        seen.add(k['name'])
        s += kernel_desc(k['name'], k.get('vgpr', 256), k.get('agpr', 0), k.get('sgpr_real', k.get('sgpr', 96)))
    return s
```

```python
import sys
sys.path.insert(0, 'work')
from asmlib import *

KA_X, KA_WQKV, KA_WO, KA_BX, KA_WG, KA_WU, KA_WD, KA_C, KA_WMOD, KA_OUT, KA_DBG, KA_WS = [8*i for i in range(12)]
WS_MOD  = 0x0000000
WS_UT   = 0x0004000
WS_STAT = 0x0010000
WS_H1F  = 0x0100000
WS_XF   = 0x0400000
WS_QKV  = 0x0800000
WS_OF   = 0x1000000
WS_A2F  = 0x1400000
WS_X1F  = 0x1800000
WS_HHF  = 0x1C00000
WS_WQKV = 0x2400000
WS_WO   = 0x2800000
WS_WGU  = 0x2C00000
WS_WD   = 0x3000000
WS_END  = 0x3400000
ACT_BYTES = 2048*640*2
SRD3 = 0x20000
import struct
def f2u(x): return struct.unpack('<I', struct.pack('<f', x))[0]

def srd(a, s, base_lo, base_hi, off, size):
    if off:
        a(f's_add_u32 s{s}, s{base_lo}, {off}\ns_addc_u32 s{s+1}, s{base_hi}, 0')
    else:
        a(f's_mov_b32 s{s}, s{base_lo}\ns_mov_b32 s{s+1}, s{base_hi}')
    a(f's_mov_b32 s{s+2}, {size}\ns_mov_b32 s{s+3}, {SRD3}')

def wave_id(a, sdst, vtmp):
    a(f'v_lshrrev_b32 v{vtmp}, 6, v0')
    a(f'v_readfirstlane_b32 s{sdst}, v{vtmp}')


class Vm:
    def __init__(self, a):
        self.a = a; self.ops = []
    def issue(self, text, tag=None):
        self.a(text); self.ops.append(tag)
    def count(self, tags):
        if not isinstance(tags, (list, set)): tags = [tags]
        last = max(i for i, t in enumerate(self.ops) if t in tags)
        n = len(self.ops) - 1 - last
        assert n <= 63, n
        return n
    def wait(self, tags, extra=''):
        self.a(f's_waitcnt vmcnt({self.count(tags)}) {extra}'.strip())

def gemm_loop(a, vm, nks, ck, nct, chunk_ops, read_frag, mfma, wbuf, pd=2, pre=2, nslot=None, pace=2, ahead=5, side=None):
    nchunk = (nks + ck - 1)//ck
    ring = nslot is not None and nslot < nchunk
    queue = []
    for c in range(nchunk):
        for t in chunk_ops(c): queue.append((t, c))
    st = dict(have=-1, gap=0)
    def allowed(c):
        if c > st['have'] + ahead: return False
        if ring and c >= nslot and (c - nslot) > st['have'] - 1: return False
        return True
    def emit(n, force_upto=-1):
        k = 0
        while queue:
            (t, isv), c = queue[0]
            if c <= force_upto: pass
            elif k >= n or not allowed(c): break
            queue.pop(0)
            if isv:
                vm.issue(t, ('c', c)); k += 1
            else:
                a(t)
    emit(0, force_upto=pre-1)
    def reg(ks, ct): return wbuf + ((ks % (pd+1))*nct + ct)*4
    def prefetch(ks):
        c = ks // ck
        if c > st['have']:
            assert not (ring and c >= nslot and (c - nslot) > st['have'] - 1 and any(cc <= c for _, cc in queue)), 'ring too small'
            emit(0, force_upto=c)
            vm.wait(('c', c), 'lgkmcnt(0)' if ring else '')
            a('s_barrier')
            st['have'] = c
    for k in range(min(pd, nks)):
        prefetch(k)
        if k == 0: a.raw('    ; MARK 1')
        for ct in range(nct): a(read_frag(k, ct, reg(k, ct)))
    side = list(side or [])
    for ks in range(nks):
        nxt = ks + pd
        if nxt < nks: prefetch(nxt)
        for ct in range(nct):
            later = (nct-1-ct) + nct*len(range(ks+1, min(ks+pd, nks))) + (ct if nxt < nks else 0)
            a(f's_waitcnt lgkmcnt({min(later, 15)})')
            a(mfma(ks, ct, reg(ks, ct), ks == 0))
            if nxt < nks: a(read_frag(nxt, ct, reg(nxt, ct)))
            st['gap'] += 1
            if st['gap'] >= pace:
                n0 = len(vm.ops); emit(1)
                if len(vm.ops) > n0: st['gap'] = 0
            if side: a(side.pop(0))
    assert not queue
    for t in side: a(t)

WS_DIAG = 0x3800000
def add_stamps(k, kidx):
    body = k['body']
    name = k['name']
    lines = body.split('\n')
    out = ['    s_memrealtime s[90:91]', '    s_memtime s[88:89]']
    for n in range(4): out.append(f'    s_mov_b32 s{80+2*n}, 0')
    for l in lines:
        if l.strip() == 's_endpgm': out.append(f'    s_branch {name}_STAMP')
        elif l.strip().startswith('; MARK'):
            n = int(l.strip().split()[2]); out.append(f'    s_memrealtime s[{80+2*n}:{81+2*n}]')
        else: out.append(l)
    out.append(f'{name}_STAMP:')
    t = f"""s_mov_b64 exec, -1
    s_waitcnt vmcnt(0) lgkmcnt(0)
    s_memrealtime s[92:93]
    s_memtime s[98:99]
    s_load_dwordx2 s[94:95], s[0:1], {KA_WS}
    s_cmp_ge_u32 s2, 256
    s_cbranch_scc1 {name}_STAMPX
    v_lshrrev_b32 v1, 6, v0
    s_lshl_b32 s96, s2, 4
    v_add_u32 v1, s96, v1
    v_lshlrev_b32 v1, 5, v1
    v_add_u32 v1, {WS_DIAG + kidx*131072}, v1
    s_waitcnt lgkmcnt(0)
    s_sub_u32 s98, s98, s88
    v_mov_b32 v2, s90
    v_mov_b32 v3, s92
    v_mov_b32 v4, s98
    v_mov_b32 v5, s80
    v_mov_b32 v6, s82
    v_mov_b32 v7, s84
    v_mov_b32 v8, s86
    v_mov_b32 v9, 0
    global_store_dwordx4 v1, v[2:5], s[94:95]
    global_store_dwordx4 v1, v[6:9], s[94:95] offset:16"""
    for l in t.split('\n'): out.append('    ' + l.strip())
    out.append(f'{name}_STAMPX:')
    out.append('    s_endpgm')
    k2 = dict(k); k2['body'] = '\n'.join(out); k2['sgpr'] = 102
    return k2
```

```python
from common import *

def k0_prep():
    a = Asm()
    S_W = 3
    a('s_cmp_ge_u32 s2, 256\ns_cbranch_scc1 K0_END')
    a(f's_load_dwordx4 s[4:7], s[0:1], {KA_WQKV}')
    a(f's_load_dwordx4 s[8:11], s[0:1], {KA_WG}')
    a(f's_load_dwordx4 s[12:15], s[0:1], {KA_WD}')
    a(f's_load_dwordx2 s[16:17], s[0:1], {KA_WMOD}')
    a(f's_load_dwordx2 s[18:19], s[0:1], {KA_WS}')
    wave_id(a, S_W, 1)
    a('v_and_b32 v2, 63, v0')
    a('s_waitcnt lgkmcnt(0)')
    a('''s_and_b32 s20, s2, 7
         s_lshr_b32 s21, s2, 3
         s_lshr_b32 s22, s21, 2
         s_lshl_b32 s22, s22, 5
         s_lshl_b32 s20, s20, 2
         s_add_u32 s22, s22, s20
         s_and_b32 s21, s21, 3
         s_add_u32 s22, s22, s21''')
    srd(a, 24, 16, 17, 0, 640*3840*2)
    srd(a, 28, 14, 15, 0, 1280)
    srd(a, 32, 18, 19, 0, WS_END)
    a('s_cmp_ge_u32 s22, 240\ns_cbranch_scc1 K0_NOGEMV1')
    a('v_lshrrev_b32 v3, 1, v0')
    a('v_and_b32 v4, 1, v0')
    a('v_mul_u32_u24 v5, 7680, v3')
    a('v_lshl_add_u32 v5, v4, 4, v5')
    a('v_lshlrev_b32 v6, 1, v3')
    a('s_lshl_b32 s23, s22, 5')
    for i in range(5):
        a(f'buffer_load_ushort v{10+i}, v6, s[28:31], 0 offen offset:{i*256}')
    for i in range(5):
        a(f's_add_u32 s36, s23, {i*128*7680}')
        a(f'buffer_load_dwordx4 v[{16+4*i}:{19+4*i}], v5, s[24:27], s36 offen')
    a.label('K0_NOGEMV1')
    a('v_lshrrev_b32 v40, 4, v2')
    a('v_and_b32 v41, 15, v2')
    a('s_lshl_b32 s37, s2, 2\ns_add_u32 s37, s37, s3')
    a(f's_mul_i32 s38, s3, {3*4096}')
    def unit_issue(r, name, src, ld, idx_s, nks, colbytes, nchunk, rowmode, out_fn):
        magic = (2**20 + nks - 1)//nks
        a(f's_mul_i32 s60, s{idx_s}, {magic}\ns_lshr_b32 s60, s60, 20')
        a(f's_mul_i32 s61, s60, {nks}\ns_sub_u32 s61, s{idx_s}, s61')
        rows, rowbytes = ld
        srd(a, 56, src, src+1, 0, rows*rowbytes)
        if rowmode == 'lin':
            a(f's_lshl_b32 s62, s61, 4')
            a(f'v_add_u32 v42, s62, v40')
            a(f'v_mul_u32_u24 v42, {rowbytes}, v42')
            step = 4*rowbytes
            a(f's_mul_i32 s63, s60, {colbytes}')
            a(f'v_lshl_add_u32 v42, v41, 4, v42')
            mask = (1 << nchunk) - 1
            m64 = mask | mask << 16 | mask << 32 | mask << 48
            a(f's_mov_b32 exec_lo, {m64 & 0xffffffff}\ns_mov_b32 exec_hi, {m64 >> 32}')
            a(f's_add_u32 m0, s38, {r*4096}')
            for q in range(4):
                a(f'buffer_load_dwordx4 v42, s[56:59], s63 offen lds')
                if q < 3:
                    a(f's_add_u32 s63, s63, {step}\ns_add_u32 m0, m0, 1024')
            a('s_mov_b64 exec, -1')
        else:
            L1 = a.newlabel('K0_WOL'); L2 = a.newlabel('K0_WOE')
            a(f's_mul_i32 s63, s60, {colbytes}')
            mask = (1 << nchunk) - 1
            m64 = mask | mask << 16 | mask << 32 | mask << 48
            a('s_cmp_ge_u32 s61, 32')
            a(f's_cbranch_scc1 {L1}')
            a('s_mul_i32 s62, s61, 20')
            a(f'v_add_u32 v42, s62, v40\nv_mul_u32_u24 v42, {rowbytes}, v42\nv_lshl_add_u32 v42, v41, 4, v42')
            a(f's_mov_b32 exec_lo, {m64 & 0xffffffff}\ns_mov_b32 exec_hi, {m64 >> 32}')
            a(f's_add_u32 m0, s38, {r*4096}')
            for q in range(4):
                a(f'buffer_load_dwordx4 v42, s[56:59], s63 offen lds')
                if q < 3: a(f's_add_u32 s63, s63, {4*rowbytes}\ns_add_u32 m0, m0, 1024')
            a(f's_branch {L2}')
            a.label(L1)
            a('s_sub_u32 s62, s61, 32\ns_mul_i32 s62, s62, 80\ns_add_u32 s62, s62, 16')
            a(f'v_add_u32 v42, s62, v40\nv_mul_u32_u24 v42, {rowbytes}, v42\nv_lshl_add_u32 v42, v41, 4, v42')
            a(f's_mov_b32 exec_lo, {m64 & 0xffffffff}\ns_mov_b32 exec_hi, {m64 >> 32}')
            for q in range(4):
                extra = (40*(q & 1) + 20*(q >> 1))*rowbytes
                a(f's_add_u32 s64, s63, {extra}')
                a(f's_add_u32 m0, s38, {r*4096 + q*1024}')
                a(f'buffer_load_dwordx4 v42, s[56:59], s64 offen lds')
            a.label(L2)
            a('s_mov_b64 exec, -1')
        out_fn()
    def out_full(r, base, nblk_per_ks, nks, first, ntile):
        def f():
            a(f's_mul_i32 s62, s60, {nks}\ns_add_u32 s62, s62, s61\ns_mul_i32 s62, s62, {nblk_per_ks*1024}')
            a(f's_add_u32 s{40+4*r}, s62, {base + first*1024}')
            a(f's_mov_b32 s{41+4*r}, {ntile}')
        return f
    def out_half(r, base, npair):
        def f():
            a(f's_lshr_b32 s62, s61, 1\ns_mul_i32 s63, s60, {npair}\ns_add_u32 s62, s62, s63\ns_mul_i32 s62, s62, 5120')
            a(f's_add_u32 s62, s62, {base}')
            a('s_and_b32 s63, s61, 1')
            a(f's_lshl_b32 s64, s63, 11\ns_add_u32 s{40+4*r}, s62, s64')
            a(f's_lshl_b32 s64, s63, 9\ns_add_u32 s64, s64, 4096\ns_add_u32 s{42+4*r}, s62, s64')
            a(f's_mov_b32 s{41+4*r}, 0')
        return f
    WQKV = dict(src=4, ld=(640, 3840), nks=40, colbytes=240, nchunk=15, rowmode='lin')
    WO   = dict(src=6, ld=(640, 1280), nks=40, colbytes=160, nchunk=10, rowmode='wo')
    WG   = dict(src=8, ld=(640, 3072), nks=40, colbytes=192, nchunk=12, rowmode='lin')
    WU   = dict(src=10, ld=(640, 3072), nks=40, colbytes=192, nchunk=12, rowmode='lin')
    WD   = dict(src=12, ld=(1536, 1280), nks=96, colbytes=160, nchunk=10, rowmode='lin')
    def issue(r, cases):
        Lend = a.newlabel('K0_IE')
        a(f's_mov_b32 s{41+4*r}, 99')
        for (hi, prm, off, ofn) in cases:
            Ln = a.newlabel('K0_IN')
            a(f's_cmp_ge_u32 s37, {hi}\ns_cbranch_scc1 {Ln}')
            if off >= 0: a(f's_add_u32 s65, s37, {off}')
            else: a(f's_sub_u32 s65, s37, {-off}')
            unit_issue(r, '', prm['src'], prm['ld'], 65, prm['nks'], prm['colbytes'], prm['nchunk'], prm['rowmode'], ofn)
            a(f's_branch {Lend}')
            a.label(Ln)
        a.label(Lend)
    issue(0, [(640, WQKV, 0, out_full(0, WS_WQKV, 4, 40, 0, 4)), (960, WO, -640, out_half(0, WS_WO, 20)), (1024, WD, -960, out_half(0, WS_WD, 48))])
    issue(1, [(640, WG, 0, out_full(1, WS_WGU, 6, 40, 0, 3)), (1024, WD, 64-640, out_half(1, WS_WD, 48))])
    issue(2, [(640, WU, 0, out_full(2, WS_WGU, 6, 40, 3, 3)), (960, WD, 448-640, out_half(2, WS_WD, 48))])
    a('s_cmp_ge_u32 s22, 240\ns_cbranch_scc1 K0_NOGEMV2')
    a('s_waitcnt vmcnt(12)')
    a('s_waitcnt vmcnt(0)')
    for i in range(5):
        a(f'v_lshlrev_b32 v{10+i}, 16, v{10+i}')
        a(f'v_mul_f32 v7, 0xbfb8aa3b, v{10+i}')
        a('v_exp_f32 v7, v7')
        a('v_add_f32 v7, 1.0, v7')
        a('v_rcp_f32 v7, v7')
        a(f'v_mul_f32 v7, v{10+i}, v7')
        a('v_cvt_pk_bf16_f32 v7, v7, v7')
        a(f'v_lshlrev_b32 v{10+i}, 16, v7')
    for i in range(5):
        for d in range(4):
            a(f'v_lshlrev_b32 v7, 16, v{16+4*i+d}')
            a(f'v_and_b32 v8, 0xffff0000, v{16+4*i+d}')
            if i == 0:
                a(f'v_mul_f32 v{44+2*d}, v10, v7\nv_mul_f32 v{45+2*d}, v10, v8')
            else:
                a(f'v_fmac_f32 v{44+2*d}, v{10+i}, v7\nv_fmac_f32 v{45+2*d}, v{10+i}, v8')
    for rot in (8, 4, 2):
        for d in range(8):
            a(f'v_add_f32_dpp v{44+d}, v{44+d}, v{44+d} row_ror:{rot} row_mask:0xf bank_mask:0xf')
    LDS_G = 3*4096*4
    a('v_lshrrev_b32 v7, 4, v0\nv_lshlrev_b32 v7, 1, v7\nv_and_b32 v8, 1, v0\nv_add_u32 v7, v7, v8\nv_lshlrev_b32 v7, 5, v7')
    a(f'v_add_u32 v7, {LDS_G}, v7')
    a('v_and_b32 v8, 15, v0\nv_cmp_gt_u32 vcc, 2, v8\ns_and_saveexec_b64 s[66:67], vcc')
    a('ds_write_b128 v7, v[44:47]\nds_write_b128 v7, v[48:51] offset:16')
    a('s_mov_b64 exec, s[66:67]')
    a('s_waitcnt lgkmcnt(0)\ns_barrier')
    a('v_cmp_gt_u32 vcc, 16, v0\ns_and_saveexec_b64 s[66:67], vcc\ns_cbranch_execz K0_GEMV_DONE')
    a(f'v_lshrrev_b32 v7, 3, v0\nv_lshlrev_b32 v7, 5, v7\nv_and_b32 v8, 7, v0\nv_lshl_add_u32 v7, v8, 2, v7\nv_add_u32 v7, {LDS_G}, v7')
    for r in range(16):
        a(f'ds_read_b32 v{16+r}, v7 offset:{r*64}')
    a('s_waitcnt lgkmcnt(0)')
    for st in (8, 4, 2, 1):
        for r in range(st):
            a(f'v_add_f32 v{16+r}, v{16+r}, v{16+r+st}')
    a('v_cvt_pk_bf16_f32 v16, v16, v16')
    a('s_mul_i32 s68, s22, 1639\ns_lshr_b32 s68, s68, 16')
    La = a.newlabel('K0_NOADD'); Lb = a.newlabel('K0_ADD')
    a(f's_cmp_eq_u32 s68, 1\ns_cbranch_scc1 {Lb}\ns_cmp_eq_u32 s68, 4\ns_cbranch_scc0 {La}')
    a.label(Lb)
    a('v_lshlrev_b32 v16, 16, v16\nv_add_f32 v16, 1.0, v16\nv_cvt_pk_bf16_f32 v16, v16, v16')
    a.label(La)
    a('v_bfe_u32 v7, v0, 2, 1\nv_lshlrev_b32 v7, 3, v7\nv_lshrrev_b32 v8, 3, v0\nv_lshl_add_u32 v7, v8, 2, v7\nv_and_b32 v8, 3, v0\nv_add_u32 v7, v7, v8')
    a('v_lshlrev_b32 v7, 1, v7')
    a(f's_add_u32 s68, s23, {WS_MOD}')
    a('buffer_store_short v16, v7, s[32:35], s68 offen')
    a.label('K0_GEMV_DONE')
    a('s_mov_b64 exec, -1')
    a.label('K0_NOGEMV2')
    a('s_waitcnt vmcnt(0)')
    a('''v_lshrrev_b32 v7, 5, v2
         v_lshlrev_b32 v7, 2, v7
         v_bfe_u32 v8, v2, 2, 2
         v_add_u32 v7, v7, v8
         v_lshlrev_b32 v7, 8, v7
         v_bfe_u32 v8, v2, 4, 1
         v_lshl_add_u32 v7, v8, 5, v7
         v_and_b32 v8, 3, v2
         v_lshl_add_u32 v7, v8, 3, v7''')
    a('v_add_u32 v7, s38, v7')
    a('v_lshlrev_b32 v9, 4, v2')
    a('v_lshrrev_b32 v43, 5, v2\nv_lshlrev_b32 v43, 8, v43\nv_and_b32 v8, 15, v2\nv_lshl_add_u32 v43, v8, 4, v43')
    for r in range(3):
        Lskip = a.newlabel('K0_P2S'); Lhalf = a.newlabel('K0_P2H')
        a(f's_cmp_eq_u32 s{41+4*r}, 99\ns_cbranch_scc1 {Lskip}')
        for ct in range(4):
            a(f'ds_read_b64_tr_b16 v[{16+4*ct}:{17+4*ct}], v7 offset:{r*4096 + ct*64}')
            a(f'ds_read_b64_tr_b16 v[{18+4*ct}:{19+4*ct}], v7 offset:{r*4096 + ct*64 + 2048}')
        a('s_waitcnt lgkmcnt(0)')
        a(f'buffer_store_dwordx4 v[16:19], v9, s[32:35], s{40+4*r} offen')
        a(f'buffer_store_dwordx4 v[20:23], v9, s[32:35], s{40+4*r} offen offset:1024')
        a(f's_cmp_eq_u32 s{41+4*r}, 0\ns_cbranch_scc1 {Lhalf}')
        a(f'buffer_store_dwordx4 v[24:27], v9, s[32:35], s{40+4*r} offen offset:2048')
        a(f's_cmp_eq_u32 s{41+4*r}, 3\ns_cbranch_scc1 {Lskip}')
        a(f'buffer_store_dwordx4 v[28:31], v9, s[32:35], s{40+4*r} offen offset:3072')
        a(f's_branch {Lskip}')
        a.label(Lhalf)
        a('s_mov_b32 exec_lo, 0xffff\ns_mov_b32 exec_hi, 0xffff')
        a(f'buffer_store_dwordx4 v[24:27], v43, s[32:35], s{42+4*r} offen')
        a('s_mov_b64 exec, -1')
        a.label(Lskip)
        a('s_nop 1')
    a.label('K0_END')
    a('s_endpgm')
    return dict(name='k0_kernel', body=a.text(), grid=256, block=256, lds=3*4096*4 + 1024, vgpr=64, sgpr=80)
```

```python
from common import *

def k1_ln():
    a = Asm()
    a('s_cmp_ge_u32 s2, 224\ns_cbranch_scc1 K1_END')
    a(f's_load_dwordx2 s[4:5], s[0:1], {KA_X}')
    a(f's_load_dwordx2 s[6:7], s[0:1], {KA_WS}')
    wave_id(a, 3, 1)
    a('v_and_b32 v2, 63, v0')
    a('s_waitcnt lgkmcnt(0)')
    srd(a, 8, 6, 7, 0, WS_END)
    a('s_cmp_ge_u32 s2, 128\ns_cbranch_scc1 K1_UT')
    srd(a, 12, 4, 5, 0, ACT_BYTES)
    a('v_lshrrev_b32 v3, 4, v2')
    a('v_and_b32 v4, 15, v2')
    a('s_lshl_b32 s16, s2, 4\ns_lshl_b32 s17, s3, 2\ns_add_u32 s16, s16, s17')
    a('v_add_u32 v5, s16, v3')
    a('v_mul_u32_u24 v6, 1280, v5')
    a('v_lshrrev_b32 v7, 1, v4\nv_and_b32 v8, 1, v4')
    a('v_lshl_add_u32 v6, v7, 5, v6\nv_lshl_add_u32 v6, v8, 3, v6')
    for i in range(5):
        a(f'buffer_load_dwordx2 v[{16+4*i}:{17+4*i}], v6, s[12:15], 0 offen offset:{i*256}')
        a(f'buffer_load_dwordx2 v[{18+4*i}:{19+4*i}], v6, s[12:15], 0 offen offset:{i*256+16}')
    a('v_lshlrev_b32 v9, 4, v4')
    for i in range(5):
        a(f'buffer_load_dwordx4 v[{40+4*i}:{43+4*i}], v9, s[8:11], 0 offen offset:{WS_MOD + 1280 + i*256}')
        a(f'buffer_load_dwordx4 v[{60+4*i}:{63+4*i}], v9, s[8:11], 0 offen offset:{WS_MOD + i*256}')
    a('v_and_b32 v10, 31, v5\nv_lshlrev_b32 v10, 4, v10\nv_lshl_add_u32 v10, v7, 10, v10\nv_lshl_add_u32 v10, v8, 9, v10')
    a('s_lshr_b32 s18, s2, 1\ns_mul_i32 s18, s18, 40960')
    a('s_waitcnt vmcnt(10)')
    for i in range(5):
        a(f's_add_u32 s19, s18, {WS_XF + i*8192}')
        a(f'buffer_store_dwordx4 v[{16+4*i}:{19+4*i}], v10, s[8:11], s19 offen')
    for i in range(20):
        a(f'v_lshlrev_b32 v{80+2*i}, 16, v{16+i}\nv_and_b32 v{81+2*i}, 0xffff0000, v{16+i}')
    a('v_add_f32 v11, v80, v81')
    for i in range(2, 40): a(f'v_add_f32 v11, v11, v{80+i}')
    for rot in (8, 4, 2, 1):
        a(f'v_add_f32_dpp v11, v11, v11 row_ror:{rot} row_mask:0xf bank_mask:0xf')
    a(f'v_mul_f32 v11, {hex(f2u(1.0/640))}, v11')
    for i in range(40): a(f'v_sub_f32 v{80+i}, v{80+i}, v11')
    a('v_mul_f32 v12, v80, v80')
    for i in range(1, 40): a(f'v_fmac_f32 v12, v{80+i}, v{80+i}')
    for rot in (8, 4, 2, 1):
        a(f'v_add_f32_dpp v12, v12, v12 row_ror:{rot} row_mask:0xf bank_mask:0xf')
    a(f'v_mov_b32 v13, {hex(f2u(1e-5))}')
    a(f'v_fmac_f32 v13, {hex(f2u(1.0/640))}, v12')
    a('v_rsq_f32 v13, v13')
    a('s_waitcnt vmcnt(5)')
    for i in range(20):
        a(f'v_mul_f32 v{80+2*i}, v{80+2*i}, v13\nv_mul_f32 v{81+2*i}, v{81+2*i}, v13')
        a(f'v_lshlrev_b32 v14, 16, v{40+i}\nv_lshlrev_b32 v15, 16, v{60+i}')
        a(f'v_fma_f32 v{80+2*i}, v{80+2*i}, v14, v15')
        a(f'v_and_b32 v14, 0xffff0000, v{40+i}\nv_and_b32 v15, 0xffff0000, v{60+i}')
        a(f'v_fma_f32 v{81+2*i}, v{81+2*i}, v14, v15')
        a(f'v_cvt_pk_bf16_f32 v{120+i}, v{80+2*i}, v{81+2*i}')
    for i in range(5):
        a(f's_add_u32 s19, s18, {WS_H1F + i*8192}')
        a(f'buffer_store_dwordx4 v[{120+4*i}:{123+4*i}], v10, s[8:11], s19 offen')
    a('s_endpgm')
    a.label('K1_UT')
    a('s_sub_u32 s16, s2, 128')
    a('s_mul_i32 s17, s16, 10923\ns_lshr_b32 s17, s17, 16')
    a('s_mul_i32 s18, s17, 6\ns_sub_u32 s18, s16, s18')
    a('s_mul_i32 s19, s17, 40\ns_mul_i32 s20, s3, 10\ns_add_u32 s19, s19, s20\ns_mul_i32 s19, s19, 6\ns_add_u32 s19, s19, s18\ns_lshl_b32 s19, s19, 10')
    a(f's_add_u32 s19, s19, {WS_WGU}')
    a('v_lshlrev_b32 v3, 4, v2')
    for i in range(10):
        a(f'buffer_load_dwordx4 v[{16+4*i}:{19+4*i}], v3, s[8:11], s19 offen')
        if i < 9: a('s_add_u32 s19, s19, 6144')
    a('v_and_b32 v4, 31, v2\nv_lshrrev_b32 v5, 5, v2')
    a('v_lshlrev_b32 v6, 4, v5')
    a(f'v_mov_b32 v7, {4*1280}\nv_mov_b32 v8, {3*1280}')
    a('v_cmp_eq_u32 vcc, 1, v4\nv_cndmask_b32 v7, v7, v8, vcc')
    a(f'v_mov_b32 v8, 0x7ff00000')
    a('v_cmp_lt_u32 vcc, 1, v4\nv_cndmask_b32 v7, v7, v8, vcc')
    a('v_add_u32 v6, v6, v7')
    a(f's_mul_i32 s20, s3, 320\ns_add_u32 s20, s20, {WS_MOD}')
    for i in range(10):
        a(f'buffer_load_dwordx4 v[{56+4*i}:{59+4*i}], v6, s[8:11], s20 offen offset:{i*32}')
    for i in range(10):
        a(f's_waitcnt vmcnt({9-i})' if i else 's_waitcnt vmcnt(9)')
        a(f'v_mfma_f32_32x32x16_bf16 v[96:111], v[{16+4*i}:{19+4*i}], v[{56+4*i}:{59+4*i}], ' + ('0' if i == 0 else 'v[96:111]'))
    a('v_lshlrev_b32 v7, 1, v4\nv_add_u32 v7, v7, v5\nv_lshlrev_b32 v7, 6, v7')
    a('s_lshl_b32 s21, s3, 8\nv_add_u32 v7, s21, v7')
    a('v_cmp_gt_u32 vcc, 2, v4\ns_and_saveexec_b64 s[22:23], vcc')
    for q in range(4): a(f'ds_write_b128 v7, v[{96+4*q}:{99+4*q}] offset:{16*q}')
    a('s_mov_b64 exec, s[22:23]')
    a('s_waitcnt lgkmcnt(0)\ns_barrier')
    a('v_cmp_gt_u32 vcc, 64, v0\ns_and_saveexec_b64 s[22:23], vcc\ns_cbranch_execz K1_END')
    a('v_lshrrev_b32 v4, 5, v0\nv_and_b32 v5, 31, v0')
    a('v_bfe_u32 v6, v5, 2, 1\nv_lshl_add_u32 v6, v4, 1, v6\nv_lshlrev_b32 v6, 6, v6')
    a('v_lshrrev_b32 v7, 3, v5\nv_lshlrev_b32 v7, 2, v7\nv_and_b32 v8, 3, v5\nv_add_u32 v7, v7, v8\nv_lshl_add_u32 v6, v7, 2, v6')
    for w in range(4): a(f'ds_read_b32 v{16+w}, v6 offset:{w*256}')
    a('s_waitcnt lgkmcnt(0)')
    a('v_add_f32 v16, v16, v17\nv_add_f32 v18, v18, v19\nv_add_f32 v16, v16, v18')
    a('s_cmp_ge_u32 s18, 3\ns_cselect_b32 s20, 2, 0\ns_cselect_b32 s21, 3, 0\ns_sub_u32 s21, s18, s21')
    a(f's_mul_i32 s20, s20, 384\ns_lshl_b32 s21, s21, 7\ns_add_u32 s20, s20, s21\ns_mul_i32 s21, s17, 1536\ns_add_u32 s20, s20, s21\ns_add_u32 s20, s20, {WS_UT}')
    a('v_mul_u32_u24 v4, 384, v4\nv_lshl_add_u32 v4, v5, 2, v4')
    a('buffer_store_dword v16, v4, s[8:11], s20 offen')
    a.label('K1_END')
    a('s_endpgm')
    return dict(name='k1_kernel', body=a.text(), grid=224, block=256, lds=1024, vgpr=144, sgpr=40)
```

```python
from common import *

def k2_qkv():
    a = Asm(); vm = Vm(a)
    a('s_cmp_ge_u32 s2, 256\ns_cbranch_scc1 K2_END')
    a(f's_load_dwordx2 s[6:7], s[0:1], {KA_WS}')
    wave_id(a, 3, 1)
    a('v_and_b32 v2, 63, v0\nv_lshlrev_b32 v3, 4, v2')
    a("""s_and_b32 s12, s2, 7
         s_lshr_b32 s13, s2, 3
         s_and_b32 s14, s12, 3
         s_lshl_b32 s14, s14, 2
         s_and_b32 s15, s13, 3
         s_add_u32 s14, s14, s15
         s_lshr_b32 s15, s12, 2
         s_lshl_b32 s15, s15, 3
         s_lshr_b32 s13, s13, 2
         s_add_u32 s15, s15, s13""")
    a('s_lshl_b32 s16, s14, 2\ns_add_u32 s16, s16, s3')
    a(f's_mul_i32 s17, s16, 40960\ns_add_u32 s17, s17, {WS_H1F}')
    a(f's_mul_i32 s18, s15, 163840\ns_lshl_b32 s19, s3, 12\ns_add_u32 s18, s18, s19\ns_add_u32 s18, s18, {WS_WQKV}')
    a('s_mov_b32 s20, s19')
    a('s_waitcnt lgkmcnt(0)')
    srd(a, 8, 6, 7, 0, WS_END)
    CK = 4
    def chunk_ops(c):
        ops = []
        ops.append((f's_add_u32 m0, s20, {c*16384}', False))
        ops.append((f's_add_u32 s21, s18, {c*16384}', False))
        for q in range(4):
            ops.append((f'buffer_load_dwordx4 v3, s[8:11], s21 offen offset:{q*1024} lds', True))
        ops.append((f's_add_u32 s22, s17, {c*4096}', False))
        for q in range(4):
            ks = 4*c + q
            ops.append((f'buffer_load_dwordx4 a[{4*ks}:{4*ks+3}], v3, s[8:11], s22 offen offset:{q*1024}', True))
        return ops
    ACC = 64
    def read_frag(ks, ct, r):
        off = (ks*4 + ct)*1024
        vb = 4 + off//65536
        return f'ds_read_b128 v[{r}:{r+3}], v{vb} offset:{off % 65536}'
    a('v_mov_b32 v4, v3\nv_add_u32 v5, 0x10000, v3\nv_add_u32 v6, 0x20000, v3')
    def mfma(ks, ct, r, first):
        d = ACC + 16*ct
        return f'v_mfma_f32_32x32x16_bf16 v[{d}:{d+15}], v[{r}:{r+3}], a[{4*ks}:{4*ks+3}], ' + ('0' if first else f'v[{d}:{d+15}]')
    a.raw('    ; MARK 0')
    gemm_loop(a, vm, 40, CK, 4, chunk_ops, read_frag, mfma, 16, pd=2, pre=2, pace=2, ahead=5)
    a.raw('    ; MARK 2')
    a('v_and_b32 v7, 31, v2\nv_lshrrev_b32 v8, 5, v2')
    a('s_lshl_b32 s23, s16, 5\nv_add_u32 v7, s23, v7\nv_lshlrev_b32 v7, 3, v7\nv_lshl_add_u32 v7, v8, 14, v7')
    a(f's_mul_i32 s24, s15, {30*16384}\ns_add_u32 s24, s24, {WS_QKV}')
    n = 0
    for ct in range(4):
        for q in range(4):
            if ct == 3 and q == 3: continue
            d = ACC + 16*ct + 4*q
            t = 16 + 2*(n % 8); n += 1
            a(f'v_cvt_pk_bf16_f32 v{t}, v{d}, v{d+1}\nv_cvt_pk_bf16_f32 v{t+1}, v{d+2}, v{d+3}')
            a(f's_add_u32 s25, s24, {(8*ct + 2*q)*16384}')
            a(f'buffer_store_dwordx2 v[{t}:{t+1}], v7, s[8:11], s25 offen')
    a.label('K2_END')
    a('s_endpgm')
    return dict(name='k2_kernel', body=a.text(), grid=256, block=256, lds=163840, vgpr=128, agpr=160, sgpr=40)
```

```python
import sys
sys.path.insert(0, 'work')
from common import *
from k0 import k0_prep
from k1 import k1_ln
from k2 import k2_qkv
import importlib
def all_kernels():
    ks = [k0_prep(), k1_ln(), k2_qkv()]
    for n, f in (('k3', 'k3_attn'), ('k4', 'k4_wo'), ('k5', 'k5_gu'), ('k6', 'k6_down')):
        try:
            m = importlib.import_module(n); ks.append(getattr(m, f)())
        except ImportError:
            break
    return ks
if __name__ == '__main__':
    out = sys.argv[1] if len(sys.argv) > 1 else 'out.s'
    ks = all_kernels()
    hdr = open('header_keep.txt').read()
    open(out, 'w').write(module(ks, header_comments=hdr))
    open(out.replace('.s', '_diag.s'), 'w').write(module([add_stamps(k, i) for i, k in enumerate(ks)]))
```

```python
import sys
sys.path.insert(0,'work')
from gen import *
ks = all_kernels()
hdr = open('header_keep.txt').read()
dummy = dict(name='kd_kernel', body='    s_endpgm\n', grid=256, block=256, lds=0, vgpr=8, sgpr=16)
for n in (4, 8):
    launches = ks + [dummy]*n
    open(f'var_d{n}.s','w').write(module(ks+[dummy], header_comments=hdr, launches=launches))
launches = [dummy]*4 + ks
open(f'var_p4.s','w').write(module(ks+[dummy], header_comments=hdr, launches=launches))
```

```python
import sys
sys.path.insert(0, 'work')
from asmlib import *

KA_X, KA_WQKV, KA_WO, KA_BX, KA_WG, KA_WU, KA_WD, KA_C, KA_WMOD, KA_OUT, KA_DBG, KA_WS = [8*i for i in range(12)]
WS_MOD  = 0x0000000
WS_UT   = 0x0004000
WS_STAT = 0x0010000
WS_H1F  = 0x0100000
WS_XF   = 0x0400000
WS_QKV  = 0x0800000
WS_OF   = 0x1000000
WS_A2F  = 0x1400000
WS_X1F  = 0x1800000
WS_HHF  = 0x1C00000
WS_WQKV = 0x2400000
WS_WO   = 0x2800000
WS_WGU  = 0x2C00000
WS_WD   = 0x3000000
WS_MODP = 0x0060000
WS_MODF = 0x0070000
WS_FLAG = 0x0080000
FL_XT, FL_H, FL_KV, FL_O, FL_C, FL_D, FL_UT = [WS_FLAG + 1024*i for i in range(7)]
WS_END  = 0x3400000
ACT_BYTES = 2048*640*2
SRD3 = 0x20000
import struct
def f2u(x): return struct.unpack('<I', struct.pack('<f', x))[0]

def srd(a, s, base_lo, base_hi, off, size):
    if off:
        a(f's_add_u32 s{s}, s{base_lo}, {off}\ns_addc_u32 s{s+1}, s{base_hi}, 0')
    else:
        a(f's_mov_b32 s{s}, s{base_lo}\ns_mov_b32 s{s+1}, s{base_hi}')
    a(f's_mov_b32 s{s+2}, {size}\ns_mov_b32 s{s+3}, {SRD3}')

def wave_id(a, sdst, vtmp):
    a(f'v_lshrrev_b32 v{vtmp}, 6, v0')
    a(f'v_readfirstlane_b32 s{sdst}, v{vtmp}')


class Vm:
    def __init__(self, a):
        self.a = a; self.ops = []
    def issue(self, text, tag=None):
        self.a(text); self.ops.append(tag)
    def count(self, tags):
        if not isinstance(tags, (list, set)): tags = [tags]
        last = max(i for i, t in enumerate(self.ops) if t in tags)
        n = len(self.ops) - 1 - last
        assert n <= 63, n
        return n
    def wait(self, tags, extra=''):
        self.a(f's_waitcnt vmcnt({self.count(tags)}) {extra}'.strip())

def gemm_loop(a, vm, nks, ck, nct, chunk_ops, read_frag, mfma, wbuf, pd=2, pre=2, nslot=None, pace=2, ahead=5, side=None, nobar=False, nowait=False, noread=False):
    nchunk = (nks + ck - 1)//ck
    ring = nslot is not None and nslot < nchunk
    queue = []
    for c in range(nchunk):
        for t in chunk_ops(c): queue.append((t, c))
    st = dict(have=-1, gap=0)
    def allowed(c):
        if c > st['have'] + ahead: return False
        if ring and c >= nslot and (c - nslot) > st['have'] - 1: return False
        return True
    def emit(n, force_upto=-1):
        k = 0
        while queue:
            (t, isv), c = queue[0]
            if c <= force_upto: pass
            elif k >= n or not allowed(c): break
            queue.pop(0)
            if isv:
                vm.issue(t, ('c', c)); k += 1
            else:
                a(t)
    emit(0, force_upto=pre-1)
    def reg(ks, ct): return wbuf + ((ks % (pd+1))*nct + ct)*4
    def prefetch(ks):
        c = ks // ck
        if c > st['have']:
            assert not (ring and c >= nslot and (c - nslot) > st['have'] - 1 and any(cc <= c for _, cc in queue)), 'ring too small'
            emit(0, force_upto=c)
            vm.wait(('c', c), 'lgkmcnt(0)' if ring else '')
            if not nobar: a('s_barrier')
            st['have'] = c
    for k in range(min(pd, nks)):
        prefetch(k)
        if k == 0: a.raw('    ; MARK 1')
        for ct in range(nct): a(read_frag(k, ct, reg(k, ct)))
    side = list(side or [])
    for ks in range(nks):
        nxt = ks + pd
        if nxt < nks: prefetch(nxt)
        for ct in range(nct):
            later = (nct-1-ct) + nct*len(range(ks+1, min(ks+pd, nks))) + (ct if nxt < nks else 0)
            if not nowait: a(f's_waitcnt lgkmcnt({min(later, 15)})')
            a(mfma(ks, ct, reg(ks, ct), ks == 0))
            if nxt < nks and not noread: a(read_frag(nxt, ct, reg(nxt, ct)))
            st['gap'] += 1
            if st['gap'] >= pace:
                n0 = len(vm.ops); emit(1)
                if len(vm.ops) > n0: st['gap'] = 0
            if side: a(side.pop(0))
    assert not queue
    for t in side: a(t)


def gemm2(a, vm, nks, ck, nct, opsA, opsB, preB, read_frag, mfmas, wbuf, pd=2, pre=2, nslot=None, pace=2, ahead=5,
          barriers=True, side=None, tagp='c'):
    nchunk = (nks + ck - 1)//ck
    ring = nslot is not None and nslot < nchunk
    queue = []
    for c in range(nchunk):
        if c >= preB:
            for t in opsB(c): queue.append((t, c, 'B'))
        for t in opsA(c): queue.append((t, c, 'A'))
    st = dict(have=-1, gap=0)
    def allowed(c, kind):
        if c > st['have'] + ahead: return False
        if kind == 'B' and ring and c >= nslot and (c - nslot) > st['have'] - 1: return False
        return True
    def emit(n, force_upto=-1):
        k = 0
        while queue:
            (t, isv), c, kind = queue[0]
            if c <= force_upto: pass
            elif k >= n or not allowed(c, kind): break
            queue.pop(0)
            if isv:
                vm.issue(t, (tagp, c)); k += 1
            else:
                a(t)
    emit(0, force_upto=pre-1)
    def reg(ks, ct): return wbuf + ((ks % (pd+1))*nct + ct)*4
    def need_chunk(c):
        if c > st['have']:
            emit(0, force_upto=c)
            if barriers:
                vm.wait((tagp, c), 'lgkmcnt(0)' if ring else '')
                a('s_barrier')
            st['have'] = c
    waitedA = [-1]
    def need_act(c):
        if not barriers and c > waitedA[0]:
            vm.wait((tagp, c)); waitedA[0] = c
    for k in range(min(pd, nks)):
        need_chunk(k // ck)
        if k == 0: a.raw('    ; MARK 9')
        for ct in range(nct): a(read_frag(k, ct, reg(k, ct)))
    side = list(side or [])
    for ks in range(nks):
        nxt = ks + pd
        if nxt < nks: need_chunk(nxt // ck)
        need_act(ks // ck)
        for ct in range(nct):
            later = (nct-1-ct) + nct*len(range(ks+1, min(ks+pd, nks))) + (ct if nxt < nks else 0)
            a(f's_waitcnt lgkmcnt({min(later, 15)})')
            ms = mfmas(ks, ct, reg(ks, ct), ks == 0)
            for i, m in enumerate(ms):
                a(m)
                if i == 0 and nxt < nks: a(read_frag(nxt, ct, reg(nxt, ct)))
                st['gap'] += 1
                if st['gap'] >= pace:
                    n0 = len(vm.ops); emit(1)
                    if len(vm.ops) > n0: st['gap'] = 0
                if side: a(side.pop(0))
    assert not queue
    for t in side: a(t)

WS_DIAG = 0x3800000
NMARK = 20
def add_stamps(k, kidx, cyc=False):
    body = k['body']
    name = k['name']
    big = k.get('sgpr', 96) <= 44
    mb = 44 if big else 72
    nm = NMARK if big else 8
    lines = body.split('\n')
    tm = 's_memtime' if cyc else 's_memrealtime'
    out = [f'    {tm} s[94:95]', '    s_memtime s[92:93]']
    for n in range(nm): out.append(f'    s_mov_b32 s{mb+2*n}, 0')
    for l in lines:
        if l.strip() == 's_endpgm': out.append(f'    s_branch {name}_STAMP')
        elif l.strip().startswith('; MARK'):
            n = int(l.strip().split()[2])
            if n < nm: out.append(f'    {tm} s[{mb+2*n}:{mb+2*n+1}]')
        else: out.append(l)
    out.append(f'{name}_STAMP:')
    t = f"""s_mov_b64 exec, -1
    s_waitcnt vmcnt(0) lgkmcnt(0)
    {tm} s[96:97]
    s_memtime s[98:99]
    s_load_dwordx2 s[100:101], s[0:1], {KA_WS}
    s_cmp_ge_u32 s2, {k['grid']}
    s_cbranch_scc1 {name}_STAMPX
    v_lshrrev_b32 v1, 6, v0
    s_lshl_b32 s90, s2, 3
    v_add_u32 v1, s90, v1
    v_lshlrev_b32 v1, 7, v1
    v_add_u32 v1, {WS_DIAG + kidx*1048576}, v1
    s_waitcnt lgkmcnt(0)
    s_sub_u32 s98, s98, s92"""
    vals = ['s94', 's96', 's98'] + [f's{mb+2*n}' for n in range(nm)]
    vals += ['0']*((-len(vals)) % 4)
    for q in range(len(vals)//4):
        t += '\n' + '\n'.join(f'v_mov_b32 v{2+e}, {vals[4*q+e]}' for e in range(4))
        t += f'\nglobal_store_dwordx4 v1, v[2:5], s[100:101] offset:{16*q}'
    for l in t.split('\n'): out.append('    ' + l.strip())
    out.append(f'{name}_STAMPX:')
    out.append('    s_endpgm')
    k2 = dict(k); k2['body'] = '\n'.join(out); k2['sgpr'] = 102
    return k2
```

```python
from common import *

N_GEMV, N_QKV, N_GU, N_WD, N_WO = 240, 160, 320, 192, 80
def k0_prep(code_label=None, code_bytes=0, parts=('gemv', 'qkv', 'gu', 'wd', 'wo'), ngemv=240):
    a = Asm()
    b0 = N_GEMV; b1 = b0 + N_QKV; b2 = b1 + N_GU; b3 = b2 + N_WD; b4 = b3 + N_WO
    a(f's_cmp_ge_u32 s2, {b4}\ns_cbranch_scc1 K0_END')
    a(f's_load_dwordx4 s[4:7], s[0:1], {KA_WQKV}')
    a(f's_load_dwordx4 s[8:11], s[0:1], {KA_WG}')
    a(f's_load_dwordx4 s[12:15], s[0:1], {KA_WD}')
    a(f's_load_dwordx2 s[16:17], s[0:1], {KA_WMOD}')
    a(f's_load_dwordx2 s[18:19], s[0:1], {KA_WS}')
    a(f's_load_dwordx2 s[20:21], s[0:1], {KA_X}')
    wave_id(a, 3, 1)
    a('v_and_b32 v2, 63, v0')
    a('s_waitcnt lgkmcnt(0)')
    a.raw('    ; MARK 0')
    ws_rebase(a, 18)
    srd(a, 32, 18, 19, 0, WS_END)
    Lw = a.newlabel('K0_NW')
    a(f's_cmp_ge_u32 s2, 256\ns_cbranch_scc1 {Lw}')
    srd(a, 56, 20, 21, 0, ACT_BYTES)
    a('s_and_b32 s60, s2, 7\ns_lshl_b32 s60, s60, 8\ns_lshr_b32 s61, s2, 3\ns_lshl_b32 s61, s61, 3\ns_add_u32 s60, s60, s61\ns_lshl_b32 s61, s3, 1\ns_add_u32 s60, s60, s61\ns_mul_i32 s60, s60, 1280')
    a('v_lshlrev_b32 v7, 6, v2')
    a('s_mov_b32 exec_lo, -1\ns_mov_b32 exec_hi, 0xff')
    a('buffer_load_dword v64, v7, s[56:59], s60 offen')
    a('s_mov_b64 exec, -1')
    if code_label:
        per = ((code_bytes + 127)//128 + 63)//64*64
        a('s_getpc_b64 s[60:61]')
        Lpc = a.newlabel('K0_PC'); a.label(Lpc)
        a(f's_add_u32 s60, s60, {code_label}-{Lpc}\ns_addc_u32 s61, s61, 0')
        a('s_lshr_b32 s62, s2, 3\ns_lshl_b32 s62, s62, 2\ns_add_u32 s62, s62, s3')
        a(f's_mul_i32 s62, s62, {per}')
        a(f'v_lshlrev_b32 v7, 6, v2\nv_add_u32 v7, s62, v7')
        a(f'v_cmp_gt_u32 vcc, {code_bytes}, v7\ns_and_saveexec_b64 s[66:67], vcc')
        a(f'v_cmp_gt_u32 vcc, {per//64}, v2\ns_and_b64 exec, exec, vcc')
        Lc = a.newlabel('K0_NC')
        a(f's_cbranch_execz {Lc}')
        a('global_load_dword v65, v7, s[60:61]')
        a.label(Lc)
        a('s_mov_b64 exec, s[66:67]')
    a.label(Lw)
    a(f's_cmp_ge_u32 s2, {b0}\ns_cbranch_scc1 K0_RELAY')
    if 'gemv' not in parts: a('s_endpgm')
    a(f's_cmp_ge_u32 s2, {ngemv}\ns_cbranch_scc1 K0_END')
    srd(a, 24, 16, 17, 0, 640*3840*2)
    srd(a, 28, 14, 15, 0, 1280)
    a('s_lshr_b32 s22, s2, 2\ns_and_b32 s23, s2, 3')
    a('v_lshrrev_b32 v3, 3, v0\nv_and_b32 v4, 7, v0')
    a('v_mul_u32_u24 v5, 7680, v3\nv_lshl_add_u32 v5, v4, 4, v5')
    a('v_lshlrev_b32 v6, 1, v3')
    a(f's_mul_i32 s36, s23, 320')
    for i in range(5):
        a(f'buffer_load_ushort v{10+i}, v6, s[28:31], s36 offen offset:{i*64}')
    a(f's_lshl_b32 s37, s22, 7\ns_mul_i32 s38, s23, {160*7680}\ns_add_u32 s37, s37, s38')
    for i in range(5):
        a(f'buffer_load_dwordx4 v[{16+4*i}:{19+4*i}], v5, s[24:27], s37 offen')
        if i < 4: a(f's_add_u32 s37, s37, {32*7680}')
    a('s_waitcnt vmcnt(5)')
    for i in range(5):
        a(f'v_lshlrev_b32 v{10+i}, 16, v{10+i}')
        a(f'v_mul_f32 v7, 0xbfb8aa3b, v{10+i}')
        a('v_exp_f32 v7, v7')
        a('v_add_f32 v7, 1.0, v7')
        a('v_rcp_f32 v7, v7')
        a(f'v_mul_f32 v7, v{10+i}, v7')
        a('v_cvt_pk_bf16_f32 v7, v7, v7')
        a(f'v_lshlrev_b32 v{10+i}, 16, v7')
    for i in range(5):
        a(f's_waitcnt vmcnt({4-i})')
        if i == 4: a.raw('    ; MARK 1')
        for d in range(4):
            a(f'v_lshlrev_b32 v7, 16, v{16+4*i+d}')
            a(f'v_and_b32 v8, 0xffff0000, v{16+4*i+d}')
            if i == 0:
                a(f'v_mul_f32 v{44+2*d}, v10, v7\nv_mul_f32 v{45+2*d}, v10, v8')
            else:
                a(f'v_fmac_f32 v{44+2*d}, v{10+i}, v7\nv_fmac_f32 v{45+2*d}, v{10+i}, v8')
    for d in range(8):
        a(f'v_add_f32_dpp v{44+d}, v{44+d}, v{44+d} row_ror:8 row_mask:0xf bank_mask:0xf')
    a(f'v_lshrrev_b32 v7, 4, v0\nv_lshlrev_b32 v7, 3, v7\nv_and_b32 v8, 7, v0\nv_add_u32 v7, v7, v8\nv_lshlrev_b32 v7, 5, v7')
    a('s_mov_b32 exec_lo, 0x00ff00ff\ns_mov_b32 exec_hi, 0x00ff00ff')
    a('ds_write_b128 v7, v[44:47]\nds_write_b128 v7, v[48:51] offset:16')
    a('s_mov_b64 exec, -1')
    a('s_waitcnt lgkmcnt(0)\ns_barrier')
    a('s_cmp_lg_u32 s3, 0\ns_cbranch_scc1 K0_END')
    a(f'v_lshrrev_b32 v7, 3, v2\nv_lshlrev_b32 v7, 5, v7\nv_and_b32 v8, 7, v2\nv_lshl_add_u32 v7, v8, 2, v7')
    for r in range(16):
        a(f'ds_read_b32 v{16+r}, v7 offset:{r*256}')
    a('s_waitcnt lgkmcnt(0)')
    for st in (8, 4, 2, 1):
        for r in range(st):
            a(f'v_add_f32 v{16+r}, v{16+r}, v{16+r+st}')
    a(f's_mul_i32 s36, s23, {3840*4}\ns_lshl_b32 s37, s22, 8\ns_add_u32 s36, s36, s37\ns_add_u32 s36, s36, {WS_MODP}')
    a('v_lshlrev_b32 v7, 2, v2')
    a('buffer_store_dword v16, v7, s[32:35], s36 offen')
    a.raw('    ; MARK 2')
    a('s_endpgm')
    a.label('K0_RELAY')
    Lz = a.newlabel('K0_NZ')
    a(f's_cmp_ge_u32 s2, 256\ns_cbranch_scc1 {Lz}\ns_cmp_lg_u32 s3, 0\ns_cbranch_scc1 {Lz}')
    a('v_mov_b32 v8, 0\nv_mov_b32 v9, 0\nv_mov_b32 v10, 0\nv_mov_b32 v11, 0\nv_lshlrev_b32 v7, 4, v2')
    a(f's_sub_u32 s36, s2, 240\ns_lshl_b32 s36, s36, 10\ns_add_u32 s36, s36, {WS_FLAG}')
    a('buffer_store_dwordx4 v[8:11], v7, s[32:35], s36 offen')
    a.label(Lz)
    a("""v_lshrrev_b32 v20, 5, v2
         v_lshlrev_b32 v20, 2, v20
         v_bfe_u32 v8, v2, 2, 2
         v_add_u32 v20, v20, v8
         v_bfe_u32 v8, v2, 4, 1
         v_lshlrev_b32 v21, 5, v8
         v_and_b32 v9, 3, v2
         v_lshl_add_u32 v21, v9, 3, v21""")
    a('v_lshlrev_b32 v9, 4, v2')
    def dma(P, ninstr_total, src, ld, rowsrc, colsrc):
        cpr = P//16
        magic = (2**16 + cpr - 1)//cpr
        rows, rowbytes = ld
        srd(a, 56, src, src+1, 0, rows*rowbytes)
        per_wave = (ninstr_total + 3)//4
        for q in range(per_wave):
            L = a.newlabel('K0_DS')
            a(f's_mul_i32 s60, s3, {per_wave}\ns_add_u32 s60, s60, {q}')
            if (3*per_wave + q) >= ninstr_total:
                a(f's_cmp_ge_u32 s60, {ninstr_total}\ns_cbranch_scc1 {L}')
            a('s_lshl_b32 s61, s60, 6\nv_add_u32 v23, s61, v2')
            a(f's_mov_b32 s62, {magic}\nv_mul_lo_u32 v24, v23, s62\nv_lshrrev_b32 v24, 16, v24')
            a(f'v_mul_u32_u24 v25, {cpr}, v24\nv_sub_u32 v25, v23, v25')
            colsrc(); rowsrc()
            a(f'v_mul_u32_u24 v24, {rowbytes}, v24\nv_add_u32 v24, v24, v25')
            a('s_lshl_b32 m0, s60, 10')
            a('buffer_load_dwordx4 v24, s[56:59], s63 offen lds')
            a.label(L)
    def frag_out(P, colreg, coloff, out_s, outoff, half=False):
        a(f'v_mul_u32_u24 v26, {P}, v20\nv_add_u32 v26, v26, v{colreg}')
        a(f'ds_read_b64_tr_b16 v[28:29], v26 offset:{coloff}\nds_read_b64_tr_b16 v[30:31], v26 offset:{coloff + 8*P}')
        a('s_waitcnt lgkmcnt(0)')
        if half:
            a('s_mov_b32 exec_lo, 0xffff\ns_mov_b32 exec_hi, 0xffff')
            a(f'buffer_store_dwordx4 v[28:31], v22, s[32:35], s{out_s} offen offset:{outoff}')
            a('s_mov_b64 exec, -1')
        else:
            a(f'buffer_store_dwordx4 v[28:31], v9, s[32:35], s{out_s} offen offset:{outoff}')
        a('s_nop 1')
    a('v_lshrrev_b32 v22, 5, v2\nv_lshlrev_b32 v22, 8, v22\nv_and_b32 v8, 15, v2\nv_lshl_add_u32 v22, v8, 4, v22')
    a(f's_cmp_ge_u32 s2, {b1}\ns_cbranch_scc1 K0_R_GU')
    if 'qkv' not in parts: a('s_endpgm')
    a(f's_sub_u32 s40, s2, {b0}\ns_lshr_b32 s41, s40, 2\ns_and_b32 s42, s40, 3')
    a(f's_mul_i32 s63, s41, {16*3840}\ns_mul_i32 s43, s42, 320\ns_add_u32 s63, s63, s43')
    def colq():
        a('v_mul_u32_u24 v27, 3277, v25\nv_lshrrev_b32 v27, 16, v27\nv_lshlrev_b32 v25, 4, v25\nv_mul_u32_u24 v27, 960, v27\nv_add_u32 v25, v25, v27')
    dma(960, 15, 4, (640, 3840), lambda: None, colq)
    a('v_bfe_u32 v10, v2, 4, 1\nv_lshlrev_b32 v10, 2, v10\nv_and_b32 v11, 3, v2\nv_add_u32 v10, v10, v11')
    a('v_lshlrev_b32 v11, 3, v10\nv_add_u32 v12, 320, v11\nv_add_u32 v13, 592, v11\nv_cmp_lt_u32 vcc, 5, v10\nv_cndmask_b32 v12, v12, v13, vcc')
    a('v_mov_b32 v13, 672\nv_cmp_eq_u32 vcc, 5, v10\nv_cndmask_b32 v12, v12, v13, vcc')
    a('v_add_u32 v14, 656, v11\nv_subrev_u32 v13, 16, v11\nv_cmp_lt_u32 vcc, 1, v10\nv_cndmask_b32 v14, v14, v13, vcc')
    a('v_mov_b32 v13, 32\nv_cmp_eq_u32 vcc, 7, v10\nv_cndmask_b32 v14, v14, v13, vcc')
    a('s_waitcnt vmcnt(0)\ns_barrier')
    a.raw('    ; MARK 3')
    a('s_lshl_b32 s44, s3, 1\ns_mul_i32 s45, s44, 40\nv_add_u32 v12, s45, v12\nv_add_u32 v14, s45, v14')
    a(f's_lshl_b32 s46, s42, 3\ns_add_u32 s46, s46, s44\ns_mul_i32 s46, s46, 40\ns_add_u32 s46, s46, s41\ns_lshl_b32 s46, s46, 11\ns_add_u32 s46, s46, {WS_WQKV}')
    for hh in range(2):
        frag_out(960, 12, 40*hh, 46, 0); frag_out(960, 14, 40*hh, 46, 1024)
        if hh == 0: a(f's_add_u32 s46, s46, {40*2048}')
    a('s_endpgm')
    a.label('K0_R_GU')
    a(f's_cmp_ge_u32 s2, {b2}\ns_cbranch_scc1 K0_R_WD')
    if 'gu' not in parts: a('s_endpgm')
    a(f's_sub_u32 s40, s2, {b1}\ns_lshr_b32 s41, s40, 3\ns_bfe_u32 s47, s40, 0x10002\ns_and_b32 s42, s40, 3')
    a(f's_mul_i32 s63, s41, {16*3072}\ns_mul_i32 s43, s42, 768\ns_add_u32 s63, s63, s43')
    a('s_cmp_eq_u32 s47, 0\ns_cselect_b32 s48, s8, s10\ns_cselect_b32 s49, s9, s11')
    dma(768, 12, 48, (640, 3072), lambda: None, lambda: a('v_lshlrev_b32 v25, 4, v25'))
    a('s_waitcnt vmcnt(0)\ns_barrier')
    a.raw('    ; MARK 3')
    a('s_mul_i32 s45, s3, 192\nv_add_u32 v12, s45, v21')
    a(f's_lshl_b32 s46, s42, 2\ns_add_u32 s46, s46, s3\ns_mul_i32 s46, s46, 40\ns_add_u32 s46, s46, s41\ns_mul_i32 s46, s46, 6144\ns_mul_i32 s47, s47, 3072\ns_add_u32 s46, s46, s47\ns_add_u32 s46, s46, {WS_WGU}')
    for ct in range(3): frag_out(768, 12, ct*64, 46, ct*1024)
    a('s_endpgm')
    def tile80(name, base_id, src, ld, npair, ws_off, rowsrc):
        a(f's_sub_u32 s40, s2, {base_id}\ns_lshr_b32 s41, s40, 1\ns_and_b32 s42, s40, 1')
        a(f's_mul_i32 s63, s42, 640')
        dma(640, 10, src, ld, rowsrc, lambda: a('v_lshlrev_b32 v25, 4, v25'))
        a('s_waitcnt vmcnt(0)\ns_barrier')
        a.raw('    ; MARK 3')
        a('s_mul_i32 s45, s3, 160\nv_add_u32 v12, s45, v21')
        a(f's_lshl_b32 s46, s42, 2\ns_add_u32 s46, s46, s3\ns_mul_i32 s46, s46, {npair}\ns_lshr_b32 s47, s41, 1\ns_add_u32 s46, s46, s47\ns_mul_i32 s46, s46, 5120\ns_add_u32 s46, s46, {ws_off}')
        a('s_and_b32 s47, s41, 1\ns_lshl_b32 s48, s47, 11\ns_add_u32 s48, s48, s46\ns_lshl_b32 s47, s47, 9\ns_add_u32 s47, s47, 4096\ns_add_u32 s47, s47, s46')
        frag_out(640, 12, 0, 48, 0); frag_out(640, 12, 64, 48, 1024)
        frag_out(640, 12, 128, 47, 0, half=True)
        a('s_endpgm')
    a.label('K0_R_WD')
    a(f's_cmp_ge_u32 s2, {b3}\ns_cbranch_scc1 K0_R_WO')
    if 'wd' not in parts: a('s_endpgm')
    tile80('wd', b2, 12, (1536, 1280), 48, WS_WD, lambda: a('s_lshl_b32 s62, s41, 4\nv_add_u32 v24, s62, v24'))
    a.label('K0_R_WO')
    if 'wo' not in parts: a('s_endpgm')
    def rowsrc_wo():
        L1 = a.newlabel('K0_WOL'); L2 = a.newlabel('K0_WOE')
        a(f's_cmp_ge_u32 s41, 32\ns_cbranch_scc1 {L1}')
        a('s_mul_i32 s62, s41, 20\nv_add_u32 v24, s62, v24')
        a(f's_branch {L2}')
        a.label(L1)
        a('s_sub_u32 s62, s41, 32\ns_mul_i32 s62, s62, 80\ns_add_u32 s62, s62, 16')
        a('v_bfe_u32 v27, v24, 2, 1\nv_mul_u32_u24 v27, 40, v27\nv_lshrrev_b32 v19, 3, v24\nv_mul_u32_u24 v19, 20, v19\nv_and_b32 v24, 3, v24\nv_add_u32 v24, v24, v27\nv_add_u32 v24, v24, v19\nv_add_u32 v24, s62, v24')
        a.label(L2)
    tile80('wo', b3, 6, (640, 1280), 20, WS_WO, rowsrc_wo)
    a.label('K0_END')
    a('s_endpgm')
    return dict(name='k0_kernel', body=a.text(), grid=b4, block=256, lds=16384, vgpr=72, sgpr=70)
```

```python
from common import *
import math

SPIN = 200000
LH = 81920
LFAST = LH + 2560
LK = 114176
LV = LK + 24576
LONES = 159488
NEG = -30000.0
WS_H2F = WS_A2F

def store2(a, text_fn):
    L1 = a.newlabel('ST_S'); L2 = a.newlabel('ST_E')
    a(f's_cmp_eq_u32 s14, 0\ns_cbranch_scc1 {L1}')
    text_fn('')
    a(f's_branch {L2}')
    a.label(L1)
    text_fn(' sc1')
    a.label(L2)

def poll(a, vaddr, cond_reg='v20', sbase='s[4:5]', n=1):
    L = a.newlabel('POLL'); Lo = a.newlabel('POLLX')
    a(f's_mov_b32 s18, {SPIN}')
    a.label(L)
    a(f's_sub_u32 s18, s18, 1\ns_cmp_eq_u32 s18, 0\ns_cbranch_scc1 {Lo}')
    a(f'global_load_dword {cond_reg}, {vaddr}, {sbase} sc1')
    a('s_waitcnt vmcnt(0)')
    a(f'v_cmp_eq_u32 vcc, 0, {cond_reg}')
    a(f's_cbranch_vccnz {L}')
    a.label(Lo)

def gbar(a, flag, local=True):
    L = a.newlabel('GB')
    a('s_barrier')
    a(f's_cmp_lg_u32 s3, 0\ns_cbranch_scc1 {L}')
    a(f's_lshl_b32 s19, s12, 7\ns_add_u32 s19, s19, {flag}')
    a(f's_lshl_b32 s20, s13, 2\ns_add_u32 s20, s20, s19\nv_mov_b32 v18, s20\nv_mov_b32 v19, 1')
    a('s_mov_b64 exec, 1')
    if local: store2(a, lambda f: a(f'global_store_dword v18, v19, s[4:5]{f}'))
    else: a('global_store_dword v18, v19, s[4:5] sc1')
    a('s_mov_b64 exec, -1')
    a('v_and_b32 v18, 31, v2\nv_lshlrev_b32 v18, 2, v18\nv_add_u32 v18, s19, v18')
    poll(a, 'v18')
    a.label(L)
    a('s_barrier')

def fin_mod(a, base, nq_valid_exec=None):
    for e in range(4):
        a(f'v_add_f32 v{base+e}, v{base+e}, v{base+4+e}\nv_add_f32 v{base+8+e}, v{base+8+e}, v{base+12+e}\nv_add_f32 v{base+e}, v{base+e}, v{base+8+e}')

def round_pack(a, base, vone, out):
    a(f'v_cvt_pk_bf16_f32 v{out}, v{base}, v{base+1}\nv_cvt_pk_bf16_f32 v{out+1}, v{base+2}, v{base+3}')
    a(f'v_lshlrev_b32 v{base}, 16, v{out}\nv_and_b32 v{base+1}, 0xffff0000, v{out}\nv_lshlrev_b32 v{base+2}, 16, v{out+1}\nv_and_b32 v{base+3}, 0xffff0000, v{out+1}')
    for e in range(4): a(f'v_add_f32 v{base+e}, v{base+e}, v{vone}')
    a(f'v_cvt_pk_bf16_f32 v{out}, v{base}, v{base+1}\nv_cvt_pk_bf16_f32 v{out+1}, v{base+2}, v{base+3}')

def cperm_pos_bytes(a, vcol4, out, tmp):
    a(f'v_lshrrev_b32 v{out}, 2, v{vcol4}\nv_lshlrev_b32 v{out}, 5, v{out}')
    a(f'v_and_b32 v{tmp}, 1, v{vcol4}\nv_lshl_add_u32 v{out}, v{tmp}, 4, v{out}')
    a(f'v_bfe_u32 v{tmp}, v{vcol4}, 1, 1\nv_lshl_add_u32 v{out}, v{tmp}, 3, v{out}')

def phase_h(a):
    a('s_getreg_b32 s15, hwreg(HW_REG_XCC_ID, 0, 4)')
    Lx = a.newlabel('H_XT')
    a(f's_cmp_lg_u32 s3, 0\ns_cbranch_scc1 {Lx}')
    a(f's_add_u32 s15, s15, 1\ns_lshl_b32 s19, s12, 7\ns_lshl_b32 s20, s13, 2\ns_add_u32 s19, s19, s20\ns_add_u32 s19, s19, {FL_XT}')
    a('v_mov_b32 v18, s19\nv_mov_b32 v19, s15\ns_mov_b64 exec, 1')
    a('global_store_dword v18, v19, s[4:5] sc1')
    a('s_mov_b64 exec, -1')
    a.label(Lx)
    Lnx = a.newlabel('H_NX')
    a('v_lshrrev_b32 v5, 4, v2\nv_and_b32 v4, 15, v2')
    a('s_lshl_b32 s19, s12, 8\ns_lshl_b32 s20, s13, 3\ns_add_u32 s19, s19, s20\ns_lshl_b32 s20, s3, 2\ns_add_u32 s19, s19, s20')
    a('v_add_u32 v5, s19, v5')
    a('v_lshrrev_b32 v7, 1, v4\nv_and_b32 v8, 1, v4')
    a(f's_cmp_ge_u32 s3, 2\ns_cbranch_scc1 {Lnx}')
    srd(a, 24, 16, 17, 0, ACT_BYTES)
    a('v_mul_u32_u24 v6, 1280, v5\nv_lshl_add_u32 v6, v7, 5, v6\nv_lshl_add_u32 v6, v8, 3, v6')
    for i in range(5):
        a(f'buffer_load_dwordx2 v[{100+4*i}:{101+4*i}], v6, s[24:27], 0 offen offset:{i*256}')
        a(f'buffer_load_dwordx2 v[{102+4*i}:{103+4*i}], v6, s[24:27], 0 offen offset:{i*256+16}')
    a.label(Lnx)
    a('v_lshlrev_b32 v9, 4, v0')
    for p in range(4):
        a(f's_mov_b32 s20, {WS_MODP + p*15360}')
        a(f'buffer_load_dwordx4 v[{24+4*p}:{27+4*p}], v9, s[8:11], s20 offen')
    L2 = a.newlabel('H_T2'); L3 = a.newlabel('H_T3'); L4 = a.newlabel('H_T4')
    a(f's_cmp_eq_u32 s3, 0\ns_cbranch_scc1 {L2}\ns_cmp_eq_u32 s3, 3\ns_cbranch_scc0 {L3}')
    a('s_mul_i32 s20, s13, 20\ns_add_u32 s20, s20, 320\nv_add_u32 v10, s20, v2')
    a(f's_branch {L4}')
    a.label(L2)
    a('v_add_u32 v10, 256, v2')
    a.label(L4)
    a('v_lshlrev_b32 v11, 4, v10')
    for p in range(4):
        a(f's_mov_b32 s20, {WS_MODP + p*15360}')
        a(f'buffer_load_dwordx4 v[{40+4*p}:{43+4*p}], v11, s[8:11], s20 offen')
    a.label(L3)
    Lb = a.newlabel('H_NB')
    a(f's_cmp_lt_u32 s3, 2\ns_cbranch_scc1 {Lb}')
    a(f's_mul_i32 s20, s13, 81920\ns_sub_u32 s21, s3, 2\ns_mul_i32 s21, s21, 40960\ns_add_u32 s20, s20, s21\ns_add_u32 s20, s20, {WS_WQKV}')
    for i in range(10):
        a(f's_add_u32 m0, s21, {i*4096}')
        for q in range(4): a(f'buffer_load_dwordx4 v3, s[8:11], s20 offen offset:{q*1024} lds')
        if i < 9: a('s_add_u32 s20, s20, 4096')
    a('s_waitcnt vmcnt(40)')
    Lb2 = a.newlabel('H_B2')
    a(f's_branch {Lb2}')
    a.label(Lb)
    a('s_waitcnt vmcnt(0)')
    a.label(Lb2)
    a.raw('    ; MARK 0')
    fin_mod(a, 24)
    a('v_cmp_lt_u32 vcc, 159, v0\nv_cndmask_b32_e64 v12, 0, 1.0, vcc')
    round_pack(a, 24, 12, 28)
    a('v_subrev_u32 v13, 160, v0\nv_cndmask_b32 v13, v0, v13, vcc')
    cperm_pos_bytes(a, 13, 14, 15)
    a(f'v_mov_b32 v15, {LH}\nv_mov_b32 v21, {LH + 1280}\nv_cndmask_b32 v15, v15, v21, vcc\nv_add_u32 v14, v14, v15')
    a('ds_write_b64 v14, v[28:29]')
    L5 = a.newlabel('H_T5'); L6 = a.newlabel('H_T6')
    a(f's_cmp_eq_u32 s3, 0\ns_cbranch_scc1 {L5}\ns_cmp_eq_u32 s3, 3\ns_cbranch_scc0 {L6}')
    fin_mod(a, 40)
    a('v_mul_u32_u24 v12, 410, v10\nv_lshrrev_b32 v12, 16, v12')
    a('v_mul_u32_u24 v13, 160, v12\nv_sub_u32 v13, v10, v13')
    cperm_pos_bytes(a, 13, 14, 15)
    a('v_mul_u32_u24 v15, 1280, v12\nv_add_u32 v14, v14, v15')
    a('v_cmp_eq_u32 vcc, 4, v12\nv_cndmask_b32_e64 v12, 0, 1.0, vcc')
    round_pack(a, 40, 12, 44)
    a(f's_lshl_b32 s20, s12, 13\ns_add_u32 s20, s20, {WS_MODF}')
    a('s_mov_b32 exec_lo, 0xfffff\ns_mov_b32 exec_hi, 0')
    a('buffer_store_dwordx2 v[44:45], v14, s[8:11], s20 offen sc1')
    a('s_mov_b64 exec, -1')
    a(f's_branch {L6}')
    a.label(L5)
    fin_mod(a, 40)
    a('v_mov_b32 v12, 1.0')
    round_pack(a, 40, 12, 44)
    a('v_add_u32 v13, 96, v2')
    cperm_pos_bytes(a, 13, 14, 15)
    a(f'v_add_u32 v14, {LH + 1280}, v14')
    a('ds_write_b64 v14, v[44:45]')
    a.label(L6)
    a('s_waitcnt lgkmcnt(0)\ns_barrier')
    Lln = a.newlabel('H_LNE')
    a(f's_cmp_ge_u32 s3, 2\ns_cbranch_scc1 {Lln}')
    a(f'v_lshlrev_b32 v9, 4, v4\nv_add_u32 v9, {LH}, v9')
    for i in range(5):
        a(f'ds_read_b128 v[{40+4*i}:{43+4*i}], v9 offset:{1280 + i*256}')
        a(f'ds_read_b128 v[{60+4*i}:{63+4*i}], v9 offset:{i*256}')
    X = 100; F = 124
    for i in range(20):
        a(f'v_lshlrev_b32 v{F+2*i}, 16, v{X+i}\nv_and_b32 v{F+1+2*i}, 0xffff0000, v{X+i}')
    a(f'v_add_f32 v11, v{F}, v{F+1}\nv_add_f32 v12, v{F+2}, v{F+3}')
    for i in range(4, 40, 2): a(f'v_add_f32 v11, v11, v{F+i}\nv_add_f32 v12, v12, v{F+i+1}')
    a('v_add_f32 v11, v11, v12')
    for rot in (8, 4, 2, 1):
        a(f'v_add_f32_dpp v11, v11, v11 row_ror:{rot} row_mask:0xf bank_mask:0xf')
    a(f'v_mul_f32 v11, {hex(f2u(1.0/640))}, v11')
    for i in range(40): a(f'v_sub_f32 v{F+i}, v{F+i}, v11')
    a(f'v_mul_f32 v12, v{F}, v{F}\nv_mul_f32 v13, v{F+1}, v{F+1}')
    for i in range(2, 40, 2): a(f'v_fmac_f32 v12, v{F+i}, v{F+i}\nv_fmac_f32 v13, v{F+i+1}, v{F+i+1}')
    a('v_add_f32 v12, v12, v13')
    for rot in (8, 4, 2, 1):
        a(f'v_add_f32_dpp v12, v12, v12 row_ror:{rot} row_mask:0xf bank_mask:0xf')
    a(f'v_mov_b32 v13, {hex(f2u(1e-5))}\nv_fmac_f32 v13, {hex(f2u(1.0/640))}, v12\nv_rsq_f32 v13, v13')
    a('s_waitcnt lgkmcnt(0)')
    for i in range(20):
        a(f'v_mul_f32 v{F+2*i}, v{F+2*i}, v13\nv_mul_f32 v{F+1+2*i}, v{F+1+2*i}, v13')
        a(f'v_lshlrev_b32 v14, 16, v{40+i}\nv_lshlrev_b32 v15, 16, v{60+i}\nv_fma_f32 v{F+2*i}, v{F+2*i}, v14, v15')
        a(f'v_and_b32 v14, 0xffff0000, v{40+i}\nv_and_b32 v15, 0xffff0000, v{60+i}\nv_fma_f32 v{F+1+2*i}, v{F+1+2*i}, v14, v15')
        a(f'v_cvt_pk_bf16_f32 v{164+i}, v{F+2*i}, v{F+1+2*i}')
    a(f's_lshl_b32 s19, s12, 7\ns_add_u32 s19, s19, {FL_XT}\nv_and_b32 v18, 31, v2\nv_lshlrev_b32 v18, 2, v18\nv_add_u32 v18, s19, v18')
    poll(a, 'v18')
    a('v_readfirstlane_b32 s19, v20\nv_cmp_ne_u32 vcc, s19, v20\ns_cmp_eq_u64 vcc, 0\ns_cselect_b32 s14, 1, 0')
    a(f'v_mov_b32 v18, {LFAST}\nv_mov_b32 v19, s14\nds_write_b32 v18, v19')
    a('v_and_b32 v10, 31, v5\nv_lshlrev_b32 v10, 4, v10\nv_lshl_add_u32 v10, v7, 10, v10\nv_lshl_add_u32 v10, v8, 9, v10')
    a('s_lshl_b32 s19, s12, 3\ns_lshr_b32 s20, s13, 2\ns_add_u32 s19, s19, s20\ns_mul_i32 s19, s19, 40960')
    def st(f):
        for i in range(5):
            a(f's_add_u32 s20, s19, {WS_H1F + i*8192}')
            a(f'buffer_store_dwordx4 v[{164+4*i}:{167+4*i}], v10, s[8:11], s20 offen{f}')
        for i in range(5):
            a(f's_add_u32 s20, s19, {WS_XF + i*8192}')
            a(f'buffer_store_dwordx4 v[{X+4*i}:{X+3+4*i}], v10, s[8:11], s20 offen{f}')
    store2(a, st)
    a.label(Lln)
    a('s_waitcnt vmcnt(0) lgkmcnt(0)')
    a.raw('    ; MARK 1')
    gbar(a, FL_H)
    a(f'v_mov_b32 v18, {LFAST}\nds_read_b32 v19, v18\ns_waitcnt lgkmcnt(0)\nv_readfirstlane_b32 s14, v19')
    a.raw('    ; MARK 2')

ACC_A = 40
QF = 104
OPT = dict(a_pre=2, a_pace=2, a_ahead=4, a_sc=' sc1')
def phase_a(a):
    vm = Vm(a)
    a('s_lshl_b32 s19, s12, 3\ns_add_u32 s20, s19, s3\ns_sub_u32 s21, 7, s3\ns_add_u32 s21, s19, s21')
    a(f's_mul_i32 s22, s20, 40960\ns_add_u32 s22, s22, {WS_H1F}\ns_mul_i32 s23, s21, 40960\ns_add_u32 s23, s23, {WS_H1F}')
    def opsA(c):
        ops = []
        for tb in range(2):
            ops.append((f's_add_u32 s{24+tb}, s{22+tb}, {c*4096}', False))
            for q in range(4):
                f = (2*(4*c + q) + tb) % 64
                ops.append((f'buffer_load_dwordx4 a[{4*f}:{4*f+3}], v3, s[8:11], s{24+tb} offen offset:{q*1024}{OPT["a_sc"]}', True))
        return ops
    a('v_add_u32 v5, 0x10000, v3')
    def read_frag(ks, ct, r):
        off = (ks*2 + ct)*1024
        return f'ds_read_b128 v[{r}:{r+3}], v{3 if off < 65536 else 5} offset:{off % 65536}'
    def mfmas(ks, ct, r, first):
        out = []
        for tb in range(2):
            d = ACC_A + (tb*2 + ct)*16; f = (2*ks + tb) % 64
            out.append(f'v_mfma_f32_32x32x16_bf16 v[{d}:{d+15}], v[{r}:{r+3}], a[{4*f}:{4*f+3}], ' + ('0' if first else f'v[{d}:{d+15}]'))
        return out
    gemm2(a, vm, 40, 4, 2, opsA, None, 99, read_frag, mfmas, 16, pd=2, pre=OPT['a_pre'], pace=OPT['a_pace'], ahead=OPT['a_ahead'], barriers=False)
    a.raw('    ; MARK 3')
    a('v_and_b32 v6, 31, v2\nv_lshrrev_b32 v7, 5, v2')
    a(f'v_lshlrev_b32 v8, 4, v0\nv_add_u32 v8, {LK + 5*4096}, v8\nv_mov_b32 v12, 0\nv_mov_b32 v13, 0\nv_mov_b32 v14, 0\nv_mov_b32 v15, 0')
    Lb = a.newlabel('A_NB')
    a(f's_cmp_lg_u32 s12, 0\ns_cbranch_scc1 {Lb}')
    nb = f2u(NEG) >> 16
    a(f'v_mov_b32 v9, {nb}\nv_cmp_gt_u32 vcc, 128, v0\nv_cndmask_b32 v12, 0, v9, vcc\nv_mov_b32 v14, v12')
    a.label(Lb)
    a('ds_write_b128 v8, v[12:15]')
    a(f'v_mov_b32 v12, 0x3f803f80\nv_mov_b32 v13, 0x3f803f80\nv_mov_b32 v14, 0x3f803f80\nv_mov_b32 v15, 0x3f803f80')
    a(f'v_lshlrev_b32 v8, 4, v0\nv_add_u32 v8, {LONES}, v8\nds_write_b128 v8, v[12:15]')
    a('v_cmp_gt_u32 vcc, 16, v0\ns_and_saveexec_b64 s[26:27], vcc\nds_write_b128 v8, v[12:15] offset:4096\ns_mov_b64 exec, s[26:27]')
    Lz = a.newlabel('A_NZ')
    a(f's_cmp_lg_u32 s12, 0\ns_cbranch_scc1 {Lz}')
    a('v_mov_b32 v12, 0\nv_mov_b32 v13, 0\nv_mov_b32 v14, 0\nv_mov_b32 v15, 0')
    a(f'v_and_b32 v8, 127, v0\nv_lshlrev_b32 v8, 4, v8\nv_lshrrev_b32 v9, 7, v0')
    a(f'v_mul_u32_u24 v10, 4096, v9\nv_add_u32 v10, v10, v8\nv_add_u32 v10, {LK}, v10')
    for gg in (0, 2): a(f'ds_write_b128 v10, v[12:15] offset:{gg*4096}')
    a(f'v_mul_u32_u24 v11, 4128, v9\nv_add_u32 v11, v11, v8\nv_add_u32 v11, {LV}, v11')
    for gg in (0, 2): a(f'ds_write_b128 v11, v[12:15] offset:{gg*4128}')
    a(f'v_cmp_gt_u32 vcc, 128, v0\ns_and_saveexec_b64 s[26:27], vcc\nds_write_b128 v10, v[12:15] offset:{4*4096}\nds_write_b128 v11, v[12:15] offset:{4*4128}\ns_mov_b64 exec, s[26:27]')
    a.label(Lz)
    a(f'v_mul_u32_u24 v8, 4096, v7\nv_add_u32 v8, {LK}, v8\nv_mul_u32_u24 v9, 4128, v7\nv_add_u32 v9, {LV}, v9')
    a(f'v_mov_b32 v10, {LK + 4*4096}\nv_mov_b32 v11, {LV + 4*4128}\nv_cmp_eq_u32 vcc, 1, v7\nv_cndmask_b32 v10, v10, v11, vcc')
    a(f's_mul_i32 s24, s13, {5*16384}\ns_add_u32 s24, s24, {WS_QKV + 160*16384}')
    a('v_lshlrev_b32 v11, 14, v7')
    a(f'v_mov_b32 v12, {4*16384}\nv_mov_b32 v13, {(160+4)*16384}\nv_cndmask_b32 v12, v12, v13, vcc')
    for tb in range(2):
        a(f's_sub_u32 s25, s{20+tb}, s19\ns_lshl_b32 s25, s25, 5\nv_add_u32 v14, s25, v6\nv_lshlrev_b32 v14, 3, v14')
        a(f's_lshl_b32 s26, s12, 11\nv_add_u32 v15, s26, v14')
        a('v_add_u32 v14, 2048, v14')
        P = 120 + 10*tb
        quads = [(0, 0), (0, 1), (0, 2), (0, 3), (1, 0)]
        for i, (ct, q) in enumerate(quads):
            d = ACC_A + (tb*2 + ct)*16 + 4*q
            a(f'v_cvt_pk_bf16_f32 v{P+2*i}, v{d}, v{d+1}\nv_cvt_pk_bf16_f32 v{P+2*i+1}, v{d+2}, v{d+3}')
        a(f'v_add_u32 v21, v8, v14\nds_write_b64 v21, v[{P}:{P+1}]\nds_write_b64 v21, v[{P+2}:{P+3}] offset:8192')
        a(f'v_add_u32 v22, v10, v14\nds_write_b64 v22, v[{P+4}:{P+5}]')
        a(f'v_add_u32 v23, v9, v14\nds_write_b64 v23, v[{P+6}:{P+7}]\nds_write_b64 v23, v[{P+8}:{P+9}] offset:{2*4128}')
        Ls = a.newlabel('A_NS')
        a(f's_cmp_eq_u32 s12, 7\ns_cbranch_scc1 {Ls}')
        a('v_add_u32 v21, v11, v15\nv_add_u32 v22, v12, v15')
        a(f'buffer_store_dwordx2 v[{P}:{P+1}], v21, s[8:11], s24 offen sc1')
        a(f's_add_u32 s25, s24, {2*16384}\nbuffer_store_dwordx2 v[{P+2}:{P+3}], v21, s[8:11], s25 offen sc1')
        a(f'buffer_store_dwordx2 v[{P+4}:{P+5}], v22, s[8:11], s24 offen sc1')
        a(f's_add_u32 s25, s24, {160*16384}\nbuffer_store_dwordx2 v[{P+6}:{P+7}], v21, s[8:11], s25 offen sc1')
        a(f's_add_u32 s25, s24, {162*16384}\nbuffer_store_dwordx2 v[{P+8}:{P+9}], v21, s[8:11], s25 offen sc1')
        a.label(Ls)
        Q = QF + 8*tb
        for i, q in enumerate((1, 2, 3)):
            d = ACC_A + (tb*2 + 1)*16 + 4*q
            a(f'v_cvt_pk_bf16_f32 v{Q+2*i}, v{d}, v{d+1}\nv_cvt_pk_bf16_f32 v{Q+2*i+1}, v{d+2}, v{d+3}')
        a(f'v_mov_b32 v21, 0x3f80\nv_cndmask_b32 v{Q+4}, v{Q+4}, v21, vcc\nv_cndmask_b32_e64 v{Q+5}, v{Q+5}, 0, vcc\nv_mov_b32 v{Q+6}, 0\nv_mov_b32 v{Q+7}, 0')
    a('s_waitcnt vmcnt(0) lgkmcnt(0)\ns_barrier')
    a.raw('    ; MARK 4')
    Lf = a.newlabel('A_F')
    a(f's_cmp_lg_u32 s3, 0\ns_cbranch_scc1 {Lf}')
    a(f's_lshl_b32 s19, s12, 7\ns_lshl_b32 s20, s13, 2\ns_add_u32 s19, s19, s20\ns_add_u32 s19, s19, {FL_KV}\nv_mov_b32 v18, s19\nv_mov_b32 v19, 1')
    a('s_mov_b64 exec, 1\nglobal_store_dword v18, v19, s[4:5] sc1\ns_mov_b64 exec, -1')
    a(f's_cmp_eq_u32 s12, 0\ns_cbranch_scc1 {Lf}')
    a('v_subrev_u32 v18, 128, v18')
    poll(a, 'v18')
    a.label(Lf)
    a('s_barrier')
    Lh = a.newlabel('A_NH')
    a(f's_cmp_eq_u32 s12, 0\ns_cbranch_scc1 {Lh}')
    for q in range(5):
        a(f's_mul_i32 s19, s3, 5\ns_add_u32 s19, s19, {q}')
        a('s_cmp_ge_u32 s19, 10\ns_cselect_b32 s20, 1, 0\ns_mul_i32 s21, s20, 10\ns_sub_u32 s19, s19, s21\ns_lshr_b32 s21, s19, 1\ns_and_b32 s19, s19, 1')
        a(f's_mul_i32 s22, s20, 160\ns_add_u32 s22, s22, s21\ns_lshl_b32 s22, s22, 14\ns_add_u32 s22, s22, s24\ns_lshl_b32 s23, s12, 11\ns_add_u32 s22, s22, s23\ns_lshl_b32 s23, s19, 10\ns_add_u32 s22, s22, s23\ns_sub_u32 s22, s22, 2048')
        a(f's_mul_i32 s25, s21, 4096\ns_add_u32 s25, s25, {LK}\ns_mul_i32 s26, s21, 4128\ns_add_u32 s26, s26, {LV}\ns_cmp_eq_u32 s20, 0\ns_cselect_b32 s25, s25, s26\ns_add_u32 m0, s25, s23')
        a('buffer_load_dwordx4 v3, s[8:11], s22 offen sc1 lds')
    a.label(Lh)
    a('s_waitcnt vmcnt(0)\ns_barrier')
    a.raw('    ; MARK 5')

def phase_b(a):
    Lp = a.newlabel('B_NP')
    a(f's_cmp_eq_u32 s3, 0\ns_cbranch_scc1 {Lp}')
    a(f's_lshr_b32 s19, s13, 2\ns_mul_i32 s19, s19, 102400\ns_add_u32 s19, s19, {WS_WO}\ns_sub_u32 s20, s3, 1\ns_mul_i32 s20, s20, {34*1024}\ns_add_u32 s19, s19, s20')
    for i in range(34):
        if i % 4 == 0:
            a(f's_add_u32 m0, s20, {i*1024}')
            if i: a('s_add_u32 s19, s19, 4096')
        if i >= 32:
            L = a.newlabel('B_SK'); a(f's_cmp_eq_u32 s3, 3\ns_cbranch_scc1 {L}')
            a(f'buffer_load_dwordx4 v3, s[8:11], s19 offen offset:{(i%4)*1024} lds'); a.label(L)
        else:
            a(f'buffer_load_dwordx4 v3, s[8:11], s19 offen offset:{(i%4)*1024} lds')
    a.label(Lp)
    S = 128; KB = 272 - 256
    Sreg = lambda j: (128 + 16*j) if j < 8 else 24
    KBUF = 40; VBUF = 56; PBUF = 72; O = 88
    cs = math.log2(math.e)/math.sqrt(20.0)
    a(f's_mov_b32 s28, {hex(f2u(cs))}')
    negf = hex(f2u(NEG))
    a('v_and_b32 v6, 31, v2\nv_lshrrev_b32 v7, 5, v2')
    a('v_bfe_u32 v10, v2, 4, 1\nv_lshlrev_b32 v10, 2, v10\nv_and_b32 v11, 3, v2\nv_add_u32 v10, v10, v11')
    a(f'v_mul_u32_u24 v11, 4128, v10\nv_add_u32 v11, {LV}, v11\nv_lshlrev_b32 v12, 5, v10\nv_add_u32 v12, {LONES}, v12')
    a('v_cmp_gt_u32 vcc, 5, v10\nv_cndmask_b32 v10, v12, v11, vcc')
    a('v_bfe_u32 v11, v2, 2, 2\nv_lshl_add_u32 v11, v7, 2, v11\nv_lshl_add_u32 v10, v11, 3, v10')
    a(f'v_lshlrev_b32 v9, 3, v6\nv_lshl_add_u32 v9, v7, 12, v9\nv_add_u32 v9, {LK}, v9')
    a('v_lshlrev_b32 v13, 2, v7\nv_sub_u32 v13, v6, v13')
    for tb in range(2):
        Q = QF + 8*tb
        a('s_lshl_b32 s19, s3, 8' if tb == 0 else 's_sub_u32 s19, 7, s3\ns_lshl_b32 s19, s19, 8')
        a('v_add_u32 v16, s19, v9\nv_add_u32 v17, s19, v10')
        a(f'v_mov_b32 v18, {negf}')
        for r in range(16):
            kr = (r & 3) + 8*(r >> 2)
            a(f'v_cmp_gt_i32 vcc, {kr}, v13')
            a(f'v_cndmask_b32_e64 v{Sreg(0)+r}, v18, 0, vcc')
            a(f'v_cndmask_b32_e64 v{Sreg(8)+r}, 0, v18, vcc')
        for b in range(2): a(f'v_mov_b32 v{KBUF+8*b+6}, 0\nv_mov_b32 v{KBUF+8*b+7}, 0')
        def kread(j):
            b = KBUF + 8*(j & 1)
            a(f'ds_read_b64 v[{b}:{b+1}], v16 offset:{j*256}')
            a(f'ds_read_b64 v[{b+2}:{b+3}], v16 offset:{8192 + j*256}')
            a(f'ds_read_b64 v[{b+4}:{b+5}], v16 offset:{16384 + j*256}')
        kread(0)
        for j in range(9):
            if j < 8: kread(j+1)
            a(f's_waitcnt lgkmcnt({3 if j < 8 else 0})')
            b = KBUF + 8*(j & 1); d = Sreg(j)
            c0 = f'v[{d}:{d+15}]' if j in (0, 8) else '0'
            a(f'v_mfma_f32_32x32x16_bf16 v[{d}:{d+15}], v[{b}:{b+3}], v[{Q}:{Q+3}], {c0}')
            a(f'v_mfma_f32_32x32x16_bf16 v[{d}:{d+15}], v[{b+4}:{b+7}], v[{Q+4}:{Q+7}], v[{d}:{d+15}]')
        def vread(j):
            b = VBUF + 8*(j & 1)
            for s in range(2):
                a(f'ds_read_b64_tr_b16 v[{b+4*s}:{b+4*s+1}], v17 offset:{j*256 + s*128}')
                a(f'ds_read_b64_tr_b16 v[{b+4*s+2}:{b+4*s+3}], v17 offset:{j*256 + s*128 + 64}')
        vread(0)
        regs = [Sreg(j) + r for j in range(9) for r in range(16)]
        for c in range(4): a(f'v_max3_f32 v{20+c}, v{regs[c]}, v{regs[4+c]}, v{regs[8+c]}')
        idx = regs[12:]
        k = 0
        while idx:
            c = 20 + (k % 4); k += 1
            if len(idx) >= 2:
                x, y = idx.pop(0), idx.pop(0); a(f'v_max3_f32 v{c}, v{c}, v{x}, v{y}')
            else:
                x = idx.pop(0); a(f'v_max_f32 v{c}, v{c}, v{x}')
        a('v_max3_f32 v20, v20, v21, v22\nv_max_f32 v20, v20, v23\nv_mov_b32 v21, v20')
        a('v_permlane32_swap_b32 v20, v21')
        a('v_max_f32 v20, v20, v21')
        a(f'v_mul_f32 v20, {hex(f2u(-cs))}, v20')
        for j in range(9):
            d = Sreg(j); pb = PBUF + 8*(j & 1); vb = VBUF + 8*(j & 1)
            if j < 8: vread(j+1)
            for r in range(16): a(f'v_fma_f32 v{d+r}, v{d+r}, s28, v20')
            for r in range(16): a(f'v_exp_f32 v{d+r}, v{d+r}')
            for i in range(8): a(f'v_cvt_pk_bf16_f32 v{pb+i}, v{d+2*i}, v{d+2*i+1}')
            a(f's_waitcnt lgkmcnt({4 if j < 8 else 0})')
            for s in range(2):
                c0 = '0' if (j == 0 and s == 0) else f'v[{O}:{O+15}]'
                a(f'v_mfma_f32_32x32x16_bf16 v[{O}:{O+15}], v[{vb+4*s}:{vb+4*s+3}], v[{pb+4*s}:{pb+4*s+3}], {c0}')
        a(f'v_mov_b32 v20, v{O+8}\nv_mov_b32 v21, v{O+8}')
        a('v_permlane32_swap_b32 v20, v21\nv_rcp_f32 v21, v21')
        for r in range(12): a(f'v_mul_f32 v{O+r}, v{O+r}, v21')
        R = 120 + 6*tb
        for i in range(6): a(f'v_cvt_pk_bf16_f32 v{R+i}, v{O+2*i}, v{O+2*i+1}')
    a.raw('    ; MARK 6')
    a(f's_lshl_b32 s19, s12, 3\ns_add_u32 s20, s19, s3\ns_sub_u32 s21, 7, s3\ns_add_u32 s21, s21, s19\ns_mul_i32 s20, s20, 40960\ns_mul_i32 s21, s21, 40960')
    a(f's_lshl_b32 s22, s13, 10\ns_add_u32 s22, s22, {WS_OF}')
    a(f's_lshr_b32 s23, s13, 2\ns_add_u32 s23, s23, 32\ns_lshl_b32 s23, s23, 10\ns_bfe_u32 s25, s13, 0x10001\ns_lshl_b32 s25, s25, 9\ns_add_u32 s23, s23, s25\ns_and_b32 s25, s13, 1\ns_lshl_b32 s25, s25, 3\ns_add_u32 s23, s23, s25\ns_add_u32 s23, s23, {WS_OF}')
    def st(f):
        for tb in range(2):
            R = 120 + 6*tb
            a(f's_add_u32 s25, s{20+tb}, s22\nbuffer_store_dwordx4 v[{R}:{R+3}], v3, s[8:11], s25 offen{f}')
        a('s_mov_b32 exec_hi, 0')
        for tb in range(2):
            R = 120 + 6*tb
            a(f's_add_u32 s25, s{20+tb}, s23\nbuffer_store_dwordx2 v[{R+4}:{R+5}], v3, s[8:11], s25 offen{f}')
        a('s_mov_b64 exec, -1')
    store2(a, st)
    a('s_waitcnt vmcnt(0)')
    gbar(a, FL_O)
    a.raw('    ; MARK 7')

def kp_kernel(upto='E'):
    a = Asm()
    a('s_cmp_ge_u32 s2, 256\ns_cbranch_scc1 KP_END')
    a(f's_load_dwordx2 s[4:5], s[0:1], {KA_WS}')
    a(f's_load_dwordx2 s[6:7], s[0:1], {KA_OUT}')
    a(f's_load_dwordx2 s[16:17], s[0:1], {KA_X}')
    wave_id(a, 3, 1)
    a('v_and_b32 v2, 63, v0\nv_lshlrev_b32 v3, 4, v2')
    a('s_and_b32 s12, s2, 7\ns_lshr_b32 s13, s2, 3\ns_mov_b32 s14, 0')
    a('s_waitcnt lgkmcnt(0)')
    ws_rebase(a, 4)
    srd(a, 8, 4, 5, 0, WS_END)
    phase_h(a)
    if upto != 'H':
        phase_a(a)
        phase_b(a)
    if upto not in ('H', 'B'):
        from kp2 import phase_c, phase_d, phase_e
        phase_c(a)
        if upto != 'C':
            phase_d(a)
            if upto != 'D': phase_e(a)
    a.label('KP_END')
    a('s_endpgm')
    return dict(name='kp_kernel', body=a.text(), grid=256, block=256, lds=163840, vgpr=256, agpr=256, sgpr=44)
```

```python
from common import *
from kp import store2, gbar, poll, OPT, WS_H2F

LX = 102400

def roles80(a):
    a('s_and_b32 s26, s3, 1\ns_lshr_b32 s27, s3, 1\ns_lshr_b32 s15, s13, 2')
    a('s_lshl_b32 s29, s12, 3\ns_and_b32 s19, s13, 3\ns_lshl_b32 s19, s19, 1\ns_add_u32 s29, s29, s19\ns_add_u32 s29, s29, s26')

def main80(a, vm, nks_total, ws_act, ws_w, nslot, preB, ACC, WB, barriers, pre, pace, ahead):
    nks = nks_total//2; npair = nks//2; nchunk = nks//4
    half_bytes = nslot*10240
    a(f's_mul_i32 s22, s29, {nks_total}\ns_mul_i32 s19, s27, {nks}\ns_add_u32 s22, s22, s19\ns_lshl_b32 s22, s22, 10\ns_add_u32 s22, s22, {ws_act}')
    a(f's_mul_i32 s23, s15, {2*npair}\ns_mul_i32 s19, s27, {npair}\ns_add_u32 s23, s23, s19\ns_add_u32 s23, s23, s26\ns_mul_i32 s23, s23, 5120\ns_add_u32 s23, s23, {ws_w}')
    a(f's_mul_i32 s30, s27, {half_bytes}\ns_mul_i32 s19, s26, 5120\ns_add_u32 s30, s30, s19')
    a(f's_mul_i32 s19, s27, {half_bytes}\nv_add_u32 v4, s19, v3')
    a('v_lshrrev_b32 v5, 5, v2\nv_lshlrev_b32 v5, 8, v5\nv_and_b32 v6, 15, v2\nv_lshl_add_u32 v5, v6, 4, v5\nv_add_u32 v5, s19, v5\nv_add_u32 v5, 4096, v5')
    def opsB(c):
        slot = c % nslot
        ops = [(f's_add_u32 m0, s30, {slot*10240}', False), (f's_add_u32 s24, s23, {c*10240}', False)]
        for q in range(4): ops.append((f'buffer_load_dwordx4 v3, s[8:11], s24 offen offset:{q*1024} lds', True))
        ops += [(f's_add_u32 m0, s30, {slot*10240 + 4096}', False), (f's_add_u32 s24, s24, 4096', False)]
        ops.append((f'buffer_load_dwordx4 v3, s[8:11], s24 offen lds', True))
        return ops
    def opsA(c):
        ops = [(f's_add_u32 s25, s22, {c*4096}', False)]
        for q in range(4):
            ks = 4*c + q
            ops.append((f'buffer_load_dwordx4 a[{4*ks}:{4*ks+3}], v3, s[8:11], s25 offen offset:{q*1024} sc1', True))
        return ops
    def read_frag(ks, ct, r):
        c = ks // 4; slot = c % nslot
        base = slot*10240 + ((ks >> 1) & 1)*5120
        if ct < 2: return f'ds_read_b128 v[{r}:{r+3}], v4 offset:{base + (ks & 1)*2048 + ct*1024}'
        return f'ds_read_b128 v[{r}:{r+3}], v5 offset:{base + (ks & 1)*512}'
    def mfmas(ks, ct, r, first):
        d = ACC + 16*ct
        return [f'v_mfma_f32_32x32x16_bf16 v[{d}:{d+15}], v[{r}:{r+3}], a[{4*ks}:{4*ks+3}], ' + ('0' if first else f'v[{d}:{d+15}]')]
    gemm2(a, vm, nks, 4, 3, opsA, opsB, preB, read_frag, mfmas, WB, pd=2, pre=pre, nslot=nslot, pace=pace, ahead=ahead, barriers=barriers)

def exchange80(a, ACC, T, region):
    def q(i): return ACC + 4*i
    L1 = a.newlabel('X_KH1'); L2 = a.newlabel('X_W')
    a(f's_mul_i32 s19, s3, 6144\ns_add_u32 s19, s19, {region}\nv_add_u32 v6, s19, v3')
    a(f's_cmp_eq_u32 s27, 1\ns_cbranch_scc1 {L1}')
    for i in range(6, 10): a(f'ds_write_b128 v6, v[{q(i)}:{q(i)+3}] offset:{(i-6)*1024}')
    a(f's_branch {L2}')
    a.label(L1)
    for i in range(6): a(f'ds_write_b128 v6, v[{q(i)}:{q(i)+3}] offset:{i*1024}')
    a.label(L2)
    a('s_waitcnt lgkmcnt(0)\ns_barrier')
    a(f's_xor_b32 s19, s3, 2\ns_mul_i32 s19, s19, 6144\ns_add_u32 s19, s19, {region}\nv_add_u32 v6, s19, v3')
    L3 = a.newlabel('X_R1'); L4 = a.newlabel('X_RD')
    a(f's_cmp_eq_u32 s27, 1\ns_cbranch_scc1 {L3}')
    for i in range(6): a(f'ds_read_b128 v[{T+4*i}:{T+4*i+3}], v6 offset:{i*1024}')
    for i in range(6):
        a(f's_waitcnt lgkmcnt({5-i})')
        for e in range(4): a(f'v_add_f32 v{q(i)+e}, v{q(i)+e}, v{T+4*i+e}')
    a(f's_branch {L4}')
    a.label(L3)
    for i in range(4): a(f'ds_read_b128 v[{T+4*i}:{T+4*i+3}], v6 offset:{i*1024}')
    for i in range(4):
        a(f's_waitcnt lgkmcnt({3-i})')
        for e in range(4): a(f'v_add_f32 v{q(i)+e}, v{q(6+i)+e}, v{T+4*i+e}')
    a.label(L4)

def prefetch_blocks(a, nblk, gbase_sgpr, contiguous=True, lds_map=None):
    L = a.newlabel('PF_N')
    per = (nblk + 2)//3
    a(f's_cmp_eq_u32 s3, 0\ns_cbranch_scc1 {L}')
    a(f's_sub_u32 s19, s3, 1\ns_mul_i32 s19, s19, {per*1024}\ns_add_u32 s20, s{gbase_sgpr}, s19')
    for i in range(per):
        if i % 4 == 0:
            a(f's_add_u32 m0, s19, {i*1024}')
            if i: a('s_add_u32 s20, s20, 4096')
        guard = (2*per + i >= nblk)
        if guard:
            L2 = a.newlabel('PF_S'); a(f's_cmp_eq_u32 s3, 3\ns_cbranch_scc1 {L2}')
        a(f'buffer_load_dwordx4 v3, s[8:11], s20 offen offset:{(i%4)*1024} lds')
        if guard: a.label(L2)
    a.label(L)
    return per

def wait_stores(a, npf):
    L1 = a.newlabel('WS_A'); L2 = a.newlabel('WS_B')
    a(f's_cmp_eq_u32 s3, 0\ns_cbranch_scc1 {L1}')
    a(f's_waitcnt vmcnt({npf})')
    a(f's_branch {L2}')
    a.label(L1)
    a('s_waitcnt vmcnt(0)')
    a.label(L2)

def phase_c(a):
    vm = Vm(a)
    roles80(a)
    ACC = 64; WB = 16
    XR = 112; GA = 124; A2 = 136; SB = 148
    a('s_mul_i32 s28, s15, 5\ns_mul_i32 s19, s27, 3\ns_add_u32 s28, s28, s19')
    a('s_mul_i32 s31, s29, 40\ns_add_u32 s31, s31, s28\ns_lshl_b32 s31, s31, 10')
    a('v_lshrrev_b32 v7, 5, v2\nv_lshlrev_b32 v7, 4, v7')
    a(f's_lshl_b32 s32, s28, 5\ns_lshl_b32 s19, s12, 13\ns_add_u32 s32, s32, s19\ns_add_u32 s32, s32, {WS_MODF}')
    def extra_ops():
        ops = [(f's_add_u32 s19, s31, {WS_XF}', False)]
        for i in range(3): ops.append((f'buffer_load_dwordx4 v[{XR+4*i}:{XR+4*i+3}], v3, s[8:11], s19 offen offset:{i*1024} sc1', True))
        for seg, R in ((2, GA), (4, A2), (3, SB)):
            ops.append((f's_add_u32 s19, s32, {seg*1280}', False))
            for i in range(3): ops.append((f'buffer_load_dwordx4 v[{R+4*i}:{R+4*i+3}], v7, s[8:11], s19 offen offset:{i*32} sc1', True))
        return ops
    nks = 20
    a(f's_mul_i32 s22, s29, 40\ns_mul_i32 s19, s27, {nks}\ns_add_u32 s22, s22, s19\ns_lshl_b32 s22, s22, 10\ns_add_u32 s22, s22, {WS_OF}')
    half_bytes = 5*10240
    a(f's_mul_i32 s19, s27, {half_bytes}\nv_add_u32 v4, s19, v3')
    a('v_lshrrev_b32 v5, 5, v2\nv_lshlrev_b32 v5, 8, v5\nv_and_b32 v6, 15, v2\nv_lshl_add_u32 v5, v6, 4, v5\nv_add_u32 v5, s19, v5\nv_add_u32 v5, 4096, v5')
    def opsA(c):
        ops = [(f's_add_u32 s25, s22, {c*4096}', False)]
        for q in range(4):
            ks = 4*c + q
            ops.append((f'buffer_load_dwordx4 a[{4*ks}:{4*ks+3}], v3, s[8:11], s25 offen offset:{q*1024} sc1', True))
        return ops
    def read_frag(ks, ct, r):
        base = (ks//4)*10240 + ((ks >> 1) & 1)*5120
        if ct < 2: return f'ds_read_b128 v[{r}:{r+3}], v4 offset:{base + (ks & 1)*2048 + ct*1024}'
        return f'ds_read_b128 v[{r}:{r+3}], v5 offset:{base + (ks & 1)*512}'
    def mfmas(ks, ct, r, first):
        d = ACC + 16*ct
        return [f'v_mfma_f32_32x32x16_bf16 v[{d}:{d+15}], v[{r}:{r+3}], a[{4*ks}:{4*ks+3}], ' + ('0' if first else f'v[{d}:{d+15}]')]
    gemm2(a, vm, nks, 4, 3, opsA, None, 99, read_frag, mfmas, WB, pd=2, pre=OPT.get('c_pre', 2), pace=1, ahead=5, barriers=False)
    for t, isv in extra_ops():
        if isv: vm.issue(t, 'x')
        else: a(t)
    a.raw('    ; MARK 10')
    exchange80(a, ACC, 16, LX)
    vm.wait('x')
    a('v_mov_b32 v8, 0\nv_mov_b32 v9, 0')
    X1 = 160
    PK = 184
    L = a.newlabel('C_F2')
    def frag1(i):
        for p in range(4):
            d = ACC + 8*i + 2*p; x = XR + 4*i + p; g = GA + 4*i + p
            a(f'v_lshlrev_b32 v10, 16, v{x}\nv_lshlrev_b32 v11, 16, v{g}\nv_fma_f32 v12, v11, v{d}, v10')
            a(f'v_and_b32 v10, 0xffff0000, v{x}\nv_and_b32 v11, 0xffff0000, v{g}\nv_fma_f32 v13, v11, v{d+1}, v10')
            a(f'v_cvt_pk_bf16_f32 v{PK+4*i+p}, v12, v13')
            lo = X1 + 8*i + 2*p
            a(f'v_lshlrev_b32 v{lo}, 16, v{PK+4*i+p}\nv_and_b32 v{lo+1}, 0xffff0000, v{PK+4*i+p}')
            a(f'v_add_f32 v8, v8, v{lo}\nv_fmac_f32 v9, v{lo}, v{lo}\nv_add_f32 v8, v8, v{lo+1}\nv_fmac_f32 v9, v{lo+1}, v{lo+1}')
    frag1(0); frag1(1)
    a(f's_cmp_eq_u32 s27, 1\ns_cbranch_scc1 {L}')
    frag1(2)
    a.label(L)
    a('v_mov_b32 v10, v8\nv_mov_b32 v11, v9')
    a('v_permlane32_swap_b32 v8, v10\nv_permlane32_swap_b32 v9, v11')
    a('v_add_f32 v8, v8, v10\nv_add_f32 v9, v9, v11')
    a(f's_lshl_b32 s19, s29, 4\ns_lshl_b32 s20, s15, 1\ns_add_u32 s19, s19, s20\ns_add_u32 s19, s19, s27\ns_lshl_b32 s33, s19, 8\ns_add_u32 s33, s33, {WS_STAT}')
    a('v_lshlrev_b32 v10, 3, v2')
    def st1(f):
        a('s_mov_b32 exec_hi, 0')
        a(f'buffer_store_dwordx2 v[8:9], v10, s[8:11], s33 offen{f}')
        a('s_mov_b64 exec, -1')
        for i in range(3):
            Ls = None
            if i == 2:
                Ls = a.newlabel('C_S2'); a(f's_cmp_eq_u32 s27, 1\ns_cbranch_scc1 {Ls}')
            a(f's_add_u32 s19, s31, {WS_X1F + i*1024}\nbuffer_store_dwordx4 v[{PK+4*i}:{PK+4*i+3}], v3, s[8:11], s19 offen{f}')
            if Ls: a.label(Ls)
    store2(a, st1)
    a(f's_lshr_b32 s34, s13, 1\ns_mul_i32 s34, s34, 245760\ns_add_u32 s34, s34, {WS_WGU}')
    npf = prefetch_blocks(a, 96, 34)
    wait_stores(a, npf)
    a.raw('    ; MARK 11')
    gbar(a, FL_C)
    a.raw('    ; MARK 12')
    ST = 16
    a('v_and_b32 v10, 31, v2\nv_lshrrev_b32 v11, 5, v2\nv_lshlrev_b32 v12, 3, v10\nv_lshl_add_u32 v12, v11, 11, v12')
    a(f's_lshl_b32 s19, s29, 12\ns_add_u32 s19, s19, {WS_STAT}')
    for i in range(8): a(f'buffer_load_dwordx2 v[{ST+2*i}:{ST+2*i+1}], v12, s[8:11], s19 offen offset:{i*256} sc1')
    a('s_waitcnt vmcnt(0)')
    for i in range(1, 8): a(f'v_add_f32 v{ST}, v{ST}, v{ST+2*i}\nv_add_f32 v{ST+1}, v{ST+1}, v{ST+2*i+1}')
    a(f'v_mov_b32 v10, v{ST}\nv_mov_b32 v11, v{ST+1}')
    a(f'v_permlane32_swap_b32 v{ST}, v10\nv_permlane32_swap_b32 v{ST+1}, v11')
    a(f'v_add_f32 v10, v{ST}, v10\nv_add_f32 v11, v{ST+1}, v11')
    inv = hex(f2u(1.0/640))
    a(f'v_mul_f32 v10, {inv}, v10\nv_mul_f32 v11, {inv}, v11\nv_fma_f32 v11, -v10, v10, v11\nv_max_f32 v11, 0, v11\nv_add_f32 v11, {hex(f2u(1e-5))}, v11\nv_rsq_f32 v11, v11')
    L = a.newlabel('C_H2')
    def frag2(i):
        for p in range(4):
            lo = X1 + 8*i + 2*p; s2 = A2 + 4*i + p; sb = SB + 4*i + p
            a(f'v_sub_f32 v{lo}, v{lo}, v10\nv_sub_f32 v{lo+1}, v{lo+1}, v10\nv_mul_f32 v{lo}, v{lo}, v11\nv_mul_f32 v{lo+1}, v{lo+1}, v11')
            a(f'v_lshlrev_b32 v12, 16, v{s2}\nv_lshlrev_b32 v13, 16, v{sb}\nv_fma_f32 v{lo}, v{lo}, v12, v13')
            a(f'v_and_b32 v12, 0xffff0000, v{s2}\nv_and_b32 v13, 0xffff0000, v{sb}\nv_fma_f32 v{lo+1}, v{lo+1}, v12, v13')
            a(f'v_cvt_pk_bf16_f32 v{PK+4*i+p}, v{lo}, v{lo+1}')
    frag2(0); frag2(1)
    a(f's_cmp_eq_u32 s27, 1\ns_cbranch_scc1 {L}')
    frag2(2)
    a.label(L)
    def st2(f):
        for i in range(3):
            Ls = None
            if i == 2:
                Ls = a.newlabel('C_S3'); a(f's_cmp_eq_u32 s27, 1\ns_cbranch_scc1 {Ls}')
            a(f's_add_u32 s19, s31, {WS_H2F + i*1024}\nbuffer_store_dwordx4 v[{PK+4*i}:{PK+4*i+3}], v3, s[8:11], s19 offen{f}')
            if Ls: a.label(Ls)
    store2(a, st2)
    a('s_waitcnt vmcnt(0)')
    a.raw('    ; MARK 13')
    gbar(a, FL_UT)
    a.raw('    ; MARK 8')

def phase_d(a):
    vm = Vm(a)
    NSLOT = 6; CB = 24576
    a('s_lshr_b32 s15, s13, 1\ns_and_b32 s19, s13, 1\ns_lshl_b32 s19, s19, 2\ns_lshl_b32 s29, s12, 3\ns_add_u32 s29, s29, s19\ns_add_u32 s29, s29, s3')
    a(f's_mul_i32 s22, s29, 40960\ns_add_u32 s22, s22, {WS_H2F}')
    a(f's_mul_i32 s23, s15, 245760\ns_mul_i32 s30, s3, 6144\ns_add_u32 s23, s23, s30\ns_add_u32 s23, s23, {WS_WGU}')
    def opsB(c):
        slot = c % NSLOT
        ops = [(f's_add_u32 m0, s30, {slot*CB}', False), (f's_add_u32 s24, s23, {c*CB}', False)]
        for q in range(4): ops.append((f'buffer_load_dwordx4 v3, s[8:11], s24 offen offset:{q*1024} lds', True))
        ops += [(f's_add_u32 m0, s30, {slot*CB + 4096}', False), ('s_add_u32 s24, s24, 4096', False)]
        for q in range(2): ops.append((f'buffer_load_dwordx4 v3, s[8:11], s24 offen offset:{q*1024} lds', True))
        return ops
    def opsA(c):
        ops = [(f's_add_u32 s25, s22, {c*4096}', False)]
        for q in range(4):
            ks = 4*c + q
            ops.append((f'buffer_load_dwordx4 a[{4*ks}:{4*ks+3}], v3, s[8:11], s25 offen offset:{q*1024} sc1', True))
        return ops
    ACC = 88
    def read_frag(ks, ct, r):
        off = ((ks//4) % NSLOT)*CB + ((ks & 3)*6 + ct)*1024
        return f'ds_read_b128 v[{r}:{r+3}], v{4 + off//65536} offset:{off % 65536}'
    a('v_mov_b32 v4, v3\nv_add_u32 v5, 0x10000, v3\nv_add_u32 v6, 0x20000, v3')
    def mfmas(ks, ct, r, first):
        d = ACC + 16*ct
        return [f'v_mfma_f32_32x32x16_bf16 v[{d}:{d+15}], v[{r}:{r+3}], a[{4*ks}:{4*ks+3}], ' + ('0' if first else f'v[{d}:{d+15}]')]
    gemm2(a, vm, 40, 4, 6, opsA, opsB, 4, read_frag, mfmas, 16, pd=2, pre=OPT.get('d_pre', 2), nslot=NSLOT, pace=OPT.get('d_pace', 2), ahead=OPT.get('d_ahead', 4), barriers=True)
    a.raw('    ; MARK 14')
    a(f's_mul_i32 s22, s29, 96\ns_mul_i32 s19, s15, 6\ns_add_u32 s22, s22, s19\ns_lshl_b32 s22, s22, 10\ns_add_u32 s22, s22, {WS_HHF}')
    for ct in range(3):
        for q in range(4):
            g = ACC + 16*ct + 4*q; u = ACC + 16*(3+ct) + 4*q
            for e in range(4): a(f'v_mul_f32 v{g+e}, v{g+e}, v{u+e}')
            o = 16 + 8*ct + 2*q
            a(f'v_cvt_pk_bf16_f32 v{o}, v{g}, v{g+1}\nv_cvt_pk_bf16_f32 v{o+1}, v{g+2}, v{g+3}')
    def st(f):
        for k in range(6):
            if k == 4: a('s_add_u32 s22, s22, 4096')
            a(f'buffer_store_dwordx4 v[{16+4*k}:{19+4*k}], v3, s[8:11], s22 offen offset:{(k % 4)*1024}{f}')
    a('s_waitcnt lgkmcnt(0)\ns_barrier')
    store2(a, st)
    a(f's_lshr_b32 s15, s13, 2\ns_mul_i32 s34, s15, {48*5120}\ns_add_u32 s34, s34, {WS_WD}')
    L = a.newlabel('D_PF')
    a(f's_cmp_eq_u32 s3, 0\ns_cbranch_scc1 {L}')
    for i in range(20):
        a(f's_sub_u32 s19, s3, 1\ns_mul_i32 s19, s19, 20\ns_add_u32 s19, s19, {i}')
        a(f's_cmp_ge_u32 s19, 30\ns_cselect_b32 s20, 1, 0\ns_mul_i32 s21, s20, 30\ns_sub_u32 s19, s19, s21\ns_lshl_b32 s19, s19, 10')
        a(f's_mul_i32 s21, s20, {24*5120}\ns_add_u32 s21, s21, s19\ns_add_u32 s21, s21, s34\ns_mul_i32 s20, s20, 61440\ns_add_u32 m0, s20, s19')
        a('buffer_load_dwordx4 v3, s[8:11], s21 offen lds')
    a.label(L)
    wait_stores(a, 20)
    a.raw('    ; MARK 15')
    gbar(a, FL_D)
    a.raw('    ; MARK 16')

def phase_e(a):
    vm = Vm(a)
    roles80(a)
    srd(a, 36, 6, 7, 0, ACT_BYTES)
    ACC = 64; WB = 16; XR = 112; GB = 124
    a('s_mul_i32 s28, s15, 5\ns_mul_i32 s19, s27, 3\ns_add_u32 s28, s28, s19')
    a('s_mul_i32 s31, s29, 40\ns_add_u32 s31, s31, s28\ns_lshl_b32 s31, s31, 10')
    a('v_lshrrev_b32 v7, 5, v2\nv_lshlrev_b32 v7, 4, v7')
    a(f's_lshl_b32 s32, s28, 5\ns_lshl_b32 s19, s12, 13\ns_add_u32 s19, s19, s32\ns_add_u32 s19, s19, {WS_MODF + 5*1280}')
    for i in range(3): vm.issue(f'buffer_load_dwordx4 v[{GB+4*i}:{GB+4*i+3}], v7, s[8:11], s19 offen offset:{i*32} sc1', 'x')
    a(f's_add_u32 s19, s31, {WS_X1F}')
    for i in range(3): vm.issue(f'buffer_load_dwordx4 v[{XR+4*i}:{XR+4*i+3}], v3, s[8:11], s19 offen offset:{i*1024} sc1', 'x')
    main80(a, vm, 96, WS_HHF, WS_WD, 6, 3, ACC, WB, True, OPT.get('e_pre', 2), OPT.get('e_pace', 1), OPT.get('e_ahead', 5))
    a.raw('    ; MARK 17')
    a('s_waitcnt lgkmcnt(0)\ns_barrier')
    exchange80(a, ACC, 16, 0)
    a('v_and_b32 v8, 31, v2\ns_lshl_b32 s19, s29, 5\nv_add_u32 v8, s19, v8\nv_mul_u32_u24 v8, 1280, v8\nv_add_u32 v8, v8, v7')
    L = a.newlabel('E_F2')
    def frag(i):
        for p in range(4):
            d = ACC + 8*i + 2*p; x = XR + 4*i + p; g = GB + 4*i + p
            a(f'v_lshlrev_b32 v10, 16, v{x}\nv_lshlrev_b32 v11, 16, v{g}\nv_fma_f32 v12, v11, v{d}, v10')
            a(f'v_and_b32 v10, 0xffff0000, v{x}\nv_and_b32 v11, 0xffff0000, v{g}\nv_fma_f32 v13, v11, v{d+1}, v10')
            a(f'v_cvt_pk_bf16_f32 v{16+4*i+p}, v12, v13')
        b = 16 + 4*i
        a(f'v_permlane32_swap_b32 v{b}, v{b+2}\nv_permlane32_swap_b32 v{b+1}, v{b+3}')
        a(f'buffer_store_dwordx4 v[{b}:{b+3}], v8, s[36:39], s32 offen offset:{i*32}')
    frag(0); frag(1)
    a(f's_cmp_eq_u32 s27, 1\ns_cbranch_scc1 {L}')
    frag(2)
    a.label(L)
```

```python
import sys
sys.path.insert(0, 'work')
from common import *
from k0v3 import k0_prep
from kp import kp_kernel
upto = sys.argv[1] if len(sys.argv) > 1 else 'E'
out = sys.argv[2] if len(sys.argv) > 2 else 'p.s'
import common
if len(sys.argv) > 3: common.WSB[0] = int(sys.argv[3], 0)
ks = [k0_prep(), kp_kernel(upto)]
hdr = open('header_keep.txt').read()
open(out, 'w').write(module(ks, header_comments=hdr))
open(out.replace('.s', '_diag.s'), 'w').write(module([add_stamps(k, i) for i, k in enumerate(ks)]))
open(out.replace('.s', '_cyc.s'), 'w').write(module([add_stamps(k, i, cyc=True) for i, k in enumerate(ks)]))
```

```python
import sys
sys.path.insert(0, 'work')
from asmlib import *

KA_X, KA_WQKV, KA_WO, KA_BX, KA_WG, KA_WU, KA_WD, KA_C, KA_WMOD, KA_OUT, KA_DBG, KA_WS = [8*i for i in range(12)]
WS_MOD  = 0x0000000
WS_UT   = 0x0004000
WS_STAT = 0x0010000
WS_H1F  = 0x0100000
WS_XF   = 0x0400000
WS_QKV  = 0x0800000
WS_OF   = 0x1000000
WS_A2F  = 0x1400000
WS_X1F  = 0x1800000
WS_HHF  = 0x1C00000
WS_WQKV = 0x2400000
WS_WO   = 0x2800000
WS_WGU  = 0x2C00000
WS_WD   = 0x3000000
WS_MODP = 0x0060000
WS_MODF = 0x0070000
WS_FLAG = 0x0080000
FL_XT, FL_H, FL_KV, FL_O, FL_C, FL_D, FL_UT = [WS_FLAG + 1024*i for i in range(7)]
WS_END  = 0x3400000
ACT_BYTES = 2048*640*2
SRD3 = 0x20000
WSB = [0]
def ws_rebase(a, lo):
    if WSB[0]: a(f's_add_u32 s{lo}, s{lo}, {WSB[0]}\ns_addc_u32 s{lo+1}, s{lo+1}, 0')

import struct
def f2u(x): return struct.unpack('<I', struct.pack('<f', x))[0]

def srd(a, s, base_lo, base_hi, off, size):
    if off:
        a(f's_add_u32 s{s}, s{base_lo}, {off}\ns_addc_u32 s{s+1}, s{base_hi}, 0')
    else:
        a(f's_mov_b32 s{s}, s{base_lo}\ns_mov_b32 s{s+1}, s{base_hi}')
    a(f's_mov_b32 s{s+2}, {size}\ns_mov_b32 s{s+3}, {SRD3}')

def wave_id(a, sdst, vtmp):
    a(f'v_lshrrev_b32 v{vtmp}, 6, v0')
    a(f'v_readfirstlane_b32 s{sdst}, v{vtmp}')


class Vm:
    def __init__(self, a):
        self.a = a; self.ops = []
    def issue(self, text, tag=None):
        self.a(text); self.ops.append(tag)
    def count(self, tags):
        if not isinstance(tags, (list, set)): tags = [tags]
        last = max(i for i, t in enumerate(self.ops) if t in tags)
        n = len(self.ops) - 1 - last
        assert n <= 63, n
        return n
    def wait(self, tags, extra=''):
        self.a(f's_waitcnt vmcnt({self.count(tags)}) {extra}'.strip())

def gemm_loop(a, vm, nks, ck, nct, chunk_ops, read_frag, mfma, wbuf, pd=2, pre=2, nslot=None, pace=2, ahead=5, side=None, nobar=False, nowait=False, noread=False):
    nchunk = (nks + ck - 1)//ck
    ring = nslot is not None and nslot < nchunk
    queue = []
    for c in range(nchunk):
        for t in chunk_ops(c): queue.append((t, c))
    st = dict(have=-1, gap=0)
    def allowed(c):
        if c > st['have'] + ahead: return False
        if ring and c >= nslot and (c - nslot) > st['have'] - 1: return False
        return True
    def emit(n, force_upto=-1):
        k = 0
        while queue:
            (t, isv), c = queue[0]
            if c <= force_upto: pass
            elif k >= n or not allowed(c): break
            queue.pop(0)
            if isv:
                vm.issue(t, ('c', c)); k += 1
            else:
                a(t)
    emit(0, force_upto=pre-1)
    def reg(ks, ct): return wbuf + ((ks % (pd+1))*nct + ct)*4
    def prefetch(ks):
        c = ks // ck
        if c > st['have']:
            assert not (ring and c >= nslot and (c - nslot) > st['have'] - 1 and any(cc <= c for _, cc in queue)), 'ring too small'
            emit(0, force_upto=c)
            vm.wait(('c', c), 'lgkmcnt(0)' if ring else '')
            if not nobar: a('s_barrier')
            st['have'] = c
    for k in range(min(pd, nks)):
        prefetch(k)
        if k == 0: a.raw('    ; MARK 1')
        for ct in range(nct): a(read_frag(k, ct, reg(k, ct)))
    side = list(side or [])
    for ks in range(nks):
        nxt = ks + pd
        if nxt < nks: prefetch(nxt)
        for ct in range(nct):
            later = (nct-1-ct) + nct*len(range(ks+1, min(ks+pd, nks))) + (ct if nxt < nks else 0)
            if not nowait: a(f's_waitcnt lgkmcnt({min(later, 15)})')
            a(mfma(ks, ct, reg(ks, ct), ks == 0))
            if nxt < nks and not noread: a(read_frag(nxt, ct, reg(nxt, ct)))
            st['gap'] += 1
            if st['gap'] >= pace:
                n0 = len(vm.ops); emit(1)
                if len(vm.ops) > n0: st['gap'] = 0
            if side: a(side.pop(0))
    assert not queue
    for t in side: a(t)


def gemm2(a, vm, nks, ck, nct, opsA, opsB, preB, read_frag, mfmas, wbuf, pd=2, pre=2, nslot=None, pace=2, ahead=5,
          barriers=True, side=None, tagp='c'):
    nchunk = (nks + ck - 1)//ck
    ring = nslot is not None and nslot < nchunk
    queue = []
    for c in range(nchunk):
        if c >= preB:
            for t in opsB(c): queue.append((t, c, 'B'))
        for t in opsA(c): queue.append((t, c, 'A'))
    st = dict(have=-1, gap=0)
    def allowed(c, kind):
        if c > st['have'] + ahead: return False
        if kind == 'B' and ring and c >= nslot and (c - nslot) > st['have'] - 1: return False
        return True
    def emit(n, force_upto=-1):
        k = 0
        while queue:
            (t, isv), c, kind = queue[0]
            if c <= force_upto: pass
            elif k >= n or not allowed(c, kind): break
            queue.pop(0)
            if isv:
                vm.issue(t, (tagp, c)); k += 1
            else:
                a(t)
    emit(0, force_upto=pre-1)
    def reg(ks, ct): return wbuf + ((ks % (pd+1))*nct + ct)*4
    def need_chunk(c):
        if c > st['have']:
            emit(0, force_upto=c)
            if barriers:
                vm.wait((tagp, c), 'lgkmcnt(0)' if ring else '')
                a('s_barrier')
            st['have'] = c
    waitedA = [-1]
    def need_act(c):
        if not barriers and c > waitedA[0]:
            vm.wait((tagp, c)); waitedA[0] = c
    for k in range(min(pd, nks)):
        need_chunk(k // ck)
        if k == 0: a.raw('    ; MARK 9')
        for ct in range(nct): a(read_frag(k, ct, reg(k, ct)))
    side = list(side or [])
    for ks in range(nks):
        nxt = ks + pd
        if nxt < nks: need_chunk(nxt // ck)
        need_act(ks // ck)
        for ct in range(nct):
            later = (nct-1-ct) + nct*len(range(ks+1, min(ks+pd, nks))) + (ct if nxt < nks else 0)
            a(f's_waitcnt lgkmcnt({min(later, 15)})')
            ms = mfmas(ks, ct, reg(ks, ct), ks == 0)
            for i, m in enumerate(ms):
                a(m)
                if i == 0 and nxt < nks: a(read_frag(nxt, ct, reg(nxt, ct)))
                st['gap'] += 1
                if st['gap'] >= pace:
                    n0 = len(vm.ops); emit(1)
                    if len(vm.ops) > n0: st['gap'] = 0
                if side: a(side.pop(0))
    assert not queue
    for t in side: a(t)

WS_DIAG = 0x3800000
NMARK = 20
def add_stamps(k, kidx, cyc=False):
    body = k['body']
    name = k['name']
    big = k.get('sgpr', 96) <= 44
    mb = 44 if big else 72
    nm = NMARK if big else 8
    lines = body.split('\n')
    tm = 's_memtime' if cyc else 's_memrealtime'
    out = [f'    {tm} s[94:95]', '    s_memtime s[92:93]']
    for n in range(nm): out.append(f'    s_mov_b32 s{mb+2*n}, 0')
    for l in lines:
        if l.strip() == 's_endpgm': out.append(f'    s_branch {name}_STAMP')
        elif l.strip().startswith('; MARK'):
            n = int(l.strip().split()[2])
            if n < nm: out.append(f'    {tm} s[{mb+2*n}:{mb+2*n+1}]')
        else: out.append(l)
    out.append(f'{name}_STAMP:')
    t = f"""s_mov_b64 exec, -1
    s_waitcnt vmcnt(0) lgkmcnt(0)
    {tm} s[96:97]
    s_memtime s[98:99]
    s_load_dwordx2 s[100:101], s[0:1], {KA_WS}
    s_cmp_ge_u32 s2, {k['grid']}
    s_cbranch_scc1 {name}_STAMPX
    v_lshrrev_b32 v1, 6, v0
    s_lshl_b32 s90, s2, 3
    v_add_u32 v1, s90, v1
    v_lshlrev_b32 v1, 7, v1
    v_add_u32 v1, {WS_DIAG + kidx*1048576}, v1
    s_waitcnt lgkmcnt(0)
    s_sub_u32 s98, s98, s92"""
    vals = ['s94', 's96', 's98'] + [f's{mb+2*n}' for n in range(nm)]
    vals += ['0']*((-len(vals)) % 4)
    for q in range(len(vals)//4):
        t += '\n' + '\n'.join(f'v_mov_b32 v{2+e}, {vals[4*q+e]}' for e in range(4))
        t += f'\nglobal_store_dwordx4 v1, v[2:5], s[100:101] offset:{16*q}'
    for l in t.split('\n'): out.append('    ' + l.strip())
    out.append(f'{name}_STAMPX:')
    out.append('    s_endpgm')
    k2 = dict(k); k2['body'] = '\n'.join(out); k2['sgpr'] = 102
    return k2
```

```python
import sys
sys.path.insert(0, 'work')
from asmlib import *

KA_X, KA_WQKV, KA_WO, KA_BX, KA_WG, KA_WU, KA_WD, KA_C, KA_WMOD, KA_OUT, KA_DBG, KA_WS = [8*i for i in range(12)]
WS_MOD  = 0x0000000
WS_UT   = 0x0004000
WS_STAT = 0x0010000
WS_H1F  = 0x0100000
WS_XF   = 0x0400000
WS_QKV  = 0x0800000
WS_OF   = 0x1000000
WS_A2F  = 0x1400000
WS_X1F  = 0x1800000
WS_HHF  = 0x1C00000
WS_WQKV = 0x2400000
WS_WO   = 0x2800000
WS_WGU  = 0x2C00000
WS_WD   = 0x3000000
WS_MODP = 0x0060000
WS_MODF = 0x0070000
WS_FLAG = 0x0080000
FL_XT, FL_H, FL_KV, FL_O, FL_C, FL_D, FL_UT, FL_BG = [WS_FLAG + 1024*i for i in range(8)]
WS_KVH  = 0x0800000
KVH_STRIDE = 786432
WS_END  = 0x3400000
ACT_BYTES = 2048*640*2
SRD3 = 0x20000
WSB = [0]
def ws_rebase(a, lo):
    if WSB[0]: a(f's_add_u32 s{lo}, s{lo}, {WSB[0]}\ns_addc_u32 s{lo+1}, s{lo+1}, 0')

import struct
def f2u(x): return struct.unpack('<I', struct.pack('<f', x))[0]

def srd(a, s, base_lo, base_hi, off, size):
    if off:
        a(f's_add_u32 s{s}, s{base_lo}, {off}\ns_addc_u32 s{s+1}, s{base_hi}, 0')
    else:
        a(f's_mov_b32 s{s}, s{base_lo}\ns_mov_b32 s{s+1}, s{base_hi}')
    a(f's_mov_b32 s{s+2}, {size}\ns_mov_b32 s{s+3}, {SRD3}')

def wave_id(a, sdst, vtmp):
    a(f'v_lshrrev_b32 v{vtmp}, 6, v0')
    a(f'v_readfirstlane_b32 s{sdst}, v{vtmp}')


def touch(a, srd_s, vtmp, vdst, soff_sgpr, nlines, lane='v2'):
    a(f'v_lshlrev_b32 v{vtmp}, 7, {lane}')
    done = 0
    while done < nlines:
        n = min(64, nlines - done)
        if n < 64: a(f's_mov_b64 exec, {hex((1 << n) - 1)}' if n <= 31 else f's_mov_b32 exec_lo, -1\ns_mov_b32 exec_hi, {hex((1 << (n-32)) - 1)}')
        a(f'buffer_load_dword v{vdst}, v{vtmp}, s[{srd_s}:{srd_s+3}], s{soff_sgpr} offen')
        if n < 64: a('s_mov_b64 exec, -1')
        done += n
        if done < nlines: a(f's_add_u32 s{soff_sgpr}, s{soff_sgpr}, 8192')

class Lg:
    def __init__(self, a):
        self.a = a; self.ops = []
    def issue(self, text, tag):
        self.a(text); self.ops.append(tag)
    def wait(self, tag):
        last = max(i for i, t in enumerate(self.ops) if t == tag)
        n = len(self.ops) - 1 - last
        self.a(f's_waitcnt lgkmcnt({min(n, 15)})')

class Vm:
    def __init__(self, a):
        self.a = a; self.ops = []
    def issue(self, text, tag=None):
        self.a(text); self.ops.append(tag)
    def count(self, tags):
        if not isinstance(tags, (list, set)): tags = [tags]
        last = max(i for i, t in enumerate(self.ops) if t in tags)
        n = len(self.ops) - 1 - last
        assert n <= 63, n
        return n
    def wait(self, tags, extra=''):
        self.a(f's_waitcnt vmcnt({self.count(tags)}) {extra}'.strip())

def gemm_loop(a, vm, nks, ck, nct, chunk_ops, read_frag, mfma, wbuf, pd=2, pre=2, nslot=None, pace=2, ahead=5, side=None, nobar=False, nowait=False, noread=False):
    nchunk = (nks + ck - 1)//ck
    ring = nslot is not None and nslot < nchunk
    queue = []
    for c in range(nchunk):
        for t in chunk_ops(c): queue.append((t, c))
    st = dict(have=-1, gap=0)
    def allowed(c):
        if c > st['have'] + ahead: return False
        if ring and c >= nslot and (c - nslot) > st['have'] - 1: return False
        return True
    def emit(n, force_upto=-1):
        k = 0
        while queue:
            (t, isv), c = queue[0]
            if c <= force_upto: pass
            elif k >= n or not allowed(c): break
            queue.pop(0)
            if isv:
                vm.issue(t, ('c', c)); k += 1
            else:
                a(t)
    emit(0, force_upto=pre-1)
    def reg(ks, ct): return wbuf + ((ks % (pd+1))*nct + ct)*4
    def prefetch(ks):
        c = ks // ck
        if c > st['have']:
            assert not (ring and c >= nslot and (c - nslot) > st['have'] - 1 and any(cc <= c for _, cc in queue)), 'ring too small'
            emit(0, force_upto=c)
            vm.wait(('c', c), 'lgkmcnt(0)' if ring else '')
            if not nobar: a('s_barrier')
            st['have'] = c
    for k in range(min(pd, nks)):
        prefetch(k)
        if k == 0: a.raw('    ; MARK 1')
        for ct in range(nct): a(read_frag(k, ct, reg(k, ct)))
    side = list(side or [])
    for ks in range(nks):
        nxt = ks + pd
        if nxt < nks: prefetch(nxt)
        for ct in range(nct):
            later = (nct-1-ct) + nct*len(range(ks+1, min(ks+pd, nks))) + (ct if nxt < nks else 0)
            if not nowait: a(f's_waitcnt lgkmcnt({min(later, 15)})')
            a(mfma(ks, ct, reg(ks, ct), ks == 0))
            if nxt < nks and not noread: a(read_frag(nxt, ct, reg(nxt, ct)))
            st['gap'] += 1
            if st['gap'] >= pace:
                n0 = len(vm.ops); emit(1)
                if len(vm.ops) > n0: st['gap'] = 0
            if side: a(side.pop(0))
    assert not queue
    for t in side: a(t)


def gemm2(a, vm, nks, ck, nct, opsA, opsB, preB, read_frag, mfmas, wbuf, pd=2, pre=2, nslot=None, pace=2, ahead=5,
          barriers=True, side=None, tagp='c', nlgkm=1):
    nchunk = (nks + ck - 1)//ck
    ring = nslot is not None and nslot < nchunk
    queue = []
    for c in range(nchunk):
        if c >= preB:
            for t in opsB(c): queue.append((t, c, 'B'))
        for t in opsA(c): queue.append((t, c, 'A'))
    st = dict(have=-1, gap=0)
    def allowed(c, kind):
        if c > st['have'] + ahead: return False
        if kind == 'B' and ring and c >= nslot and (c - nslot) > st['have'] - 2: return False
        return True
    def emit(n, force_upto=-1):
        k = 0
        while queue:
            (t, isv), c, kind = queue[0]
            if c <= force_upto: pass
            elif k >= n or not allowed(c, kind): break
            queue.pop(0)
            if isv:
                vm.issue(t, (tagp, c)); k += 1
            else:
                a(t)
    emit(0, force_upto=pre-1)
    def reg(ks, ct): return wbuf + ((ks % (pd+1))*nct + ct)*4
    def need_chunk(c):
        if c > st['have']:
            for (_t, cc, kind) in queue:
                if cc <= c and kind == 'B' and ring and cc >= nslot: assert (cc - nslot) <= st['have'] - 2, 'ring too small'
            emit(0, force_upto=c)
            if barriers:
                assert not any(cc <= c for _, cc, _k in queue)
                vm.wait((tagp, c))
                a('s_barrier')
            st['have'] = c
    waitedA = [-1]
    def need_act(c):
        if not barriers and c > waitedA[0]:
            vm.wait((tagp, c)); waitedA[0] = c
    for k in range(min(pd, nks)):
        need_chunk(k // ck)
        if k == 0: a.raw('    ; MARK 9')
        for ct in range(nct): a(read_frag(k, ct, reg(k, ct)))
    side = list(side or [])
    for ks in range(nks):
        nxt = ks + pd
        if nxt < nks: need_chunk(nxt // ck)
        need_act(ks // ck)
        for ct in range(nct):
            later = (nct-1-ct) + nct*len(range(ks+1, min(ks+pd, nks))) + (ct if nxt < nks else 0)
            a(f's_waitcnt lgkmcnt({min(later*nlgkm, 15)})')
            ms = mfmas(ks, ct, reg(ks, ct), ks == 0)
            for i, m in enumerate(ms):
                a(m)
                if i == 0 and nxt < nks: a(read_frag(nxt, ct, reg(nxt, ct)))
                st['gap'] += 1
                if st['gap'] >= pace:
                    n0 = len(vm.ops); emit(1)
                    if len(vm.ops) > n0: st['gap'] = 0
                if side: a(side.pop(0))
    assert not queue
    for t in side: a(t)

WS_DIAG = 0x3800000
NMARK = 20
def add_stamps(k, kidx, cyc=False):
    body = k['body']
    name = k['name']
    big = k.get('sgpr', 96) <= 44
    mb = 44 if big else 72
    nm = NMARK if big else 8
    lines = body.split('\n')
    tm = 's_memtime' if cyc else 's_memrealtime'
    out = [f'    {tm} s[94:95]', '    s_memtime s[92:93]']
    for n in range(nm): out.append(f'    s_mov_b32 s{mb+2*n}, 0')
    for l in lines:
        if l.strip() == 's_endpgm': out.append(f'    s_branch {name}_STAMP')
        elif l.strip().startswith('; MARK'):
            n = int(l.strip().split()[2])
            if n < nm: out.append(f'    {tm} s[{mb+2*n}:{mb+2*n+1}]')
        else: out.append(l)
    out.append(f'{name}_STAMP:')
    t = f"""s_mov_b64 exec, -1
    s_waitcnt vmcnt(0) lgkmcnt(0)
    {tm} s[96:97]
    s_memtime s[98:99]
    s_load_dwordx2 s[100:101], s[0:1], {KA_WS}
    s_cmp_ge_u32 s2, {min(k['grid'], 1024)}
    s_cbranch_scc1 {name}_STAMPX
    v_lshrrev_b32 v1, 6, v0
    s_lshl_b32 s90, s2, 3
    v_add_u32 v1, s90, v1
    v_lshlrev_b32 v1, 7, v1
    v_add_u32 v1, {WS_DIAG + kidx*1048576}, v1
    s_waitcnt lgkmcnt(0)
    s_sub_u32 s98, s98, s92"""
    vals = ['s94', 's96', 's98'] + [f's{mb+2*n}' for n in range(nm)]
    vals += ['0']*((-len(vals)) % 4)
    for q in range(len(vals)//4):
        t += '\n' + '\n'.join(f'v_mov_b32 v{2+e}, {vals[4*q+e]}' for e in range(4))
        t += f'\nglobal_store_dwordx4 v1, v[2:5], s[100:101] offset:{16*q}'
    for l in t.split('\n'): out.append('    ' + l.strip())
    out.append(f'{name}_STAMPX:')
    out.append('    s_endpgm')
    k2 = dict(k); k2['body'] = '\n'.join(out); k2['sgpr'] = 102; k2['sgpr_real'] = 102
    return k2
```

```python
from common import *

TOUCH = True
H1TOUCH = False
N_GEMV, N_QKV, N_GU, N_WD, N_WO = 240, 160, 320, 192, 80
def k0_prep(code_label=None, code_bytes=0, parts=('gemv', 'qkv', 'wo'), ngemv=240):
    a = Asm()
    b0 = N_GEMV; b1 = b0 + N_QKV; b2 = b1 + (N_GU if 'gu' in parts else 0); b3 = b2 + (N_WD if 'wd' in parts else 0); b4 = b3 + N_WO
    a(f's_cmp_ge_u32 s2, {b4}\ns_cbranch_scc1 K0_END')
    a(f's_load_dwordx4 s[4:7], s[0:1], {KA_WQKV}')
    a(f's_load_dwordx4 s[8:11], s[0:1], {KA_WG}')
    a(f's_load_dwordx4 s[12:15], s[0:1], {KA_WD}')
    a(f's_load_dwordx2 s[16:17], s[0:1], {KA_WMOD}')
    a(f's_load_dwordx2 s[18:19], s[0:1], {KA_WS}')
    a(f's_load_dwordx2 s[20:21], s[0:1], {KA_X}')
    wave_id(a, 3, 1)
    a('v_and_b32 v2, 63, v0')
    a('s_waitcnt lgkmcnt(0)')
    a.raw('    ; MARK 0')
    ws_rebase(a, 18)
    srd(a, 32, 18, 19, 0, WS_END)
    def warmup():
        n = 2
        srd(a, 56, 20, 21, 0, ACT_BYTES)
        a('s_and_b32 s60, s2, 7\ns_lshl_b32 s60, s60, 8\ns_lshr_b32 s61, s2, 3\ns_lshl_b32 s61, s61, 3\ns_add_u32 s60, s60, s61\ns_lshl_b32 s61, s3, 1\ns_add_u32 s60, s60, s61\ns_mul_i32 s60, s60, 1280')
        a('v_lshlrev_b32 v9, 7, v2')
        a('s_mov_b64 exec, 0xfffff')
        a('buffer_load_dword v64, v9, s[56:59], s60 offen')
        if H1TOUCH:
            a(f's_and_b32 s60, s2, 7\ns_mul_i32 s60, s60, 327680\ns_lshr_b32 s61, s2, 3\ns_mul_i32 s61, s61, 10240\ns_add_u32 s60, s60, s61\ns_mul_i32 s61, s3, 2560\ns_add_u32 s60, s60, s61\ns_add_u32 s60, s60, {WS_H1F}')
            a('buffer_load_dword v66, v9, s[32:35], s60 offen')
        else: n -= 1
        a('s_mov_b64 exec, -1')
        if code_label:
            a('s_getpc_b64 s[60:61]')
            Lpc = a.newlabel('K0_PC'); a.label(Lpc)
            a(f's_add_u32 s60, s60, {code_label}-{Lpc}\ns_addc_u32 s61, s61, 0')
            a('s_lshr_b32 s62, s2, 3\ns_lshl_b32 s62, s62, 2\ns_add_u32 s62, s62, s3\ns_lshl_b32 s62, s62, 10\nv_add_u32 v9, s62, v9')
            a(f'v_min_u32 v9, {code_bytes}-{code_label}-4, v9')
            a('s_mov_b64 exec, 0xff')
            a('global_load_dword v65, v9, s[60:61]')
            a('s_mov_b64 exec, -1')
            n += 1
        return n
    a(f's_cmp_ge_u32 s2, {b0}\ns_cbranch_scc1 K0_RELAY')
    if 'gemv' not in parts: a('s_endpgm')
    a(f's_cmp_ge_u32 s2, {ngemv}\ns_cbranch_scc1 K0_END')
    srd(a, 24, 16, 17, 0, 640*3840*2)
    srd(a, 28, 14, 15, 0, 1280)
    a('s_lshr_b32 s22, s2, 2\ns_and_b32 s23, s2, 3')
    a('v_lshrrev_b32 v3, 3, v0\nv_and_b32 v4, 7, v0')
    a('v_mul_u32_u24 v5, 7680, v3\nv_lshl_add_u32 v5, v4, 4, v5')
    a('v_lshlrev_b32 v6, 1, v3')
    a(f's_mul_i32 s36, s23, 320')
    for i in range(5):
        a(f'buffer_load_ushort v{10+i}, v6, s[28:31], s36 offen offset:{i*64}')
    a(f's_lshl_b32 s37, s22, 7\ns_mul_i32 s38, s23, {160*7680}\ns_add_u32 s37, s37, s38')
    for i in range(5):
        a(f'buffer_load_dwordx4 v[{16+4*i}:{19+4*i}], v5, s[24:27], s37 offen')
        if i < 4: a(f's_add_u32 s37, s37, {32*7680}')
    nw = warmup()
    a(f's_waitcnt vmcnt({5 + nw})')
    for i in range(5):
        a(f'v_lshlrev_b32 v{10+i}, 16, v{10+i}')
        a(f'v_mul_f32 v7, 0xbfb8aa3b, v{10+i}')
        a('v_exp_f32 v7, v7')
        a('v_add_f32 v7, 1.0, v7')
        a('v_rcp_f32 v7, v7')
        a(f'v_mul_f32 v7, v{10+i}, v7')
        a('v_cvt_pk_bf16_f32 v7, v7, v7')
        a(f'v_lshlrev_b32 v{10+i}, 16, v7')
    for i in range(5):
        a(f's_waitcnt vmcnt({4-i+nw})')
        if i == 4: a.raw('    ; MARK 1')
        for d in range(4):
            a(f'v_lshlrev_b32 v7, 16, v{16+4*i+d}')
            a(f'v_and_b32 v8, 0xffff0000, v{16+4*i+d}')
            if i == 0:
                a(f'v_mul_f32 v{44+2*d}, v10, v7\nv_mul_f32 v{45+2*d}, v10, v8')
            else:
                a(f'v_fmac_f32 v{44+2*d}, v{10+i}, v7\nv_fmac_f32 v{45+2*d}, v{10+i}, v8')
    for d in range(8):
        a(f'v_add_f32_dpp v{44+d}, v{44+d}, v{44+d} row_ror:8 row_mask:0xf bank_mask:0xf')
    a(f'v_lshrrev_b32 v7, 4, v0\nv_lshlrev_b32 v7, 3, v7\nv_and_b32 v8, 7, v0\nv_add_u32 v7, v7, v8\nv_lshlrev_b32 v7, 5, v7')
    a('s_mov_b32 exec_lo, 0x00ff00ff\ns_mov_b32 exec_hi, 0x00ff00ff')
    a('ds_write_b128 v7, v[44:47]\nds_write_b128 v7, v[48:51] offset:16')
    a('s_mov_b64 exec, -1')
    a('s_waitcnt lgkmcnt(0)\ns_barrier')
    a('s_cmp_lg_u32 s3, 0\ns_cbranch_scc1 K0_END')
    a(f'v_lshrrev_b32 v7, 3, v2\nv_lshlrev_b32 v7, 5, v7\nv_and_b32 v8, 7, v2\nv_lshl_add_u32 v7, v8, 2, v7')
    for r in range(16):
        a(f'ds_read_b32 v{16+r}, v7 offset:{r*256}')
    a('s_waitcnt lgkmcnt(0)')
    for st in (8, 4, 2, 1):
        for r in range(st):
            a(f'v_add_f32 v{16+r}, v{16+r}, v{16+r+st}')
    a(f's_mul_i32 s36, s23, {3840*4}\ns_lshl_b32 s37, s22, 8\ns_add_u32 s36, s36, s37\ns_add_u32 s36, s36, {WS_MODP}')
    a('v_lshlrev_b32 v7, 2, v2')
    a('buffer_store_dword v16, v7, s[32:35], s36 offen')
    a.raw('    ; MARK 2')
    a('s_endpgm')
    a.label('K0_RELAY')
    Lw = a.newlabel('K0_NW')
    a(f's_cmp_ge_u32 s2, 256\ns_cbranch_scc1 {Lw}')
    warmup()
    a.label(Lw)
    Lz = a.newlabel('K0_NZ')
    a(f's_cmp_ge_u32 s2, 256\ns_cbranch_scc1 {Lz}\ns_cmp_lg_u32 s3, 0\ns_cbranch_scc1 {Lz}')
    a('v_mov_b32 v8, 0\nv_mov_b32 v9, 0\nv_mov_b32 v10, 0\nv_mov_b32 v11, 0\nv_lshlrev_b32 v7, 4, v2')
    a(f's_sub_u32 s36, s2, 240\ns_lshl_b32 s36, s36, 10\ns_add_u32 s36, s36, {WS_FLAG}')
    a('buffer_store_dwordx4 v[8:11], v7, s[32:35], s36 offen')
    a.label(Lz)
    a("""v_lshrrev_b32 v20, 5, v2
         v_lshlrev_b32 v20, 2, v20
         v_bfe_u32 v8, v2, 2, 2
         v_add_u32 v20, v20, v8
         v_bfe_u32 v8, v2, 4, 1
         v_lshlrev_b32 v21, 5, v8
         v_and_b32 v9, 3, v2
         v_lshl_add_u32 v21, v9, 3, v21""")
    a('v_lshlrev_b32 v9, 4, v2')
    def dma(P, ninstr_total, src, ld, rowsrc, colsrc):
        cpr = P//16
        magic = (2**16 + cpr - 1)//cpr
        rows, rowbytes = ld
        srd(a, 56, src, src+1, 0, rows*rowbytes)
        per_wave = (ninstr_total + 3)//4
        for q in range(per_wave):
            L = a.newlabel('K0_DS')
            a(f's_mul_i32 s60, s3, {per_wave}\ns_add_u32 s60, s60, {q}')
            if (3*per_wave + q) >= ninstr_total:
                a(f's_cmp_ge_u32 s60, {ninstr_total}\ns_cbranch_scc1 {L}')
            a('s_lshl_b32 s61, s60, 6\nv_add_u32 v23, s61, v2')
            a(f's_mov_b32 s62, {magic}\nv_mul_lo_u32 v24, v23, s62\nv_lshrrev_b32 v24, 16, v24')
            a(f'v_mul_u32_u24 v25, {cpr}, v24\nv_sub_u32 v25, v23, v25')
            colsrc(); rowsrc()
            a(f'v_mul_u32_u24 v24, {rowbytes}, v24\nv_add_u32 v24, v24, v25')
            a('s_lshl_b32 m0, s60, 10')
            a('buffer_load_dwordx4 v24, s[56:59], s63 offen lds')
            a.label(L)
    def frag_out(P, colreg, coloff, out_s, outoff, half=False):
        a(f'v_mul_u32_u24 v26, {P}, v20\nv_add_u32 v26, v26, v{colreg}')
        a(f'ds_read_b64_tr_b16 v[28:29], v26 offset:{coloff}\nds_read_b64_tr_b16 v[30:31], v26 offset:{coloff + 8*P}')
        a('s_waitcnt lgkmcnt(0)')
        if half:
            a('s_mov_b32 exec_lo, 0xffff\ns_mov_b32 exec_hi, 0xffff')
            a(f'buffer_store_dwordx4 v[28:31], v22, s[32:35], s{out_s} offen offset:{outoff}')
            a('s_mov_b64 exec, -1')
        else:
            a(f'buffer_store_dwordx4 v[28:31], v9, s[32:35], s{out_s} offen offset:{outoff}')
        a('s_nop 1')
    a('v_lshrrev_b32 v22, 5, v2\nv_lshlrev_b32 v22, 8, v22\nv_and_b32 v8, 15, v2\nv_lshl_add_u32 v22, v8, 4, v22')
    a(f's_cmp_ge_u32 s2, {b1}\ns_cbranch_scc1 K0_R_GU')
    if 'qkv' not in parts: a('s_endpgm')
    a(f's_sub_u32 s40, s2, {b0}\ns_lshr_b32 s41, s40, 2\ns_and_b32 s42, s40, 3')
    a(f's_mul_i32 s63, s41, {16*3840}\ns_mul_i32 s43, s42, 320\ns_add_u32 s63, s63, s43')
    def colq():
        a('v_mul_u32_u24 v27, 3277, v25\nv_lshrrev_b32 v27, 16, v27\nv_lshlrev_b32 v25, 4, v25\nv_mul_u32_u24 v27, 960, v27\nv_add_u32 v25, v25, v27')
    dma(960, 15, 4, (640, 3840), lambda: None, colq)
    a('v_bfe_u32 v10, v2, 4, 1\nv_lshlrev_b32 v10, 2, v10\nv_and_b32 v11, 3, v2\nv_add_u32 v10, v10, v11')
    a('v_lshlrev_b32 v11, 3, v10\nv_add_u32 v12, 320, v11\nv_add_u32 v13, 592, v11\nv_cmp_lt_u32 vcc, 5, v10\nv_cndmask_b32 v12, v12, v13, vcc')
    a('v_mov_b32 v13, 672\nv_cmp_eq_u32 vcc, 5, v10\nv_cndmask_b32 v12, v12, v13, vcc')
    a('v_add_u32 v14, 656, v11\nv_subrev_u32 v13, 16, v11\nv_cmp_lt_u32 vcc, 1, v10\nv_cndmask_b32 v14, v14, v13, vcc')
    a('v_mov_b32 v13, 32\nv_cmp_eq_u32 vcc, 7, v10\nv_cndmask_b32 v14, v14, v13, vcc')
    a('s_waitcnt vmcnt(0)\ns_barrier')
    a.raw('    ; MARK 3')
    a('s_lshl_b32 s44, s3, 1\ns_mul_i32 s45, s44, 40\nv_add_u32 v12, s45, v12\nv_add_u32 v14, s45, v14')
    a(f's_lshl_b32 s46, s42, 3\ns_add_u32 s46, s46, s44\ns_mul_i32 s46, s46, 40\ns_add_u32 s46, s46, s41\ns_lshl_b32 s46, s46, 11\ns_add_u32 s46, s46, {WS_WQKV}')
    for hh in range(2):
        frag_out(960, 12, 40*hh, 46, 0); frag_out(960, 14, 40*hh, 46, 1024)
        if hh == 0: a(f's_add_u32 s46, s46, {40*2048}')
    a('s_endpgm')
    def gu_section():
        a(f's_sub_u32 s40, s2, {b1}\ns_lshr_b32 s41, s40, 3\ns_bfe_u32 s47, s40, 0x10002\ns_and_b32 s42, s40, 3')
        a(f's_mul_i32 s63, s41, {16*3072}\ns_mul_i32 s43, s42, 768\ns_add_u32 s63, s63, s43')
        a('s_cmp_eq_u32 s47, 0\ns_cselect_b32 s48, s8, s10\ns_cselect_b32 s49, s9, s11')
        dma(768, 12, 48, (640, 3072), lambda: None, lambda: a('v_lshlrev_b32 v25, 4, v25'))
        a('s_waitcnt vmcnt(0)\ns_barrier')
        a.raw('    ; MARK 3')
        a('s_mul_i32 s45, s3, 192\nv_add_u32 v12, s45, v21')
        a(f's_lshl_b32 s46, s42, 2\ns_add_u32 s46, s46, s3\ns_mul_i32 s46, s46, 40\ns_add_u32 s46, s46, s41\ns_mul_i32 s46, s46, 6144\ns_mul_i32 s47, s47, 3072\ns_add_u32 s46, s46, s47\ns_add_u32 s46, s46, {WS_WGU}')
        for ct in range(3): frag_out(768, 12, ct*64, 46, ct*1024)
        a('s_endpgm')

    a.label('K0_R_GU')
    a(f's_cmp_ge_u32 s2, {b2}\ns_cbranch_scc1 K0_R_WD')
    if 'gu' in parts: gu_section()
    def tile80(name, base_id, src, ld, npair, ws_off, rowsrc):
        a(f's_sub_u32 s40, s2, {base_id}\ns_lshr_b32 s41, s40, 1\ns_and_b32 s42, s40, 1')
        a(f's_mul_i32 s63, s42, 640')
        dma(640, 10, src, ld, rowsrc, lambda: a('v_lshlrev_b32 v25, 4, v25'))
        a('s_waitcnt vmcnt(0)\ns_barrier')
        a.raw('    ; MARK 3')
        a('s_mul_i32 s45, s3, 160\nv_add_u32 v12, s45, v21')
        a(f's_lshl_b32 s46, s42, 2\ns_add_u32 s46, s46, s3\ns_mul_i32 s46, s46, {npair}\ns_lshr_b32 s47, s41, 1\ns_add_u32 s46, s46, s47\ns_mul_i32 s46, s46, 5120\ns_add_u32 s46, s46, {ws_off}')
        a('s_and_b32 s47, s41, 1\ns_lshl_b32 s48, s47, 11\ns_add_u32 s48, s48, s46\ns_lshl_b32 s47, s47, 9\ns_add_u32 s47, s47, 4096\ns_add_u32 s47, s47, s46')
        frag_out(640, 12, 0, 48, 0); frag_out(640, 12, 64, 48, 1024)
        frag_out(640, 12, 128, 47, 0, half=True)
        a('s_endpgm')
    a.label('K0_R_WD')
    a(f's_cmp_ge_u32 s2, {b3}\ns_cbranch_scc1 K0_R_WO')
    if 'wd' in parts: tile80('wd', b2, 12, (1536, 1280), 48, WS_WD, lambda: a('s_lshl_b32 s62, s41, 4\nv_add_u32 v24, s62, v24'))
    a.label('K0_R_WO')
    if 'wo' not in parts: a('s_endpgm')
    def rowsrc_wo():
        L1 = a.newlabel('K0_WOL'); L2 = a.newlabel('K0_WOE')
        a(f's_cmp_ge_u32 s41, 32\ns_cbranch_scc1 {L1}')
        a('s_mul_i32 s62, s41, 20\nv_add_u32 v24, s62, v24')
        a(f's_branch {L2}')
        a.label(L1)
        a('s_sub_u32 s62, s41, 32\ns_mul_i32 s62, s62, 80\ns_add_u32 s62, s62, 16')
        a('v_bfe_u32 v27, v24, 2, 1\nv_mul_u32_u24 v27, 40, v27\nv_lshrrev_b32 v19, 3, v24\nv_mul_u32_u24 v19, 20, v19\nv_and_b32 v24, 3, v24\nv_add_u32 v24, v24, v27\nv_add_u32 v24, v24, v19\nv_add_u32 v24, s62, v24')
        a.label(L2)
    tile80('wo', b3, 6, (640, 1280), 20, WS_WO, rowsrc_wo)
    a.label('K0_END')
    a('s_endpgm')
    return dict(name='k0_kernel', body=a.text(), grid=b4, block=256, lds=16384, vgpr=72, sgpr=70)
```

```python
from common import *
import math

SPIN = 2000000
LH = 81920
LFAST = LH + 2560
LK = 114176
LV = LK + 24576
LONES = 159488
NEG = -30000.0
KP_O = WS_H1F
WS_H2F = WS_H1F
KP_X1 = WS_XF

def store2(a, text_fn):
    L1 = a.newlabel('ST_S'); L2 = a.newlabel('ST_E')
    a(f's_cmp_eq_u32 s14, 0\ns_cbranch_scc1 {L1}')
    text_fn('')
    a(f's_branch {L2}')
    a.label(L1)
    text_fn(' sc1')
    a.label(L2)

def poll(a, vaddr, cond_reg='v20', sbase='s[4:5]', n=1, spin=None):
    L = a.newlabel('POLL'); Lo = a.newlabel('POLLX')
    a(f's_mov_b32 s18, {spin or SPIN}')
    a.label(L)
    a(f's_sub_u32 s18, s18, 1\ns_cmp_eq_u32 s18, 0\ns_cbranch_scc1 {Lo}')
    a(f'global_load_dword {cond_reg}, {vaddr}, {sbase} sc1')
    a('s_waitcnt vmcnt(0)')
    a(f'v_cmp_eq_u32 vcc, 0, {cond_reg}')
    a(f's_cbranch_vccnz {L}')
    a.label(Lo)

def poll_bg(a):
    L = a.newlabel('PBG'); Lo = a.newlabel('PBGX'); Ls = a.newlabel('PBGS')
    a(f's_cmp_lg_u32 s3, 1\ns_cbranch_scc1 {Ls}')
    a(f'v_add_u32 v18, {FL_BG}, v3\ns_mov_b32 s18, {SPIN}')
    a.label(L)
    a(f's_sub_u32 s18, s18, 1\ns_cmp_eq_u32 s18, 0\ns_cbranch_scc1 {Lo}')
    a('global_load_dwordx4 v[20:23], v18, s[4:5] sc1\ns_waitcnt vmcnt(0)')
    a('v_min_u32 v20, v20, v21\nv_min_u32 v22, v22, v23\nv_min_u32 v20, v20, v22\nv_cmp_eq_u32 vcc, 0, v20')
    a(f's_cbranch_vccnz {L}')
    a.label(Lo)
    a.label(Ls)

def gbar(a, flag, local=True, during=None, also_set=None):
    L = a.newlabel('GB'); Ld = a.newlabel('GBD')
    a('s_barrier')
    a(f's_cmp_lg_u32 s3, 0\ns_cbranch_scc1 {Ld if during else L}')
    a(f's_lshl_b32 s19, s12, 7\ns_add_u32 s19, s19, {flag}')
    a(f's_lshl_b32 s20, s13, 2\ns_add_u32 s20, s20, s19\nv_mov_b32 v18, s20\nv_mov_b32 v19, 1')
    a('s_mov_b64 exec, 1')
    if local: store2(a, lambda f: a(f'global_store_dword v18, v19, s[4:5]{f}'))
    else: a('global_store_dword v18, v19, s[4:5] sc1')
    if also_set is not None:
        a(f's_lshl_b32 s20, s2, 2\ns_add_u32 s20, s20, {also_set}\nv_mov_b32 v18, s20\nglobal_store_dword v18, v19, s[4:5] sc1')
    a('s_mov_b64 exec, -1')
    a('v_and_b32 v18, 31, v2\nv_lshlrev_b32 v18, 2, v18\nv_add_u32 v18, s19, v18')
    poll(a, 'v18')
    if during:
        a(f's_branch {L}')
        a.label(Ld)
        during()
    a.label(L)
    a('s_barrier')

def fin_mod(a, base, nq_valid_exec=None):
    for e in range(4):
        a(f'v_add_f32 v{base+e}, v{base+e}, v{base+4+e}\nv_add_f32 v{base+8+e}, v{base+8+e}, v{base+12+e}\nv_add_f32 v{base+e}, v{base+e}, v{base+8+e}')

def round_pack(a, base, vone, out):
    a(f'v_cvt_pk_bf16_f32 v{out}, v{base}, v{base+1}\nv_cvt_pk_bf16_f32 v{out+1}, v{base+2}, v{base+3}')
    a(f'v_lshlrev_b32 v{base}, 16, v{out}\nv_and_b32 v{base+1}, 0xffff0000, v{out}\nv_lshlrev_b32 v{base+2}, 16, v{out+1}\nv_and_b32 v{base+3}, 0xffff0000, v{out+1}')
    for e in range(4): a(f'v_add_f32 v{base+e}, v{base+e}, v{vone}')
    a(f'v_cvt_pk_bf16_f32 v{out}, v{base}, v{base+1}\nv_cvt_pk_bf16_f32 v{out+1}, v{base+2}, v{base+3}')

def cperm_pos_bytes(a, vcol4, out, tmp):
    a(f'v_lshrrev_b32 v{out}, 2, v{vcol4}\nv_lshlrev_b32 v{out}, 5, v{out}')
    a(f'v_and_b32 v{tmp}, 1, v{vcol4}\nv_lshl_add_u32 v{out}, v{tmp}, 4, v{out}')
    a(f'v_bfe_u32 v{tmp}, v{vcol4}, 1, 1\nv_lshl_add_u32 v{out}, v{tmp}, 3, v{out}')

LHF = 81920
LFAST = LHF + 5120


def round4(a, base, vone):
    t = base + 4
    for rep in range(2):
        a(f'v_cvt_pk_bf16_f32 v{t}, v{base}, v{base+1}\nv_cvt_pk_bf16_f32 v{t+1}, v{base+2}, v{base+3}')
        a(f'v_lshlrev_b32 v{base}, 16, v{t}\nv_and_b32 v{base+1}, 0xffff0000, v{t}\nv_lshlrev_b32 v{base+2}, 16, v{t+1}\nv_and_b32 v{base+3}, 0xffff0000, v{t+1}')
        if rep == 0:
            for e in range(4): a(f'v_add_f32 v{base+e}, v{base+e}, v{vone}')

def bg_setup(a):
    a('s_lshl_b32 s30, s2, 1')
    a('v_lshrrev_b32 v14, 3, v2\nv_and_b32 v15, 7, v2')
    Ld = a.newlabel('BG_D'); Le = a.newlabel('BG_E')
    a(f's_cmp_ge_u32 s2, 160\ns_cbranch_scc1 {Ld}')
    a(f's_lshr_b32 s19, s30, 3\ns_mul_i32 s43, s19, 49152\ns_and_b32 s20, s30, 3\ns_mul_i32 s20, s20, 768\ns_add_u32 s43, s43, s20')
    a('s_bitcmp1_b32 s30, 2\ns_cselect_b32 s32, s38, s36\ns_cselect_b32 s33, s39, s37')
    a(f's_and_b32 s20, s30, 3\ns_mul_i32 s31, s20, {4*40*6144}\ns_mul_i32 s19, s19, 6144\ns_add_u32 s31, s31, s19\ns_bfe_u32 s19, s30, 0x10002\ns_mul_i32 s19, s19, 3072\ns_add_u32 s31, s31, s19\ns_add_u32 s31, s31, {WS_WGU}')
    a('v_mul_u32_u24 v8, 3072, v14\nv_lshl_add_u32 v8, v15, 4, v8')
    a('v_lshlrev_b32 v14, 6, v14\nv_and_b32 v11, 3, v15\nv_lshl_add_u32 v14, v11, 4, v14\nv_lshrrev_b32 v11, 2, v15')
    a(f'v_mul_u32_u24 v15, {40*6144 - 2048}, v11\nv_add_u32 v15, v15, v14\nv_lshl_add_u32 v14, v11, 10, v14')
    a(f's_branch {Le}')
    a.label(Ld)
    a(f's_sub_u32 s30, s30, 320\ns_lshr_b32 s19, s30, 1\ns_mul_i32 s43, s19, 20480')
    a('s_mov_b32 s32, s40\ns_mov_b32 s33, s41')
    a(f's_lshr_b32 s31, s30, 2\ns_mul_i32 s31, s31, 5120\ns_add_u32 s31, s31, {WS_WD}\ns_and_b32 s30, s19, 1')
    a('v_mul_u32_u24 v8, 1280, v14\nv_lshl_add_u32 v8, v15, 4, v8')
    a.label(Le)
    a('s_mov_b32 s34, 1966080\ns_mov_b32 s35, 0x20000')

def bg_plan(w):
    gu = [(i, rh, m) for i in range(2) for m in range(6) for rh in range(2)]
    dn = [(i, rh, m) for i in range(2) for m in range(5) for rh in range(2)]
    g = gu[w-1::3]; d = dn[w-1::3]
    return [(g[k], d[k] if k < len(d) else None) for k in range(8)]

def bg_load(k, gu, dn):
    i, rh, m = gu
    return (f's_add_u32 s19, s43, {i*768 + rh*8*3072}\nbuffer_load_dwordx4 a[{4*k}:{4*k+3}], v8, s[32:35], s19 offen offset:{128*m}',
            (f's_add_u32 s19, s43, {dn[0]*640 + dn[1]*8*1280}\nbuffer_load_dwordx4 a[{4*k}:{4*k+3}], v8, s[32:35], s19 offen offset:{128*dn[2]}' if dn
             else f'buffer_load_dwordx4 a[{4*k}:{4*k+3}], v8, s[32:35], s43 offen'))

def bg_store(k, gu, dn):
    i, rh, m = gu
    b = 2*m
    off = i*4*40*6144 + (b//3)*40*6144 + (b % 3)*1024 + rh*512
    tg = f's_add_u32 s23, s31, {off}\nbuffer_store_dwordx4 a[{4*k}:{4*k+3}], v{15 if (b % 3) == 2 else 14}, s[8:11], s23 offen sc1'
    if dn is None: return tg, 's_nop 0'
    i, rh, m = dn
    t = f'v_add_u32 v11, {8*m}, v15\nv_mul_u32_u24 v12, 6554, v11\nv_lshrrev_b32 v12, 16, v12\nv_mul_u32_u24 v8, 10, v12\nv_sub_u32 v11, v11, v8'
    t += f'\nv_mul_u32_u24 v12, {48*5}, v12\nv_lshlrev_b32 v12, 10, v12'
    t += f'\ns_lshl_b32 s19, s30, 11\ns_add_u32 s19, s19, {rh*512}\ns_lshl_b32 s23, s30, 9\ns_add_u32 s23, s23, {4096 + rh*256}'
    t += '\nv_cmp_lt_u32 s[20:21], 7, v11\nv_and_b32 v8, 3, v11\nv_lshlrev_b32 v8, 4, v8\nv_lshrrev_b32 v11, 2, v11\nv_lshlrev_b32 v11, 10, v11'
    t += '\nv_lshl_add_u32 v11, v14, 6, v11\nv_add_u32 v11, s19, v11\nv_add_u32 v12, v12, v8\nv_lshlrev_b32 v8, 5, v14\nv_add_u32 v8, s23, v8\nv_cndmask_b32_e64 v11, v11, v8, s[20:21]\nv_add_u32 v12, v12, v11'
    t += f'\ns_add_u32 s23, s31, {i*4*48*5120}\nbuffer_store_dwordx4 a[{4*k}:{4*k+3}], v12, s[8:11], s23 offen sc1'
    return tg, t

LSYNC = LFAST + 16
def lds_arrive(a, off):
    a(f'v_mov_b32 v18, {LSYNC + off}\nv_mov_b32 v19, 1\ns_mov_b64 exec, 1\nds_add_u32 v18, v19\ns_mov_b64 exec, -1')
def lds_spin(a, off, n):
    L = a.newlabel('LSP'); Lo = a.newlabel('LSPX')
    a(f'v_mov_b32 v18, {LSYNC + off}\ns_mov_b32 s18, {SPIN}')
    a.label(L)
    a(f's_sub_u32 s18, s18, 1\ns_cmp_eq_u32 s18, 0\ns_cbranch_scc1 {Lo}')
    a(f'ds_read_b32 v19, v18\ns_waitcnt lgkmcnt(0)\nv_readfirstlane_b32 s19, v19\ns_cmp_lt_u32 s19, {n}\ns_cbranch_scc1 {L}')
    a.label(Lo)

def phase_h(a):
    a(f'v_mov_b32 v18, {LSYNC}\nv_mov_b32 v20, 0\nv_mov_b32 v21, 0\nv_mov_b32 v22, 0\nv_mov_b32 v23, 0\nds_write_b128 v18, v[20:23]\ns_waitcnt lgkmcnt(0)\ns_barrier')
    Lw23 = a.newlabel('H_W23'); Lend = a.newlabel('H_END')
    a(f's_cmp_ge_u32 s3, 2\ns_cbranch_scc1 {Lw23}')
    a('s_setprio 3')
    a('v_lshrrev_b32 v5, 4, v2\nv_and_b32 v4, 15, v2')
    a('s_lshl_b32 s19, s12, 8\ns_lshl_b32 s20, s13, 3\ns_add_u32 s19, s19, s20\ns_lshl_b32 s20, s3, 2\ns_add_u32 s19, s19, s20')
    a('v_add_u32 v5, s19, v5')
    a('v_lshrrev_b32 v7, 1, v4\nv_and_b32 v8, 1, v4')
    a(f's_mul_i32 s21, s3, 2560\ns_add_u32 s21, s21, {WS_MODP}')
    for p in range(4):
        for r in range(3):
            a(f'buffer_load_dwordx4 v[{24+16*r+4*p}:{27+16*r+4*p}], v3, s[8:11], s21 offen offset:{r*1024}')
        if p < 3: a('s_add_u32 s21, s21, 15360')
    srd(a, 24, 16, 17, 0, ACT_BYTES)
    a('v_mul_u32_u24 v6, 1280, v5\nv_lshl_add_u32 v6, v7, 5, v6\nv_lshl_add_u32 v6, v8, 3, v6')
    for i in range(5):
        a(f'buffer_load_dwordx2 v[{192+4*i}:{193+4*i}], v6, s[24:27], 0 offen offset:{i*256}')
        a(f'buffer_load_dwordx2 v[{194+4*i}:{195+4*i}], v6, s[24:27], 0 offen offset:{i*256+16}')
    Lx = a.newlabel('H_XT'); Lx2 = a.newlabel('H_XT2')
    a('s_getreg_b32 s15, hwreg(HW_REG_XCC_ID, 0, 4)\ns_add_u32 s15, s15, 1')
    a(f's_cmp_lg_u32 s3, 1\ns_cbranch_scc1 {Lx}')
    a(f's_lshl_b32 s19, s12, 7\ns_lshl_b32 s20, s13, 2\ns_add_u32 s19, s19, s20\ns_add_u32 s19, s19, {FL_XT}')
    a('v_mov_b32 v18, s19\nv_mov_b32 v19, s15\ns_mov_b64 exec, 1')
    a('global_store_dword v18, v19, s[4:5] sc1')
    a('s_mov_b64 exec, -1')
    a('s_waitcnt vmcnt(11)')
    a(f's_branch {Lx2}')
    a.label(Lx)
    a('s_waitcnt vmcnt(10)')
    a.label(Lx2)
    a.raw('    ; MARK 0')
    a('v_lshrrev_b32 v14, 2, v2\nv_lshlrev_b32 v14, 6, v14\nv_and_b32 v15, 1, v2\nv_lshl_add_u32 v14, v15, 5, v14\nv_bfe_u32 v15, v2, 1, 1\nv_lshl_add_u32 v14, v15, 4, v14')
    a(f's_mul_i32 s20, s3, 2560\ns_add_u32 s20, s20, {LHF}\nv_add_u32 v14, s20, v14')
    a('s_cmp_eq_u32 s3, 1\ns_cselect_b32 s20, 1.0, 0\nv_mov_b32 v12, s20')
    for r in range(3):
        b = 24 + 16*r
        fin_mod(a, b); round4(a, b, 12)
        if r == 2: a('s_mov_b32 exec_hi, 0')
        a(f'ds_write_b128 v14, v[{b}:{b+3}] offset:{r*1024}')
        if r == 2: a('s_mov_b64 exec, -1')
    a('s_waitcnt lgkmcnt(0)')
    lds_arrive(a, 0)
    X = 192; F = 124
    a('s_waitcnt vmcnt(0)')
    a(f's_lshl_b32 s19, s12, 7\ns_add_u32 s19, s19, {FL_XT}\nv_and_b32 v22, 31, v2\nv_lshlrev_b32 v22, 2, v22\nv_add_u32 v22, s19, v22')
    a('global_load_dword v20, v22, s[4:5] sc1')
    for i in range(20):
        a(f'v_lshlrev_b32 v{F+2*i}, 16, v{X+i}\nv_and_b32 v{F+1+2*i}, 0xffff0000, v{X+i}')
    a(f'v_pk_add_f32 v[12:13], v[{F}:{F+1}], v[{F+2}:{F+3}]\nv_pk_add_f32 v[14:15], v[{F+4}:{F+5}], v[{F+6}:{F+7}]')
    for i in range(4, 20, 2):
        a(f'v_pk_add_f32 v[12:13], v[12:13], v[{F+2*i}:{F+2*i+1}]\nv_pk_add_f32 v[14:15], v[14:15], v[{F+2*i+2}:{F+2*i+3}]')
    a('v_pk_add_f32 v[12:13], v[12:13], v[14:15]\nv_add_f32 v12, v12, v13')
    for rot in (8, 4, 2, 1):
        a(f'v_add_f32_dpp v12, v12, v12 row_ror:{rot} row_mask:0xf bank_mask:0xf')
    a(f'v_mul_f32 v12, {hex(f2u(-1.0/640))}, v12\nv_mov_b32 v13, v12')
    for i in range(20): a(f'v_pk_add_f32 v[{F+2*i}:{F+2*i+1}], v[{F+2*i}:{F+2*i+1}], v[12:13]')
    a(f'v_pk_mul_f32 v[14:15], v[{F}:{F+1}], v[{F}:{F+1}]\nv_pk_mul_f32 v[16:17], v[{F+2}:{F+3}], v[{F+2}:{F+3}]')
    for i in range(2, 20, 2):
        a(f'v_pk_fma_f32 v[14:15], v[{F+2*i}:{F+2*i+1}], v[{F+2*i}:{F+2*i+1}], v[14:15]\nv_pk_fma_f32 v[16:17], v[{F+2*i+2}:{F+2*i+3}], v[{F+2*i+2}:{F+2*i+3}], v[16:17]')
    a('v_pk_add_f32 v[14:15], v[14:15], v[16:17]\nv_add_f32 v14, v14, v15')
    for rot in (8, 4, 2, 1):
        a(f'v_add_f32_dpp v14, v14, v14 row_ror:{rot} row_mask:0xf bank_mask:0xf')
    a(f'v_mov_b32 v15, {hex(f2u(1e-5))}\nv_fmac_f32 v15, {hex(f2u(1.0/640))}, v14\nv_rsq_f32 v14, v15')
    a('v_mov_b32 v15, v14')
    Lp = a.newlabel('H_XP'); Lpo = a.newlabel('H_XPO')
    a(f's_waitcnt vmcnt(0)\nv_cmp_eq_u32 vcc, 0, v20\ns_cbranch_vccz {Lpo}')
    poll(a, 'v22')
    a.label(Lpo)
    a('v_cmp_ne_u32 vcc, s15, v20\ns_cmp_eq_u64 vcc, 0\ns_cselect_b32 s14, 1, 0')
    a(f'v_mov_b32 v18, {LFAST}\nv_mov_b32 v19, s14\nds_write_b32 v18, v19')
    lds_spin(a, 0, 2)
    a(f'v_lshlrev_b32 v9, 5, v4\nv_add_u32 v9, {LHF}, v9')
    A1 = 24; SA = 64
    for i in range(5):
        for hh in range(2):
            a(f'ds_read_b128 v[{A1+8*i+4*hh}:{A1+8*i+4*hh+3}], v9 offset:{2560 + i*512 + 16*hh}')
            a(f'ds_read_b128 v[{SA+8*i+4*hh}:{SA+8*i+4*hh+3}], v9 offset:{i*512 + 16*hh}')
    for i in range(20): a(f'v_pk_mul_f32 v[{F+2*i}:{F+2*i+1}], v[{F+2*i}:{F+2*i+1}], v[14:15]')
    for i in range(5):
        a(f's_waitcnt lgkmcnt({min(15, 16 - 4*i)})')
        for k in range(4*i, 4*i+4):
            a(f'v_pk_fma_f32 v[{F+2*k}:{F+2*k+1}], v[{F+2*k}:{F+2*k+1}], v[{A1+2*k}:{A1+2*k+1}], v[{SA+2*k}:{SA+2*k+1}]')
            a(f'v_cvt_pk_bf16_f32 v{164+k}, v{F+2*k}, v{F+2*k+1}')
    a('v_and_b32 v10, 31, v5\nv_lshlrev_b32 v10, 4, v10\nv_lshl_add_u32 v10, v7, 10, v10\nv_lshl_add_u32 v10, v8, 9, v10')
    a('s_lshl_b32 s19, s12, 3\ns_lshr_b32 s20, s13, 2\ns_add_u32 s21, s19, s20\ns_mul_i32 s21, s21, 40960')
    def st(f):
        for i in range(5):
            a(f's_add_u32 s20, s21, {WS_H1F + i*8192}')
            a(f'buffer_store_dwordx4 v[{164+4*i}:{167+4*i}], v10, s[8:11], s20 offen{f}')
    store2(a, st)
    a('s_waitcnt vmcnt(0)')
    a.raw('    ; MARK 1')
    Lw1 = a.newlabel('H_W1'); Lst = a.newlabel('H_ST')
    a(f's_cmp_eq_u32 s3, 1\ns_cbranch_scc1 {Lw1}')
    lds_spin(a, 4, 1)
    a(f's_lshl_b32 s22, s12, 7\ns_add_u32 s22, s22, {FL_H}\ns_lshl_b32 s20, s13, 2\ns_add_u32 s20, s20, s22\nv_mov_b32 v18, s20\nv_mov_b32 v19, 1\ns_mov_b64 exec, 1')
    store2(a, lambda f: a(f'global_store_dword v18, v19, s[4:5]{f}'))
    a('s_mov_b64 exec, -1')
    a('v_and_b32 v18, 31, v2\nv_lshlrev_b32 v18, 2, v18\nv_add_u32 v18, s22, v18')
    poll(a, 'v18')
    a(f's_branch {Lst}')
    a.label(Lw1)
    lds_arrive(a, 4)
    a.label(Lst)
    def st2(f):
        for i in range(5):
            a(f's_add_u32 s20, s21, {WS_XF + i*8192}')
            a(f'buffer_store_dwordx4 v[{X+4*i}:{X+3+4*i}], v10, s[8:11], s20 offen{f}')
    store2(a, st2)
    a(f's_branch {Lend}')
    a.label(Lw23)
    if OPT.get('h_touch', 1):
        a(f's_mul_i32 s20, s12, 327680\ns_mul_i32 s21, s13, 10240\ns_add_u32 s20, s20, s21\ns_sub_u32 s21, s3, 2\ns_mul_i32 s21, s21, 5120\ns_add_u32 s20, s20, s21\ns_add_u32 s20, s20, {WS_H1F}')
        touch(a, 8, 9, 255, 20, 40)
    a(f's_mul_i32 s20, s13, 81920\ns_sub_u32 s21, s3, 2\ns_lshl_b32 s21, s21, 12\ns_add_u32 s20, s20, s21\ns_add_u32 s20, s20, {WS_WQKV}')
    PB = OPT.get('a_preB', 10)
    for i in range(PB):
        a(f's_add_u32 m0, s21, {i*8192}')
        for q in range(4): a(f'buffer_load_dwordx4 v3, s[8:11], s20 offen offset:{q*1024} lds')
        if i < PB-1: a('s_add_u32 s20, s20, 8192')
    L3 = a.newlabel('H_T3')
    a(f's_cmp_eq_u32 s3, 3\ns_cbranch_scc0 {L3}')
    a('s_mul_i32 s20, s13, 20\ns_add_u32 s20, s20, 320\nv_add_u32 v10, s20, v2\nv_lshlrev_b32 v11, 4, v10')
    for p in range(4):
        a(f's_mov_b32 s20, {WS_MODP + p*15360}')
        a(f'buffer_load_dwordx4 v[{44+4*p}:{47+4*p}], v11, s[8:11], s20 offen')
    a.label(L3)
    a('s_waitcnt vmcnt(0)')
    L4 = a.newlabel('H_T4')
    a(f's_cmp_eq_u32 s3, 3\ns_cbranch_scc0 {L4}')
    fin_mod(a, 44)
    a('v_mul_u32_u24 v12, 410, v10\nv_lshrrev_b32 v12, 16, v12')
    a('v_mul_u32_u24 v13, 160, v12\nv_sub_u32 v13, v10, v13')
    cperm_pos_bytes(a, 13, 14, 15)
    a('v_mul_u32_u24 v15, 1280, v12\nv_add_u32 v14, v14, v15')
    a('v_cmp_eq_u32 vcc, 4, v12\nv_cndmask_b32_e64 v12, 0, 1.0, vcc')
    round_pack(a, 44, 12, 48)
    a(f's_lshl_b32 s20, s12, 13\ns_add_u32 s20, s20, {WS_MODF}')
    a('s_mov_b32 exec_lo, 0xfffff\ns_mov_b32 exec_hi, 0')
    a('buffer_store_dwordx2 v[48:49], v14, s[8:11], s20 offen sc1')
    a('s_mov_b64 exec, -1')
    a.label(L4)
    a.label(Lend)
    a.raw('    ; MARK 19')
    a('s_setprio 0')
    a('s_waitcnt lgkmcnt(0)\ns_barrier')
    a(f'v_mov_b32 v18, {LFAST}\nds_read_b32 v19, v18\ns_waitcnt lgkmcnt(0)\nv_readfirstlane_b32 s14, v19')
    a.raw('    ; MARK 2')

ACC_A = 40
QF = 224
OPT = dict(a_pre=3, a_pace=2, a_ahead=5, a_sc=' sc1', a_preB=5)
def phase_a(a):
    vm = Vm(a)
    a('s_lshl_b32 s19, s12, 3\ns_add_u32 s20, s19, s3\ns_sub_u32 s21, 7, s3\ns_add_u32 s21, s19, s21')
    a(f's_mul_i32 s22, s20, 40960\ns_add_u32 s22, s22, {WS_H1F}\ns_mul_i32 s23, s21, 40960\ns_add_u32 s23, s23, {WS_H1F}')
    def opsA(c):
        ops = []
        for tb in range(2):
            ops.append((f's_add_u32 s{24+tb}, s{22+tb}, {c*4096}', False))
            for q in range(4):
                f = (2*(4*c + q) + tb) % 64
                ops.append((f'buffer_load_dwordx4 a[{4*f}:{4*f+3}], v3, s[8:11], s{24+tb} offen offset:{q*1024}{OPT["a_sc"]}', True))
        return ops
    a('v_add_u32 v5, 0x10000, v3')
    def read_frag(ks, ct, r):
        off = (ks*2 + ct)*1024
        return f'ds_read_b128 v[{r}:{r+3}], v{3 if off < 65536 else 5} offset:{off % 65536}'
    def mfmas(ks, ct, r, first):
        out = []
        for tb in range(2):
            d = ACC_A + (tb*2 + ct)*16; f = (2*ks + tb) % 64
            out.append(f'v_mfma_f32_32x32x16_bf16 v[{d}:{d+15}], v[{r}:{r+3}], a[{4*f}:{4*f+3}], ' + ('0' if first else f'v[{d}:{d+15}]'))
        return out
    PB = OPT.get('a_preB', 10)
    a(f's_mul_i32 s26, s13, 81920\ns_lshl_b32 s27, s3, 11\ns_add_u32 s26, s26, s27\ns_add_u32 s26, s26, {WS_WQKV}')
    def opsB(c):
        return [(f's_add_u32 m0, s27, {c*8192}', False), (f's_add_u32 s28, s26, {c*8192}', False),
                ('buffer_load_dwordx4 v3, s[8:11], s28 offen lds', True), ('buffer_load_dwordx4 v3, s[8:11], s28 offen offset:1024 lds', True)]
    gemm2(a, vm, 40, 4, 2, opsA, opsB, PB, read_frag, mfmas, 16, pd=2, pre=OPT['a_pre'], pace=OPT['a_pace'], ahead=OPT['a_ahead'], barriers=(PB < 10))
    a.raw('    ; MARK 3')
    a('v_and_b32 v6, 31, v2\nv_lshrrev_b32 v7, 5, v2')
    a(f'v_lshlrev_b32 v8, 4, v0\nv_add_u32 v8, {LK + 5*4096}, v8\nv_mov_b32 v12, 0\nv_mov_b32 v13, 0\nv_mov_b32 v14, 0\nv_mov_b32 v15, 0')
    Lb = a.newlabel('A_NB')
    a(f's_cmp_lg_u32 s12, 0\ns_cbranch_scc1 {Lb}')
    nb = f2u(NEG) >> 16
    a(f'v_mov_b32 v9, {nb}\nv_cmp_gt_u32 vcc, 128, v0\nv_cndmask_b32 v12, 0, v9, vcc\nv_mov_b32 v14, v12')
    a.label(Lb)
    a('ds_write_b128 v8, v[12:15]')
    a(f'v_mov_b32 v12, 0x3f803f80\nv_mov_b32 v13, 0x3f803f80\nv_mov_b32 v14, 0x3f803f80\nv_mov_b32 v15, 0x3f803f80')
    a(f'v_lshlrev_b32 v8, 4, v0\nv_add_u32 v8, {LONES}, v8\nds_write_b128 v8, v[12:15]')
    a('v_cmp_gt_u32 vcc, 16, v0\ns_and_saveexec_b64 s[26:27], vcc\nds_write_b128 v8, v[12:15] offset:4096\ns_mov_b64 exec, s[26:27]')
    Lz = a.newlabel('A_NZ')
    a(f's_cmp_lg_u32 s12, 0\ns_cbranch_scc1 {Lz}')
    a('v_mov_b32 v12, 0\nv_mov_b32 v13, 0\nv_mov_b32 v14, 0\nv_mov_b32 v15, 0')
    a(f'v_and_b32 v8, 127, v0\nv_lshlrev_b32 v8, 4, v8\nv_lshrrev_b32 v9, 7, v0')
    a(f'v_mul_u32_u24 v10, 4096, v9\nv_add_u32 v10, v10, v8\nv_add_u32 v10, {LK}, v10')
    for gg in (0, 2): a(f'ds_write_b128 v10, v[12:15] offset:{gg*4096}')
    a(f'v_mul_u32_u24 v11, 4128, v9\nv_add_u32 v11, v11, v8\nv_add_u32 v11, {LV}, v11')
    for gg in (0, 2): a(f'ds_write_b128 v11, v[12:15] offset:{gg*4128}')
    a(f'v_cmp_gt_u32 vcc, 128, v0\ns_and_saveexec_b64 s[26:27], vcc\nds_write_b128 v10, v[12:15] offset:{4*4096}\nds_write_b128 v11, v[12:15] offset:{4*4128}\ns_mov_b64 exec, s[26:27]')
    a.label(Lz)
    a(f'v_mul_u32_u24 v8, 4096, v7\nv_add_u32 v8, {LK}, v8\nv_mul_u32_u24 v9, 4128, v7\nv_add_u32 v9, {LV}, v9')
    a(f'v_mov_b32 v10, {LK + 4*4096}\nv_mov_b32 v11, {LV + 4*4128}\nv_cmp_eq_u32 vcc, 1, v7\nv_cndmask_b32 v10, v10, v11, vcc')
    a(f's_mul_i32 s24, s12, {KVH_STRIDE}\ns_mul_i32 s25, s13, 20480\ns_add_u32 s24, s24, s25\ns_add_u32 s24, s24, {WS_KVH}')
    a('v_lshlrev_b32 v11, 11, v7')
    a(f'v_mov_b32 v12, {4*2048}\nv_mov_b32 v13, {9*2048}\nv_cndmask_b32 v12, v12, v13, vcc')
    for tb in range(2):
        a(f's_sub_u32 s25, s{20+tb}, s19\ns_lshl_b32 s25, s25, 5\nv_add_u32 v14, s25, v6\nv_lshlrev_b32 v14, 3, v14')
        a('v_mov_b32 v15, v14')
        a('v_add_u32 v14, 2048, v14')
        P = 120 + 10*tb
        quads = [(0, 0), (0, 1), (0, 2), (0, 3), (1, 0)]
        for i, (ct, q) in enumerate(quads):
            d = ACC_A + (tb*2 + ct)*16 + 4*q
            a(f'v_cvt_pk_bf16_f32 v{P+2*i}, v{d}, v{d+1}\nv_cvt_pk_bf16_f32 v{P+2*i+1}, v{d+2}, v{d+3}')
        a(f'v_add_u32 v21, v8, v14\nds_write_b64 v21, v[{P}:{P+1}]\nds_write_b64 v21, v[{P+2}:{P+3}] offset:8192')
        a(f'v_add_u32 v22, v10, v14\nds_write_b64 v22, v[{P+4}:{P+5}]')
        a(f'v_add_u32 v23, v9, v14\nds_write_b64 v23, v[{P+6}:{P+7}]\nds_write_b64 v23, v[{P+8}:{P+9}] offset:{2*4128}')
        Ls = a.newlabel('A_NS')
        a(f's_cmp_eq_u32 s12, 7\ns_cbranch_scc1 {Ls}')
        a('v_add_u32 v21, v11, v15\nv_add_u32 v22, v12, v15')
        a(f'buffer_store_dwordx2 v[{P}:{P+1}], v21, s[8:11], s24 offen sc1')
        a(f's_add_u32 s25, s24, {2*2048}\nbuffer_store_dwordx2 v[{P+2}:{P+3}], v21, s[8:11], s25 offen sc1')
        a(f'buffer_store_dwordx2 v[{P+4}:{P+5}], v22, s[8:11], s24 offen sc1')
        a(f's_add_u32 s25, s24, {5*2048}\nbuffer_store_dwordx2 v[{P+6}:{P+7}], v21, s[8:11], s25 offen sc1')
        a(f's_add_u32 s25, s24, {7*2048}\nbuffer_store_dwordx2 v[{P+8}:{P+9}], v21, s[8:11], s25 offen sc1')
        a.label(Ls)
        Q = QF + 8*tb
        for i, q in enumerate((1, 2, 3)):
            d = ACC_A + (tb*2 + 1)*16 + 4*q
            a(f'v_cvt_pk_bf16_f32 v{Q+2*i}, v{d}, v{d+1}\nv_cvt_pk_bf16_f32 v{Q+2*i+1}, v{d+2}, v{d+3}')
        a(f'v_mov_b32 v21, 0x3f80\nv_cndmask_b32 v{Q+4}, v{Q+4}, v21, vcc\nv_cndmask_b32_e64 v{Q+5}, v{Q+5}, 0, vcc\nv_mov_b32 v{Q+6}, 0\nv_mov_b32 v{Q+7}, 0')
    a('s_waitcnt lgkmcnt(0)\ns_barrier')
    a.raw('    ; MARK 4')

def phase_b(a):
    import sys as _sys
    from kp_attn import attention
    attention(a, _sys.modules[__name__])
    a.raw('    ; MARK 6')
    a(f's_lshl_b32 s19, s12, 3\ns_add_u32 s20, s19, s3\ns_sub_u32 s21, 7, s3\ns_add_u32 s21, s21, s19\ns_mul_i32 s20, s20, 40960\ns_mul_i32 s21, s21, 40960')
    a(f's_lshl_b32 s22, s13, 10\ns_add_u32 s22, s22, {KP_O}')
    a(f's_lshr_b32 s23, s13, 2\ns_add_u32 s23, s23, 32\ns_lshl_b32 s23, s23, 10\ns_bfe_u32 s25, s13, 0x10001\ns_lshl_b32 s25, s25, 9\ns_add_u32 s23, s23, s25\ns_and_b32 s25, s13, 1\ns_lshl_b32 s25, s25, 3\ns_add_u32 s23, s23, s25\ns_add_u32 s23, s23, {KP_O}')
    def st(f):
        for tb in range(2):
            R = 240 + 6*tb
            a(f's_add_u32 s25, s{20+tb}, s22\nbuffer_store_dwordx4 v[{R}:{R+3}], v3, s[8:11], s25 offen{f}')
        a('s_mov_b32 exec_hi, 0')
        for tb in range(2):
            R = 240 + 6*tb
            a(f's_add_u32 s25, s{20+tb}, s23\nbuffer_store_dwordx2 v[{R+4}:{R+5}], v3, s[8:11], s25 offen{f}')
        a('s_mov_b64 exec, -1')
    store2(a, st)
    a('s_waitcnt vmcnt(0)')
    gbar(a, FL_O, also_set=FL_BG)
    a.raw('    ; MARK 7')

def kp_kernel(upto='E'):
    a = Asm()
    a('s_cmp_ge_u32 s2, 256\ns_cbranch_scc1 KP_END')
    a(f's_load_dwordx2 s[4:5], s[0:1], {KA_WS}')
    a(f's_load_dwordx2 s[6:7], s[0:1], {KA_OUT}')
    a(f's_load_dwordx2 s[16:17], s[0:1], {KA_X}')
    a(f's_load_dwordx4 s[36:39], s[0:1], {KA_WG}')
    a(f's_load_dwordx2 s[40:41], s[0:1], {KA_WD}')
    wave_id(a, 3, 1)
    a('v_and_b32 v2, 63, v0\nv_lshlrev_b32 v3, 4, v2')
    if OPT.get('perm_roles'): a('s_lshr_b32 s12, s2, 5\ns_and_b32 s13, s2, 31\ns_mov_b32 s14, 0')
    else: a('s_and_b32 s12, s2, 7\ns_lshr_b32 s13, s2, 3\ns_mov_b32 s14, 0')
    a('s_waitcnt lgkmcnt(0)')
    ws_rebase(a, 4)
    srd(a, 8, 4, 5, 0, WS_END)
    phase_h(a)
    if upto != 'H':
        phase_a(a)
        phase_b(a)
    if upto not in ('H', 'B'):
        from kp2 import phase_c, phase_d, phase_e
        phase_c(a)
        if upto != 'C':
            phase_d(a)
            if upto != 'D': phase_e(a)
    a.label('KP_END')
    a('s_endpgm')
    a.label('KP_CODE_END')
    return dict(name='kp_kernel', body=a.text(), grid=256, block=256, lds=163840, vgpr=256, agpr=256, sgpr=44, sgpr_real=96)
```

```python
from common import *
from kp import store2, gbar, poll, poll_bg, OPT, WS_H2F, KP_O, KP_X1

def BSC(): return ' sc1' if OPT.get('bg', 1) and OPT.get('b_sc1', 1) else ''
LX = 102400

def roles80(a):
    a('s_and_b32 s26, s3, 1\ns_lshr_b32 s27, s3, 1\ns_lshr_b32 s15, s13, 2')
    a('s_lshl_b32 s29, s12, 3\ns_and_b32 s19, s13, 3\ns_lshl_b32 s19, s19, 1\ns_add_u32 s29, s29, s19\ns_add_u32 s29, s29, s26')

def main80(a, vm, nks_total, ws_act, ws_w, nslot, preB, ACC, WB, barriers, pre, pace, ahead, tr=False):
    nks = nks_total//2; npair = nks//2; nchunk = nks//4
    half_bytes = nslot*10240
    a(f's_and_b32 s22, s29, 7\ns_mul_i32 s22, s22, {nks_total}\ns_mul_i32 s19, s27, {nks}\ns_add_u32 s22, s22, s19\ns_lshl_b32 s22, s22, 10')
    a(f's_add_u32 s19, s12, 7\ns_and_b32 s19, s19, 7\ns_mul_i32 s19, s19, {KVH_STRIDE}\ns_add_u32 s22, s22, s19\ns_add_u32 s22, s22, {ws_act}')
    a(f's_mul_i32 s23, s15, {2*npair}\ns_mul_i32 s19, s27, {npair}\ns_add_u32 s23, s23, s19\ns_add_u32 s23, s23, s26\ns_mul_i32 s23, s23, 5120\ns_add_u32 s23, s23, {ws_w}')
    a(f's_mul_i32 s30, s27, {half_bytes}\ns_mul_i32 s19, s26, 5120\ns_add_u32 s30, s30, s19')
    a(f's_mul_i32 s19, s27, {half_bytes}\nv_add_u32 v4, s19, v3')
    a('v_lshrrev_b32 v5, 5, v2\nv_lshlrev_b32 v5, 8, v5\nv_and_b32 v6, 15, v2\nv_lshl_add_u32 v5, v6, 4, v5\nv_add_u32 v5, s19, v5\nv_add_u32 v5, 4096, v5')
    def rot(c, mul, base, dst):
        return [(f's_add_u32 s33, s35, {c}', False), (f's_sub_u32 s21, s33, {nchunk}', False), (f's_cmp_ge_u32 s33, {nchunk}', False),
                ('s_cselect_b32 s33, s21, s33', False), (f's_mul_i32 s33, s33, {mul}', False), (f's_add_u32 s{dst}, s{base}, s33', False)]
    def opsB(c):
        slot = c % nslot
        ops = [(f's_add_u32 m0, s30, {slot*10240}', False)] + rot(c, 10240, 23, 24)
        for q in range(4): ops.append((f'buffer_load_dwordx4 v3, s[8:11], s24 offen offset:{q*1024}{BSC()} lds', True))
        ops += [(f's_add_u32 m0, s30, {slot*10240 + 4096}', False), (f's_add_u32 s24, s24, 4096', False)]
        ops.append((f'buffer_load_dwordx4 v3, s[8:11], s24 offen{BSC()} lds', True))
        return ops
    TA = OPT.get('e_ta', 0)
    if TA:
        a('s_and_b32 s19, s13, 3\ns_lshl_b32 s19, s19, 2\ns_add_u32 s19, s19, s3\ns_mul_i32 s19, s19, 10\ns_cmp_ge_u32 s19, 80\ns_cselect_b32 s20, 1, 0')
        a(f's_mul_i32 s21, s20, 80\ns_sub_u32 s19, s19, s21\ns_lshl_b32 s19, s19, 7\ns_mul_i32 s20, s20, {npair*5120}\ns_add_u32 s19, s19, s20\ns_mul_i32 s20, s15, {2*npair*5120}\ns_add_u32 s19, s19, s20\ns_add_u32 s34, s19, {ws_w}')
        a('v_lshlrev_b32 v9, 7, v2')
    def opsT(c):
        if not TA or c >= nchunk: return []
        return [(f's_add_u32 s20, s34, {c*10240}', False), ('s_mov_b64 exec, 0x3ff\nbuffer_load_dword v10, v9, s[8:11], s20 offen\ns_mov_b64 exec, -1', True)]
    def opsA(c):
        ops = sum((opsT(k) for k in range(preB, preB + TA)), []) if c == 0 else opsT(preB + TA - 1 + c)
        ops = ops + rot(c, 4096, 22, 25)
        for q in range(4):
            ks = 4*c + q
            ops.append((f'buffer_load_dwordx4 a[{4*ks}:{4*ks+3}], v3, s[8:11], s25 offen offset:{q*1024} sc1', True))
        return ops
    if tr:
        a('v_lshrrev_b32 v6, 5, v2\nv_lshlrev_b32 v6, 2, v6\nv_bfe_u32 v4, v2, 2, 2\nv_add_u32 v6, v6, v4\nv_and_b32 v4, 3, v2\nv_lshlrev_b32 v4, 3, v4')
        a('v_lshl_add_u32 v5, v6, 5, v4\nv_lshl_add_u32 v4, v6, 6, v4\nv_bfe_u32 v6, v2, 4, 1\nv_lshl_add_u32 v4, v6, 5, v4')
        a(f's_mul_i32 s19, s27, {half_bytes}\nv_add_u32 v4, s19, v4\nv_add_u32 v5, s19, v5\nv_add_u32 v5, 4096, v5')
    def read_frag(ks, ct, r):
        c = ks // 4; slot = c % nslot
        base = slot*10240 + ((ks >> 1) & 1)*5120
        if tr:
            if ct < 2:
                o = base + (ks & 1)*2048 + ct*1024
                return f'ds_read_b64_tr_b16 v[{r}:{r+1}], v4 offset:{o}\nds_read_b64_tr_b16 v[{r+2}:{r+3}], v4 offset:{o+512}'
            o = base + (ks & 1)*512
            return f'ds_read_b64_tr_b16 v[{r}:{r+1}], v5 offset:{o}\nds_read_b64_tr_b16 v[{r+2}:{r+3}], v5 offset:{o+256}'
        if ct < 2: return f'ds_read_b128 v[{r}:{r+3}], v4 offset:{base + (ks & 1)*2048 + ct*1024}'
        return f'ds_read_b128 v[{r}:{r+3}], v5 offset:{base + (ks & 1)*512}'
    def mfmas(ks, ct, r, first):
        d = ACC + 16*ct
        return [f'v_mfma_f32_32x32x16_bf16 v[{d}:{d+15}], v[{r}:{r+3}], a[{4*ks}:{4*ks+3}], ' + ('0' if first else f'v[{d}:{d+15}]')]
    gemm2(a, vm, nks, 4, 3, opsA, opsB, preB, read_frag, mfmas, WB, pd=2, pre=pre, nslot=nslot, pace=pace, ahead=ahead, barriers=barriers, nlgkm=(2 if tr else 1))

def exchange80(a, ACC, T, region):
    def q(i): return ACC + 4*i
    L1 = a.newlabel('X_KH1'); L2 = a.newlabel('X_W')
    a(f's_mul_i32 s19, s3, 6144\ns_add_u32 s19, s19, {region}\nv_add_u32 v6, s19, v3')
    a(f's_cmp_eq_u32 s27, 1\ns_cbranch_scc1 {L1}')
    for i in range(6, 10): a(f'ds_write_b128 v6, v[{q(i)}:{q(i)+3}] offset:{(i-6)*1024}')
    a(f's_branch {L2}')
    a.label(L1)
    for i in range(6): a(f'ds_write_b128 v6, v[{q(i)}:{q(i)+3}] offset:{i*1024}')
    a.label(L2)
    a('s_waitcnt lgkmcnt(0)\ns_barrier')
    a(f's_xor_b32 s19, s3, 2\ns_mul_i32 s19, s19, 6144\ns_add_u32 s19, s19, {region}\nv_add_u32 v6, s19, v3')
    L3 = a.newlabel('X_R1'); L4 = a.newlabel('X_RD')
    a(f's_cmp_eq_u32 s27, 1\ns_cbranch_scc1 {L3}')
    for i in range(6): a(f'ds_read_b128 v[{T+4*i}:{T+4*i+3}], v6 offset:{i*1024}')
    for i in range(6):
        a(f's_waitcnt lgkmcnt({5-i})')
        for e in range(4): a(f'v_add_f32 v{q(i)+e}, v{q(i)+e}, v{T+4*i+e}')
    a(f's_branch {L4}')
    a.label(L3)
    for i in range(4): a(f'ds_read_b128 v[{T+4*i}:{T+4*i+3}], v6 offset:{i*1024}')
    for i in range(4):
        a(f's_waitcnt lgkmcnt({3-i})')
        for e in range(4): a(f'v_add_f32 v{q(i)+e}, v{q(6+i)+e}, v{T+4*i+e}')
    a.label(L4)

def prefetch_blocks(a, nblk, gbase_sgpr, contiguous=True, lds_map=None):
    L = a.newlabel('PF_N')
    per = (nblk + 2)//3
    a(f's_cmp_eq_u32 s3, 0\ns_cbranch_scc1 {L}')
    a(f's_sub_u32 s19, s3, 1\ns_mul_i32 s19, s19, {per*1024}\ns_add_u32 s20, s{gbase_sgpr}, s19')
    for i in range(per):
        if i % 4 == 0:
            a(f's_add_u32 m0, s19, {i*1024}')
            if i: a('s_add_u32 s20, s20, 4096')
        guard = (2*per + i >= nblk)
        if guard:
            L2 = a.newlabel('PF_S'); a(f's_cmp_eq_u32 s3, 3\ns_cbranch_scc1 {L2}')
        a(f'buffer_load_dwordx4 v3, s[8:11], s20 offen offset:{(i%4)*1024}{BSC()} lds')
        if guard: a.label(L2)
    a.label(L)
    return per

def wait_stores(a, npf):
    L1 = a.newlabel('WS_A'); L2 = a.newlabel('WS_B')
    a(f's_cmp_eq_u32 s3, 0\ns_cbranch_scc1 {L1}')
    a(f's_waitcnt vmcnt({npf})')
    a(f's_branch {L2}')
    a.label(L1)
    a('s_waitcnt vmcnt(0)')
    a.label(L2)

def phase_c(a):
    vm = Vm(a)
    roles80(a)
    ACC = 64; WB = 16
    XR = 112; GA = 124; A2 = 136; SB = 148
    a('s_mul_i32 s28, s15, 5\ns_mul_i32 s19, s27, 3\ns_add_u32 s28, s28, s19')
    a('s_mul_i32 s31, s29, 40\ns_add_u32 s31, s31, s28\ns_lshl_b32 s31, s31, 10')
    a('v_lshrrev_b32 v7, 5, v2\nv_lshlrev_b32 v7, 4, v7')
    a(f's_lshl_b32 s32, s28, 5\ns_lshl_b32 s19, s12, 13\ns_add_u32 s32, s32, s19\ns_add_u32 s32, s32, {WS_MODF}')
    def extra_ops():
        ops = [(f's_add_u32 s19, s31, {WS_XF}', False)]
        for i in range(3): ops.append((f'buffer_load_dwordx4 v[{XR+4*i}:{XR+4*i+3}], v3, s[8:11], s19 offen offset:{i*1024} sc1', True))
        for seg, R in ((2, GA), (4, A2), (3, SB)):
            ops.append((f's_add_u32 s19, s32, {seg*1280}', False))
            for i in range(3): ops.append((f'buffer_load_dwordx4 v[{R+4*i}:{R+4*i+3}], v7, s[8:11], s19 offen offset:{i*32} sc1', True))
        return ops
    nks = 20
    a(f's_mul_i32 s22, s29, 40\ns_mul_i32 s19, s27, {nks}\ns_add_u32 s22, s22, s19\ns_lshl_b32 s22, s22, 10\ns_add_u32 s22, s22, {KP_O}')
    half_bytes = 5*10240
    a(f's_mul_i32 s19, s27, {half_bytes}\nv_add_u32 v4, s19, v3')
    a('v_lshrrev_b32 v5, 5, v2\nv_lshlrev_b32 v5, 8, v5\nv_and_b32 v6, 15, v2\nv_lshl_add_u32 v5, v6, 4, v5\nv_add_u32 v5, s19, v5\nv_add_u32 v5, 4096, v5')
    def opsA(c):
        ops = [(f's_add_u32 s25, s22, {c*4096}', False)]
        for q in range(4):
            ks = 4*c + q
            ops.append((f'buffer_load_dwordx4 a[{4*ks}:{4*ks+3}], v3, s[8:11], s25 offen offset:{q*1024} sc1', True))
        return ops
    def read_frag(ks, ct, r):
        base = (ks//4)*10240 + ((ks >> 1) & 1)*5120
        if ct < 2: return f'ds_read_b128 v[{r}:{r+3}], v4 offset:{base + (ks & 1)*2048 + ct*1024}'
        return f'ds_read_b128 v[{r}:{r+3}], v5 offset:{base + (ks & 1)*512}'
    def mfmas(ks, ct, r, first):
        d = ACC + 16*ct
        return [f'v_mfma_f32_32x32x16_bf16 v[{d}:{d+15}], v[{r}:{r+3}], a[{4*ks}:{4*ks+3}], ' + ('0' if first else f'v[{d}:{d+15}]')]
    opsA2 = lambda c: opsA(c) + (extra_ops() if c == 4 else [])
    gemm2(a, vm, nks, 4, 3, opsA2, None, 99, read_frag, mfmas, WB, pd=2, pre=OPT.get('c_pre', 2), pace=1, ahead=5, barriers=False)
    a.raw('    ; MARK 10')
    exchange80(a, ACC, 16, LX)
    a('v_mov_b32 v8, 0\nv_mov_b32 v9, 0')
    X1 = 160
    PK = 184
    L = a.newlabel('C_F2')
    def frag1(i):
        for p in range(4):
            d = ACC + 8*i + 2*p; x = XR + 4*i + p; g = GA + 4*i + p
            a(f'v_lshlrev_b32 v10, 16, v{x}\nv_lshlrev_b32 v11, 16, v{g}\nv_fma_f32 v12, v11, v{d}, v10')
            a(f'v_and_b32 v10, 0xffff0000, v{x}\nv_and_b32 v11, 0xffff0000, v{g}\nv_fma_f32 v13, v11, v{d+1}, v10')
            a(f'v_cvt_pk_bf16_f32 v{PK+4*i+p}, v12, v13')
            lo = X1 + 8*i + 2*p
            a(f'v_lshlrev_b32 v{lo}, 16, v{PK+4*i+p}\nv_and_b32 v{lo+1}, 0xffff0000, v{PK+4*i+p}')
            a(f'v_add_f32 v8, v8, v{lo}\nv_fmac_f32 v9, v{lo}, v{lo}\nv_add_f32 v8, v8, v{lo+1}\nv_fmac_f32 v9, v{lo+1}, v{lo+1}')
    frag1(0); frag1(1)
    a(f's_cmp_eq_u32 s27, 1\ns_cbranch_scc1 {L}')
    frag1(2)
    a.label(L)
    a('v_mov_b32 v10, v8\nv_mov_b32 v11, v9')
    a('v_permlane32_swap_b32 v8, v10\nv_permlane32_swap_b32 v9, v11')
    a('v_add_f32 v8, v8, v10\nv_add_f32 v9, v9, v11')
    a(f's_lshl_b32 s19, s29, 4\ns_lshl_b32 s20, s15, 1\ns_add_u32 s19, s19, s20\ns_add_u32 s19, s19, s27\ns_lshl_b32 s33, s19, 8\ns_add_u32 s33, s33, {WS_STAT}')
    a('v_lshlrev_b32 v10, 3, v2')
    def st1(f):
        a('s_mov_b32 exec_hi, 0')
        a(f'buffer_store_dwordx2 v[8:9], v10, s[8:11], s33 offen{f}')
        a('s_mov_b64 exec, -1')
        for i in range(3):
            Ls = None
            if i == 2:
                Ls = a.newlabel('C_S2'); a(f's_cmp_eq_u32 s27, 1\ns_cbranch_scc1 {Ls}')
            a(f's_add_u32 s19, s31, {KP_X1 + i*1024}\nbuffer_store_dwordx4 v[{PK+4*i}:{PK+4*i+3}], v3, s[8:11], s19 offen{f}')
            if Ls: a.label(Ls)
    store2(a, st1)
    a(f's_lshr_b32 s34, s13, 1\ns_mul_i32 s34, s34, 245760\ns_add_u32 s34, s34, {WS_WGU}')
    if OPT.get('d_rotg'): a('s_mul_i32 s19, s12, 24576\ns_add_u32 s34, s34, s19')
    else: a(f's_and_b32 s19, s13, 1\ns_mul_i32 s19, s19, {5*24576*OPT.get("d_rot", 0)}\ns_add_u32 s34, s34, s19')
    a('s_waitcnt vmcnt(0)')
    a.raw('    ; MARK 11')
    gbar(a, FL_C, during=((lambda: poll_bg(a)) if OPT.get('bg', 1) else None))
    a.raw('    ; MARK 12')
    ST = 16
    a('v_and_b32 v10, 31, v2\nv_lshrrev_b32 v11, 5, v2\nv_lshlrev_b32 v12, 3, v10\nv_lshl_add_u32 v12, v11, 11, v12')
    a(f's_lshl_b32 s19, s29, 12\ns_add_u32 s19, s19, {WS_STAT}')
    for i in range(8): a(f'buffer_load_dwordx2 v[{ST+2*i}:{ST+2*i+1}], v12, s[8:11], s19 offen offset:{i*256} sc1')
    a('s_waitcnt vmcnt(0)')
    for i in range(1, 8): a(f'v_add_f32 v{ST}, v{ST}, v{ST+2*i}\nv_add_f32 v{ST+1}, v{ST+1}, v{ST+2*i+1}')
    a(f'v_mov_b32 v10, v{ST}\nv_mov_b32 v11, v{ST+1}')
    a(f'v_permlane32_swap_b32 v{ST}, v10\nv_permlane32_swap_b32 v{ST+1}, v11')
    a(f'v_add_f32 v10, v{ST}, v10\nv_add_f32 v11, v{ST+1}, v11')
    inv = hex(f2u(1.0/640))
    a(f'v_mul_f32 v10, {inv}, v10\nv_mul_f32 v11, {inv}, v11\nv_fma_f32 v11, -v10, v10, v11\nv_max_f32 v11, 0, v11\nv_add_f32 v11, {hex(f2u(1e-5))}, v11\nv_rsq_f32 v11, v11')
    L = a.newlabel('C_H2')
    def frag2(i):
        for p in range(4):
            lo = X1 + 8*i + 2*p; s2 = A2 + 4*i + p; sb = SB + 4*i + p
            a(f'v_sub_f32 v{lo}, v{lo}, v10\nv_sub_f32 v{lo+1}, v{lo+1}, v10\nv_mul_f32 v{lo}, v{lo}, v11\nv_mul_f32 v{lo+1}, v{lo+1}, v11')
            a(f'v_lshlrev_b32 v12, 16, v{s2}\nv_lshlrev_b32 v13, 16, v{sb}\nv_fma_f32 v{lo}, v{lo}, v12, v13')
            a(f'v_and_b32 v12, 0xffff0000, v{s2}\nv_and_b32 v13, 0xffff0000, v{sb}\nv_fma_f32 v{lo+1}, v{lo+1}, v12, v13')
            a(f'v_cvt_pk_bf16_f32 v{PK+4*i+p}, v{lo}, v{lo+1}')
    frag2(0); frag2(1)
    a(f's_cmp_eq_u32 s27, 1\ns_cbranch_scc1 {L}')
    frag2(2)
    a.label(L)
    def st2(f):
        for i in range(3):
            Ls = None
            if i == 2:
                Ls = a.newlabel('C_S3'); a(f's_cmp_eq_u32 s27, 1\ns_cbranch_scc1 {Ls}')
            a(f's_add_u32 s19, s31, {WS_H2F + i*1024}\nbuffer_store_dwordx4 v[{PK+4*i}:{PK+4*i+3}], v3, s[8:11], s19 offen{f}')
            if Ls: a.label(Ls)
    store2(a, st2)
    a('s_waitcnt vmcnt(0)')
    a.raw('    ; MARK 13')
    gbar(a, FL_UT, during=(lambda: prefetch_blocks(a, 24*OPT.get('d_preB', 1), 34)) if OPT.get('d_preB', 1) else None)
    a.raw('    ; MARK 8')

def phase_d(a):
    vm = Vm(a)
    NSLOT = 6; CB = 24576
    a('s_lshr_b32 s15, s13, 1\ns_and_b32 s19, s13, 1\ns_lshl_b32 s19, s19, 2\ns_lshl_b32 s29, s12, 3\ns_add_u32 s29, s29, s19\ns_add_u32 s29, s29, s3')
    a(f's_mul_i32 s22, s29, 40960\ns_add_u32 s22, s22, {WS_H2F}')
    a(f's_mul_i32 s23, s15, 245760\ns_mul_i32 s30, s3, 6144\ns_add_u32 s23, s23, s30\ns_add_u32 s23, s23, {WS_WGU}')
    R = OPT.get('d_rot', 0)
    a(f's_and_b32 s19, s13, 1\ns_mul_i32 s20, s19, {5*CB*R}\ns_sub_u32 s27, s23, s20\ns_add_u32 s23, s23, s20\ns_mul_i32 s20, s19, {5*4096*R}\ns_sub_u32 s26, s22, s20\ns_add_u32 s22, s22, s20')
    def drot(c, mul, base, dst):
        return [(f's_add_u32 s33, s12, {c}', False), ('s_sub_u32 s21, s33, 10', False), ('s_cmp_ge_u32 s33, 10', False),
                ('s_cselect_b32 s33, s21, s33', False), (f's_mul_i32 s33, s33, {mul}', False), (f's_add_u32 s{dst}, s{base}, s33', False)]
    def opsB(c):
        slot = c % NSLOT
        if OPT.get('d_noB'): return [('s_nop 0', True)]
        if OPT.get('d_rotg'):
            ops = [(f's_add_u32 m0, s30, {slot*CB}', False)] + drot(c, CB, 23, 24)
        else:
            ops = [(f's_add_u32 m0, s30, {slot*CB}', False), (f's_add_u32 s24, s{23 if c < 5 else 27}, {c*CB}', False)]
        for q in range(4): ops.append((f'buffer_load_dwordx4 v3, s[8:11], s24 offen offset:{q*1024}{BSC()} lds', True))
        ops += [(f's_add_u32 m0, s30, {slot*CB + 4096}', False), ('s_add_u32 s24, s24, 4096', False)]
        for q in range(2): ops.append((f'buffer_load_dwordx4 v3, s[8:11], s24 offen offset:{q*1024}{BSC()} lds', True))
        return ops
    TA = OPT.get('d_ta', 0); PB = OPT.get('d_preB', 1)
    if TA:
        a(f's_and_b32 s19, s13, 1\ns_lshl_b32 s19, s19, 2\ns_add_u32 s19, s19, s3\ns_mul_i32 s19, s19, {24*128}\ns_mul_i32 s20, s15, 245760\ns_add_u32 s19, s19, s20\ns_add_u32 s34, s19, {WS_WGU}')
        a('v_lshlrev_b32 v9, 7, v2')
    def opsT(c):
        if not TA or c >= 10: return []
        return [(f's_add_u32 s20, s34, {c*CB}', False), ('s_mov_b64 exec, 0xffffff\nbuffer_load_dword v10, v9, s[8:11], s20 offen\ns_mov_b64 exec, -1', True)]
    def opsA(c):
        ops = sum((opsT(k) for k in range(PB, PB + TA)), []) if c == 0 else opsT(PB + TA - 1 + c)
        if OPT.get('d_rotg'): ops = ops + drot(c, 4096, 22, 25)
        else: ops = ops + [(f's_add_u32 s25, s{22 if c < 5 else 26}, {c*4096}', False)]
        for q in range(4):
            ks = 4*c + q
            ops.append((f'buffer_load_dwordx4 a[{4*ks}:{4*ks+3}], v3, s[8:11], s25 offen offset:{q*1024} sc1', True))
        return ops
    ACC = 88
    TR = bool(OPT.get('bg', 1))
    def read_frag(ks, ct, r):
        off = ((ks//4) % NSLOT)*CB + ((ks & 3)*6 + ct)*1024
        if TR:
            return f'ds_read_b64_tr_b16 v[{r}:{r+1}], v{4 + off//65536} offset:{off % 65536}\nds_read_b64_tr_b16 v[{r+2}:{r+3}], v{4 + off//65536} offset:{off % 65536 + 512}'
        return f'ds_read_b128 v[{r}:{r+3}], v{4 + off//65536} offset:{off % 65536}'
    if TR:
        a('v_lshrrev_b32 v6, 5, v2\nv_lshlrev_b32 v6, 2, v6\nv_bfe_u32 v4, v2, 2, 2\nv_add_u32 v6, v6, v4\nv_and_b32 v4, 3, v2\nv_lshlrev_b32 v4, 3, v4')
        a('v_lshl_add_u32 v4, v6, 6, v4\nv_bfe_u32 v6, v2, 4, 1\nv_lshl_add_u32 v4, v6, 5, v4')
        a('v_add_u32 v5, 0x10000, v4\nv_add_u32 v6, 0x20000, v4')
    else:
        a('v_mov_b32 v4, v3\nv_add_u32 v5, 0x10000, v3\nv_add_u32 v6, 0x20000, v3')
    def mfmas(ks, ct, r, first):
        d = ACC + 16*ct
        if OPT.get('d_nomfma'): return ['s_nop 7']
        return [f'v_mfma_f32_32x32x16_bf16 v[{d}:{d+15}], v[{r}:{r+3}], a[{4*ks}:{4*ks+3}], ' + ('0' if first else f'v[{d}:{d+15}]')]
    gemm2(a, vm, 40, 4, 6, opsA, opsB, OPT.get('d_preB', 1), read_frag, mfmas, 16, pd=(1 if TR else 2), pre=OPT.get('d_pre', 2), nslot=NSLOT, pace=OPT.get('d_pace', 2), ahead=OPT.get('d_ahead', 4), barriers=True, nlgkm=(2 if TR else 1))
    a.raw('    ; MARK 14')
    a(f's_and_b32 s22, s29, 7\ns_mul_i32 s22, s22, 96\ns_mul_i32 s19, s15, 6\ns_add_u32 s22, s22, s19\ns_lshl_b32 s22, s22, 10')
    a(f's_add_u32 s19, s12, 7\ns_and_b32 s19, s19, 7\ns_mul_i32 s19, s19, {KVH_STRIDE}\ns_add_u32 s22, s22, s19\ns_add_u32 s22, s22, {WS_KVH}')
    for ct in range(3):
        for q in range(4):
            g = ACC + 16*ct + 4*q; u = ACC + 16*(3+ct) + 4*q
            for e in range(4): a(f'v_mul_f32 v{g+e}, v{g+e}, v{u+e}')
            o = 16 + 8*ct + 2*q
            a(f'v_cvt_pk_bf16_f32 v{o}, v{g}, v{g+1}\nv_cvt_pk_bf16_f32 v{o+1}, v{g+2}, v{g+3}')
    def st(f):
        for k in range(6):
            if k == 4: a('s_add_u32 s22, s22, 4096')
            a(f'buffer_store_dwordx4 v[{16+4*k}:{19+4*k}], v3, s[8:11], s22 offen offset:{(k % 4)*1024}{f}')
    a('s_waitcnt lgkmcnt(0)\ns_barrier')
    store2(a, st)
    a(f's_lshr_b32 s15, s13, 2\ns_mul_i32 s34, s15, {48*5120}\ns_add_u32 s34, s34, {WS_WD}')
    if OPT.get('e_rotg', 1): a('s_mul_i32 s19, s12, 10240\ns_add_u32 s34, s34, s19')
    else: a(f's_and_b32 s19, s13, 3\ns_mul_i32 s19, s19, {3*10240*OPT.get("e_rot", 0)}\ns_add_u32 s34, s34, s19')
    def out_touch():
        pass
    def pf_wd():
      a('s_sub_u32 s19, s3, 1\ns_mul_i32 s19, s19, 20')
      for i in range(20):
          if i in (0, 10):
              a(f's_add_u32 s20, s19, {i}\ns_cmp_ge_u32 s20, 30\ns_cselect_b32 s21, 1, 0\ns_mul_i32 s25, s21, 30\ns_sub_u32 s20, s20, s25\ns_lshl_b32 s20, s20, 10')
              a(f's_mul_i32 s25, s21, {24*5120}\ns_add_u32 s25, s25, s20\ns_add_u32 s25, s25, s34\ns_mul_i32 s21, s21, 61440\ns_add_u32 s21, s21, s20')
          k = i % 10
          if k % 4 == 0:
              a(f's_add_u32 m0, s21, {k*1024}')
              if k: a('s_add_u32 s25, s25, 4096')
          a(f'buffer_load_dwordx4 v3, s[8:11], s25 offen offset:{(k % 4)*1024}{BSC()} lds')
    a('s_waitcnt vmcnt(0)')
    a.raw('    ; MARK 15')
    gbar(a, FL_D, during=pf_wd)
    a.raw('    ; MARK 16')

def phase_e(a):
    vm = Vm(a)
    roles80(a)
    srd(a, 36, 6, 7, 0, ACT_BYTES)
    ACC = 64; WB = 16; XR = 112; GB = 124
    a('s_mul_i32 s28, s15, 5\ns_mul_i32 s19, s27, 3\ns_add_u32 s28, s28, s19')
    a('s_mul_i32 s31, s29, 40\ns_add_u32 s31, s31, s28\ns_lshl_b32 s31, s31, 10')
    a('v_lshrrev_b32 v7, 5, v2\nv_lshlrev_b32 v7, 4, v7')
    a(f's_lshl_b32 s32, s28, 5\ns_lshl_b32 s19, s12, 13\ns_add_u32 s19, s19, s32\ns_add_u32 s19, s19, {WS_MODF + 5*1280}')
    for i in range(3): vm.issue(f'buffer_load_dwordx4 v[{GB+4*i}:{GB+4*i+3}], v7, s[8:11], s19 offen offset:{i*32} sc1', 'x')
    a(f's_add_u32 s19, s31, {KP_X1}')
    for i in range(3): vm.issue(f'buffer_load_dwordx4 v[{XR+4*i}:{XR+4*i+3}], v3, s[8:11], s19 offen offset:{i*1024} sc1', 'x')
    if OPT.get('wbl2'):
        Lwb = a.newlabel('E_WB')
        a(f's_cmp_lg_u32 s13, {OPT.get("wbl2_j", 0)}\ns_cbranch_scc1 {Lwb}\ns_cmp_lg_u32 s3, 0\ns_cbranch_scc1 {Lwb}')
        a('buffer_wbl2 sc1')
        a.label(Lwb)
    if OPT.get('e_rotg', 1): a('s_mov_b32 s35, s12')
    else: a('s_and_b32 s35, s13, 3\ns_mul_i32 s35, s35, ' + str(3*OPT.get('e_rot', 0)))
    main80(a, vm, 96, WS_KVH, WS_WD, 6, 3, ACC, WB, True, OPT.get('e_pre', 2), OPT.get('e_pace', 1), OPT.get('e_ahead', 4), tr=bool(OPT.get('bg', 1)))
    a.raw('    ; MARK 17')
    a('s_waitcnt lgkmcnt(0)\ns_barrier')
    exchange80(a, ACC, 16, 0)
    a('v_and_b32 v8, 31, v2\ns_lshl_b32 s19, s29, 5\nv_add_u32 v8, s19, v8\nv_mul_u32_u24 v8, 1280, v8\nv_add_u32 v8, v8, v7')
    L = a.newlabel('E_F2')
    def frag(i):
        for p in range(4):
            d = ACC + 8*i + 2*p; x = XR + 4*i + p; g = GB + 4*i + p
            a(f'v_lshlrev_b32 v10, 16, v{x}\nv_lshlrev_b32 v11, 16, v{g}\nv_fma_f32 v12, v11, v{d}, v10')
            a(f'v_and_b32 v10, 0xffff0000, v{x}\nv_and_b32 v11, 0xffff0000, v{g}\nv_fma_f32 v13, v11, v{d+1}, v10')
            a(f'v_cvt_pk_bf16_f32 v{16+4*i+p}, v12, v13')
        b = 16 + 4*i
        a(f'v_permlane32_swap_b32 v{b}, v{b+2}\nv_permlane32_swap_b32 v{b+1}, v{b+3}')
        a(f'buffer_store_dwordx4 v[{b}:{b+3}], v8, s[36:39], s32 offen offset:{i*32}' + OPT.get('out_fl', ''))
    frag(0); frag(1)
    a(f's_cmp_eq_u32 s27, 1\ns_cbranch_scc1 {L}')
    frag(2)
    a.label(L)
```

```python
from common import *
import math

def attention(a, K):
    OPT = K.OPT; LK, LV, LONES, QF, NEG = K.LK, K.LV, K.LONES, K.QF, K.NEG
    use_bg = OPT.get('bg', 1)
    if use_bg: K.bg_setup(a)
    a(f's_lshr_b32 s26, s13, 2\ns_mul_i32 s26, s26, 102400\ns_mul_i32 s27, s3, 25600\ns_add_u32 s26, s26, s27\ns_add_u32 s26, s26, {WS_WO}')
    wo = []
    for i in range(25):
        t = ''
        if i % 4 == 0:
            t += f's_add_u32 m0, s27, {i*1024}\n'
            if i: t += 's_add_u32 s26, s26, 4096\n'
        t += f'buffer_load_dwordx4 v3, s[8:11], s26 offen offset:{(i%4)*1024} lds'
        wo.append(t)
    a(f's_add_u32 s19, s12, 7\ns_and_b32 s19, s19, 7\ns_mul_i32 s19, s19, {KVH_STRIDE}\ns_add_u32 s19, s19, {WS_KVH}')
    a(f's_mul_i32 s20, s13, 24576\ns_mul_i32 s21, s3, 6144\ns_add_u32 s20, s20, s21\ns_add_u32 s20, s20, s19')
    a(f's_lshl_b32 s21, s13, 12\ns_lshl_b32 s22, s3, 10\ns_add_u32 s21, s21, s22\ns_add_u32 s21, s21, s19\ns_add_u32 s21, s21, 655360')
    a('s_cmp_eq_u32 s12, 0\ns_cselect_b32 s16, s20, s21\ns_cselect_b32 s25, 48, 8')
    a(f's_lshl_b32 s22, s12, 15\ns_lshl_b32 s23, s13, 10\ns_add_u32 s22, s22, s23\ns_lshl_b32 s23, s3, 8\ns_add_u32 s22, s22, s23\ns_add_u32 s17, s22, {WS_STAT}')
    a('v_lshlrev_b32 v4, 7, v2')
    touches = ['s_bfm_b64 exec, s25, 0\nbuffer_load_dword v5, v4, s[8:11], s16 offen\ns_mov_b64 exec, 3\nbuffer_load_dword v5, v4, s[8:11], s17 offen\ns_mov_b64 exec, -1']
    M0 = 28; M8 = 44; PBUF = 60; S0 = 76
    Sreg = lambda s: S0 + 16*s
    KBUF = 32; VBUF = 48; O1 = (72, 88); O2 = (104, 120)
    NM = (24, 26); MRAW = (252, 253); FF = (222, 223)
    cs = math.log2(math.e)/math.sqrt(20.0)
    a(f's_mov_b32 s28, {hex(f2u(cs))}\ns_mov_b32 s29, {hex(f2u(cs))}')
    a('v_and_b32 v6, 31, v2\nv_lshrrev_b32 v7, 5, v2')
    a(f'v_lshlrev_b32 v9, 3, v6\nv_lshl_add_u32 v9, v7, 12, v9\nv_add_u32 v9, {LK}, v9')
    a('s_lshl_b32 s19, s3, 8\ns_sub_u32 s20, 7, s3\ns_lshl_b32 s20, s20, 8')
    a('v_add_u32 v16, s19, v9\nv_add_u32 v18, s20, v9')
    for b in range(2): a(f'v_accvgpr_write_b32 a{KBUF+8*b+6}, 0\nv_accvgpr_write_b32 a{KBUF+8*b+7}, 0')
    a('v_bfe_u32 v10, v2, 4, 1\nv_lshlrev_b32 v10, 2, v10\nv_and_b32 v11, 3, v2\nv_add_u32 v10, v10, v11')
    a(f'v_mul_u32_u24 v11, 4128, v10\nv_add_u32 v11, {LV}, v11\nv_lshlrev_b32 v12, 5, v10\nv_add_u32 v12, {LONES}, v12')
    a('v_cmp_gt_u32 vcc, 5, v10\nv_lshlrev_b32 v13, 2, v7\nv_sub_u32 v13, v6, v13\nv_cndmask_b32 v10, v12, v11, vcc')
    a('v_bfe_u32 v11, v2, 2, 2\nv_lshl_add_u32 v11, v7, 2, v11\nv_lshl_add_u32 v10, v11, 3, v10')
    a('v_add_u32 v17, s19, v10\nv_add_u32 v19, s20, v10')
    a(f'v_mov_b32 v220, {hex(f2u(NEG))}')
    VK = (16, 18); VV = (17, 19)
    sp = ['vcc', 's[20:21]', 's[22:23]']
    krs = [(r & 3) + 8*(r >> 2) for r in range(16)]
    mask_code = []
    for r in range(18):
        if r < 16: mask_code.append(f'v_cmp_gt_i32 {sp[r % 3]}, {krs[r]}, v13')
        if r >= 2:
            q = r - 2
            mask_code += [f'v_cndmask_b32_e64 v{M0+q}, v220, 0, {sp[q % 3]}', f'v_cndmask_b32_e64 v{M8+q}, 0, v220, {sp[q % 3]}']
    Lend = a.newlabel('AT_END')
    labels = [a.newlabel(f'AT_W{w}') for w in range(4)]
    a(f's_cmp_eq_u32 s3, 1\ns_cbranch_scc1 {labels[1]}\ns_cmp_eq_u32 s3, 2\ns_cbranch_scc1 {labels[2]}\ns_cmp_eq_u32 s3, 3\ns_cbranch_scc1 {labels[3]}')

    def variant(w):
        lg = Lg(a)
        cnt = dict(k=0, v=0)
        kb = {}; vb = {}
        def kread(tb, j):
            b = KBUF + 8*(cnt['k'] & 1); cnt['k'] += 1
            for o, off in ((0, 0), (2, 8192), (4, 16384)):
                lg.issue(f'ds_read_b64 a[{b+o}:{b+o+1}], v{VK[tb]} offset:{off + j*256}', ('k', tb, j))
            kb[(tb, j)] = b
        def vread(tb, j):
            b = VBUF + 8*(cnt['v'] % 3); cnt['v'] += 1
            for s in range(2):
                lg.issue(f'ds_read_b64_tr_b16 a[{b+4*s}:{b+4*s+1}], v{VV[tb]} offset:{j*256 + s*128}', ('v', tb, j))
                lg.issue(f'ds_read_b64_tr_b16 a[{b+4*s+2}:{b+4*s+3}], v{VV[tb]} offset:{j*256 + s*128 + 64}', ('v', tb, j))
            vb[(tb, j)] = b
        def qk_items(tb, j, slot):
            Q = QF + 8*tb; d = Sreg(slot)
            c0 = f'v[{M0}:{M0+15}]' if j == 0 else (f'v[{M8}:{M8+15}]' if j == 8 else '0')
            def m0():
                lg.wait(('k', tb, j)); b = kb[(tb, j)]
                a(f'v_mfma_f32_32x32x16_bf16 v[{d}:{d+15}], a[{b}:{b+3}], v[{Q}:{Q+3}], {c0}')
            def m1():
                b = kb[(tb, j)]
                a(f'v_mfma_f32_32x32x16_bf16 v[{d}:{d+15}], a[{b+4}:{b+7}], v[{Q+4}:{Q+7}], v[{d}:{d+15}]')
            return [m0, m1]
        def pv_items(tb, j, slot, O, first):
            pb = PBUF + 8*(slot & 1)
            def mk(s):
                def f():
                    if s == 0: lg.wait(('v', tb, j))
                    v = vb[(tb, j)]
                    c0 = '0' if (first and s == 0) else f'a[{O}:{O+15}]'
                    a(f'v_mfma_f32_32x32x16_bf16 a[{O}:{O+15}], a[{v+4*s}:{v+4*s+3}], v[{pb+4*s}:{pb+4*s+3}], {c0}')
                return f
            return [mk(0), mk(1)]
        def interleave(valu, items, first=3):
            wts = [2 if t.startswith('v_exp') else 1 for t in valu]
            tot = sum(wts); n = len(items); k = 0; acc = 0
            for t, ww in zip(valu, wts):
                while k < n and acc >= first + k*(tot - first)/n:
                    items[k](); k += 1
                a(t); acc += ww
            while k < n:
                items[k](); k += 1
        def maxchain(slots):
            regs = [Sreg(s) + r for s in slots for r in range(16)]
            out = [f'v_max3_f32 v{20+c}, v{regs[c]}, v{regs[4+c]}, v{regs[8+c]}' for c in range(4)]
            idx = regs[12:]; k = 0
            while idx:
                c = 20 + (k % 4); k += 1
                if len(idx) >= 2:
                    x, y = idx.pop(0), idx.pop(0); out.append(f'v_max3_f32 v{c}, v{c}, v{x}, v{y}')
                else:
                    x = idx.pop(0); out.append(f'v_max_f32 v{c}, v{c}, v{x}')
            out += ['v_max3_f32 v20, v20, v21, v22', 'v_max_f32 v20, v20, v23', 'v_mov_b32 v21, v20', 'v_permlane32_swap_b32 v20, v21', 'v_max_f32 v20, v20, v21']
            return out
        def softmax_list(slot, nm):
            d = Sreg(slot); pb = PBUF + 8*(slot & 1)
            return ([f'v_pk_fma_f32 v[{d+r}:{d+r+1}], v[{d+r}:{d+r+1}], s[28:29], v[{nm}:{nm+1}]' for r in range(0, 16, 2)]
                    + [f'v_exp_f32 v{d+r}, v{d+r}' for r in range(16)] + [f'v_cvt_pk_bf16_f32 v{pb+i}, v{d+2*i}, v{d+2*i+1}' for i in range(8)])
        def stage(tiles, O, shadow, hooks, stage2):
            n = len(tiles)
            order = sorted(range(n), key=lambda s: (tiles[s][1] in (0, 8)) and bool(shadow))
            kread(*tiles[order[0]])
            items = []
            for i, s in enumerate(order):
                its = qk_items(tiles[s][0], tiles[s][1], s)
                def first(f=its[0], nx=(order[i+1] if i+1 < n else None)):
                    if nx is not None: kread(*tiles[nx])
                    f()
                items += [first, its[1]]
            nm_early = 2*sum(1 for s in order if not (tiles[s][1] in (0, 8)))
            if shadow:
                interleave(shadow, items[:nm_early], first=0)
                for it in items[nm_early:]: it()
            else:
                for it in items: it()
            vread(*tiles[0])
            for tb in range(2):
                slots = [s for s in range(n) if tiles[s][0] == tb]
                for t in maxchain(slots): a(t)
                if not stage2:
                    a(f'v_mov_b32 v{MRAW[tb]}, v20')
                else:
                    a(f'v_max_f32 v20, v20, v{MRAW[tb]}\nv_sub_f32 v21, v{MRAW[tb]}, v20\nv_mul_f32 v21, s28, v21\nv_exp_f32 v{FF[tb]}, v21')
                a(f'v_mul_f32 v{NM[tb]}, {hex(f2u(-cs))}, v20\nv_mov_b32 v{NM[tb]+1}, v{NM[tb]}')
            seen = set()
            for s in range(n + 1):
                items = []
                if s >= 1:
                    tb, j = tiles[s-1]
                    items = pv_items(tb, j, s-1, O[tb], tb not in seen); seen.add(tb)
                if s < n:
                    if s + 1 < n: vread(*tiles[s+1])
                    interleave(softmax_list(s, NM[tiles[s][0]]), items)
                    if s in hooks: hooks[s]()
                else:
                    for it in items: it()
        T1 = [(0, jj) for jj in range(8-w, 9)] + [(1, jj) for jj in range(w+1, 9)]
        T2 = [(0, jj) for jj in range(0, 8-w)] + [(1, jj) for jj in range(0, w+1)]
        assert len(T1) == 9 and len(T2) == 9
        nbg_early = (8 if (use_bg and w >= 1 and OPT.get('bg_early', 1)) else 0)
        def publish():
            a(f's_waitcnt vmcnt({nbg_early})\ns_barrier')
            if w == 0:
                a(f's_lshl_b32 s19, s12, 7\ns_add_u32 s19, s19, {FL_KV}\ns_lshl_b32 s20, s13, 2\ns_add_u32 s20, s20, s19\nv_mov_b32 v221, s20\nv_mov_b32 v222, 1')
                a('s_mov_b64 exec, 1\nglobal_store_dword v221, v222, s[4:5] sc1\ns_mov_b64 exec, -1')
                a('s_cmp_eq_u32 s12, 0\ns_cselect_b32 s21, 0, 128\ns_sub_u32 s20, s20, s21')
                a('v_and_b32 v221, 31, v2\nv_lshlrev_b32 v221, 2, v221\nv_add_u32 v221, s19, v221\nv_mov_b32 v222, s20\nv_cmp_lt_u32 vcc, 31, v2\nv_cndmask_b32 v221, v221, v222, vcc')
        def probe():
            if w == 0: a('global_load_dword v222, v221, s[4:5] sc1')
        def fetch():
            if w == 0:
                L = a.newlabel('AT_P'); Lo = a.newlabel('AT_PX')
                a(f's_mov_b32 s18, {K.SPIN}\ns_waitcnt vmcnt(0)\nv_cmp_eq_u32 vcc, 0, v222\ns_cbranch_vccz {Lo}')
                a('global_load_dword v20, v221, s[4:5] sc1\ns_sleep 2\nglobal_load_dword v21, v221, s[4:5] sc1\ns_sleep 2')
                a.label(L)
                a('global_load_dword v22, v221, s[4:5] sc1\ns_waitcnt vmcnt(2)\nv_cmp_eq_u32 vcc, 0, v20')
                a(f's_cbranch_vccz {Lo}')
                a('global_load_dword v20, v221, s[4:5] sc1\ns_waitcnt vmcnt(2)\nv_cmp_eq_u32 vcc, 0, v21')
                a(f's_cbranch_vccz {Lo}')
                a('global_load_dword v21, v221, s[4:5] sc1\ns_waitcnt vmcnt(2)\nv_cmp_eq_u32 vcc, 0, v22')
                a(f's_cbranch_vccz {Lo}')
                a(f's_sub_u32 s18, s18, 1\ns_cmp_lg_u32 s18, 0\ns_cbranch_scc1 {L}')
                a.label(Lo)
            a('s_barrier')
            Ls = a.newlabel('AT_NH')
            a(f's_cmp_eq_u32 s12, 0\ns_cbranch_scc1 {Ls}')
            a(f's_sub_u32 s22, s24, {KVH_STRIDE - 5*w*1024}')
            for q in range(5):
                ii = 5*w + q; piece, half = ii >> 1, ii & 1
                dst = (LK + piece*4096 if piece < 5 else LV + (piece-5)*4128) + half*1024
                a(f's_mov_b32 m0, {dst}')
                if q: a('s_add_u32 s22, s22, 1024')
                a('buffer_load_dwordx4 v3, s[8:11], s22 offen sc1 lds')
            a.label(Ls)
        def branchy(tg, td):
            Ld = a.newlabel('BS_D'); Le = a.newlabel('BS_E')
            return f's_cmp_ge_u32 s2, 160\ns_cbranch_scc1 {Ld}\n' + tg + f'\ns_branch {Le}\n{Ld}:\n' + td + f'\n{Le}:'
        def emit_text(t):
            for line in t.split('\n'):
                if line.endswith(':'): a.label(line[:-1])
                else: a(line)
        plan = K.bg_plan(w) if (use_bg and w >= 1) else []
        hooks = {}
        def add_hook(slot, fn):
            prev = hooks.get(slot)
            hooks[slot] = (lambda: (prev(), fn())) if prev else fn
        add_hook(OPT.get('at_pub', 1), publish)
        if not OPT.get('bg_early', 1):
            for k, (g_, d_) in enumerate(plan):
                add_hook(min(8, OPT.get('at_pub', 1) + (k*OPT.get('bg_spread', 4))//8), lambda k=k, g_=g_, d_=d_: emit_text(branchy(*K.bg_load(k, g_, d_))))
        else:
            for k, (g_, d_) in enumerate(plan): emit_text(branchy(*K.bg_load(k, g_, d_)))
        add_hook(OPT.get('at_probe', 6), probe)
        add_hook(OPT.get('at_fetch', 7), fetch)
        stage(T1, O1, list(mask_code), hooks, False)
        a('s_waitcnt vmcnt(0) lgkmcnt(0)\ns_barrier')
        if w == 0: a.raw('    ; MARK 5')
        a0 = a.lines; a.lines = []
        stage(T2, O2, None, {}, True)
        for tb in range(2):
            R = 240 + 6*tb; A = O1[tb]; B = O2[tb]; f = FF[tb]
            a(f'v_accvgpr_read_b32 v20, a{A+8}\nv_accvgpr_read_b32 v21, a{B+8}\nv_fma_f32 v20, v20, v{f}, v21\nv_mov_b32 v21, v20')
            a('v_permlane32_swap_b32 v20, v21\nv_rcp_f32 v21, v21')
            a(f'v_mul_f32 v{f}, v{f}, v21')
            for i in range(6):
                a(f'v_accvgpr_read_b32 v22, a{B+2*i}\nv_accvgpr_read_b32 v23, a{B+2*i+1}\nv_accvgpr_read_b32 v9, a{A+2*i}\nv_accvgpr_read_b32 v10, a{A+2*i+1}')
                a(f'v_mul_f32 v22, v22, v21\nv_mul_f32 v23, v23, v21\nv_fma_f32 v22, v9, v{f}, v22\nv_fma_f32 v23, v10, v{f}, v23\nv_cvt_pk_bf16_f32 v{R+i}, v22, v23')
        body = a.lines; a.lines = a0
        real = [i for i, l in enumerate(body) if l.startswith('    ') and not l.strip().startswith(';')]
        N = len(real)
        sched = []
        for k, (g_, d_) in enumerate(plan):
            sched.append((OPT.get('bg_s0', 0.02) + OPT.get('bg_sd', 0.04)*k, branchy(*K.bg_store(k, g_, d_))))
        for t in touches: sched.append((OPT.get('bg_t', 0.30), t))
        for k, t in enumerate(wo): sched.append((OPT.get('bg_w0', 0.03) + OPT.get('bg_wspan', 0.75)*k/len(wo), t))
        pos = {}
        for fr, t in sched: pos.setdefault(real[min(N-1, int(fr*N))], []).append(t)
        for i, l in enumerate(body):
            a.raw(l)
            for t in pos.get(i, []):
                for line in t.split('\n'):
                    if line.endswith(':'): a.label(line[:-1])
                    else: a(line)
        a(f's_branch {Lend}')
    for w in range(4):
        if w: a.label(labels[w])
        variant(w)
    a.label(Lend)
```

```python
import sys
sys.path.insert(0, 'work')
from common import *
from k0v3 import k0_prep
from kp import kp_kernel
upto = sys.argv[1] if len(sys.argv) > 1 else 'E'
out = sys.argv[2] if len(sys.argv) > 2 else 'p.s'
import common, kp, json, os
if os.environ.get('KPOPT'): kp.OPT.update(json.loads(os.environ['KPOPT']))
if len(sys.argv) > 3: common.WSB[0] = int(sys.argv[3], 0)
import k0v3; k0v3.K0LDS[0] = kp.OPT.get('k0lds', 16384); k0v3.GATE[0] = kp.OPT.get('gate', 0); k0v3.STF[0] = kp.OPT.get('k0st', '')
parts = ('gemv','qkv','wo') if kp.OPT.get('bg', 1) else ('gemv','qkv','gu','wd','wo')
ks = [k0_prep(code_label='kp_kernel', code_bytes='KP_CODE_END', parts=parts, ln=bool(kp.OPT.get('lnk0', 1))), kp_kernel(upto)]
hdr = open('header_keep.txt').read()
open(out, 'w').write(module(ks, header_comments=hdr))
open(out.replace('.s', '_diag.s'), 'w').write(module([add_stamps(k, i) for i, k in enumerate(ks)]))
open(out.replace('.s', '_cyc.s'), 'w').write(module([add_stamps(k, i, cyc=True) for i, k in enumerate(ks)]))
```

```python
from common import *
import math

SPIN = 2000000
LH = 81920
LFAST = LH + 2560
LK = 114176
LV = LK + 24576
LONES = 159488
NEG = -30000.0
KP_O = WS_H1F
WS_H2F = WS_H1F
KP_X1 = WS_XF

def store2(a, text_fn):
    L1 = a.newlabel('ST_S'); L2 = a.newlabel('ST_E')
    a(f's_cmp_eq_u32 s14, 0\ns_cbranch_scc1 {L1}')
    text_fn('')
    a(f's_branch {L2}')
    a.label(L1)
    text_fn(' sc1')
    a.label(L2)

def poll(a, vaddr, cond_reg='v20', sbase='s[4:5]', n=1, spin=None):
    L = a.newlabel('POLL'); Lo = a.newlabel('POLLX')
    a(f's_mov_b32 s18, {spin or SPIN}')
    a.label(L)
    a(f's_sub_u32 s18, s18, 1\ns_cmp_eq_u32 s18, 0\ns_cbranch_scc1 {Lo}')
    a(f'global_load_dword {cond_reg}, {vaddr}, {sbase} sc1')
    a('s_waitcnt vmcnt(0)')
    a(f'v_cmp_eq_u32 vcc, 0, {cond_reg}')
    a(f's_cbranch_vccnz {L}')
    a.label(Lo)

def poll_bg(a):
    L = a.newlabel('PBG'); Lo = a.newlabel('PBGX'); Ls = a.newlabel('PBGS')
    a(f's_cmp_lg_u32 s3, 1\ns_cbranch_scc1 {Ls}')
    a(f'v_add_u32 v18, {FL_BG}, v3\ns_mov_b32 s18, {SPIN}')
    a.label(L)
    a(f's_sub_u32 s18, s18, 1\ns_cmp_eq_u32 s18, 0\ns_cbranch_scc1 {Lo}')
    a('global_load_dwordx4 v[20:23], v18, s[4:5] sc1\ns_waitcnt vmcnt(0)')
    a('v_min_u32 v20, v20, v21\nv_min_u32 v22, v22, v23\nv_min_u32 v20, v20, v22\nv_cmp_eq_u32 vcc, 0, v20')
    a(f's_cbranch_vccnz {L}')
    a.label(Lo)
    a.label(Ls)

def gbar(a, flag, local=True, during=None, also_set=None):
    L = a.newlabel('GB'); Ld = a.newlabel('GBD')
    a('s_barrier')
    a(f's_cmp_lg_u32 s3, 0\ns_cbranch_scc1 {Ld if during else L}')
    a(f's_lshl_b32 s19, s12, 7\ns_add_u32 s19, s19, {flag}')
    a(f's_lshl_b32 s20, s13, 2\ns_add_u32 s20, s20, s19\nv_mov_b32 v18, s20\nv_mov_b32 v19, 1')
    a('s_mov_b64 exec, 1')
    if local: store2(a, lambda f: a(f'global_store_dword v18, v19, s[4:5]{f}'))
    else: a('global_store_dword v18, v19, s[4:5] sc1')
    if also_set is not None:
        a(f's_lshl_b32 s20, s2, 2\ns_add_u32 s20, s20, {also_set}\nv_mov_b32 v18, s20\nglobal_store_dword v18, v19, s[4:5] sc1')
    a('s_mov_b64 exec, -1')
    a('v_and_b32 v18, 31, v2\nv_lshlrev_b32 v18, 2, v18\nv_add_u32 v18, s19, v18')
    poll(a, 'v18')
    if during:
        a(f's_branch {L}')
        a.label(Ld)
        during()
    a.label(L)
    a('s_barrier')

def fin_mod(a, base, nq_valid_exec=None):
    for e in range(4):
        a(f'v_add_f32 v{base+e}, v{base+e}, v{base+4+e}\nv_add_f32 v{base+8+e}, v{base+8+e}, v{base+12+e}\nv_add_f32 v{base+e}, v{base+e}, v{base+8+e}')

def round_pack(a, base, vone, out):
    a(f'v_cvt_pk_bf16_f32 v{out}, v{base}, v{base+1}\nv_cvt_pk_bf16_f32 v{out+1}, v{base+2}, v{base+3}')
    a(f'v_lshlrev_b32 v{base}, 16, v{out}\nv_and_b32 v{base+1}, 0xffff0000, v{out}\nv_lshlrev_b32 v{base+2}, 16, v{out+1}\nv_and_b32 v{base+3}, 0xffff0000, v{out+1}')
    for e in range(4): a(f'v_add_f32 v{base+e}, v{base+e}, v{vone}')
    a(f'v_cvt_pk_bf16_f32 v{out}, v{base}, v{base+1}\nv_cvt_pk_bf16_f32 v{out+1}, v{base+2}, v{base+3}')

def cperm_pos_bytes(a, vcol4, out, tmp):
    a(f'v_lshrrev_b32 v{out}, 2, v{vcol4}\nv_lshlrev_b32 v{out}, 5, v{out}')
    a(f'v_and_b32 v{tmp}, 1, v{vcol4}\nv_lshl_add_u32 v{out}, v{tmp}, 4, v{out}')
    a(f'v_bfe_u32 v{tmp}, v{vcol4}, 1, 1\nv_lshl_add_u32 v{out}, v{tmp}, 3, v{out}')

LHF = 81920
LFAST = LHF + 5120


def round4(a, base, vone):
    t = base + 4
    for rep in range(2):
        a(f'v_cvt_pk_bf16_f32 v{t}, v{base}, v{base+1}\nv_cvt_pk_bf16_f32 v{t+1}, v{base+2}, v{base+3}')
        a(f'v_lshlrev_b32 v{base}, 16, v{t}\nv_and_b32 v{base+1}, 0xffff0000, v{t}\nv_lshlrev_b32 v{base+2}, 16, v{t+1}\nv_and_b32 v{base+3}, 0xffff0000, v{t+1}')
        if rep == 0:
            for e in range(4): a(f'v_add_f32 v{base+e}, v{base+e}, v{vone}')

def bg_setup(a):
    a('s_lshl_b32 s30, s2, 1')
    a('v_lshrrev_b32 v14, 3, v2\nv_and_b32 v15, 7, v2')
    Ld = a.newlabel('BG_D'); Le = a.newlabel('BG_E')
    a(f's_cmp_ge_u32 s2, 160\ns_cbranch_scc1 {Ld}')
    a(f's_lshr_b32 s19, s30, 3\ns_mul_i32 s43, s19, 49152\ns_and_b32 s20, s30, 3\ns_mul_i32 s20, s20, 768\ns_add_u32 s43, s43, s20')
    a('s_bitcmp1_b32 s30, 2\ns_cselect_b32 s32, s38, s36\ns_cselect_b32 s33, s39, s37')
    a(f's_and_b32 s20, s30, 3\ns_mul_i32 s31, s20, {4*40*6144}\ns_mul_i32 s19, s19, 6144\ns_add_u32 s31, s31, s19\ns_bfe_u32 s19, s30, 0x10002\ns_mul_i32 s19, s19, 3072\ns_add_u32 s31, s31, s19\ns_add_u32 s31, s31, {WS_WGU}')
    a('v_mul_u32_u24 v8, 3072, v14\nv_lshl_add_u32 v8, v15, 4, v8')
    a('v_lshlrev_b32 v14, 6, v14\nv_and_b32 v11, 3, v15\nv_lshl_add_u32 v14, v11, 4, v14\nv_lshrrev_b32 v11, 2, v15')
    a(f'v_mul_u32_u24 v15, {40*6144 - 2048}, v11\nv_add_u32 v15, v15, v14\nv_lshl_add_u32 v14, v11, 10, v14')
    a(f's_branch {Le}')
    a.label(Ld)
    a(f's_sub_u32 s30, s30, 320\ns_lshr_b32 s19, s30, 1\ns_mul_i32 s43, s19, 20480')
    a('s_mov_b32 s32, s40\ns_mov_b32 s33, s41')
    a(f's_lshr_b32 s31, s30, 2\ns_mul_i32 s31, s31, 5120\ns_add_u32 s31, s31, {WS_WD}\ns_and_b32 s30, s19, 1')
    a('v_mul_u32_u24 v8, 1280, v14\nv_lshl_add_u32 v8, v15, 4, v8')
    a.label(Le)
    a('s_mov_b32 s34, 1966080\ns_mov_b32 s35, 0x20000')

def bg_plan(w):
    gu = [(i, rh, m) for i in range(2) for m in range(6) for rh in range(2)]
    dn = [(i, rh, m) for i in range(2) for m in range(5) for rh in range(2)]
    g = gu[w-1::3]; d = dn[w-1::3]
    return [(g[k], d[k] if k < len(d) else None) for k in range(8)]

def bg_load(k, gu, dn):
    i, rh, m = gu
    return (f's_add_u32 s19, s43, {i*768 + rh*8*3072}\nbuffer_load_dwordx4 a[{4*k}:{4*k+3}], v8, s[32:35], s19 offen offset:{128*m}',
            (f's_add_u32 s19, s43, {dn[0]*640 + dn[1]*8*1280}\nbuffer_load_dwordx4 a[{4*k}:{4*k+3}], v8, s[32:35], s19 offen offset:{128*dn[2]}' if dn
             else f'buffer_load_dwordx4 a[{4*k}:{4*k+3}], v8, s[32:35], s43 offen'))

def bg_store(k, gu, dn):
    i, rh, m = gu
    b = 2*m
    off = i*4*40*6144 + (b//3)*40*6144 + (b % 3)*1024 + rh*512
    tg = f's_add_u32 s23, s31, {off}\nbuffer_store_dwordx4 a[{4*k}:{4*k+3}], v{15 if (b % 3) == 2 else 14}, s[8:11], s23 offen sc1'
    if dn is None: return tg, 's_nop 0'
    i, rh, m = dn
    t = f'v_add_u32 v11, {8*m}, v15\nv_mul_u32_u24 v12, 6554, v11\nv_lshrrev_b32 v12, 16, v12\nv_mul_u32_u24 v8, 10, v12\nv_sub_u32 v11, v11, v8'
    t += f'\nv_mul_u32_u24 v12, {48*5}, v12\nv_lshlrev_b32 v12, 10, v12'
    t += f'\ns_lshl_b32 s19, s30, 11\ns_add_u32 s19, s19, {rh*512}\ns_lshl_b32 s23, s30, 9\ns_add_u32 s23, s23, {4096 + rh*256}'
    t += '\nv_cmp_lt_u32 s[20:21], 7, v11\nv_and_b32 v8, 3, v11\nv_lshlrev_b32 v8, 4, v8\nv_lshrrev_b32 v11, 2, v11\nv_lshlrev_b32 v11, 10, v11'
    t += '\nv_lshl_add_u32 v11, v14, 6, v11\nv_add_u32 v11, s19, v11\nv_add_u32 v12, v12, v8\nv_lshlrev_b32 v8, 5, v14\nv_add_u32 v8, s23, v8\nv_cndmask_b32_e64 v11, v11, v8, s[20:21]\nv_add_u32 v12, v12, v11'
    t += f'\ns_add_u32 s23, s31, {i*4*48*5120}\nbuffer_store_dwordx4 a[{4*k}:{4*k+3}], v12, s[8:11], s23 offen sc1'
    return tg, t

LSYNC = LFAST + 16
def lds_arrive(a, off):
    a(f'v_mov_b32 v18, {LSYNC + off}\nv_mov_b32 v19, 1\ns_mov_b64 exec, 1\nds_add_u32 v18, v19\ns_mov_b64 exec, -1')
def lds_spin(a, off, n):
    L = a.newlabel('LSP'); Lo = a.newlabel('LSPX')
    a(f'v_mov_b32 v18, {LSYNC + off}\ns_mov_b32 s18, {SPIN}')
    a.label(L)
    a(f's_sub_u32 s18, s18, 1\ns_cmp_eq_u32 s18, 0\ns_cbranch_scc1 {Lo}')
    a(f'ds_read_b32 v19, v18\ns_waitcnt lgkmcnt(0)\nv_readfirstlane_b32 s19, v19\ns_cmp_lt_u32 s19, {n}\ns_cbranch_scc1 {L}')
    a.label(Lo)

def phase_h(a):
    a(f'v_mov_b32 v18, {LSYNC}\nv_mov_b32 v20, 0\nv_mov_b32 v21, 0\nv_mov_b32 v22, 0\nv_mov_b32 v23, 0\nds_write_b128 v18, v[20:23]\ns_waitcnt lgkmcnt(0)\ns_barrier')
    Lw23 = a.newlabel('H_W23'); Lend = a.newlabel('H_END')
    a(f's_cmp_ge_u32 s3, 2\ns_cbranch_scc1 {Lw23}')
    a('s_setprio 3')
    a('v_lshrrev_b32 v5, 4, v2\nv_and_b32 v4, 15, v2')
    a('s_lshl_b32 s19, s12, 8\ns_lshl_b32 s20, s13, 3\ns_add_u32 s19, s19, s20\ns_lshl_b32 s20, s3, 2\ns_add_u32 s19, s19, s20')
    a('v_add_u32 v5, s19, v5')
    a('v_lshrrev_b32 v7, 1, v4\nv_and_b32 v8, 1, v4')
    a(f's_mul_i32 s21, s3, 2560\ns_add_u32 s21, s21, {WS_MODP}')
    for p in range(4):
        for r in range(3):
            a(f'buffer_load_dwordx4 v[{24+16*r+4*p}:{27+16*r+4*p}], v3, s[8:11], s21 offen offset:{r*1024}')
        if p < 3: a('s_add_u32 s21, s21, 15360')
    srd(a, 24, 16, 17, 0, ACT_BYTES)
    a('v_mul_u32_u24 v6, 1280, v5\nv_lshl_add_u32 v6, v7, 5, v6\nv_lshl_add_u32 v6, v8, 3, v6')
    for i in range(5):
        a(f'buffer_load_dwordx2 v[{192+4*i}:{193+4*i}], v6, s[24:27], 0 offen offset:{i*256}')
        a(f'buffer_load_dwordx2 v[{194+4*i}:{195+4*i}], v6, s[24:27], 0 offen offset:{i*256+16}')
    Lx = a.newlabel('H_XT'); Lx2 = a.newlabel('H_XT2')
    a('s_getreg_b32 s15, hwreg(HW_REG_XCC_ID, 0, 4)\ns_add_u32 s15, s15, 1')
    a(f's_cmp_lg_u32 s3, 1\ns_cbranch_scc1 {Lx}')
    a(f's_lshl_b32 s19, s12, 7\ns_lshl_b32 s20, s13, 2\ns_add_u32 s19, s19, s20\ns_add_u32 s19, s19, {FL_XT}')
    a('v_mov_b32 v18, s19\nv_mov_b32 v19, s15\ns_mov_b64 exec, 1')
    a('global_store_dword v18, v19, s[4:5] sc1')
    a('s_mov_b64 exec, -1')
    a('s_waitcnt vmcnt(11)')
    a(f's_branch {Lx2}')
    a.label(Lx)
    a('s_waitcnt vmcnt(10)')
    a.label(Lx2)
    a.raw('    ; MARK 0')
    a('v_lshrrev_b32 v14, 2, v2\nv_lshlrev_b32 v14, 6, v14\nv_and_b32 v15, 1, v2\nv_lshl_add_u32 v14, v15, 5, v14\nv_bfe_u32 v15, v2, 1, 1\nv_lshl_add_u32 v14, v15, 4, v14')
    a(f's_mul_i32 s20, s3, 2560\ns_add_u32 s20, s20, {LHF}\nv_add_u32 v14, s20, v14')
    a('s_cmp_eq_u32 s3, 1\ns_cselect_b32 s20, 1.0, 0\nv_mov_b32 v12, s20')
    for r in range(3):
        b = 24 + 16*r
        fin_mod(a, b); round4(a, b, 12)
        if r == 2: a('s_mov_b32 exec_hi, 0')
        a(f'ds_write_b128 v14, v[{b}:{b+3}] offset:{r*1024}')
        if r == 2: a('s_mov_b64 exec, -1')
    a('s_waitcnt lgkmcnt(0)')
    lds_arrive(a, 0)
    X = 192; F = 124
    a('s_waitcnt vmcnt(0)')
    a(f's_lshl_b32 s19, s12, 7\ns_add_u32 s19, s19, {FL_XT}\nv_and_b32 v22, 31, v2\nv_lshlrev_b32 v22, 2, v22\nv_add_u32 v22, s19, v22')
    a('global_load_dword v20, v22, s[4:5] sc1')
    for i in range(20):
        a(f'v_lshlrev_b32 v{F+2*i}, 16, v{X+i}\nv_and_b32 v{F+1+2*i}, 0xffff0000, v{X+i}')
    a(f'v_pk_add_f32 v[12:13], v[{F}:{F+1}], v[{F+2}:{F+3}]\nv_pk_add_f32 v[14:15], v[{F+4}:{F+5}], v[{F+6}:{F+7}]')
    for i in range(4, 20, 2):
        a(f'v_pk_add_f32 v[12:13], v[12:13], v[{F+2*i}:{F+2*i+1}]\nv_pk_add_f32 v[14:15], v[14:15], v[{F+2*i+2}:{F+2*i+3}]')
    a('v_pk_add_f32 v[12:13], v[12:13], v[14:15]\nv_add_f32 v12, v12, v13')
    for rot in (8, 4, 2, 1):
        a(f'v_add_f32_dpp v12, v12, v12 row_ror:{rot} row_mask:0xf bank_mask:0xf')
    a(f'v_mul_f32 v12, {hex(f2u(-1.0/640))}, v12\nv_mov_b32 v13, v12')
    for i in range(20): a(f'v_pk_add_f32 v[{F+2*i}:{F+2*i+1}], v[{F+2*i}:{F+2*i+1}], v[12:13]')
    a(f'v_pk_mul_f32 v[14:15], v[{F}:{F+1}], v[{F}:{F+1}]\nv_pk_mul_f32 v[16:17], v[{F+2}:{F+3}], v[{F+2}:{F+3}]')
    for i in range(2, 20, 2):
        a(f'v_pk_fma_f32 v[14:15], v[{F+2*i}:{F+2*i+1}], v[{F+2*i}:{F+2*i+1}], v[14:15]\nv_pk_fma_f32 v[16:17], v[{F+2*i+2}:{F+2*i+3}], v[{F+2*i+2}:{F+2*i+3}], v[16:17]')
    a('v_pk_add_f32 v[14:15], v[14:15], v[16:17]\nv_add_f32 v14, v14, v15')
    for rot in (8, 4, 2, 1):
        a(f'v_add_f32_dpp v14, v14, v14 row_ror:{rot} row_mask:0xf bank_mask:0xf')
    a(f'v_mov_b32 v15, {hex(f2u(1e-5))}\nv_fmac_f32 v15, {hex(f2u(1.0/640))}, v14\nv_rsq_f32 v14, v15')
    a('v_mov_b32 v15, v14')
    Lp = a.newlabel('H_XP'); Lpo = a.newlabel('H_XPO')
    a(f's_waitcnt vmcnt(0)\nv_cmp_eq_u32 vcc, 0, v20\ns_cbranch_vccz {Lpo}')
    poll(a, 'v22')
    a.label(Lpo)
    a('v_cmp_ne_u32 vcc, s15, v20\ns_cmp_eq_u64 vcc, 0\ns_cselect_b32 s14, 1, 0')
    a(f'v_mov_b32 v18, {LFAST}\nv_mov_b32 v19, s14\nds_write_b32 v18, v19')
    lds_spin(a, 0, 2)
    a(f'v_lshlrev_b32 v9, 5, v4\nv_add_u32 v9, {LHF}, v9')
    A1 = 24; SA = 64
    for i in range(5):
        for hh in range(2):
            a(f'ds_read_b128 v[{A1+8*i+4*hh}:{A1+8*i+4*hh+3}], v9 offset:{2560 + i*512 + 16*hh}')
            a(f'ds_read_b128 v[{SA+8*i+4*hh}:{SA+8*i+4*hh+3}], v9 offset:{i*512 + 16*hh}')
    for i in range(20): a(f'v_pk_mul_f32 v[{F+2*i}:{F+2*i+1}], v[{F+2*i}:{F+2*i+1}], v[14:15]')
    for i in range(5):
        a(f's_waitcnt lgkmcnt({min(15, 16 - 4*i)})')
        for k in range(4*i, 4*i+4):
            a(f'v_pk_fma_f32 v[{F+2*k}:{F+2*k+1}], v[{F+2*k}:{F+2*k+1}], v[{A1+2*k}:{A1+2*k+1}], v[{SA+2*k}:{SA+2*k+1}]')
            a(f'v_cvt_pk_bf16_f32 v{164+k}, v{F+2*k}, v{F+2*k+1}')
    a('v_and_b32 v10, 31, v5\nv_lshlrev_b32 v10, 4, v10\nv_lshl_add_u32 v10, v7, 10, v10\nv_lshl_add_u32 v10, v8, 9, v10')
    a('s_lshl_b32 s19, s12, 3\ns_lshr_b32 s20, s13, 2\ns_add_u32 s21, s19, s20\ns_mul_i32 s21, s21, 40960')
    def st(f):
        for i in range(5):
            a(f's_add_u32 s20, s21, {WS_H1F + i*8192}')
            a(f'buffer_store_dwordx4 v[{164+4*i}:{167+4*i}], v10, s[8:11], s20 offen{f}')
    store2(a, st)
    a('s_waitcnt vmcnt(0)')
    a.raw('    ; MARK 1')
    Lw1 = a.newlabel('H_W1'); Lst = a.newlabel('H_ST')
    a(f's_cmp_eq_u32 s3, 1\ns_cbranch_scc1 {Lw1}')
    lds_spin(a, 4, 1)
    a(f's_lshl_b32 s22, s12, 7\ns_add_u32 s22, s22, {FL_H}\ns_lshl_b32 s20, s13, 2\ns_add_u32 s20, s20, s22\nv_mov_b32 v18, s20\nv_mov_b32 v19, 1\ns_mov_b64 exec, 1')
    store2(a, lambda f: a(f'global_store_dword v18, v19, s[4:5]{f}'))
    a('s_mov_b64 exec, -1')
    a('v_and_b32 v18, 31, v2\nv_lshlrev_b32 v18, 2, v18\nv_add_u32 v18, s22, v18')
    poll(a, 'v18')
    a(f's_branch {Lst}')
    a.label(Lw1)
    lds_arrive(a, 4)
    a.label(Lst)
    def st2(f):
        for i in range(5):
            a(f's_add_u32 s20, s21, {WS_XF + i*8192}')
            a(f'buffer_store_dwordx4 v[{X+4*i}:{X+3+4*i}], v10, s[8:11], s20 offen{f}')
    store2(a, st2)
    a(f's_branch {Lend}')
    a.label(Lw23)
    if OPT.get('tlbwarm'):
        a('v_lshlrev_b32 v9, 21, v2\ns_mov_b64 exec, 0x3ffffff')
        a('buffer_load_dword v255, v9, s[8:11], 0 offen')
        a('s_mov_b64 exec, 3')
        a('global_load_dword v255, v9, s[6:7]')
        a('s_mov_b64 exec, 1')
        for r in (36, 38, 40): a(f'global_load_dword v255, v9, s[{r}:{r+1}]')
        a('s_mov_b64 exec, -1')
    if OPT.get('h_touch', 1):
        a(f's_mul_i32 s20, s12, 327680\ns_mul_i32 s21, s13, 10240\ns_add_u32 s20, s20, s21\ns_sub_u32 s21, s3, 2\ns_mul_i32 s21, s21, 5120\ns_add_u32 s20, s20, s21\ns_add_u32 s20, s20, {WS_H1F}')
        touch(a, 8, 9, 255, 20, 40)
    a(f's_mul_i32 s20, s13, 81920\ns_sub_u32 s21, s3, 2\ns_lshl_b32 s21, s21, 12\ns_add_u32 s20, s20, s21\ns_add_u32 s20, s20, {WS_WQKV}')
    PB = OPT.get('a_preB', 10)
    for i in range(PB):
        a(f's_add_u32 m0, s21, {i*8192}')
        for q in range(4): a(f'buffer_load_dwordx4 v3, s[8:11], s20 offen offset:{q*1024} lds')
        if i < PB-1: a('s_add_u32 s20, s20, 8192')
    L3 = a.newlabel('H_T3')
    a(f's_cmp_eq_u32 s3, 3\ns_cbranch_scc0 {L3}')
    a('s_mul_i32 s20, s13, 20\ns_add_u32 s20, s20, 320\nv_add_u32 v10, s20, v2\nv_lshlrev_b32 v11, 4, v10')
    for p in range(4):
        a(f's_mov_b32 s20, {WS_MODP + p*15360}')
        a(f'buffer_load_dwordx4 v[{44+4*p}:{47+4*p}], v11, s[8:11], s20 offen')
    a.label(L3)
    a('s_waitcnt vmcnt(0)')
    L4 = a.newlabel('H_T4')
    a(f's_cmp_eq_u32 s3, 3\ns_cbranch_scc0 {L4}')
    fin_mod(a, 44)
    a('v_mul_u32_u24 v12, 410, v10\nv_lshrrev_b32 v12, 16, v12')
    a('v_mul_u32_u24 v13, 160, v12\nv_sub_u32 v13, v10, v13')
    cperm_pos_bytes(a, 13, 14, 15)
    a('v_mul_u32_u24 v15, 1280, v12\nv_add_u32 v14, v14, v15')
    a('v_cmp_eq_u32 vcc, 4, v12\nv_cndmask_b32_e64 v12, 0, 1.0, vcc')
    round_pack(a, 44, 12, 48)
    a(f's_lshl_b32 s20, s12, 13\ns_add_u32 s20, s20, {WS_MODF}')
    a('s_mov_b32 exec_lo, 0xfffff\ns_mov_b32 exec_hi, 0')
    a('buffer_store_dwordx2 v[48:49], v14, s[8:11], s20 offen sc1')
    a('s_mov_b64 exec, -1')
    a.label(L4)
    a.label(Lend)
    a.raw('    ; MARK 19')
    a('s_setprio 0')
    a('s_waitcnt lgkmcnt(0)\ns_barrier')
    a(f'v_mov_b32 v18, {LFAST}\nds_read_b32 v19, v18\ns_waitcnt lgkmcnt(0)\nv_readfirstlane_b32 s14, v19')
    a.raw('    ; MARK 2')

ACC_A = 40
QF = 224
OPT = dict(a_pre=3, a_pace=2, a_ahead=5, a_sc=' sc1', a_preB=5)
def phase_a(a):
    vm = Vm(a)
    a('s_lshl_b32 s19, s12, 3\ns_add_u32 s20, s19, s3\ns_sub_u32 s21, 7, s3\ns_add_u32 s21, s19, s21')
    a(f's_mul_i32 s22, s20, 40960\ns_add_u32 s22, s22, {WS_H1F}\ns_mul_i32 s23, s21, 40960\ns_add_u32 s23, s23, {WS_H1F}')
    def opsA(c):
        ops = []
        for tb in range(2):
            ops.append((f's_add_u32 s{24+tb}, s{22+tb}, {c*4096}', False))
            for q in range(4):
                f = (2*(4*c + q) + tb) % 64
                ops.append((f'buffer_load_dwordx4 a[{4*f}:{4*f+3}], v3, s[8:11], s{24+tb} offen offset:{q*1024}{OPT["a_sc"]}', True))
        return ops
    a('v_add_u32 v5, 0x10000, v3')
    def read_frag(ks, ct, r):
        off = (ks*2 + ct)*1024
        return f'ds_read_b128 v[{r}:{r+3}], v{3 if off < 65536 else 5} offset:{off % 65536}'
    def mfmas(ks, ct, r, first):
        out = []
        for tb in range(2):
            d = ACC_A + (tb*2 + ct)*16; f = (2*ks + tb) % 64
            out.append(f'v_mfma_f32_32x32x16_bf16 v[{d}:{d+15}], v[{r}:{r+3}], a[{4*f}:{4*f+3}], ' + ('0' if first else f'v[{d}:{d+15}]'))
        return out
    PB = OPT.get('a_preB', 10)
    a(f's_mul_i32 s26, s13, 81920\ns_lshl_b32 s27, s3, 11\ns_add_u32 s26, s26, s27\ns_add_u32 s26, s26, {WS_WQKV}')
    def opsB(c):
        return [(f's_add_u32 m0, s27, {c*8192}', False), (f's_add_u32 s28, s26, {c*8192}', False),
                ('buffer_load_dwordx4 v3, s[8:11], s28 offen lds', True), ('buffer_load_dwordx4 v3, s[8:11], s28 offen offset:1024 lds', True)]
    gemm2(a, vm, 40, 4, 2, opsA, opsB, PB, read_frag, mfmas, 16, pd=2, pre=OPT['a_pre'], pace=OPT['a_pace'], ahead=OPT['a_ahead'], barriers=(PB < 10))
    a.raw('    ; MARK 3')
    a('v_and_b32 v6, 31, v2\nv_lshrrev_b32 v7, 5, v2')
    a(f'v_lshlrev_b32 v8, 4, v0\nv_add_u32 v8, {LK + 5*4096}, v8\nv_mov_b32 v12, 0\nv_mov_b32 v13, 0\nv_mov_b32 v14, 0\nv_mov_b32 v15, 0')
    Lb = a.newlabel('A_NB')
    a(f's_cmp_lg_u32 s12, 0\ns_cbranch_scc1 {Lb}')
    nb = f2u(NEG) >> 16
    a(f'v_mov_b32 v9, {nb}\nv_cmp_gt_u32 vcc, 128, v0\nv_cndmask_b32 v12, 0, v9, vcc\nv_mov_b32 v14, v12')
    a.label(Lb)
    a('ds_write_b128 v8, v[12:15]')
    a(f'v_mov_b32 v12, 0x3f803f80\nv_mov_b32 v13, 0x3f803f80\nv_mov_b32 v14, 0x3f803f80\nv_mov_b32 v15, 0x3f803f80')
    a(f'v_lshlrev_b32 v8, 4, v0\nv_add_u32 v8, {LONES}, v8\nds_write_b128 v8, v[12:15]')
    a('v_cmp_gt_u32 vcc, 16, v0\ns_and_saveexec_b64 s[26:27], vcc\nds_write_b128 v8, v[12:15] offset:4096\ns_mov_b64 exec, s[26:27]')
    Lz = a.newlabel('A_NZ')
    a(f's_cmp_lg_u32 s12, 0\ns_cbranch_scc1 {Lz}')
    a('v_mov_b32 v12, 0\nv_mov_b32 v13, 0\nv_mov_b32 v14, 0\nv_mov_b32 v15, 0')
    a(f'v_and_b32 v8, 127, v0\nv_lshlrev_b32 v8, 4, v8\nv_lshrrev_b32 v9, 7, v0')
    a(f'v_mul_u32_u24 v10, 4096, v9\nv_add_u32 v10, v10, v8\nv_add_u32 v10, {LK}, v10')
    for gg in (0, 2): a(f'ds_write_b128 v10, v[12:15] offset:{gg*4096}')
    a(f'v_mul_u32_u24 v11, 4128, v9\nv_add_u32 v11, v11, v8\nv_add_u32 v11, {LV}, v11')
    for gg in (0, 2): a(f'ds_write_b128 v11, v[12:15] offset:{gg*4128}')
    a(f'v_cmp_gt_u32 vcc, 128, v0\ns_and_saveexec_b64 s[26:27], vcc\nds_write_b128 v10, v[12:15] offset:{4*4096}\nds_write_b128 v11, v[12:15] offset:{4*4128}\ns_mov_b64 exec, s[26:27]')
    a.label(Lz)
    a(f'v_mul_u32_u24 v8, 4096, v7\nv_add_u32 v8, {LK}, v8\nv_mul_u32_u24 v9, 4128, v7\nv_add_u32 v9, {LV}, v9')
    a(f'v_mov_b32 v10, {LK + 4*4096}\nv_mov_b32 v11, {LV + 4*4128}\nv_cmp_eq_u32 vcc, 1, v7\nv_cndmask_b32 v10, v10, v11, vcc')
    a(f's_mul_i32 s24, s12, {KVH_STRIDE}\ns_mul_i32 s25, s13, 20480\ns_add_u32 s24, s24, s25\ns_add_u32 s24, s24, {WS_KVH}')
    a('v_lshlrev_b32 v11, 11, v7')
    a(f'v_mov_b32 v12, {4*2048}\nv_mov_b32 v13, {9*2048}\nv_cndmask_b32 v12, v12, v13, vcc')
    for tb in range(2):
        a(f's_sub_u32 s25, s{20+tb}, s19\ns_lshl_b32 s25, s25, 5\nv_add_u32 v14, s25, v6\nv_lshlrev_b32 v14, 3, v14')
        a('v_mov_b32 v15, v14')
        a('v_add_u32 v14, 2048, v14')
        P = 120 + 10*tb
        quads = [(0, 0), (0, 1), (0, 2), (0, 3), (1, 0)]
        for i, (ct, q) in enumerate(quads):
            d = ACC_A + (tb*2 + ct)*16 + 4*q
            a(f'v_cvt_pk_bf16_f32 v{P+2*i}, v{d}, v{d+1}\nv_cvt_pk_bf16_f32 v{P+2*i+1}, v{d+2}, v{d+3}')
        a(f'v_add_u32 v21, v8, v14\nds_write_b64 v21, v[{P}:{P+1}]\nds_write_b64 v21, v[{P+2}:{P+3}] offset:8192')
        a(f'v_add_u32 v22, v10, v14\nds_write_b64 v22, v[{P+4}:{P+5}]')
        a(f'v_add_u32 v23, v9, v14\nds_write_b64 v23, v[{P+6}:{P+7}]\nds_write_b64 v23, v[{P+8}:{P+9}] offset:{2*4128}')
        Ls = a.newlabel('A_NS')
        a(f's_cmp_eq_u32 s12, 7\ns_cbranch_scc1 {Ls}')
        a('v_add_u32 v21, v11, v15\nv_add_u32 v22, v12, v15')
        a(f'buffer_store_dwordx2 v[{P}:{P+1}], v21, s[8:11], s24 offen sc1')
        a(f's_add_u32 s25, s24, {2*2048}\nbuffer_store_dwordx2 v[{P+2}:{P+3}], v21, s[8:11], s25 offen sc1')
        a(f'buffer_store_dwordx2 v[{P+4}:{P+5}], v22, s[8:11], s24 offen sc1')
        a(f's_add_u32 s25, s24, {5*2048}\nbuffer_store_dwordx2 v[{P+6}:{P+7}], v21, s[8:11], s25 offen sc1')
        a(f's_add_u32 s25, s24, {7*2048}\nbuffer_store_dwordx2 v[{P+8}:{P+9}], v21, s[8:11], s25 offen sc1')
        a.label(Ls)
        Q = QF + 8*tb
        for i, q in enumerate((1, 2, 3)):
            d = ACC_A + (tb*2 + 1)*16 + 4*q
            a(f'v_cvt_pk_bf16_f32 v{Q+2*i}, v{d}, v{d+1}\nv_cvt_pk_bf16_f32 v{Q+2*i+1}, v{d+2}, v{d+3}')
        a(f'v_mov_b32 v21, 0x3f80\nv_cndmask_b32 v{Q+4}, v{Q+4}, v21, vcc\nv_cndmask_b32_e64 v{Q+5}, v{Q+5}, 0, vcc\nv_mov_b32 v{Q+6}, 0\nv_mov_b32 v{Q+7}, 0')
    a('s_waitcnt lgkmcnt(0)\ns_barrier')
    a.raw('    ; MARK 4')

def phase_b(a):
    import sys as _sys
    from kp_attn import attention
    attention(a, _sys.modules[__name__])
    a.raw('    ; MARK 6')
    a(f's_lshl_b32 s19, s12, 3\ns_add_u32 s20, s19, s3\ns_sub_u32 s21, 7, s3\ns_add_u32 s21, s21, s19\ns_mul_i32 s20, s20, 40960\ns_mul_i32 s21, s21, 40960')
    a(f's_lshl_b32 s22, s13, 10\ns_add_u32 s22, s22, {KP_O}')
    a(f's_lshr_b32 s23, s13, 2\ns_add_u32 s23, s23, 32\ns_lshl_b32 s23, s23, 10\ns_bfe_u32 s25, s13, 0x10001\ns_lshl_b32 s25, s25, 9\ns_add_u32 s23, s23, s25\ns_and_b32 s25, s13, 1\ns_lshl_b32 s25, s25, 3\ns_add_u32 s23, s23, s25\ns_add_u32 s23, s23, {KP_O}')
    def st(f):
        for tb in range(2):
            R = 240 + 6*tb
            a(f's_add_u32 s25, s{20+tb}, s22\nbuffer_store_dwordx4 v[{R}:{R+3}], v3, s[8:11], s25 offen{f}')
        a('s_mov_b32 exec_hi, 0')
        for tb in range(2):
            R = 240 + 6*tb
            a(f's_add_u32 s25, s{20+tb}, s23\nbuffer_store_dwordx2 v[{R+4}:{R+5}], v3, s[8:11], s25 offen{f}')
        a('s_mov_b64 exec, -1')
    store2(a, st)
    a('s_waitcnt vmcnt(0)')
    gbar(a, FL_O, also_set=FL_BG)
    a.raw('    ; MARK 7')

def kp_kernel(upto='E'):
    a = Asm()
    a('s_cmp_ge_u32 s2, 256\ns_cbranch_scc1 KP_END')
    a(f's_load_dwordx2 s[4:5], s[0:1], {KA_WS}')
    a(f's_load_dwordx2 s[6:7], s[0:1], {KA_OUT}')
    a(f's_load_dwordx2 s[16:17], s[0:1], {KA_X}')
    a(f's_load_dwordx4 s[36:39], s[0:1], {KA_WG}')
    a(f's_load_dwordx2 s[40:41], s[0:1], {KA_WD}')
    wave_id(a, 3, 1)
    a('v_and_b32 v2, 63, v0\nv_lshlrev_b32 v3, 4, v2')
    if OPT.get('perm_roles'): a('s_lshr_b32 s12, s2, 5\ns_and_b32 s13, s2, 31\ns_mov_b32 s14, 0')
    else: a('s_and_b32 s12, s2, 7\ns_lshr_b32 s13, s2, 3\ns_mov_b32 s14, 0')
    a('s_waitcnt lgkmcnt(0)')
    ws_rebase(a, 4)
    srd(a, 8, 4, 5, 0, WS_END)
    phase_h(a)
    if upto != 'H':
        phase_a(a)
        phase_b(a)
    if upto not in ('H', 'B'):
        from kp2 import phase_c, phase_d, phase_e
        phase_c(a)
        if upto != 'C':
            phase_d(a)
            if upto != 'D': phase_e(a)
    a.label('KP_END')
    a('s_endpgm')
    a.label('KP_CODE_END')
    return dict(name='kp_kernel', body=a.text(), grid=256, block=256, lds=163840, vgpr=256, agpr=256, sgpr=44, sgpr_real=96)
```

```python
from common import *
import math

SPIN = 2000000
LH = 81920
LFAST = LH + 2560
LK = 114176
LV = LK + 24576
LONES = 159488
NEG = -30000.0
KP_O = WS_H1F
WS_H2F = WS_H1F
KP_X1 = WS_XF

def store2(a, text_fn):
    L1 = a.newlabel('ST_S'); L2 = a.newlabel('ST_E')
    a(f's_cmp_eq_u32 s14, 0\ns_cbranch_scc1 {L1}')
    text_fn('')
    a(f's_branch {L2}')
    a.label(L1)
    text_fn(' sc1')
    a.label(L2)

def poll(a, vaddr, cond_reg='v20', sbase='s[4:5]', n=1, spin=None):
    L = a.newlabel('POLL'); Lo = a.newlabel('POLLX')
    a(f's_mov_b32 s18, {spin or SPIN}')
    a.label(L)
    a(f's_sub_u32 s18, s18, 1\ns_cmp_eq_u32 s18, 0\ns_cbranch_scc1 {Lo}')
    a(f'global_load_dword {cond_reg}, {vaddr}, {sbase} sc1')
    a('s_waitcnt vmcnt(0)')
    a(f'v_cmp_eq_u32 vcc, 0, {cond_reg}')
    a(f's_cbranch_vccnz {L}')
    a.label(Lo)

def poll_bg(a):
    L = a.newlabel('PBG'); Lo = a.newlabel('PBGX'); Ls = a.newlabel('PBGS')
    a(f's_cmp_lg_u32 s3, 1\ns_cbranch_scc1 {Ls}')
    a(f'v_add_u32 v18, {FL_BG}, v3\ns_mov_b32 s18, {SPIN}')
    a.label(L)
    a(f's_sub_u32 s18, s18, 1\ns_cmp_eq_u32 s18, 0\ns_cbranch_scc1 {Lo}')
    a('global_load_dwordx4 v[20:23], v18, s[4:5] sc1\ns_waitcnt vmcnt(0)')
    a('v_min_u32 v20, v20, v21\nv_min_u32 v22, v22, v23\nv_min_u32 v20, v20, v22\nv_cmp_eq_u32 vcc, 0, v20')
    a(f's_cbranch_vccnz {L}')
    a.label(Lo)
    a.label(Ls)

def gbar(a, flag, local=True, during=None, also_set=None):
    L = a.newlabel('GB'); Ld = a.newlabel('GBD')
    a('s_barrier')
    a(f's_cmp_lg_u32 s3, 0\ns_cbranch_scc1 {Ld if during else L}')
    a(f's_lshl_b32 s19, s12, 7\ns_add_u32 s19, s19, {flag}')
    a(f's_lshl_b32 s20, s13, 2\ns_add_u32 s20, s20, s19\nv_mov_b32 v18, s20\nv_mov_b32 v19, 1')
    a('s_mov_b64 exec, 1')
    if local: store2(a, lambda f: a(f'global_store_dword v18, v19, s[4:5]{f}'))
    else: a('global_store_dword v18, v19, s[4:5] sc1')
    if also_set is not None:
        a(f's_lshl_b32 s20, s2, 2\ns_add_u32 s20, s20, {also_set}\nv_mov_b32 v18, s20\nglobal_store_dword v18, v19, s[4:5] sc1')
    a('s_mov_b64 exec, -1')
    a('v_and_b32 v18, 31, v2\nv_lshlrev_b32 v18, 2, v18\nv_add_u32 v18, s19, v18')
    poll(a, 'v18')
    if during:
        a(f's_branch {L}')
        a.label(Ld)
        during()
    a.label(L)
    a('s_barrier')

def fin_mod(a, base, nq_valid_exec=None):
    for e in range(4):
        a(f'v_add_f32 v{base+e}, v{base+e}, v{base+4+e}\nv_add_f32 v{base+8+e}, v{base+8+e}, v{base+12+e}\nv_add_f32 v{base+e}, v{base+e}, v{base+8+e}')

def round_pack(a, base, vone, out):
    a(f'v_cvt_pk_bf16_f32 v{out}, v{base}, v{base+1}\nv_cvt_pk_bf16_f32 v{out+1}, v{base+2}, v{base+3}')
    a(f'v_lshlrev_b32 v{base}, 16, v{out}\nv_and_b32 v{base+1}, 0xffff0000, v{out}\nv_lshlrev_b32 v{base+2}, 16, v{out+1}\nv_and_b32 v{base+3}, 0xffff0000, v{out+1}')
    for e in range(4): a(f'v_add_f32 v{base+e}, v{base+e}, v{vone}')
    a(f'v_cvt_pk_bf16_f32 v{out}, v{base}, v{base+1}\nv_cvt_pk_bf16_f32 v{out+1}, v{base+2}, v{base+3}')

def cperm_pos_bytes(a, vcol4, out, tmp):
    a(f'v_lshrrev_b32 v{out}, 2, v{vcol4}\nv_lshlrev_b32 v{out}, 5, v{out}')
    a(f'v_and_b32 v{tmp}, 1, v{vcol4}\nv_lshl_add_u32 v{out}, v{tmp}, 4, v{out}')
    a(f'v_bfe_u32 v{tmp}, v{vcol4}, 1, 1\nv_lshl_add_u32 v{out}, v{tmp}, 3, v{out}')

LHF = 81920
LFAST = LHF + 5120


def round4(a, base, vone):
    t = base + 4
    for rep in range(2):
        a(f'v_cvt_pk_bf16_f32 v{t}, v{base}, v{base+1}\nv_cvt_pk_bf16_f32 v{t+1}, v{base+2}, v{base+3}')
        a(f'v_lshlrev_b32 v{base}, 16, v{t}\nv_and_b32 v{base+1}, 0xffff0000, v{t}\nv_lshlrev_b32 v{base+2}, 16, v{t+1}\nv_and_b32 v{base+3}, 0xffff0000, v{t+1}')
        if rep == 0:
            for e in range(4): a(f'v_add_f32 v{base+e}, v{base+e}, v{vone}')

def bg_setup(a):
    a('s_lshl_b32 s30, s2, 1')
    a('v_lshrrev_b32 v14, 3, v2\nv_and_b32 v15, 7, v2')
    Ld = a.newlabel('BG_D'); Le = a.newlabel('BG_E')
    a(f's_cmp_ge_u32 s2, 160\ns_cbranch_scc1 {Ld}')
    a(f's_lshr_b32 s19, s30, 3\ns_mul_i32 s43, s19, 49152\ns_and_b32 s20, s30, 3\ns_mul_i32 s20, s20, 768\ns_add_u32 s43, s43, s20')
    a('s_bitcmp1_b32 s30, 2\ns_cselect_b32 s32, s38, s36\ns_cselect_b32 s33, s39, s37')
    a(f's_and_b32 s20, s30, 3\ns_mul_i32 s31, s20, {4*40*6144}\ns_mul_i32 s19, s19, 6144\ns_add_u32 s31, s31, s19\ns_bfe_u32 s19, s30, 0x10002\ns_mul_i32 s19, s19, 3072\ns_add_u32 s31, s31, s19\ns_add_u32 s31, s31, {WS_WGU}')
    a('v_mul_u32_u24 v8, 3072, v14\nv_lshl_add_u32 v8, v15, 4, v8')
    a('v_lshlrev_b32 v14, 6, v14\nv_and_b32 v11, 3, v15\nv_lshl_add_u32 v14, v11, 4, v14\nv_lshrrev_b32 v11, 2, v15')
    a(f'v_mul_u32_u24 v15, {40*6144 - 2048}, v11\nv_add_u32 v15, v15, v14\nv_lshl_add_u32 v14, v11, 10, v14')
    a(f's_branch {Le}')
    a.label(Ld)
    a(f's_sub_u32 s30, s30, 320\ns_lshr_b32 s19, s30, 1\ns_mul_i32 s43, s19, 20480')
    a('s_mov_b32 s32, s40\ns_mov_b32 s33, s41')
    a(f's_lshr_b32 s31, s30, 2\ns_mul_i32 s31, s31, 5120\ns_add_u32 s31, s31, {WS_WD}\ns_and_b32 s30, s19, 1')
    a('v_mul_u32_u24 v8, 1280, v14\nv_lshl_add_u32 v8, v15, 4, v8')
    a.label(Le)
    a('s_mov_b32 s34, 1966080\ns_mov_b32 s35, 0x20000')

def bg_plan(w):
    gu = [(i, rh, m) for i in range(2) for m in range(6) for rh in range(2)]
    dn = [(i, rh, m) for i in range(2) for m in range(5) for rh in range(2)]
    g = gu[w-1::3]; d = dn[w-1::3]
    return [(g[k], d[k] if k < len(d) else None) for k in range(8)]

def bg_load(k, gu, dn):
    i, rh, m = gu
    return (f's_add_u32 s19, s43, {i*768 + rh*8*3072}\nbuffer_load_dwordx4 a[{4*k}:{4*k+3}], v8, s[32:35], s19 offen offset:{128*m}',
            (f's_add_u32 s19, s43, {dn[0]*640 + dn[1]*8*1280}\nbuffer_load_dwordx4 a[{4*k}:{4*k+3}], v8, s[32:35], s19 offen offset:{128*dn[2]}' if dn
             else f'buffer_load_dwordx4 a[{4*k}:{4*k+3}], v8, s[32:35], s43 offen'))

def bg_store(k, gu, dn):
    i, rh, m = gu
    b = 2*m
    off = i*4*40*6144 + (b//3)*40*6144 + (b % 3)*1024 + rh*512
    tg = f's_add_u32 s23, s31, {off}\nbuffer_store_dwordx4 a[{4*k}:{4*k+3}], v{15 if (b % 3) == 2 else 14}, s[8:11], s23 offen sc1'
    if dn is None: return tg, 's_nop 0'
    i, rh, m = dn
    t = f'v_add_u32 v11, {8*m}, v15\nv_mul_u32_u24 v12, 6554, v11\nv_lshrrev_b32 v12, 16, v12\nv_mul_u32_u24 v8, 10, v12\nv_sub_u32 v11, v11, v8'
    t += f'\nv_mul_u32_u24 v12, {48*5}, v12\nv_lshlrev_b32 v12, 10, v12'
    t += f'\ns_lshl_b32 s19, s30, 11\ns_add_u32 s19, s19, {rh*512}\ns_lshl_b32 s23, s30, 9\ns_add_u32 s23, s23, {4096 + rh*256}'
    t += '\nv_cmp_lt_u32 s[20:21], 7, v11\nv_and_b32 v8, 3, v11\nv_lshlrev_b32 v8, 4, v8\nv_lshrrev_b32 v11, 2, v11\nv_lshlrev_b32 v11, 10, v11'
    t += '\nv_lshl_add_u32 v11, v14, 6, v11\nv_add_u32 v11, s19, v11\nv_add_u32 v12, v12, v8\nv_lshlrev_b32 v8, 5, v14\nv_add_u32 v8, s23, v8\nv_cndmask_b32_e64 v11, v11, v8, s[20:21]\nv_add_u32 v12, v12, v11'
    t += f'\ns_add_u32 s23, s31, {i*4*48*5120}\nbuffer_store_dwordx4 a[{4*k}:{4*k+3}], v12, s[8:11], s23 offen sc1'
    return tg, t

LSYNC = LFAST + 16
def lds_arrive(a, off):
    a(f'v_mov_b32 v18, {LSYNC + off}\nv_mov_b32 v19, 1\ns_mov_b64 exec, 1\nds_add_u32 v18, v19\ns_mov_b64 exec, -1')
def lds_spin(a, off, n):
    L = a.newlabel('LSP'); Lo = a.newlabel('LSPX')
    a(f'v_mov_b32 v18, {LSYNC + off}\ns_mov_b32 s18, {SPIN}')
    a.label(L)
    a(f's_sub_u32 s18, s18, 1\ns_cmp_eq_u32 s18, 0\ns_cbranch_scc1 {Lo}')
    a(f'ds_read_b32 v19, v18\ns_waitcnt lgkmcnt(0)\nv_readfirstlane_b32 s19, v19\ns_cmp_lt_u32 s19, {n}\ns_cbranch_scc1 {L}')
    a.label(Lo)

def phase_h(a):
    a(f'v_mov_b32 v18, {LSYNC}\nv_mov_b32 v20, 0\nv_mov_b32 v21, 0\nv_mov_b32 v22, 0\nv_mov_b32 v23, 0\nds_write_b128 v18, v[20:23]\ns_waitcnt lgkmcnt(0)\ns_barrier')
    Lw23 = a.newlabel('H_W23'); Lend = a.newlabel('H_END')
    a(f's_cmp_ge_u32 s3, 2\ns_cbranch_scc1 {Lw23}')
    a('s_setprio 3')
    a('v_lshrrev_b32 v5, 4, v2\nv_and_b32 v4, 15, v2')
    a('s_lshl_b32 s19, s12, 8\ns_lshl_b32 s20, s13, 3\ns_add_u32 s19, s19, s20\ns_lshl_b32 s20, s3, 2\ns_add_u32 s19, s19, s20')
    a('v_add_u32 v5, s19, v5')
    a('v_lshrrev_b32 v7, 1, v4\nv_and_b32 v8, 1, v4')
    a(f's_mul_i32 s21, s3, 2560\ns_add_u32 s21, s21, {WS_MODP}')
    for p in range(4):
        for r in range(3):
            a(f'buffer_load_dwordx4 v[{24+16*r+4*p}:{27+16*r+4*p}], v3, s[8:11], s21 offen offset:{r*1024}')
        if p < 3: a('s_add_u32 s21, s21, 15360')
    srd(a, 24, 16, 17, 0, ACT_BYTES)
    a('v_mul_u32_u24 v6, 1280, v5\nv_lshl_add_u32 v6, v7, 5, v6\nv_lshl_add_u32 v6, v8, 3, v6')
    for i in range(5):
        a(f'buffer_load_dwordx2 v[{192+4*i}:{193+4*i}], v6, s[24:27], 0 offen offset:{i*256}')
        a(f'buffer_load_dwordx2 v[{194+4*i}:{195+4*i}], v6, s[24:27], 0 offen offset:{i*256+16}')
    Lx = a.newlabel('H_XT'); Lx2 = a.newlabel('H_XT2')
    a('s_getreg_b32 s15, hwreg(HW_REG_XCC_ID, 0, 4)\ns_add_u32 s15, s15, 1')
    a(f's_cmp_lg_u32 s3, 1\ns_cbranch_scc1 {Lx}')
    a(f's_lshl_b32 s19, s12, 7\ns_lshl_b32 s20, s13, 2\ns_add_u32 s19, s19, s20\ns_add_u32 s19, s19, {FL_XT}')
    a('v_mov_b32 v18, s19\nv_mov_b32 v19, s15\ns_mov_b64 exec, 1')
    a('global_store_dword v18, v19, s[4:5] sc1')
    a('s_mov_b64 exec, -1')
    a('s_waitcnt vmcnt(11)')
    a(f's_branch {Lx2}')
    a.label(Lx)
    a('s_waitcnt vmcnt(10)')
    a.label(Lx2)
    a.raw('    ; MARK 0')
    a('v_lshrrev_b32 v14, 2, v2\nv_lshlrev_b32 v14, 6, v14\nv_and_b32 v15, 1, v2\nv_lshl_add_u32 v14, v15, 5, v14\nv_bfe_u32 v15, v2, 1, 1\nv_lshl_add_u32 v14, v15, 4, v14')
    a(f's_mul_i32 s20, s3, 2560\ns_add_u32 s20, s20, {LHF}\nv_add_u32 v14, s20, v14')
    a('s_cmp_eq_u32 s3, 1\ns_cselect_b32 s20, 1.0, 0\nv_mov_b32 v12, s20')
    for r in range(3):
        b = 24 + 16*r
        fin_mod(a, b); round4(a, b, 12)
        if r == 2: a('s_mov_b32 exec_hi, 0')
        a(f'ds_write_b128 v14, v[{b}:{b+3}] offset:{r*1024}')
        if r == 2: a('s_mov_b64 exec, -1')
    a('s_waitcnt lgkmcnt(0)')
    lds_arrive(a, 0)
    X = 192; F = 124
    a('s_waitcnt vmcnt(0)')
    a(f's_lshl_b32 s19, s12, 7\ns_add_u32 s19, s19, {FL_XT}\nv_and_b32 v22, 31, v2\nv_lshlrev_b32 v22, 2, v22\nv_add_u32 v22, s19, v22')
    a('global_load_dword v20, v22, s[4:5] sc1')
    for i in range(20):
        a(f'v_lshlrev_b32 v{F+2*i}, 16, v{X+i}\nv_and_b32 v{F+1+2*i}, 0xffff0000, v{X+i}')
    a(f'v_pk_add_f32 v[12:13], v[{F}:{F+1}], v[{F+2}:{F+3}]\nv_pk_add_f32 v[14:15], v[{F+4}:{F+5}], v[{F+6}:{F+7}]')
    for i in range(4, 20, 2):
        a(f'v_pk_add_f32 v[12:13], v[12:13], v[{F+2*i}:{F+2*i+1}]\nv_pk_add_f32 v[14:15], v[14:15], v[{F+2*i+2}:{F+2*i+3}]')
    a('v_pk_add_f32 v[12:13], v[12:13], v[14:15]\nv_add_f32 v12, v12, v13')
    for rot in (8, 4, 2, 1):
        a(f'v_add_f32_dpp v12, v12, v12 row_ror:{rot} row_mask:0xf bank_mask:0xf')
    a(f'v_mul_f32 v12, {hex(f2u(-1.0/640))}, v12\nv_mov_b32 v13, v12')
    for i in range(20): a(f'v_pk_add_f32 v[{F+2*i}:{F+2*i+1}], v[{F+2*i}:{F+2*i+1}], v[12:13]')
    a(f'v_pk_mul_f32 v[14:15], v[{F}:{F+1}], v[{F}:{F+1}]\nv_pk_mul_f32 v[16:17], v[{F+2}:{F+3}], v[{F+2}:{F+3}]')
    for i in range(2, 20, 2):
        a(f'v_pk_fma_f32 v[14:15], v[{F+2*i}:{F+2*i+1}], v[{F+2*i}:{F+2*i+1}], v[14:15]\nv_pk_fma_f32 v[16:17], v[{F+2*i+2}:{F+2*i+3}], v[{F+2*i+2}:{F+2*i+3}], v[16:17]')
    a('v_pk_add_f32 v[14:15], v[14:15], v[16:17]\nv_add_f32 v14, v14, v15')
    for rot in (8, 4, 2, 1):
        a(f'v_add_f32_dpp v14, v14, v14 row_ror:{rot} row_mask:0xf bank_mask:0xf')
    a(f'v_mov_b32 v15, {hex(f2u(1e-5))}\nv_fmac_f32 v15, {hex(f2u(1.0/640))}, v14\nv_rsq_f32 v14, v15')
    a('v_mov_b32 v15, v14')
    Lp = a.newlabel('H_XP'); Lpo = a.newlabel('H_XPO')
    a(f's_waitcnt vmcnt(0)\nv_cmp_eq_u32 vcc, 0, v20\ns_cbranch_vccz {Lpo}')
    poll(a, 'v22')
    a.label(Lpo)
    a('v_cmp_ne_u32 vcc, s15, v20\ns_cmp_eq_u64 vcc, 0\ns_cselect_b32 s14, 1, 0')
    a(f'v_mov_b32 v18, {LFAST}\nv_mov_b32 v19, s14\nds_write_b32 v18, v19')
    lds_spin(a, 0, 2)
    a(f'v_lshlrev_b32 v9, 5, v4\nv_add_u32 v9, {LHF}, v9')
    A1 = 24; SA = 64
    for i in range(5):
        for hh in range(2):
            a(f'ds_read_b128 v[{A1+8*i+4*hh}:{A1+8*i+4*hh+3}], v9 offset:{2560 + i*512 + 16*hh}')
            a(f'ds_read_b128 v[{SA+8*i+4*hh}:{SA+8*i+4*hh+3}], v9 offset:{i*512 + 16*hh}')
    for i in range(20): a(f'v_pk_mul_f32 v[{F+2*i}:{F+2*i+1}], v[{F+2*i}:{F+2*i+1}], v[14:15]')
    for i in range(5):
        a(f's_waitcnt lgkmcnt({min(15, 16 - 4*i)})')
        for k in range(4*i, 4*i+4):
            a(f'v_pk_fma_f32 v[{F+2*k}:{F+2*k+1}], v[{F+2*k}:{F+2*k+1}], v[{A1+2*k}:{A1+2*k+1}], v[{SA+2*k}:{SA+2*k+1}]')
            a(f'v_cvt_pk_bf16_f32 v{164+k}, v{F+2*k}, v{F+2*k+1}')
    a('v_and_b32 v10, 31, v5\nv_lshlrev_b32 v10, 4, v10\nv_lshl_add_u32 v10, v7, 10, v10\nv_lshl_add_u32 v10, v8, 9, v10')
    a('s_lshl_b32 s19, s12, 3\ns_lshr_b32 s20, s13, 2\ns_add_u32 s21, s19, s20\ns_mul_i32 s21, s21, 40960')
    def st(f):
        for i in range(5):
            a(f's_add_u32 s20, s21, {WS_H1F + i*8192}')
            a(f'buffer_store_dwordx4 v[{164+4*i}:{167+4*i}], v10, s[8:11], s20 offen{f}')
    store2(a, st)
    a('s_waitcnt vmcnt(0)')
    a.raw('    ; MARK 1')
    Lw1 = a.newlabel('H_W1'); Lst = a.newlabel('H_ST')
    a(f's_cmp_eq_u32 s3, 1\ns_cbranch_scc1 {Lw1}')
    lds_spin(a, 4, 1)
    a(f's_lshl_b32 s22, s12, 7\ns_add_u32 s22, s22, {FL_H}\ns_lshl_b32 s20, s13, 2\ns_add_u32 s20, s20, s22\nv_mov_b32 v18, s20\nv_mov_b32 v19, 1\ns_mov_b64 exec, 1')
    store2(a, lambda f: a(f'global_store_dword v18, v19, s[4:5]{f}'))
    a('s_mov_b64 exec, -1')
    a('v_and_b32 v18, 31, v2\nv_lshlrev_b32 v18, 2, v18\nv_add_u32 v18, s22, v18')
    poll(a, 'v18')
    a(f's_branch {Lst}')
    a.label(Lw1)
    lds_arrive(a, 4)
    a.label(Lst)
    def st2(f):
        for i in range(5):
            a(f's_add_u32 s20, s21, {WS_XF + i*8192}')
            a(f'buffer_store_dwordx4 v[{X+4*i}:{X+3+4*i}], v10, s[8:11], s20 offen{f}')
    store2(a, st2)
    a(f's_branch {Lend}')
    a.label(Lw23)
    if OPT.get('tlbwarm'):
        a('v_lshlrev_b32 v9, 21, v2\ns_mov_b64 exec, 0x3ffffff')
        a('buffer_load_dword v255, v9, s[8:11], 0 offen')
        a('s_mov_b64 exec, 3')
        a('global_load_dword v255, v9, s[6:7]')
        a('s_mov_b64 exec, 1')
        for r in (36, 38, 40): a(f'global_load_dword v255, v9, s[{r}:{r+1}]')
        a('s_mov_b64 exec, -1')
    if OPT.get('h_touch', 1):
        a(f's_mul_i32 s20, s12, 327680\ns_mul_i32 s21, s13, 10240\ns_add_u32 s20, s20, s21\ns_sub_u32 s21, s3, 2\ns_mul_i32 s21, s21, 5120\ns_add_u32 s20, s20, s21\ns_add_u32 s20, s20, {WS_H1F}')
        touch(a, 8, 9, 255, 20, 40)
    if OPT.get('kv_touch'):
        a(f's_mul_i32 s20, s12, {KVH_STRIDE}\ns_mul_i32 s21, s13, 20480\ns_add_u32 s20, s20, s21\ns_sub_u32 s21, s3, 2\ns_mul_i32 s21, s21, 10240\ns_add_u32 s20, s20, s21\ns_add_u32 s20, s20, {WS_KVH}')
        touch(a, 8, 9, 255, 20, 80)
    a(f's_mul_i32 s20, s13, 81920\ns_sub_u32 s21, s3, 2\ns_lshl_b32 s21, s21, 12\ns_add_u32 s20, s20, s21\ns_add_u32 s20, s20, {WS_WQKV}')
    PB = OPT.get('a_preB', 10)
    for i in range(PB):
        a(f's_add_u32 m0, s21, {i*8192}')
        for q in range(4): a(f'buffer_load_dwordx4 v3, s[8:11], s20 offen offset:{q*1024} lds')
        if i < PB-1: a('s_add_u32 s20, s20, 8192')
    L3 = a.newlabel('H_T3')
    a(f's_cmp_eq_u32 s3, 3\ns_cbranch_scc0 {L3}')
    a('s_mul_i32 s20, s13, 20\ns_add_u32 s20, s20, 320\nv_add_u32 v10, s20, v2\nv_lshlrev_b32 v11, 4, v10')
    for p in range(4):
        a(f's_mov_b32 s20, {WS_MODP + p*15360}')
        a(f'buffer_load_dwordx4 v[{44+4*p}:{47+4*p}], v11, s[8:11], s20 offen')
    a.label(L3)
    a('s_waitcnt vmcnt(0)')
    L4 = a.newlabel('H_T4')
    a(f's_cmp_eq_u32 s3, 3\ns_cbranch_scc0 {L4}')
    fin_mod(a, 44)
    a('v_mul_u32_u24 v12, 410, v10\nv_lshrrev_b32 v12, 16, v12')
    a('v_mul_u32_u24 v13, 160, v12\nv_sub_u32 v13, v10, v13')
    cperm_pos_bytes(a, 13, 14, 15)
    a('v_mul_u32_u24 v15, 1280, v12\nv_add_u32 v14, v14, v15')
    a('v_cmp_eq_u32 vcc, 4, v12\nv_cndmask_b32_e64 v12, 0, 1.0, vcc')
    round_pack(a, 44, 12, 48)
    a(f's_lshl_b32 s20, s12, 13\ns_add_u32 s20, s20, {WS_MODF}')
    a('s_mov_b32 exec_lo, 0xfffff\ns_mov_b32 exec_hi, 0')
    a('buffer_store_dwordx2 v[48:49], v14, s[8:11], s20 offen sc1')
    a('s_mov_b64 exec, -1')
    a.label(L4)
    a.label(Lend)
    a.raw('    ; MARK 19')
    a('s_setprio 0')
    a('s_waitcnt lgkmcnt(0)\ns_barrier')
    a(f'v_mov_b32 v18, {LFAST}\nds_read_b32 v19, v18\ns_waitcnt lgkmcnt(0)\nv_readfirstlane_b32 s14, v19')
    a.raw('    ; MARK 2')

ACC_A = 40
QF = 224
OPT = dict(a_pre=3, a_pace=2, a_ahead=5, a_sc=' sc1', a_preB=5, bg=0)
def phase_a(a):
    vm = Vm(a)
    a('s_lshl_b32 s19, s12, 3\ns_add_u32 s20, s19, s3\ns_sub_u32 s21, 7, s3\ns_add_u32 s21, s19, s21')
    a(f's_mul_i32 s22, s20, 40960\ns_add_u32 s22, s22, {WS_H1F}\ns_mul_i32 s23, s21, 40960\ns_add_u32 s23, s23, {WS_H1F}')
    def opsA(c):
        ops = []
        for tb in range(2):
            ops.append((f's_add_u32 s{24+tb}, s{22+tb}, {c*4096}', False))
            for q in range(4):
                f = (2*(4*c + q) + tb) % 64
                ops.append((f'buffer_load_dwordx4 a[{4*f}:{4*f+3}], v3, s[8:11], s{24+tb} offen offset:{q*1024}{OPT["a_sc"]}', True))
        return ops
    a('v_add_u32 v5, 0x10000, v3')
    def read_frag(ks, ct, r):
        off = (ks*2 + ct)*1024
        return f'ds_read_b128 v[{r}:{r+3}], v{3 if off < 65536 else 5} offset:{off % 65536}'
    def mfmas(ks, ct, r, first):
        out = []
        for tb in range(2):
            d = ACC_A + (tb*2 + ct)*16; f = (2*ks + tb) % 64
            out.append(f'v_mfma_f32_32x32x16_bf16 v[{d}:{d+15}], v[{r}:{r+3}], a[{4*f}:{4*f+3}], ' + ('0' if first else f'v[{d}:{d+15}]'))
        return out
    PB = OPT.get('a_preB', 10)
    a(f's_mul_i32 s26, s13, 81920\ns_lshl_b32 s27, s3, 11\ns_add_u32 s26, s26, s27\ns_add_u32 s26, s26, {WS_WQKV}')
    def opsB(c):
        return [(f's_add_u32 m0, s27, {c*8192}', False), (f's_add_u32 s28, s26, {c*8192}', False),
                ('buffer_load_dwordx4 v3, s[8:11], s28 offen lds', True), ('buffer_load_dwordx4 v3, s[8:11], s28 offen offset:1024 lds', True)]
    gemm2(a, vm, 40, 4, 2, opsA, opsB, PB, read_frag, mfmas, 16, pd=2, pre=OPT['a_pre'], pace=OPT['a_pace'], ahead=OPT['a_ahead'], barriers=(PB < 10))
    a.raw('    ; MARK 3')
    a('v_and_b32 v6, 31, v2\nv_lshrrev_b32 v7, 5, v2')
    a(f'v_lshlrev_b32 v8, 4, v0\nv_add_u32 v8, {LK + 5*4096}, v8\nv_mov_b32 v12, 0\nv_mov_b32 v13, 0\nv_mov_b32 v14, 0\nv_mov_b32 v15, 0')
    Lb = a.newlabel('A_NB')
    a(f's_cmp_lg_u32 s12, 0\ns_cbranch_scc1 {Lb}')
    nb = f2u(NEG) >> 16
    a(f'v_mov_b32 v9, {nb}\nv_cmp_gt_u32 vcc, 128, v0\nv_cndmask_b32 v12, 0, v9, vcc\nv_mov_b32 v14, v12')
    a.label(Lb)
    a('ds_write_b128 v8, v[12:15]')
    a(f'v_mov_b32 v12, 0x3f803f80\nv_mov_b32 v13, 0x3f803f80\nv_mov_b32 v14, 0x3f803f80\nv_mov_b32 v15, 0x3f803f80')
    a(f'v_lshlrev_b32 v8, 4, v0\nv_add_u32 v8, {LONES}, v8\nds_write_b128 v8, v[12:15]')
    a('v_cmp_gt_u32 vcc, 16, v0\ns_and_saveexec_b64 s[26:27], vcc\nds_write_b128 v8, v[12:15] offset:4096\ns_mov_b64 exec, s[26:27]')
    Lz = a.newlabel('A_NZ')
    a(f's_cmp_lg_u32 s12, 0\ns_cbranch_scc1 {Lz}')
    a('v_mov_b32 v12, 0\nv_mov_b32 v13, 0\nv_mov_b32 v14, 0\nv_mov_b32 v15, 0')
    a(f'v_and_b32 v8, 127, v0\nv_lshlrev_b32 v8, 4, v8\nv_lshrrev_b32 v9, 7, v0')
    a(f'v_mul_u32_u24 v10, 4096, v9\nv_add_u32 v10, v10, v8\nv_add_u32 v10, {LK}, v10')
    for gg in (0, 2): a(f'ds_write_b128 v10, v[12:15] offset:{gg*4096}')
    a(f'v_mul_u32_u24 v11, 4128, v9\nv_add_u32 v11, v11, v8\nv_add_u32 v11, {LV}, v11')
    for gg in (0, 2): a(f'ds_write_b128 v11, v[12:15] offset:{gg*4128}')
    a(f'v_cmp_gt_u32 vcc, 128, v0\ns_and_saveexec_b64 s[26:27], vcc\nds_write_b128 v10, v[12:15] offset:{4*4096}\nds_write_b128 v11, v[12:15] offset:{4*4128}\ns_mov_b64 exec, s[26:27]')
    a.label(Lz)
    a(f'v_mul_u32_u24 v8, 4096, v7\nv_add_u32 v8, {LK}, v8\nv_mul_u32_u24 v9, 4128, v7\nv_add_u32 v9, {LV}, v9')
    a(f'v_mov_b32 v10, {LK + 4*4096}\nv_mov_b32 v11, {LV + 4*4128}\nv_cmp_eq_u32 vcc, 1, v7\nv_cndmask_b32 v10, v10, v11, vcc')
    a(f's_mul_i32 s24, s12, {KVH_STRIDE}\ns_mul_i32 s25, s13, 20480\ns_add_u32 s24, s24, s25\ns_add_u32 s24, s24, {WS_KVH}')
    a('v_lshlrev_b32 v11, 11, v7')
    a(f'v_mov_b32 v12, {4*2048}\nv_mov_b32 v13, {9*2048}\nv_cndmask_b32 v12, v12, v13, vcc')
    for tb in range(2):
        a(f's_sub_u32 s25, s{20+tb}, s19\ns_lshl_b32 s25, s25, 5\nv_add_u32 v14, s25, v6\nv_lshlrev_b32 v14, 3, v14')
        a('v_mov_b32 v15, v14')
        a('v_add_u32 v14, 2048, v14')
        P = 120 + 10*tb
        quads = [(0, 0), (0, 1), (0, 2), (0, 3), (1, 0)]
        for i, (ct, q) in enumerate(quads):
            d = ACC_A + (tb*2 + ct)*16 + 4*q
            a(f'v_cvt_pk_bf16_f32 v{P+2*i}, v{d}, v{d+1}\nv_cvt_pk_bf16_f32 v{P+2*i+1}, v{d+2}, v{d+3}')
        a(f'v_add_u32 v21, v8, v14\nds_write_b64 v21, v[{P}:{P+1}]\nds_write_b64 v21, v[{P+2}:{P+3}] offset:8192')
        a(f'v_add_u32 v22, v10, v14\nds_write_b64 v22, v[{P+4}:{P+5}]')
        a(f'v_add_u32 v23, v9, v14\nds_write_b64 v23, v[{P+6}:{P+7}]\nds_write_b64 v23, v[{P+8}:{P+9}] offset:{2*4128}')
        Ls = a.newlabel('A_NS')
        a(f's_cmp_eq_u32 s12, 7\ns_cbranch_scc1 {Ls}')
        a('v_add_u32 v21, v11, v15\nv_add_u32 v22, v12, v15')
        a(f'buffer_store_dwordx2 v[{P}:{P+1}], v21, s[8:11], s24 offen sc1')
        a(f's_add_u32 s25, s24, {2*2048}\nbuffer_store_dwordx2 v[{P+2}:{P+3}], v21, s[8:11], s25 offen sc1')
        a(f'buffer_store_dwordx2 v[{P+4}:{P+5}], v22, s[8:11], s24 offen sc1')
        a(f's_add_u32 s25, s24, {5*2048}\nbuffer_store_dwordx2 v[{P+6}:{P+7}], v21, s[8:11], s25 offen sc1')
        a(f's_add_u32 s25, s24, {7*2048}\nbuffer_store_dwordx2 v[{P+8}:{P+9}], v21, s[8:11], s25 offen sc1')
        a.label(Ls)
        Q = QF + 8*tb
        for i, q in enumerate((1, 2, 3)):
            d = ACC_A + (tb*2 + 1)*16 + 4*q
            a(f'v_cvt_pk_bf16_f32 v{Q+2*i}, v{d}, v{d+1}\nv_cvt_pk_bf16_f32 v{Q+2*i+1}, v{d+2}, v{d+3}')
        a(f'v_mov_b32 v21, 0x3f80\nv_cndmask_b32 v{Q+4}, v{Q+4}, v21, vcc\nv_cndmask_b32_e64 v{Q+5}, v{Q+5}, 0, vcc\nv_mov_b32 v{Q+6}, 0\nv_mov_b32 v{Q+7}, 0')
    a('s_waitcnt lgkmcnt(0)\ns_barrier')
    a.raw('    ; MARK 4')

def phase_b(a):
    import sys as _sys
    from kp_attn import attention
    attention(a, _sys.modules[__name__])
    a.raw('    ; MARK 6')
    a(f's_lshl_b32 s19, s12, 3\ns_add_u32 s20, s19, s3\ns_sub_u32 s21, 7, s3\ns_add_u32 s21, s21, s19\ns_mul_i32 s20, s20, 40960\ns_mul_i32 s21, s21, 40960')
    a(f's_lshl_b32 s22, s13, 10\ns_add_u32 s22, s22, {KP_O}')
    a(f's_lshr_b32 s23, s13, 2\ns_add_u32 s23, s23, 32\ns_lshl_b32 s23, s23, 10\ns_bfe_u32 s25, s13, 0x10001\ns_lshl_b32 s25, s25, 9\ns_add_u32 s23, s23, s25\ns_and_b32 s25, s13, 1\ns_lshl_b32 s25, s25, 3\ns_add_u32 s23, s23, s25\ns_add_u32 s23, s23, {KP_O}')
    def st(f):
        for tb in range(2):
            R = 240 + 6*tb
            a(f's_add_u32 s25, s{20+tb}, s22\nbuffer_store_dwordx4 v[{R}:{R+3}], v3, s[8:11], s25 offen{f}')
        a('s_mov_b32 exec_hi, 0')
        for tb in range(2):
            R = 240 + 6*tb
            a(f's_add_u32 s25, s{20+tb}, s23\nbuffer_store_dwordx2 v[{R+4}:{R+5}], v3, s[8:11], s25 offen{f}')
        a('s_mov_b64 exec, -1')
    store2(a, st)
    a('s_waitcnt vmcnt(0)')
    gbar(a, FL_O, also_set=FL_BG)
    a.raw('    ; MARK 7')

def kp_kernel(upto='E'):
    a = Asm()
    a('s_cmp_ge_u32 s2, 256\ns_cbranch_scc1 KP_END')
    a(f's_load_dwordx2 s[4:5], s[0:1], {KA_WS}')
    a(f's_load_dwordx2 s[6:7], s[0:1], {KA_OUT}')
    a(f's_load_dwordx2 s[16:17], s[0:1], {KA_X}')
    a(f's_load_dwordx4 s[36:39], s[0:1], {KA_WG}')
    a(f's_load_dwordx2 s[40:41], s[0:1], {KA_WD}')
    wave_id(a, 3, 1)
    a('v_and_b32 v2, 63, v0\nv_lshlrev_b32 v3, 4, v2')
    if OPT.get('perm_roles'): a('s_lshr_b32 s12, s2, 5\ns_and_b32 s13, s2, 31\ns_mov_b32 s14, 0')
    else: a('s_and_b32 s12, s2, 7\ns_lshr_b32 s13, s2, 3\ns_mov_b32 s14, 0')
    a('s_waitcnt lgkmcnt(0)')
    ws_rebase(a, 4)
    srd(a, 8, 4, 5, 0, WS_END)
    phase_h(a)
    if upto != 'H':
        phase_a(a)
        phase_b(a)
    if upto not in ('H', 'B'):
        from kp2 import phase_c, phase_d, phase_e
        phase_c(a)
        if upto != 'C':
            phase_d(a)
            if upto != 'D': phase_e(a)
    a.label('KP_END')
    a('s_endpgm')
    a.label('KP_CODE_END')
    return dict(name='kp_kernel', body=a.text(), grid=256, block=256, lds=163840, vgpr=256, agpr=256, sgpr=44, sgpr_real=96)
```

```python
from common import *

TOUCH = True
K0LDS = [16384]
H1TOUCH = False
N_GEMV, N_QKV, N_GU, N_WD, N_WO = 240, 160, 320, 192, 80
N_LN = 256

def ln_section(a):
    from kp import fin_mod, round4
    a.label('K0_LN')
    a('s_and_b32 s12, s2, 7\ns_sub_u32 s13, s2, 240\ns_lshr_b32 s13, s13, 3')
    a('v_lshlrev_b32 v3, 4, v2')
    Lw = a.newlabel('LN_W01')
    a(f's_cmp_lt_u32 s3, 2\ns_cbranch_scc1 {Lw}')
    a(f's_mul_i32 s20, s12, 327680\ns_mul_i32 s21, s13, 10240\ns_add_u32 s20, s20, s21\ns_sub_u32 s21, s3, 2\ns_mul_i32 s21, s21, 5120\ns_add_u32 s20, s20, s21\ns_add_u32 s20, s20, {WS_H1F}')
    touch(a, 32, 9, 95, 20, 40)
    a('s_endpgm')
    a.label(Lw)
    a('v_lshrrev_b32 v5, 4, v2\nv_and_b32 v4, 15, v2')
    a('s_lshl_b32 s19, s12, 8\ns_lshl_b32 s20, s13, 3\ns_add_u32 s19, s19, s20\ns_lshl_b32 s20, s3, 2\ns_add_u32 s19, s19, s20')
    a('v_add_u32 v5, s19, v5\nv_lshrrev_b32 v7, 1, v4\nv_and_b32 v8, 1, v4')
    srd(a, 24, 20 if False else 20, 21, 0, ACT_BYTES) if False else None
    a('s_mov_b32 s24, s56\ns_mov_b32 s25, s57') if False else None
    X = 16; F = 36
    a(f's_load_dwordx2 s[40:41], s[0:1], {KA_DBG}\ns_load_dwordx2 s[42:43], s[0:1], {KA_X}\ns_waitcnt lgkmcnt(0)')
    srd(a, 24, 42, 43, 0, ACT_BYTES)
    a('v_mul_u32_u24 v6, 1280, v5\nv_lshl_add_u32 v6, v7, 5, v6\nv_lshl_add_u32 v6, v8, 3, v6')
    for i in range(5):
        a(f'buffer_load_dwordx2 v[{X+4*i}:{X+1+4*i}], v6, s[24:27], 0 offen offset:{i*256}')
        a(f'buffer_load_dwordx2 v[{X+2+4*i}:{X+3+4*i}], v6, s[24:27], 0 offen offset:{i*256+16}')
    a('v_and_b32 v10, 31, v5\nv_lshlrev_b32 v10, 4, v10\nv_lshl_add_u32 v10, v7, 10, v10\nv_lshl_add_u32 v10, v8, 9, v10')
    a('s_lshl_b32 s19, s12, 3\ns_lshr_b32 s20, s13, 2\ns_add_u32 s21, s19, s20\ns_mul_i32 s21, s21, 40960')
    a('s_waitcnt vmcnt(0)')
    for i in range(5):
        a(f's_add_u32 s20, s21, {WS_XF + i*8192}')
        a(f'buffer_store_dwordx4 v[{X+4*i}:{X+3+4*i}], v10, s[32:35], s20 offen')
    for i in range(20):
        a(f'v_lshlrev_b32 v{F+2*i}, 16, v{X+i}\nv_and_b32 v{F+1+2*i}, 0xffff0000, v{X+i}')
    a(f'v_pk_add_f32 v[12:13], v[{F}:{F+1}], v[{F+2}:{F+3}]\nv_pk_add_f32 v[14:15], v[{F+4}:{F+5}], v[{F+6}:{F+7}]')
    for i in range(4, 20, 2):
        a(f'v_pk_add_f32 v[12:13], v[12:13], v[{F+2*i}:{F+2*i+1}]\nv_pk_add_f32 v[14:15], v[14:15], v[{F+2*i+2}:{F+2*i+3}]')
    a('v_pk_add_f32 v[12:13], v[12:13], v[14:15]\nv_add_f32 v12, v12, v13')
    for rot in (8, 4, 2, 1):
        a(f'v_add_f32_dpp v12, v12, v12 row_ror:{rot} row_mask:0xf bank_mask:0xf')
    a(f'v_mul_f32 v12, {hex(f2u(-1.0/640))}, v12\nv_mov_b32 v13, v12')
    for i in range(20): a(f'v_pk_add_f32 v[{F+2*i}:{F+2*i+1}], v[{F+2*i}:{F+2*i+1}], v[12:13]')
    a(f'v_pk_mul_f32 v[14:15], v[{F}:{F+1}], v[{F}:{F+1}]\nv_pk_mul_f32 v[12:13], v[{F+2}:{F+3}], v[{F+2}:{F+3}]')
    for i in range(2, 20, 2):
        a(f'v_pk_fma_f32 v[14:15], v[{F+2*i}:{F+2*i+1}], v[{F+2*i}:{F+2*i+1}], v[14:15]\nv_pk_fma_f32 v[12:13], v[{F+2*i+2}:{F+2*i+3}], v[{F+2*i+2}:{F+2*i+3}], v[12:13]')
    a('v_pk_add_f32 v[14:15], v[14:15], v[12:13]\nv_add_f32 v14, v14, v15')
    for rot in (8, 4, 2, 1):
        a(f'v_add_f32_dpp v14, v14, v14 row_ror:{rot} row_mask:0xf bank_mask:0xf')
    a(f'v_mov_b32 v15, {hex(f2u(1e-5))}\nv_fmac_f32 v15, {hex(f2u(1.0/640))}, v14\nv_rsq_f32 v14, v15')
    a('v_mov_b32 v15, v14')
    for i in range(20): a(f'v_pk_mul_f32 v[{F+2*i}:{F+2*i+1}], v[{F+2*i}:{F+2*i+1}], v[14:15]')
    a.raw('    ; MARK 4')
    L = a.newlabel('LN_P'); Lo = a.newlabel('LN_PX')
    a(f's_cmp_eq_u32 s3, 1\ns_cbranch_scc1 {Lo}')
    a('v_mov_b32 v11, 0\ns_mov_b32 s18, 4000000')
    a.label(L)
    a(f's_sub_u32 s18, s18, 1\ns_cmp_eq_u32 s18, 0\ns_cbranch_scc1 {Lo}')
    a('global_load_dword v12, v11, s[40:41] sc1\ns_waitcnt vmcnt(0)\nv_cmp_eq_u32 vcc, 0, v12')
    a(f's_cbranch_vccz {Lo}\ns_sleep 2\ns_branch {L}')
    a.label(Lo)
    a('s_barrier')
    a.raw('    ; MARK 5')
    a(f's_mul_i32 s22, s3, 2560\ns_add_u32 s22, s22, {WS_MODP}')
    PR = (76, 16, 92 - 60)
    for r in range(2):
        b = (76, 16)[r]
        for p in range(4):
            a(f's_add_u32 s23, s22, {p*15360}\nbuffer_load_dwordx4 v[{b+4*p}:{b+4*p+3}], v3, s[32:35], s23 offen offset:{r*1024} sc1')
    a('v_lshrrev_b32 v9, 2, v2\nv_lshlrev_b32 v9, 6, v9\nv_and_b32 v11, 1, v2\nv_lshl_add_u32 v9, v11, 5, v9\nv_bfe_u32 v11, v2, 1, 1\nv_lshl_add_u32 v9, v11, 4, v9')
    a('s_mul_i32 s20, s3, 2560\nv_add_u32 v9, s20, v9')
    a('s_cmp_eq_u32 s3, 1\ns_cselect_b32 s20, 1.0, 0\nv_mov_b32 v12, s20')
    a('s_waitcnt vmcnt(4)')
    fin_mod(a, 76); round4(a, 76, 12)
    a('ds_write_b128 v9, v[76:79]')
    for p in range(4):
        a(f's_add_u32 s23, s22, {p*15360}\nbuffer_load_dwordx4 v[{76+4*p}:{76+4*p+3}], v3, s[32:35], s23 offen offset:2048 sc1')
    a('s_waitcnt vmcnt(4)')
    fin_mod(a, 16); round4(a, 16, 12)
    a('ds_write_b128 v9, v[16:19] offset:1024')
    a('s_waitcnt vmcnt(0)')
    fin_mod(a, 76); round4(a, 76, 12)
    a('s_mov_b32 exec_hi, 0\nds_write_b128 v9, v[76:79] offset:2048\ns_mov_b64 exec, -1')
    a.raw('    ; MARK 6')
    a('s_waitcnt lgkmcnt(0)\ns_barrier')
    a('v_lshlrev_b32 v9, 5, v4')
    for i in range(5):
        for hh in range(2):
            a(f'ds_read_b128 v[{76+4*hh}:{79+4*hh}], v9 offset:{2560 + i*512 + 16*hh}')
            a(f'ds_read_b128 v[{84+4*hh}:{87+4*hh}], v9 offset:{i*512 + 16*hh}')
        a('s_waitcnt lgkmcnt(0)')
        for k in range(4):
            q = 4*i + k
            a(f'v_pk_fma_f32 v[{F+2*q}:{F+2*q+1}], v[{F+2*q}:{F+2*q+1}], v[{76+2*k}:{77+2*k}], v[{84+2*k}:{85+2*k}]')
            a(f'v_cvt_pk_bf16_f32 v{16+q}, v{F+2*q}, v{F+2*q+1}')
        a(f's_add_u32 s20, s21, {WS_H1F + i*8192}')
        a(f'buffer_store_dwordx4 v[{16+4*i}:{19+4*i}], v10, s[32:35], s20 offen')
    a('s_endpgm')

def k0_prep(code_label=None, code_bytes=0, parts=('gemv', 'qkv', 'wo'), ngemv=240, ln=False):
    a = Asm()
    bl = N_GEMV + (N_LN if ln else 0)
    b0 = bl; b1 = b0 + N_QKV; b2 = b1 + (N_GU if 'gu' in parts else 0); b3 = b2 + (N_WD if 'wd' in parts else 0); b4 = b3 + N_WO
    a(f's_cmp_ge_u32 s2, {b4}\ns_cbranch_scc1 K0_END')
    a(f's_load_dwordx4 s[4:7], s[0:1], {KA_WQKV}')
    a(f's_load_dwordx4 s[8:11], s[0:1], {KA_WG}')
    a(f's_load_dwordx4 s[12:15], s[0:1], {KA_WD}')
    a(f's_load_dwordx2 s[16:17], s[0:1], {KA_WMOD}')
    a(f's_load_dwordx2 s[18:19], s[0:1], {KA_WS}')
    a(f's_load_dwordx2 s[20:21], s[0:1], {KA_X}')
    wave_id(a, 3, 1)
    a('v_and_b32 v2, 63, v0')
    a('s_waitcnt lgkmcnt(0)')
    a.raw('    ; MARK 0')
    ws_rebase(a, 18)
    srd(a, 32, 18, 19, 0, WS_END)
    def warmup():
        n = 2
        if ln:
            a('v_lshlrev_b32 v9, 7, v2')
            n = 0
        if not ln: srd(a, 56, 20, 21, 0, ACT_BYTES)
        if not ln:
            a('s_and_b32 s60, s2, 7\ns_lshl_b32 s60, s60, 8\ns_lshr_b32 s61, s2, 3\ns_lshl_b32 s61, s61, 3\ns_add_u32 s60, s60, s61\ns_lshl_b32 s61, s3, 1\ns_add_u32 s60, s60, s61\ns_mul_i32 s60, s60, 1280')
            a('v_lshlrev_b32 v9, 7, v2')
            a('s_mov_b64 exec, 0xfffff')
            a('buffer_load_dword v64, v9, s[56:59], s60 offen')
            if H1TOUCH:
                a(f's_and_b32 s60, s2, 7\ns_mul_i32 s60, s60, 327680\ns_lshr_b32 s61, s2, 3\ns_mul_i32 s61, s61, 10240\ns_add_u32 s60, s60, s61\ns_mul_i32 s61, s3, 2560\ns_add_u32 s60, s60, s61\ns_add_u32 s60, s60, {WS_H1F}')
                a('buffer_load_dword v66, v9, s[32:35], s60 offen')
            else: n -= 1
            a('s_mov_b64 exec, -1')
        if code_label:
            a('s_getpc_b64 s[60:61]')
            Lpc = a.newlabel('K0_PC'); a.label(Lpc)
            a(f's_add_u32 s60, s60, {code_label}-{Lpc}\ns_addc_u32 s61, s61, 0')
            a('s_lshr_b32 s62, s2, 3\ns_lshl_b32 s62, s62, 2\ns_add_u32 s62, s62, s3\ns_lshl_b32 s62, s62, 10\nv_add_u32 v9, s62, v9')
            a(f'v_min_u32 v9, {code_bytes}-{code_label}-4, v9')
            a('s_mov_b64 exec, 0xff')
            a('global_load_dword v65, v9, s[60:61]')
            a('s_mov_b64 exec, -1')
            n += 1
        return n
    a(f's_cmp_ge_u32 s2, {b0}\ns_cbranch_scc1 K0_RELAY')
    if ln: a(f's_cmp_ge_u32 s2, {N_GEMV}\ns_cbranch_scc1 K0_LN')
    if 'gemv' not in parts: a('s_endpgm')
    a(f's_cmp_ge_u32 s2, {ngemv}\ns_cbranch_scc1 K0_END')
    srd(a, 24, 16, 17, 0, 640*3840*2)
    srd(a, 28, 14, 15, 0, 1280)
    a('s_lshr_b32 s22, s2, 2\ns_and_b32 s23, s2, 3')
    a('v_lshrrev_b32 v3, 3, v0\nv_and_b32 v4, 7, v0')
    a('v_mul_u32_u24 v5, 7680, v3\nv_lshl_add_u32 v5, v4, 4, v5')
    a('v_lshlrev_b32 v6, 1, v3')
    a(f's_mul_i32 s36, s23, 320')
    for i in range(5):
        a(f'buffer_load_ushort v{10+i}, v6, s[28:31], s36 offen offset:{i*64}')
    a(f's_lshl_b32 s37, s22, 7\ns_mul_i32 s38, s23, {160*7680}\ns_add_u32 s37, s37, s38')
    for i in range(5):
        a(f'buffer_load_dwordx4 v[{16+4*i}:{19+4*i}], v5, s[24:27], s37 offen')
        if i < 4: a(f's_add_u32 s37, s37, {32*7680}')
    nw = warmup()
    a(f's_waitcnt vmcnt({5 + nw})')
    for i in range(5):
        a(f'v_lshlrev_b32 v{10+i}, 16, v{10+i}')
        a(f'v_mul_f32 v7, 0xbfb8aa3b, v{10+i}')
        a('v_exp_f32 v7, v7')
        a('v_add_f32 v7, 1.0, v7')
        a('v_rcp_f32 v7, v7')
        a(f'v_mul_f32 v7, v{10+i}, v7')
        a('v_cvt_pk_bf16_f32 v7, v7, v7')
        a(f'v_lshlrev_b32 v{10+i}, 16, v7')
    for i in range(5):
        a(f's_waitcnt vmcnt({4-i+nw})')
        if i == 4: a.raw('    ; MARK 1')
        for d in range(4):
            a(f'v_lshlrev_b32 v7, 16, v{16+4*i+d}')
            a(f'v_and_b32 v8, 0xffff0000, v{16+4*i+d}')
            if i == 0:
                a(f'v_mul_f32 v{44+2*d}, v10, v7\nv_mul_f32 v{45+2*d}, v10, v8')
            else:
                a(f'v_fmac_f32 v{44+2*d}, v{10+i}, v7\nv_fmac_f32 v{45+2*d}, v{10+i}, v8')
    for d in range(8):
        a(f'v_add_f32_dpp v{44+d}, v{44+d}, v{44+d} row_ror:8 row_mask:0xf bank_mask:0xf')
    a(f'v_lshrrev_b32 v7, 4, v0\nv_lshlrev_b32 v7, 3, v7\nv_and_b32 v8, 7, v0\nv_add_u32 v7, v7, v8\nv_lshlrev_b32 v7, 5, v7')
    a('s_mov_b32 exec_lo, 0x00ff00ff\ns_mov_b32 exec_hi, 0x00ff00ff')
    a('ds_write_b128 v7, v[44:47]\nds_write_b128 v7, v[48:51] offset:16')
    a('s_mov_b64 exec, -1')
    a('s_waitcnt lgkmcnt(0)\ns_barrier')
    a('s_cmp_lg_u32 s3, 0\ns_cbranch_scc1 K0_END')
    a(f'v_lshrrev_b32 v7, 3, v2\nv_lshlrev_b32 v7, 5, v7\nv_and_b32 v8, 7, v2\nv_lshl_add_u32 v7, v8, 2, v7')
    for r in range(16):
        a(f'ds_read_b32 v{16+r}, v7 offset:{r*256}')
    a('s_waitcnt lgkmcnt(0)')
    for st in (8, 4, 2, 1):
        for r in range(st):
            a(f'v_add_f32 v{16+r}, v{16+r}, v{16+r+st}')
    a(f's_mul_i32 s36, s23, {3840*4}\ns_lshl_b32 s37, s22, 8\ns_add_u32 s36, s36, s37\ns_add_u32 s36, s36, {WS_MODP}')
    a('v_lshlrev_b32 v7, 2, v2')
    if ln:
        Lpl = a.newlabel('K0_PL')
        a(f's_cmp_ge_u32 s2, 80\ns_cbranch_scc1 {Lpl}')
        a('buffer_store_dword v16, v7, s[32:35], s36 offen sc1')
        a(f's_load_dwordx2 s[40:41], s[0:1], {KA_DBG}')
        a('s_waitcnt vmcnt(0) lgkmcnt(0)')
        a('v_mov_b32 v8, 128\nv_mov_b32 v9, 1\ns_mov_b64 exec, 1\nglobal_atomic_add v10, v8, v9, s[40:41] sc0 sc1')
        a.raw('    ; MARK 7')
        a('s_waitcnt vmcnt(0)')
        a.raw('    ; MARK 2')
        a('v_readfirstlane_b32 s42, v10\ns_cmp_lg_u32 s42, 79\ns_cbranch_scc1 K0_END')
        a('v_mov_b32 v8, 0\nglobal_store_dword v8, v9, s[40:41] sc1')
        a('s_endpgm')
        a.label(Lpl)
    a('buffer_store_dword v16, v7, s[32:35], s36 offen')
    a.raw('    ; MARK 2')
    a('s_endpgm')
    if ln: ln_section(a)
    a.label('K0_RELAY')
    Lw = a.newlabel('K0_NW')
    a(f's_cmp_ge_u32 s2, {256 if not ln else 0}\ns_cbranch_scc1 {Lw}')
    warmup()
    a.label(Lw)
    Lz = a.newlabel('K0_NZ')
    a(f's_cmp_ge_u32 s2, {b0 + 16}\ns_cbranch_scc1 {Lz}\ns_cmp_lg_u32 s3, 0\ns_cbranch_scc1 {Lz}')
    a('v_mov_b32 v8, 0\nv_mov_b32 v9, 0\nv_mov_b32 v10, 0\nv_mov_b32 v11, 0\nv_lshlrev_b32 v7, 4, v2')
    a(f's_sub_u32 s36, s2, {b0}\ns_lshl_b32 s36, s36, 10\ns_add_u32 s36, s36, {WS_FLAG}')
    a('buffer_store_dwordx4 v[8:11], v7, s[32:35], s36 offen')
    a.label(Lz)
    a("""v_lshrrev_b32 v20, 5, v2
         v_lshlrev_b32 v20, 2, v20
         v_bfe_u32 v8, v2, 2, 2
         v_add_u32 v20, v20, v8
         v_bfe_u32 v8, v2, 4, 1
         v_lshlrev_b32 v21, 5, v8
         v_and_b32 v9, 3, v2
         v_lshl_add_u32 v21, v9, 3, v21""")
    a('v_lshlrev_b32 v9, 4, v2')
    def dma(P, ninstr_total, src, ld, rowsrc, colsrc):
        cpr = P//16
        magic = (2**16 + cpr - 1)//cpr
        rows, rowbytes = ld
        srd(a, 56, src, src+1, 0, rows*rowbytes)
        per_wave = (ninstr_total + 3)//4
        for q in range(per_wave):
            L = a.newlabel('K0_DS')
            a(f's_mul_i32 s60, s3, {per_wave}\ns_add_u32 s60, s60, {q}')
            if (3*per_wave + q) >= ninstr_total:
                a(f's_cmp_ge_u32 s60, {ninstr_total}\ns_cbranch_scc1 {L}')
            a('s_lshl_b32 s61, s60, 6\nv_add_u32 v23, s61, v2')
            a(f's_mov_b32 s62, {magic}\nv_mul_lo_u32 v24, v23, s62\nv_lshrrev_b32 v24, 16, v24')
            a(f'v_mul_u32_u24 v25, {cpr}, v24\nv_sub_u32 v25, v23, v25')
            colsrc(); rowsrc()
            a(f'v_mul_u32_u24 v24, {rowbytes}, v24\nv_add_u32 v24, v24, v25')
            a('s_lshl_b32 m0, s60, 10')
            a('buffer_load_dwordx4 v24, s[56:59], s63 offen lds')
            a.label(L)
    def frag_out(P, colreg, coloff, out_s, outoff, half=False):
        a(f'v_mul_u32_u24 v26, {P}, v20\nv_add_u32 v26, v26, v{colreg}')
        a(f'ds_read_b64_tr_b16 v[28:29], v26 offset:{coloff}\nds_read_b64_tr_b16 v[30:31], v26 offset:{coloff + 8*P}')
        a('s_waitcnt lgkmcnt(0)')
        if half:
            a('s_mov_b32 exec_lo, 0xffff\ns_mov_b32 exec_hi, 0xffff')
            a(f'buffer_store_dwordx4 v[28:31], v22, s[32:35], s{out_s} offen offset:{outoff}')
            a('s_mov_b64 exec, -1')
        else:
            a(f'buffer_store_dwordx4 v[28:31], v9, s[32:35], s{out_s} offen offset:{outoff}')
        a('s_nop 1')
    a('v_lshrrev_b32 v22, 5, v2\nv_lshlrev_b32 v22, 8, v22\nv_and_b32 v8, 15, v2\nv_lshl_add_u32 v22, v8, 4, v22')
    a(f's_cmp_ge_u32 s2, {b1}\ns_cbranch_scc1 K0_R_GU')
    if 'qkv' not in parts: a('s_endpgm')
    a(f's_sub_u32 s40, s2, {b0}\ns_lshr_b32 s41, s40, 2\ns_and_b32 s42, s40, 3')
    a(f's_mul_i32 s63, s41, {16*3840}\ns_mul_i32 s43, s42, 320\ns_add_u32 s63, s63, s43')
    def colq():
        a('v_mul_u32_u24 v27, 3277, v25\nv_lshrrev_b32 v27, 16, v27\nv_lshlrev_b32 v25, 4, v25\nv_mul_u32_u24 v27, 960, v27\nv_add_u32 v25, v25, v27')
    dma(960, 15, 4, (640, 3840), lambda: None, colq)
    a('v_bfe_u32 v10, v2, 4, 1\nv_lshlrev_b32 v10, 2, v10\nv_and_b32 v11, 3, v2\nv_add_u32 v10, v10, v11')
    a('v_lshlrev_b32 v11, 3, v10\nv_add_u32 v12, 320, v11\nv_add_u32 v13, 592, v11\nv_cmp_lt_u32 vcc, 5, v10\nv_cndmask_b32 v12, v12, v13, vcc')
    a('v_mov_b32 v13, 672\nv_cmp_eq_u32 vcc, 5, v10\nv_cndmask_b32 v12, v12, v13, vcc')
    a('v_add_u32 v14, 656, v11\nv_subrev_u32 v13, 16, v11\nv_cmp_lt_u32 vcc, 1, v10\nv_cndmask_b32 v14, v14, v13, vcc')
    a('v_mov_b32 v13, 32\nv_cmp_eq_u32 vcc, 7, v10\nv_cndmask_b32 v14, v14, v13, vcc')
    a('s_waitcnt vmcnt(0)\ns_barrier')
    a.raw('    ; MARK 3')
    a('s_lshl_b32 s44, s3, 1\ns_mul_i32 s45, s44, 40\nv_add_u32 v12, s45, v12\nv_add_u32 v14, s45, v14')
    a(f's_lshl_b32 s46, s42, 3\ns_add_u32 s46, s46, s44\ns_mul_i32 s46, s46, 40\ns_add_u32 s46, s46, s41\ns_lshl_b32 s46, s46, 11\ns_add_u32 s46, s46, {WS_WQKV}')
    for hh in range(2):
        frag_out(960, 12, 40*hh, 46, 0); frag_out(960, 14, 40*hh, 46, 1024)
        if hh == 0: a(f's_add_u32 s46, s46, {40*2048}')
    a('s_endpgm')
    def gu_section():
        a(f's_sub_u32 s40, s2, {b1}\ns_lshr_b32 s41, s40, 3\ns_bfe_u32 s47, s40, 0x10002\ns_and_b32 s42, s40, 3')
        a(f's_mul_i32 s63, s41, {16*3072}\ns_mul_i32 s43, s42, 768\ns_add_u32 s63, s63, s43')
        a('s_cmp_eq_u32 s47, 0\ns_cselect_b32 s48, s8, s10\ns_cselect_b32 s49, s9, s11')
        dma(768, 12, 48, (640, 3072), lambda: None, lambda: a('v_lshlrev_b32 v25, 4, v25'))
        a('s_waitcnt vmcnt(0)\ns_barrier')
        a.raw('    ; MARK 3')
        a('s_mul_i32 s45, s3, 192\nv_add_u32 v12, s45, v21')
        a(f's_lshl_b32 s46, s42, 2\ns_add_u32 s46, s46, s3\ns_mul_i32 s46, s46, 40\ns_add_u32 s46, s46, s41\ns_mul_i32 s46, s46, 6144\ns_mul_i32 s47, s47, 3072\ns_add_u32 s46, s46, s47\ns_add_u32 s46, s46, {WS_WGU}')
        for ct in range(3): frag_out(768, 12, ct*64, 46, ct*1024)
        a('s_endpgm')

    a.label('K0_R_GU')
    a(f's_cmp_ge_u32 s2, {b2}\ns_cbranch_scc1 K0_R_WD')
    if 'gu' in parts: gu_section()
    def tile80(name, base_id, src, ld, npair, ws_off, rowsrc):
        a(f's_sub_u32 s40, s2, {base_id}\ns_lshr_b32 s41, s40, 1\ns_and_b32 s42, s40, 1')
        a(f's_mul_i32 s63, s42, 640')
        dma(640, 10, src, ld, rowsrc, lambda: a('v_lshlrev_b32 v25, 4, v25'))
        a('s_waitcnt vmcnt(0)\ns_barrier')
        a.raw('    ; MARK 3')
        a('s_mul_i32 s45, s3, 160\nv_add_u32 v12, s45, v21')
        a(f's_lshl_b32 s46, s42, 2\ns_add_u32 s46, s46, s3\ns_mul_i32 s46, s46, {npair}\ns_lshr_b32 s47, s41, 1\ns_add_u32 s46, s46, s47\ns_mul_i32 s46, s46, 5120\ns_add_u32 s46, s46, {ws_off}')
        a('s_and_b32 s47, s41, 1\ns_lshl_b32 s48, s47, 11\ns_add_u32 s48, s48, s46\ns_lshl_b32 s47, s47, 9\ns_add_u32 s47, s47, 4096\ns_add_u32 s47, s47, s46')
        frag_out(640, 12, 0, 48, 0); frag_out(640, 12, 64, 48, 1024)
        frag_out(640, 12, 128, 47, 0, half=True)
        a('s_endpgm')
    a.label('K0_R_WD')
    a(f's_cmp_ge_u32 s2, {b3}\ns_cbranch_scc1 K0_R_WO')
    if 'wd' in parts: tile80('wd', b2, 12, (1536, 1280), 48, WS_WD, lambda: a('s_lshl_b32 s62, s41, 4\nv_add_u32 v24, s62, v24'))
    a.label('K0_R_WO')
    if 'wo' not in parts: a('s_endpgm')
    def rowsrc_wo():
        L1 = a.newlabel('K0_WOL'); L2 = a.newlabel('K0_WOE')
        a(f's_cmp_ge_u32 s41, 32\ns_cbranch_scc1 {L1}')
        a('s_mul_i32 s62, s41, 20\nv_add_u32 v24, s62, v24')
        a(f's_branch {L2}')
        a.label(L1)
        a('s_sub_u32 s62, s41, 32\ns_mul_i32 s62, s62, 80\ns_add_u32 s62, s62, 16')
        a('v_bfe_u32 v27, v24, 2, 1\nv_mul_u32_u24 v27, 40, v27\nv_lshrrev_b32 v19, 3, v24\nv_mul_u32_u24 v19, 20, v19\nv_and_b32 v24, 3, v24\nv_add_u32 v24, v24, v27\nv_add_u32 v24, v24, v19\nv_add_u32 v24, s62, v24')
        a.label(L2)
    tile80('wo', b3, 6, (640, 1280), 20, WS_WO, rowsrc_wo)
    a.label('K0_END')
    a('s_endpgm')
    return dict(name='k0_kernel', body=a.text(), grid=b4, block=256, lds=K0LDS[0], vgpr=(96 if ln else 72), sgpr=70)
```

```python
from common import *
import math

SPIN = 2000000
LH = 81920
LFAST = LH + 2560
LK = 114176
LV = LK + 24576
LONES = 159488
LFAST2 = 110592
NEG = -30000.0
KP_O = WS_H1F
WS_H2F = WS_H1F
KP_X1 = WS_XF

def store2(a, text_fn):
    L1 = a.newlabel('ST_S'); L2 = a.newlabel('ST_E')
    a(f's_cmp_eq_u32 s14, 0\ns_cbranch_scc1 {L1}')
    text_fn('')
    a(f's_branch {L2}')
    a.label(L1)
    text_fn(' sc1')
    a.label(L2)

def poll(a, vaddr, cond_reg='v20', sbase='s[4:5]', n=1, spin=None):
    L = a.newlabel('POLL'); Lo = a.newlabel('POLLX')
    a(f's_mov_b32 s18, {spin or SPIN}')
    a.label(L)
    a(f's_sub_u32 s18, s18, 1\ns_cmp_eq_u32 s18, 0\ns_cbranch_scc1 {Lo}')
    a(f'global_load_dword {cond_reg}, {vaddr}, {sbase} sc1')
    a('s_waitcnt vmcnt(0)')
    a(f'v_cmp_eq_u32 vcc, 0, {cond_reg}')
    a(f's_cbranch_vccnz {L}')
    a.label(Lo)

def poll_bg(a):
    L = a.newlabel('PBG'); Lo = a.newlabel('PBGX'); Ls = a.newlabel('PBGS')
    a(f's_cmp_lg_u32 s3, 1\ns_cbranch_scc1 {Ls}')
    a(f'v_add_u32 v18, {FL_BG}, v3\ns_mov_b32 s18, {SPIN}')
    a.label(L)
    a(f's_sub_u32 s18, s18, 1\ns_cmp_eq_u32 s18, 0\ns_cbranch_scc1 {Lo}')
    a('global_load_dwordx4 v[20:23], v18, s[4:5] sc1\ns_waitcnt vmcnt(0)')
    a('v_min_u32 v20, v20, v21\nv_min_u32 v22, v22, v23\nv_min_u32 v20, v20, v22\nv_cmp_eq_u32 vcc, 0, v20')
    a(f's_cbranch_vccnz {L}')
    a.label(Lo)
    a.label(Ls)

def gbar(a, flag, local=True, during=None, also_set=None):
    L = a.newlabel('GB'); Ld = a.newlabel('GBD')
    a('s_barrier')
    a(f's_cmp_lg_u32 s3, 0\ns_cbranch_scc1 {Ld if during else L}')
    a(f's_lshl_b32 s19, s12, 7\ns_add_u32 s19, s19, {flag}')
    a(f's_lshl_b32 s20, s13, 2\ns_add_u32 s20, s20, s19\nv_mov_b32 v18, s20\nv_mov_b32 v19, 1')
    a('s_mov_b64 exec, 1')
    if local: store2(a, lambda f: a(f'global_store_dword v18, v19, s[4:5]{f}'))
    else: a('global_store_dword v18, v19, s[4:5] sc1')
    if also_set is not None:
        a(f's_lshl_b32 s20, s2, 2\ns_add_u32 s20, s20, {also_set}\nv_mov_b32 v18, s20\nglobal_store_dword v18, v19, s[4:5] sc1')
    a('s_mov_b64 exec, -1')
    a('v_and_b32 v18, 31, v2\nv_lshlrev_b32 v18, 2, v18\nv_add_u32 v18, s19, v18')
    poll(a, 'v18')
    if during:
        a(f's_branch {L}')
        a.label(Ld)
        during()
    a.label(L)
    a('s_barrier')

def fin_mod(a, base, nq_valid_exec=None):
    for e in range(4):
        a(f'v_add_f32 v{base+e}, v{base+e}, v{base+4+e}\nv_add_f32 v{base+8+e}, v{base+8+e}, v{base+12+e}\nv_add_f32 v{base+e}, v{base+e}, v{base+8+e}')

def round_pack(a, base, vone, out):
    a(f'v_cvt_pk_bf16_f32 v{out}, v{base}, v{base+1}\nv_cvt_pk_bf16_f32 v{out+1}, v{base+2}, v{base+3}')
    a(f'v_lshlrev_b32 v{base}, 16, v{out}\nv_and_b32 v{base+1}, 0xffff0000, v{out}\nv_lshlrev_b32 v{base+2}, 16, v{out+1}\nv_and_b32 v{base+3}, 0xffff0000, v{out+1}')
    for e in range(4): a(f'v_add_f32 v{base+e}, v{base+e}, v{vone}')
    a(f'v_cvt_pk_bf16_f32 v{out}, v{base}, v{base+1}\nv_cvt_pk_bf16_f32 v{out+1}, v{base+2}, v{base+3}')

def cperm_pos_bytes(a, vcol4, out, tmp):
    a(f'v_lshrrev_b32 v{out}, 2, v{vcol4}\nv_lshlrev_b32 v{out}, 5, v{out}')
    a(f'v_and_b32 v{tmp}, 1, v{vcol4}\nv_lshl_add_u32 v{out}, v{tmp}, 4, v{out}')
    a(f'v_bfe_u32 v{tmp}, v{vcol4}, 1, 1\nv_lshl_add_u32 v{out}, v{tmp}, 3, v{out}')

LHF = 81920
LFAST = LHF + 5120


def round4(a, base, vone):
    t = base + 4
    for rep in range(2):
        a(f'v_cvt_pk_bf16_f32 v{t}, v{base}, v{base+1}\nv_cvt_pk_bf16_f32 v{t+1}, v{base+2}, v{base+3}')
        a(f'v_lshlrev_b32 v{base}, 16, v{t}\nv_and_b32 v{base+1}, 0xffff0000, v{t}\nv_lshlrev_b32 v{base+2}, 16, v{t+1}\nv_and_b32 v{base+3}, 0xffff0000, v{t+1}')
        if rep == 0:
            for e in range(4): a(f'v_add_f32 v{base+e}, v{base+e}, v{vone}')

def bg_setup(a):
    a('s_lshl_b32 s30, s2, 1')
    a('v_lshrrev_b32 v14, 3, v2\nv_and_b32 v15, 7, v2')
    Ld = a.newlabel('BG_D'); Le = a.newlabel('BG_E')
    a(f's_cmp_ge_u32 s2, 160\ns_cbranch_scc1 {Ld}')
    a(f's_lshr_b32 s19, s30, 3\ns_mul_i32 s43, s19, 49152\ns_and_b32 s20, s30, 3\ns_mul_i32 s20, s20, 768\ns_add_u32 s43, s43, s20')
    a('s_bitcmp1_b32 s30, 2\ns_cselect_b32 s32, s38, s36\ns_cselect_b32 s33, s39, s37')
    a(f's_and_b32 s20, s30, 3\ns_mul_i32 s31, s20, {4*40*6144}\ns_mul_i32 s19, s19, 6144\ns_add_u32 s31, s31, s19\ns_bfe_u32 s19, s30, 0x10002\ns_mul_i32 s19, s19, 3072\ns_add_u32 s31, s31, s19\ns_add_u32 s31, s31, {WS_WGU}')
    a('v_mul_u32_u24 v8, 3072, v14\nv_lshl_add_u32 v8, v15, 4, v8')
    a('v_lshlrev_b32 v14, 6, v14\nv_and_b32 v11, 3, v15\nv_lshl_add_u32 v14, v11, 4, v14\nv_lshrrev_b32 v11, 2, v15')
    a(f'v_mul_u32_u24 v15, {40*6144 - 2048}, v11\nv_add_u32 v15, v15, v14\nv_lshl_add_u32 v14, v11, 10, v14')
    a(f's_branch {Le}')
    a.label(Ld)
    a(f's_sub_u32 s30, s30, 320\ns_lshr_b32 s19, s30, 1\ns_mul_i32 s43, s19, 20480')
    a('s_mov_b32 s32, s40\ns_mov_b32 s33, s41')
    a(f's_lshr_b32 s31, s30, 2\ns_mul_i32 s31, s31, 5120\ns_add_u32 s31, s31, {WS_WD}\ns_and_b32 s30, s19, 1')
    a('v_mul_u32_u24 v8, 1280, v14\nv_lshl_add_u32 v8, v15, 4, v8')
    a.label(Le)
    a('s_mov_b32 s34, 1966080\ns_mov_b32 s35, 0x20000')

def bg_plan(w):
    gu = [(i, rh, m) for i in range(2) for m in range(6) for rh in range(2)]
    dn = [(i, rh, m) for i in range(2) for m in range(5) for rh in range(2)]
    g = gu[w-1::3]; d = dn[w-1::3]
    return [(g[k], d[k] if k < len(d) else None) for k in range(8)]

def bg_load(k, gu, dn):
    i, rh, m = gu
    return (f's_add_u32 s19, s43, {i*768 + rh*8*3072}\nbuffer_load_dwordx4 a[{4*k}:{4*k+3}], v8, s[32:35], s19 offen offset:{128*m}',
            (f's_add_u32 s19, s43, {dn[0]*640 + dn[1]*8*1280}\nbuffer_load_dwordx4 a[{4*k}:{4*k+3}], v8, s[32:35], s19 offen offset:{128*dn[2]}' if dn
             else f'buffer_load_dwordx4 a[{4*k}:{4*k+3}], v8, s[32:35], s43 offen'))

def bg_store(k, gu, dn):
    i, rh, m = gu
    b = 2*m
    off = i*4*40*6144 + (b//3)*40*6144 + (b % 3)*1024 + rh*512
    tg = f's_add_u32 s23, s31, {off}\nbuffer_store_dwordx4 a[{4*k}:{4*k+3}], v{15 if (b % 3) == 2 else 14}, s[8:11], s23 offen sc1'
    if dn is None: return tg, 's_nop 0'
    i, rh, m = dn
    t = f'v_add_u32 v11, {8*m}, v15\nv_mul_u32_u24 v12, 6554, v11\nv_lshrrev_b32 v12, 16, v12\nv_mul_u32_u24 v8, 10, v12\nv_sub_u32 v11, v11, v8'
    t += f'\nv_mul_u32_u24 v12, {48*5}, v12\nv_lshlrev_b32 v12, 10, v12'
    t += f'\ns_lshl_b32 s19, s30, 11\ns_add_u32 s19, s19, {rh*512}\ns_lshl_b32 s23, s30, 9\ns_add_u32 s23, s23, {4096 + rh*256}'
    t += '\nv_cmp_lt_u32 s[20:21], 7, v11\nv_and_b32 v8, 3, v11\nv_lshlrev_b32 v8, 4, v8\nv_lshrrev_b32 v11, 2, v11\nv_lshlrev_b32 v11, 10, v11'
    t += '\nv_lshl_add_u32 v11, v14, 6, v11\nv_add_u32 v11, s19, v11\nv_add_u32 v12, v12, v8\nv_lshlrev_b32 v8, 5, v14\nv_add_u32 v8, s23, v8\nv_cndmask_b32_e64 v11, v11, v8, s[20:21]\nv_add_u32 v12, v12, v11'
    t += f'\ns_add_u32 s23, s31, {i*4*48*5120}\nbuffer_store_dwordx4 a[{4*k}:{4*k+3}], v12, s[8:11], s23 offen sc1'
    return tg, t

LSYNC = LFAST + 16
def lds_arrive(a, off):
    a(f'v_mov_b32 v18, {LSYNC + off}\nv_mov_b32 v19, 1\ns_mov_b64 exec, 1\nds_add_u32 v18, v19\ns_mov_b64 exec, -1')
def lds_spin(a, off, n):
    L = a.newlabel('LSP'); Lo = a.newlabel('LSPX')
    a(f'v_mov_b32 v18, {LSYNC + off}\ns_mov_b32 s18, {SPIN}')
    a.label(L)
    a(f's_sub_u32 s18, s18, 1\ns_cmp_eq_u32 s18, 0\ns_cbranch_scc1 {Lo}')
    a(f'ds_read_b32 v19, v18\ns_waitcnt lgkmcnt(0)\nv_readfirstlane_b32 s19, v19\ns_cmp_lt_u32 s19, {n}\ns_cbranch_scc1 {L}')
    a.label(Lo)

def phase_h(a):
    a(f'v_mov_b32 v18, {LSYNC}\nv_mov_b32 v20, 0\nv_mov_b32 v21, 0\nv_mov_b32 v22, 0\nv_mov_b32 v23, 0\nds_write_b128 v18, v[20:23]\ns_waitcnt lgkmcnt(0)\ns_barrier')
    Lw23 = a.newlabel('H_W23'); Lend = a.newlabel('H_END')
    a(f's_cmp_ge_u32 s3, 2\ns_cbranch_scc1 {Lw23}')
    a('s_setprio 3')
    a('v_lshrrev_b32 v5, 4, v2\nv_and_b32 v4, 15, v2')
    a('s_lshl_b32 s19, s12, 8\ns_lshl_b32 s20, s13, 3\ns_add_u32 s19, s19, s20\ns_lshl_b32 s20, s3, 2\ns_add_u32 s19, s19, s20')
    a('v_add_u32 v5, s19, v5')
    a('v_lshrrev_b32 v7, 1, v4\nv_and_b32 v8, 1, v4')
    a(f's_mul_i32 s21, s3, 2560\ns_add_u32 s21, s21, {WS_MODP}')
    for p in range(4):
        for r in range(3):
            a(f'buffer_load_dwordx4 v[{24+16*r+4*p}:{27+16*r+4*p}], v3, s[8:11], s21 offen offset:{r*1024}')
        if p < 3: a('s_add_u32 s21, s21, 15360')
    srd(a, 24, 16, 17, 0, ACT_BYTES)
    a('v_mul_u32_u24 v6, 1280, v5\nv_lshl_add_u32 v6, v7, 5, v6\nv_lshl_add_u32 v6, v8, 3, v6')
    for i in range(5):
        a(f'buffer_load_dwordx2 v[{192+4*i}:{193+4*i}], v6, s[24:27], 0 offen offset:{i*256}')
        a(f'buffer_load_dwordx2 v[{194+4*i}:{195+4*i}], v6, s[24:27], 0 offen offset:{i*256+16}')
    Lx = a.newlabel('H_XT'); Lx2 = a.newlabel('H_XT2')
    a('s_getreg_b32 s15, hwreg(HW_REG_XCC_ID, 0, 4)\ns_add_u32 s15, s15, 1')
    a(f's_cmp_lg_u32 s3, 1\ns_cbranch_scc1 {Lx}')
    a(f's_lshl_b32 s19, s12, 7\ns_lshl_b32 s20, s13, 2\ns_add_u32 s19, s19, s20\ns_add_u32 s19, s19, {FL_XT}')
    a('v_mov_b32 v18, s19\nv_mov_b32 v19, s15\ns_mov_b64 exec, 1')
    a('global_store_dword v18, v19, s[4:5] sc1')
    a('s_mov_b64 exec, -1')
    a('s_waitcnt vmcnt(11)')
    a(f's_branch {Lx2}')
    a.label(Lx)
    a('s_waitcnt vmcnt(10)')
    a.label(Lx2)
    a.raw('    ; MARK 0')
    a('v_lshrrev_b32 v14, 2, v2\nv_lshlrev_b32 v14, 6, v14\nv_and_b32 v15, 1, v2\nv_lshl_add_u32 v14, v15, 5, v14\nv_bfe_u32 v15, v2, 1, 1\nv_lshl_add_u32 v14, v15, 4, v14')
    a(f's_mul_i32 s20, s3, 2560\ns_add_u32 s20, s20, {LHF}\nv_add_u32 v14, s20, v14')
    a('s_cmp_eq_u32 s3, 1\ns_cselect_b32 s20, 1.0, 0\nv_mov_b32 v12, s20')
    for r in range(3):
        b = 24 + 16*r
        fin_mod(a, b); round4(a, b, 12)
        if r == 2: a('s_mov_b32 exec_hi, 0')
        a(f'ds_write_b128 v14, v[{b}:{b+3}] offset:{r*1024}')
        if r == 2: a('s_mov_b64 exec, -1')
    a('s_waitcnt lgkmcnt(0)')
    lds_arrive(a, 0)
    X = 192; F = 124
    a('s_waitcnt vmcnt(0)')
    a(f's_lshl_b32 s19, s12, 7\ns_add_u32 s19, s19, {FL_XT}\nv_and_b32 v22, 31, v2\nv_lshlrev_b32 v22, 2, v22\nv_add_u32 v22, s19, v22')
    a('global_load_dword v20, v22, s[4:5] sc1')
    for i in range(20):
        a(f'v_lshlrev_b32 v{F+2*i}, 16, v{X+i}\nv_and_b32 v{F+1+2*i}, 0xffff0000, v{X+i}')
    a(f'v_pk_add_f32 v[12:13], v[{F}:{F+1}], v[{F+2}:{F+3}]\nv_pk_add_f32 v[14:15], v[{F+4}:{F+5}], v[{F+6}:{F+7}]')
    for i in range(4, 20, 2):
        a(f'v_pk_add_f32 v[12:13], v[12:13], v[{F+2*i}:{F+2*i+1}]\nv_pk_add_f32 v[14:15], v[14:15], v[{F+2*i+2}:{F+2*i+3}]')
    a('v_pk_add_f32 v[12:13], v[12:13], v[14:15]\nv_add_f32 v12, v12, v13')
    for rot in (8, 4, 2, 1):
        a(f'v_add_f32_dpp v12, v12, v12 row_ror:{rot} row_mask:0xf bank_mask:0xf')
    a(f'v_mul_f32 v12, {hex(f2u(-1.0/640))}, v12\nv_mov_b32 v13, v12')
    for i in range(20): a(f'v_pk_add_f32 v[{F+2*i}:{F+2*i+1}], v[{F+2*i}:{F+2*i+1}], v[12:13]')
    a(f'v_pk_mul_f32 v[14:15], v[{F}:{F+1}], v[{F}:{F+1}]\nv_pk_mul_f32 v[16:17], v[{F+2}:{F+3}], v[{F+2}:{F+3}]')
    for i in range(2, 20, 2):
        a(f'v_pk_fma_f32 v[14:15], v[{F+2*i}:{F+2*i+1}], v[{F+2*i}:{F+2*i+1}], v[14:15]\nv_pk_fma_f32 v[16:17], v[{F+2*i+2}:{F+2*i+3}], v[{F+2*i+2}:{F+2*i+3}], v[16:17]')
    a('v_pk_add_f32 v[14:15], v[14:15], v[16:17]\nv_add_f32 v14, v14, v15')
    for rot in (8, 4, 2, 1):
        a(f'v_add_f32_dpp v14, v14, v14 row_ror:{rot} row_mask:0xf bank_mask:0xf')
    a(f'v_mov_b32 v15, {hex(f2u(1e-5))}\nv_fmac_f32 v15, {hex(f2u(1.0/640))}, v14\nv_rsq_f32 v14, v15')
    a('v_mov_b32 v15, v14')
    Lp = a.newlabel('H_XP'); Lpo = a.newlabel('H_XPO')
    a(f's_waitcnt vmcnt(0)\nv_cmp_eq_u32 vcc, 0, v20\ns_cbranch_vccz {Lpo}')
    poll(a, 'v22')
    a.label(Lpo)
    a('v_cmp_ne_u32 vcc, s15, v20\ns_cmp_eq_u64 vcc, 0\ns_cselect_b32 s14, 1, 0')
    a(f'v_mov_b32 v18, {LFAST}\nv_mov_b32 v19, s14\nds_write_b32 v18, v19')
    lds_spin(a, 0, 2)
    a(f'v_lshlrev_b32 v9, 5, v4\nv_add_u32 v9, {LHF}, v9')
    A1 = 24; SA = 64
    for i in range(5):
        for hh in range(2):
            a(f'ds_read_b128 v[{A1+8*i+4*hh}:{A1+8*i+4*hh+3}], v9 offset:{2560 + i*512 + 16*hh}')
            a(f'ds_read_b128 v[{SA+8*i+4*hh}:{SA+8*i+4*hh+3}], v9 offset:{i*512 + 16*hh}')
    for i in range(20): a(f'v_pk_mul_f32 v[{F+2*i}:{F+2*i+1}], v[{F+2*i}:{F+2*i+1}], v[14:15]')
    for i in range(5):
        a(f's_waitcnt lgkmcnt({min(15, 16 - 4*i)})')
        for k in range(4*i, 4*i+4):
            a(f'v_pk_fma_f32 v[{F+2*k}:{F+2*k+1}], v[{F+2*k}:{F+2*k+1}], v[{A1+2*k}:{A1+2*k+1}], v[{SA+2*k}:{SA+2*k+1}]')
            a(f'v_cvt_pk_bf16_f32 v{164+k}, v{F+2*k}, v{F+2*k+1}')
    a('v_and_b32 v10, 31, v5\nv_lshlrev_b32 v10, 4, v10\nv_lshl_add_u32 v10, v7, 10, v10\nv_lshl_add_u32 v10, v8, 9, v10')
    a('s_lshl_b32 s19, s12, 3\ns_lshr_b32 s20, s13, 2\ns_add_u32 s21, s19, s20\ns_mul_i32 s21, s21, 40960')
    def st(f):
        for i in range(5):
            a(f's_add_u32 s20, s21, {WS_H1F + i*8192}')
            a(f'buffer_store_dwordx4 v[{164+4*i}:{167+4*i}], v10, s[8:11], s20 offen{f}')
    store2(a, st)
    a('s_waitcnt vmcnt(0)')
    a.raw('    ; MARK 1')
    Lw1 = a.newlabel('H_W1'); Lst = a.newlabel('H_ST')
    a(f's_cmp_eq_u32 s3, 1\ns_cbranch_scc1 {Lw1}')
    lds_spin(a, 4, 1)
    a(f's_lshl_b32 s22, s12, 7\ns_add_u32 s22, s22, {FL_H}\ns_lshl_b32 s20, s13, 2\ns_add_u32 s20, s20, s22\nv_mov_b32 v18, s20\nv_mov_b32 v19, 1\ns_mov_b64 exec, 1')
    store2(a, lambda f: a(f'global_store_dword v18, v19, s[4:5]{f}'))
    a('s_mov_b64 exec, -1')
    a('v_and_b32 v18, 31, v2\nv_lshlrev_b32 v18, 2, v18\nv_add_u32 v18, s22, v18')
    poll(a, 'v18')
    a(f's_branch {Lst}')
    a.label(Lw1)
    lds_arrive(a, 4)
    a.label(Lst)
    def st2(f):
        for i in range(5):
            a(f's_add_u32 s20, s21, {WS_XF + i*8192}')
            a(f'buffer_store_dwordx4 v[{X+4*i}:{X+3+4*i}], v10, s[8:11], s20 offen{f}')
    store2(a, st2)
    a(f's_branch {Lend}')
    a.label(Lw23)
    if OPT.get('tlbwarm'):
        a('v_lshlrev_b32 v9, 21, v2\ns_mov_b64 exec, 0x3ffffff')
        a('buffer_load_dword v255, v9, s[8:11], 0 offen')
        a('s_mov_b64 exec, 3')
        a('global_load_dword v255, v9, s[6:7]')
        a('s_mov_b64 exec, 1')
        for r in (36, 38, 40): a(f'global_load_dword v255, v9, s[{r}:{r+1}]')
        a('s_mov_b64 exec, -1')
    if OPT.get('h_touch', 1):
        a(f's_mul_i32 s20, s12, 327680\ns_mul_i32 s21, s13, 10240\ns_add_u32 s20, s20, s21\ns_sub_u32 s21, s3, 2\ns_mul_i32 s21, s21, 5120\ns_add_u32 s20, s20, s21\ns_add_u32 s20, s20, {WS_H1F}')
        touch(a, 8, 9, 255, 20, 40)
    if OPT.get('kv_touch'):
        a(f's_mul_i32 s20, s12, {KVH_STRIDE}\ns_mul_i32 s21, s13, 20480\ns_add_u32 s20, s20, s21\ns_sub_u32 s21, s3, 2\ns_mul_i32 s21, s21, 10240\ns_add_u32 s20, s20, s21\ns_add_u32 s20, s20, {WS_KVH}')
        touch(a, 8, 9, 255, 20, 80)
    a(f's_mul_i32 s20, s13, 81920\ns_sub_u32 s21, s3, 2\ns_lshl_b32 s21, s21, 12\ns_add_u32 s20, s20, s21\ns_add_u32 s20, s20, {WS_WQKV}')
    PB = OPT.get('a_preB', 10)
    for i in range(PB):
        a(f's_add_u32 m0, s21, {i*8192}')
        for q in range(4): a(f'buffer_load_dwordx4 v3, s[8:11], s20 offen offset:{q*1024} lds')
        if i < PB-1: a('s_add_u32 s20, s20, 8192')
    L3 = a.newlabel('H_T3')
    a(f's_cmp_eq_u32 s3, 3\ns_cbranch_scc0 {L3}')
    a('s_mul_i32 s20, s13, 20\ns_add_u32 s20, s20, 320\nv_add_u32 v10, s20, v2\nv_lshlrev_b32 v11, 4, v10')
    for p in range(4):
        a(f's_mov_b32 s20, {WS_MODP + p*15360}')
        a(f'buffer_load_dwordx4 v[{44+4*p}:{47+4*p}], v11, s[8:11], s20 offen')
    a.label(L3)
    a('s_waitcnt vmcnt(0)')
    L4 = a.newlabel('H_T4')
    a(f's_cmp_eq_u32 s3, 3\ns_cbranch_scc0 {L4}')
    fin_mod(a, 44)
    a('v_mul_u32_u24 v12, 410, v10\nv_lshrrev_b32 v12, 16, v12')
    a('v_mul_u32_u24 v13, 160, v12\nv_sub_u32 v13, v10, v13')
    cperm_pos_bytes(a, 13, 14, 15)
    a('v_mul_u32_u24 v15, 1280, v12\nv_add_u32 v14, v14, v15')
    a('v_cmp_eq_u32 vcc, 4, v12\nv_cndmask_b32_e64 v12, 0, 1.0, vcc')
    round_pack(a, 44, 12, 48)
    a(f's_lshl_b32 s20, s12, 13\ns_add_u32 s20, s20, {WS_MODF}')
    a('s_mov_b32 exec_lo, 0xfffff\ns_mov_b32 exec_hi, 0')
    a('buffer_store_dwordx2 v[48:49], v14, s[8:11], s20 offen sc1')
    a('s_mov_b64 exec, -1')
    a.label(L4)
    a.label(Lend)
    a.raw('    ; MARK 19')
    a('s_setprio 0')
    a('s_waitcnt lgkmcnt(0)\ns_barrier')
    a(f'v_mov_b32 v18, {LFAST}\nds_read_b32 v19, v18\ns_waitcnt lgkmcnt(0)\nv_readfirstlane_b32 s14, v19')
    a.raw('    ; MARK 2')


def phase_start(a):
    Lx = a.newlabel('S_XT')
    a('s_getreg_b32 s15, hwreg(HW_REG_XCC_ID, 0, 4)\ns_add_u32 s15, s15, 1')
    a(f's_cmp_lg_u32 s3, 1\ns_cbranch_scc1 {Lx}')
    a(f's_lshl_b32 s19, s12, 7\ns_lshl_b32 s20, s13, 2\ns_add_u32 s19, s19, s20\ns_add_u32 s19, s19, {FL_XT}')
    a('v_mov_b32 v18, s19\nv_mov_b32 v19, s15\ns_mov_b64 exec, 1')
    a('global_store_dword v18, v19, s[4:5] sc1')
    a('s_mov_b64 exec, -1')
    a.label(Lx)
    a('s_mul_i32 s20, s13, 20\ns_mul_i32 s21, s3, 5\ns_add_u32 s20, s20, s21\ns_add_u32 s20, s20, 320\nv_add_u32 v140, s20, v2\nv_lshlrev_b32 v141, 4, v140')
    for p in range(4):
        a(f's_mov_b32 s20, {WS_MODP + p*15360}')
        a(f'buffer_load_dwordx4 v[{144+4*p}:{147+4*p}], v141, s[8:11], s20 offen')
    a.raw('    ; MARK 2')

def modf_side():
    b = Asm()
    fin_mod(b, 144)
    b('v_mul_u32_u24 v142, 410, v140\nv_lshrrev_b32 v142, 16, v142')
    b('v_mul_u32_u24 v143, 160, v142\nv_sub_u32 v143, v140, v143')
    cperm_pos_bytes(b, 143, 160, 161)
    b('v_mul_u32_u24 v161, 1280, v142\nv_add_u32 v160, v160, v161')
    b('v_cmp_eq_u32 vcc, 4, v142\ns_nop 1\nv_cndmask_b32_e64 v142, 0, 1.0, vcc')
    round_pack(b, 144, 142, 148)
    b(f's_lshl_b32 s29, s12, 13\ns_add_u32 s29, s29, {WS_MODF}')
    out = [l.strip() for l in b.lines]
    out.append('s_mov_b64 exec, 31\nbuffer_store_dwordx2 v[148:149], v160, s[8:11], s29 offen sc1\ns_mov_b64 exec, -1')
    return out

ACC_A = 40
QF = 224
OPT = dict(a_pre=3, a_pace=2, a_ahead=5, a_sc=' sc1', a_preB=5, bg=0)
def phase_a(a):
    vm = Vm(a)
    a('s_lshl_b32 s19, s12, 3\ns_add_u32 s20, s19, s3\ns_sub_u32 s21, 7, s3\ns_add_u32 s21, s19, s21')
    a(f's_mul_i32 s22, s20, 40960\ns_add_u32 s22, s22, {WS_H1F}\ns_mul_i32 s23, s21, 40960\ns_add_u32 s23, s23, {WS_H1F}')
    def opsA(c):
        ops = []
        for tb in range(2):
            ops.append((f's_add_u32 s{24+tb}, s{22+tb}, {c*4096}', False))
            for q in range(4):
                f = (2*(4*c + q) + tb) % 64
                ops.append((f'buffer_load_dwordx4 a[{4*f}:{4*f+3}], v3, s[8:11], s{24+tb} offen offset:{q*1024}{OPT["a_sc"]}', True))
        return ops
    a('v_add_u32 v5, 0x10000, v3')
    def read_frag(ks, ct, r):
        off = (ks*2 + ct)*1024
        return f'ds_read_b128 v[{r}:{r+3}], v{3 if off < 65536 else 5} offset:{off % 65536}'
    def mfmas(ks, ct, r, first):
        out = []
        for tb in range(2):
            d = ACC_A + (tb*2 + ct)*16; f = (2*ks + tb) % 64
            out.append(f'v_mfma_f32_32x32x16_bf16 v[{d}:{d+15}], v[{r}:{r+3}], a[{4*f}:{4*f+3}], ' + ('0' if first else f'v[{d}:{d+15}]'))
        return out
    PB = OPT.get('a_preB', 10)
    a(f's_mul_i32 s26, s13, 81920\ns_lshl_b32 s27, s3, 11\ns_add_u32 s26, s26, s27\ns_add_u32 s26, s26, {WS_WQKV}')
    def opsB(c):
        return [(f's_add_u32 m0, s27, {c*8192}', False), (f's_add_u32 s28, s26, {c*8192}', False),
                ('buffer_load_dwordx4 v3, s[8:11], s28 offen lds', True), ('buffer_load_dwordx4 v3, s[8:11], s28 offen offset:1024 lds', True)]
    side = None
    if OPT.get('lnk0', 1):
        side = ['s_nop 0']*4 + modf_side()
    gemm2(a, vm, 40, 4, 2, opsA, opsB, PB, read_frag, mfmas, 16, pd=2, pre=OPT['a_pre'], pace=OPT['a_pace'], ahead=OPT['a_ahead'], barriers=(PB < 10), side=side)
    a.raw('    ; MARK 3')
    a('v_and_b32 v6, 31, v2\nv_lshrrev_b32 v7, 5, v2')
    a(f'v_lshlrev_b32 v8, 4, v0\nv_add_u32 v8, {LK + 5*4096}, v8\nv_mov_b32 v12, 0\nv_mov_b32 v13, 0\nv_mov_b32 v14, 0\nv_mov_b32 v15, 0')
    Lb = a.newlabel('A_NB')
    a(f's_cmp_lg_u32 s12, 0\ns_cbranch_scc1 {Lb}')
    nb = f2u(NEG) >> 16
    a(f'v_mov_b32 v9, {nb}\nv_cmp_gt_u32 vcc, 128, v0\nv_cndmask_b32 v12, 0, v9, vcc\nv_mov_b32 v14, v12')
    a.label(Lb)
    a('ds_write_b128 v8, v[12:15]')
    a(f'v_mov_b32 v12, 0x3f803f80\nv_mov_b32 v13, 0x3f803f80\nv_mov_b32 v14, 0x3f803f80\nv_mov_b32 v15, 0x3f803f80')
    a(f'v_lshlrev_b32 v8, 4, v0\nv_add_u32 v8, {LONES}, v8\nds_write_b128 v8, v[12:15]')
    a('v_cmp_gt_u32 vcc, 16, v0\ns_and_saveexec_b64 s[26:27], vcc\nds_write_b128 v8, v[12:15] offset:4096\ns_mov_b64 exec, s[26:27]')
    Lz = a.newlabel('A_NZ')
    a(f's_cmp_lg_u32 s12, 0\ns_cbranch_scc1 {Lz}')
    a('v_mov_b32 v12, 0\nv_mov_b32 v13, 0\nv_mov_b32 v14, 0\nv_mov_b32 v15, 0')
    a(f'v_and_b32 v8, 127, v0\nv_lshlrev_b32 v8, 4, v8\nv_lshrrev_b32 v9, 7, v0')
    a(f'v_mul_u32_u24 v10, 4096, v9\nv_add_u32 v10, v10, v8\nv_add_u32 v10, {LK}, v10')
    for gg in (0, 2): a(f'ds_write_b128 v10, v[12:15] offset:{gg*4096}')
    a(f'v_mul_u32_u24 v11, 4128, v9\nv_add_u32 v11, v11, v8\nv_add_u32 v11, {LV}, v11')
    for gg in (0, 2): a(f'ds_write_b128 v11, v[12:15] offset:{gg*4128}')
    a(f'v_cmp_gt_u32 vcc, 128, v0\ns_and_saveexec_b64 s[26:27], vcc\nds_write_b128 v10, v[12:15] offset:{4*4096}\nds_write_b128 v11, v[12:15] offset:{4*4128}\ns_mov_b64 exec, s[26:27]')
    a.label(Lz)
    a(f'v_mul_u32_u24 v8, 4096, v7\nv_add_u32 v8, {LK}, v8\nv_mul_u32_u24 v9, 4128, v7\nv_add_u32 v9, {LV}, v9')
    a(f'v_mov_b32 v10, {LK + 4*4096}\nv_mov_b32 v11, {LV + 4*4128}\nv_cmp_eq_u32 vcc, 1, v7\nv_cndmask_b32 v10, v10, v11, vcc')
    a(f's_mul_i32 s24, s12, {KVH_STRIDE}\ns_mul_i32 s25, s13, 20480\ns_add_u32 s24, s24, s25\ns_add_u32 s24, s24, {WS_KVH}')
    a('v_lshlrev_b32 v11, 11, v7')
    a(f'v_mov_b32 v12, {4*2048}\nv_mov_b32 v13, {9*2048}\nv_cndmask_b32 v12, v12, v13, vcc')
    for tb in range(2):
        a(f's_sub_u32 s25, s{20+tb}, s19\ns_lshl_b32 s25, s25, 5\nv_add_u32 v14, s25, v6\nv_lshlrev_b32 v14, 3, v14')
        a('v_mov_b32 v15, v14')
        a('v_add_u32 v14, 2048, v14')
        P = 120 + 10*tb
        quads = [(0, 0), (0, 1), (0, 2), (0, 3), (1, 0)]
        for i, (ct, q) in enumerate(quads):
            d = ACC_A + (tb*2 + ct)*16 + 4*q
            a(f'v_cvt_pk_bf16_f32 v{P+2*i}, v{d}, v{d+1}\nv_cvt_pk_bf16_f32 v{P+2*i+1}, v{d+2}, v{d+3}')
        a(f'v_add_u32 v21, v8, v14\nds_write_b64 v21, v[{P}:{P+1}]\nds_write_b64 v21, v[{P+2}:{P+3}] offset:8192')
        a(f'v_add_u32 v22, v10, v14\nds_write_b64 v22, v[{P+4}:{P+5}]')
        a(f'v_add_u32 v23, v9, v14\nds_write_b64 v23, v[{P+6}:{P+7}]\nds_write_b64 v23, v[{P+8}:{P+9}] offset:{2*4128}')
        Ls = a.newlabel('A_NS')
        a(f's_cmp_eq_u32 s12, 7\ns_cbranch_scc1 {Ls}')
        a('v_add_u32 v21, v11, v15\nv_add_u32 v22, v12, v15')
        a(f'buffer_store_dwordx2 v[{P}:{P+1}], v21, s[8:11], s24 offen sc1')
        a(f's_add_u32 s25, s24, {2*2048}\nbuffer_store_dwordx2 v[{P+2}:{P+3}], v21, s[8:11], s25 offen sc1')
        a(f'buffer_store_dwordx2 v[{P+4}:{P+5}], v22, s[8:11], s24 offen sc1')
        a(f's_add_u32 s25, s24, {5*2048}\nbuffer_store_dwordx2 v[{P+6}:{P+7}], v21, s[8:11], s25 offen sc1')
        a(f's_add_u32 s25, s24, {7*2048}\nbuffer_store_dwordx2 v[{P+8}:{P+9}], v21, s[8:11], s25 offen sc1')
        a.label(Ls)
        Q = QF + 8*tb
        for i, q in enumerate((1, 2, 3)):
            d = ACC_A + (tb*2 + 1)*16 + 4*q
            a(f'v_cvt_pk_bf16_f32 v{Q+2*i}, v{d}, v{d+1}\nv_cvt_pk_bf16_f32 v{Q+2*i+1}, v{d+2}, v{d+3}')
        a(f'v_mov_b32 v21, 0x3f80\nv_cndmask_b32 v{Q+4}, v{Q+4}, v21, vcc\nv_cndmask_b32_e64 v{Q+5}, v{Q+5}, 0, vcc\nv_mov_b32 v{Q+6}, 0\nv_mov_b32 v{Q+7}, 0')
    a('s_waitcnt lgkmcnt(0)\ns_barrier')
    a.raw('    ; MARK 4')

def phase_b(a):
    import sys as _sys
    from kp_attn import attention
    attention(a, _sys.modules[__name__])
    a.raw('    ; MARK 6')
    a(f's_lshl_b32 s19, s12, 3\ns_add_u32 s20, s19, s3\ns_sub_u32 s21, 7, s3\ns_add_u32 s21, s21, s19\ns_mul_i32 s20, s20, 40960\ns_mul_i32 s21, s21, 40960')
    a(f's_lshl_b32 s22, s13, 10\ns_add_u32 s22, s22, {KP_O}')
    a(f's_lshr_b32 s23, s13, 2\ns_add_u32 s23, s23, 32\ns_lshl_b32 s23, s23, 10\ns_bfe_u32 s25, s13, 0x10001\ns_lshl_b32 s25, s25, 9\ns_add_u32 s23, s23, s25\ns_and_b32 s25, s13, 1\ns_lshl_b32 s25, s25, 3\ns_add_u32 s23, s23, s25\ns_add_u32 s23, s23, {KP_O}')
    def st(f):
        for tb in range(2):
            R = 240 + 6*tb
            a(f's_add_u32 s25, s{20+tb}, s22\nbuffer_store_dwordx4 v[{R}:{R+3}], v3, s[8:11], s25 offen{f}')
        a('s_mov_b32 exec_hi, 0')
        for tb in range(2):
            R = 240 + 6*tb
            a(f's_add_u32 s25, s{20+tb}, s23\nbuffer_store_dwordx2 v[{R+4}:{R+5}], v3, s[8:11], s25 offen{f}')
        a('s_mov_b64 exec, -1')
    store2(a, st)
    a('s_waitcnt vmcnt(0)')
    gbar(a, FL_O, also_set=FL_BG)
    a.raw('    ; MARK 7')

def kp_kernel(upto='E'):
    a = Asm()
    a('s_cmp_ge_u32 s2, 256\ns_cbranch_scc1 KP_END')
    a(f's_load_dwordx2 s[4:5], s[0:1], {KA_WS}')
    a(f's_load_dwordx2 s[6:7], s[0:1], {KA_OUT}')
    a(f's_load_dwordx2 s[16:17], s[0:1], {KA_X}')
    a(f's_load_dwordx4 s[36:39], s[0:1], {KA_WG}')
    a(f's_load_dwordx2 s[40:41], s[0:1], {KA_WD}')
    wave_id(a, 3, 1)
    a('v_and_b32 v2, 63, v0\nv_lshlrev_b32 v3, 4, v2')
    if OPT.get('perm_roles'): a('s_lshr_b32 s12, s2, 5\ns_and_b32 s13, s2, 31\ns_mov_b32 s14, 0')
    else: a('s_and_b32 s12, s2, 7\ns_lshr_b32 s13, s2, 3\ns_mov_b32 s14, 0')
    a('s_waitcnt lgkmcnt(0)')
    ws_rebase(a, 4)
    srd(a, 8, 4, 5, 0, WS_END)
    if OPT.get('lnk0', 1):
        OPT['a_preB'] = OPT.get('a_preB0', 0)
        phase_start(a)
    else: phase_h(a)
    if upto != 'H':
        phase_a(a)
        phase_b(a)
    if upto not in ('H', 'B'):
        from kp2 import phase_c, phase_d, phase_e
        phase_c(a)
        if upto != 'C':
            phase_d(a)
            if upto != 'D': phase_e(a)
    a.label('KP_END')
    a('s_endpgm')
    a.label('KP_CODE_END')
    return dict(name='kp_kernel', body=a.text(), grid=256, block=256, lds=163840, vgpr=256, agpr=256, sgpr=44, sgpr_real=96)
```

```python
from common import *
import math

def attention(a, K):
    OPT = K.OPT; LK, LV, LONES, QF, NEG = K.LK, K.LV, K.LONES, K.QF, K.NEG
    use_bg = OPT.get('bg', 1)
    if use_bg: K.bg_setup(a)
    a(f's_lshr_b32 s26, s13, 2\ns_mul_i32 s26, s26, 102400\ns_mul_i32 s27, s3, 25600\ns_add_u32 s26, s26, s27\ns_add_u32 s26, s26, {WS_WO}')
    wo = []
    for i in range(25):
        t = ''
        if i % 4 == 0:
            t += f's_add_u32 m0, s27, {i*1024}\n'
            if i: t += 's_add_u32 s26, s26, 4096\n'
        t += f'buffer_load_dwordx4 v3, s[8:11], s26 offen offset:{(i%4)*1024} lds'
        wo.append(t)
    a(f's_add_u32 s19, s12, 7\ns_and_b32 s19, s19, 7\ns_mul_i32 s19, s19, {KVH_STRIDE}\ns_add_u32 s19, s19, {WS_KVH}')
    a(f's_mul_i32 s20, s13, 24576\ns_mul_i32 s21, s3, 6144\ns_add_u32 s20, s20, s21\ns_add_u32 s20, s20, s19')
    a(f's_lshl_b32 s21, s13, 12\ns_lshl_b32 s22, s3, 10\ns_add_u32 s21, s21, s22\ns_add_u32 s21, s21, s19\ns_add_u32 s21, s21, 655360')
    a('s_cmp_eq_u32 s12, 0\ns_cselect_b32 s16, s20, s21\ns_cselect_b32 s25, 48, 8')
    a(f's_lshl_b32 s22, s12, 15\ns_lshl_b32 s23, s13, 10\ns_add_u32 s22, s22, s23\ns_lshl_b32 s23, s3, 8\ns_add_u32 s22, s22, s23\ns_add_u32 s17, s22, {WS_STAT}')
    a('v_lshlrev_b32 v4, 7, v2')
    touches = ['s_bfm_b64 exec, s25, 0\nbuffer_load_dword v5, v4, s[8:11], s16 offen\ns_mov_b64 exec, 3\nbuffer_load_dword v5, v4, s[8:11], s17 offen\ns_mov_b64 exec, -1']
    M0 = 28; M8 = 44; PBUF = 60; S0 = 76
    Sreg = lambda s: S0 + 16*s
    KBUF = 32; VBUF = 48; O1 = (72, 88); O2 = (104, 120)
    NM = (24, 26); MRAW = (252, 253); FF = (222, 223)
    cs = math.log2(math.e)/math.sqrt(20.0)
    a(f's_mov_b32 s28, {hex(f2u(cs))}\ns_mov_b32 s29, {hex(f2u(cs))}')
    a('v_and_b32 v6, 31, v2\nv_lshrrev_b32 v7, 5, v2')
    a(f'v_lshlrev_b32 v9, 3, v6\nv_lshl_add_u32 v9, v7, 12, v9\nv_add_u32 v9, {LK}, v9')
    a('s_lshl_b32 s19, s3, 8\ns_sub_u32 s20, 7, s3\ns_lshl_b32 s20, s20, 8')
    a('v_add_u32 v16, s19, v9\nv_add_u32 v18, s20, v9')
    for b in range(2): a(f'v_accvgpr_write_b32 a{KBUF+8*b+6}, 0\nv_accvgpr_write_b32 a{KBUF+8*b+7}, 0')
    a('v_bfe_u32 v10, v2, 4, 1\nv_lshlrev_b32 v10, 2, v10\nv_and_b32 v11, 3, v2\nv_add_u32 v10, v10, v11')
    a(f'v_mul_u32_u24 v11, 4128, v10\nv_add_u32 v11, {LV}, v11\nv_lshlrev_b32 v12, 5, v10\nv_add_u32 v12, {LONES}, v12')
    a('v_cmp_gt_u32 vcc, 5, v10\nv_lshlrev_b32 v13, 2, v7\nv_sub_u32 v13, v6, v13\nv_cndmask_b32 v10, v12, v11, vcc')
    a('v_bfe_u32 v11, v2, 2, 2\nv_lshl_add_u32 v11, v7, 2, v11\nv_lshl_add_u32 v10, v11, 3, v10')
    a('v_add_u32 v17, s19, v10\nv_add_u32 v19, s20, v10')
    a(f'v_mov_b32 v220, {hex(f2u(NEG))}')
    VK = (16, 18); VV = (17, 19)
    sp = ['vcc', 's[20:21]', 's[22:23]']
    krs = [(r & 3) + 8*(r >> 2) for r in range(16)]
    mask_code = []
    for r in range(18):
        if r < 16: mask_code.append(f'v_cmp_gt_i32 {sp[r % 3]}, {krs[r]}, v13')
        if r >= 2:
            q = r - 2
            mask_code += [f'v_cndmask_b32_e64 v{M0+q}, v220, 0, {sp[q % 3]}', f'v_cndmask_b32_e64 v{M8+q}, 0, v220, {sp[q % 3]}']
    Lend = a.newlabel('AT_END')
    labels = [a.newlabel(f'AT_W{w}') for w in range(4)]
    a(f's_cmp_eq_u32 s3, 1\ns_cbranch_scc1 {labels[1]}\ns_cmp_eq_u32 s3, 2\ns_cbranch_scc1 {labels[2]}\ns_cmp_eq_u32 s3, 3\ns_cbranch_scc1 {labels[3]}')

    def variant(w):
        lg = Lg(a)
        cnt = dict(k=0, v=0)
        kb = {}; vb = {}
        def kread(tb, j):
            b = KBUF + 8*(cnt['k'] & 1); cnt['k'] += 1
            for o, off in ((0, 0), (2, 8192), (4, 16384)):
                lg.issue(f'ds_read_b64 a[{b+o}:{b+o+1}], v{VK[tb]} offset:{off + j*256}', ('k', tb, j))
            kb[(tb, j)] = b
        def vread(tb, j):
            b = VBUF + 8*(cnt['v'] % 3); cnt['v'] += 1
            for s in range(2):
                lg.issue(f'ds_read_b64_tr_b16 a[{b+4*s}:{b+4*s+1}], v{VV[tb]} offset:{j*256 + s*128}', ('v', tb, j))
                lg.issue(f'ds_read_b64_tr_b16 a[{b+4*s+2}:{b+4*s+3}], v{VV[tb]} offset:{j*256 + s*128 + 64}', ('v', tb, j))
            vb[(tb, j)] = b
        def qk_items(tb, j, slot):
            Q = QF + 8*tb; d = Sreg(slot)
            c0 = f'v[{M0}:{M0+15}]' if j == 0 else (f'v[{M8}:{M8+15}]' if j == 8 else '0')
            def m0():
                lg.wait(('k', tb, j)); b = kb[(tb, j)]
                a(f'v_mfma_f32_32x32x16_bf16 v[{d}:{d+15}], a[{b}:{b+3}], v[{Q}:{Q+3}], {c0}')
            def m1():
                b = kb[(tb, j)]
                a(f'v_mfma_f32_32x32x16_bf16 v[{d}:{d+15}], a[{b+4}:{b+7}], v[{Q+4}:{Q+7}], v[{d}:{d+15}]')
            return [m0, m1]
        def pv_items(tb, j, slot, O, first):
            pb = PBUF + 8*(slot & 1)
            def mk(s):
                def f():
                    if s == 0: lg.wait(('v', tb, j))
                    v = vb[(tb, j)]
                    c0 = '0' if (first and s == 0) else f'a[{O}:{O+15}]'
                    a(f'v_mfma_f32_32x32x16_bf16 a[{O}:{O+15}], a[{v+4*s}:{v+4*s+3}], v[{pb+4*s}:{pb+4*s+3}], {c0}')
                return f
            return [mk(0), mk(1)]
        def interleave(valu, items, first=3):
            wts = [2 if t.startswith('v_exp') else 1 for t in valu]
            tot = sum(wts); n = len(items); k = 0; acc = 0
            for t, ww in zip(valu, wts):
                while k < n and acc >= first + k*(tot - first)/n:
                    items[k](); k += 1
                a(t); acc += ww
            while k < n:
                items[k](); k += 1
        def maxchain(slots):
            regs = [Sreg(s) + r for s in slots for r in range(16)]
            out = [f'v_max3_f32 v{20+c}, v{regs[c]}, v{regs[4+c]}, v{regs[8+c]}' for c in range(4)]
            idx = regs[12:]; k = 0
            while idx:
                c = 20 + (k % 4); k += 1
                if len(idx) >= 2:
                    x, y = idx.pop(0), idx.pop(0); out.append(f'v_max3_f32 v{c}, v{c}, v{x}, v{y}')
                else:
                    x = idx.pop(0); out.append(f'v_max_f32 v{c}, v{c}, v{x}')
            out += ['v_max3_f32 v20, v20, v21, v22', 'v_max_f32 v20, v20, v23', 'v_mov_b32 v21, v20', 'v_permlane32_swap_b32 v20, v21', 'v_max_f32 v20, v20, v21']
            return out
        def softmax_list(slot, nm):
            d = Sreg(slot); pb = PBUF + 8*(slot & 1)
            return ([f'v_pk_fma_f32 v[{d+r}:{d+r+1}], v[{d+r}:{d+r+1}], s[28:29], v[{nm}:{nm+1}]' for r in range(0, 16, 2)]
                    + [f'v_exp_f32 v{d+r}, v{d+r}' for r in range(16)] + [f'v_cvt_pk_bf16_f32 v{pb+i}, v{d+2*i}, v{d+2*i+1}' for i in range(8)])
        def stage(tiles, O, shadow, hooks, stage2):
            n = len(tiles)
            order = sorted(range(n), key=lambda s: (tiles[s][1] in (0, 8)) and bool(shadow))
            kread(*tiles[order[0]])
            items = []
            for i, s in enumerate(order):
                its = qk_items(tiles[s][0], tiles[s][1], s)
                def first(f=its[0], nx=(order[i+1] if i+1 < n else None)):
                    if nx is not None: kread(*tiles[nx])
                    f()
                items += [first, its[1]]
            nm_early = 2*sum(1 for s in order if not (tiles[s][1] in (0, 8)))
            if shadow:
                interleave(shadow, items[:nm_early], first=0)
                for it in items[nm_early:]: it()
            else:
                for it in items: it()
            vread(*tiles[0])
            for tb in range(2):
                slots = [s for s in range(n) if tiles[s][0] == tb]
                for t in maxchain(slots): a(t)
                if not stage2:
                    a(f'v_mov_b32 v{MRAW[tb]}, v20')
                else:
                    a(f'v_max_f32 v20, v20, v{MRAW[tb]}\nv_sub_f32 v21, v{MRAW[tb]}, v20\nv_mul_f32 v21, s28, v21\nv_exp_f32 v{FF[tb]}, v21')
                a(f'v_mul_f32 v{NM[tb]}, {hex(f2u(-cs))}, v20\nv_mov_b32 v{NM[tb]+1}, v{NM[tb]}')
            seen = set()
            for s in range(n + 1):
                items = []
                if s >= 1:
                    tb, j = tiles[s-1]
                    items = pv_items(tb, j, s-1, O[tb], tb not in seen); seen.add(tb)
                if s < n:
                    if s + 1 < n: vread(*tiles[s+1])
                    interleave(softmax_list(s, NM[tiles[s][0]]), items)
                    if s in hooks: hooks[s]()
                else:
                    for it in items: it()
        T1 = [(0, jj) for jj in range(8-w, 9)] + [(1, jj) for jj in range(w+1, 9)]
        T2 = [(0, jj) for jj in range(0, 8-w)] + [(1, jj) for jj in range(0, w+1)]
        assert len(T1) == 9 and len(T2) == 9
        nbg_early = (8 if (use_bg and w >= 1 and OPT.get('bg_early', 1)) else 0)
        def publish():
            a(f's_waitcnt vmcnt({nbg_early})\ns_barrier')
            if w == 0:
                a(f's_lshl_b32 s19, s12, 7\ns_add_u32 s19, s19, {FL_KV}\ns_lshl_b32 s20, s13, 2\ns_add_u32 s20, s20, s19\nv_mov_b32 v221, s20\nv_mov_b32 v222, 1')
                a('s_mov_b64 exec, 1\nglobal_store_dword v221, v222, s[4:5] sc1\ns_mov_b64 exec, -1')
                a('s_cmp_eq_u32 s12, 0\ns_cselect_b32 s21, 0, 128\ns_sub_u32 s20, s20, s21')
                a('v_and_b32 v221, 31, v2\nv_lshlrev_b32 v221, 2, v221\nv_add_u32 v221, s19, v221\nv_mov_b32 v222, s20\nv_cmp_lt_u32 vcc, 31, v2\nv_cndmask_b32 v221, v221, v222, vcc')
        def probe():
            if w == 0:
                if OPT.get('lnk0', 1):
                    a(f's_lshl_b32 s19, s12, 7\ns_add_u32 s19, s19, {FL_XT}\nv_and_b32 v223, 31, v2\nv_lshlrev_b32 v223, 2, v223\nv_add_u32 v223, s19, v223')
                    a('global_load_dword v23, v223, s[4:5] sc1')
                a('global_load_dword v222, v221, s[4:5] sc1')
        def fetch():
            if w == 0:
                L = a.newlabel('AT_P'); Lo = a.newlabel('AT_PX')
                a(f's_mov_b32 s18, {K.SPIN}\ns_waitcnt vmcnt(0)\nv_cmp_eq_u32 vcc, 0, v222\ns_cbranch_vccz {Lo}')
                a('global_load_dword v20, v221, s[4:5] sc1\ns_sleep 2\nglobal_load_dword v21, v221, s[4:5] sc1\ns_sleep 2')
                a.label(L)
                a('global_load_dword v22, v221, s[4:5] sc1\ns_waitcnt vmcnt(2)\nv_cmp_eq_u32 vcc, 0, v20')
                a(f's_cbranch_vccz {Lo}')
                a('global_load_dword v20, v221, s[4:5] sc1\ns_waitcnt vmcnt(2)\nv_cmp_eq_u32 vcc, 0, v21')
                a(f's_cbranch_vccz {Lo}')
                a('global_load_dword v21, v221, s[4:5] sc1\ns_waitcnt vmcnt(2)\nv_cmp_eq_u32 vcc, 0, v22')
                a(f's_cbranch_vccz {Lo}')
                a(f's_sub_u32 s18, s18, 1\ns_cmp_lg_u32 s18, 0\ns_cbranch_scc1 {L}')
                a.label(Lo)
            if w == 0 and OPT.get('lnk0', 1):
                L2 = a.newlabel('AT_X'); L2o = a.newlabel('AT_XO')
                a(f's_waitcnt vmcnt(0)\ns_mov_b32 s18, {K.SPIN}')
                a.label(L2)
                a(f'v_cmp_eq_u32 vcc, 0, v23\ns_cbranch_vccz {L2o}\ns_sub_u32 s18, s18, 1\ns_cmp_eq_u32 s18, 0\ns_cbranch_scc1 {L2o}')
                a(f'global_load_dword v23, v223, s[4:5] sc1\ns_waitcnt vmcnt(0)\ns_branch {L2}')
                a.label(L2o)
                a('v_cmp_ne_u32 vcc, s15, v23\ns_cmp_eq_u64 vcc, 0\ns_cselect_b32 s14, 1, 0')
                a(f'v_mov_b32 v20, {K.LFAST2}\nv_mov_b32 v21, s14\nds_write_b32 v20, v21\ns_waitcnt lgkmcnt(0)')
            a('s_barrier')
            Ls = a.newlabel('AT_NH')
            a(f's_cmp_eq_u32 s12, 0\ns_cbranch_scc1 {Ls}')
            a(f's_sub_u32 s22, s24, {KVH_STRIDE - 5*w*1024}')
            for q in range(5):
                ii = 5*w + q; piece, half = ii >> 1, ii & 1
                dst = (LK + piece*4096 if piece < 5 else LV + (piece-5)*4128) + half*1024
                a(f's_mov_b32 m0, {dst}')
                if q: a('s_add_u32 s22, s22, 1024')
                a('buffer_load_dwordx4 v3, s[8:11], s22 offen sc1 lds')
            a.label(Ls)
        def branchy(tg, td):
            Ld = a.newlabel('BS_D'); Le = a.newlabel('BS_E')
            return f's_cmp_ge_u32 s2, 160\ns_cbranch_scc1 {Ld}\n' + tg + f'\ns_branch {Le}\n{Ld}:\n' + td + f'\n{Le}:'
        def emit_text(t):
            for line in t.split('\n'):
                if line.endswith(':'): a.label(line[:-1])
                else: a(line)
        plan = K.bg_plan(w) if (use_bg and w >= 1) else []
        hooks = {}
        def add_hook(slot, fn):
            prev = hooks.get(slot)
            hooks[slot] = (lambda: (prev(), fn())) if prev else fn
        add_hook(OPT.get('at_pub', 1), publish)
        if not OPT.get('bg_early', 1):
            for k, (g_, d_) in enumerate(plan):
                add_hook(min(8, OPT.get('at_pub', 1) + (k*OPT.get('bg_spread', 4))//8), lambda k=k, g_=g_, d_=d_: emit_text(branchy(*K.bg_load(k, g_, d_))))
        else:
            for k, (g_, d_) in enumerate(plan): emit_text(branchy(*K.bg_load(k, g_, d_)))
        add_hook(OPT.get('at_probe', 6), probe)
        add_hook(OPT.get('at_fetch', 7), fetch)
        stage(T1, O1, list(mask_code), hooks, False)
        a('s_waitcnt vmcnt(0) lgkmcnt(0)\ns_barrier')
        if OPT.get('lnk0', 1): a(f'v_mov_b32 v20, {K.LFAST2}\nds_read_b32 v21, v20\ns_waitcnt lgkmcnt(0)\nv_readfirstlane_b32 s14, v21')
        if w == 0: a.raw('    ; MARK 5')
        a0 = a.lines; a.lines = []
        stage(T2, O2, None, {}, True)
        for tb in range(2):
            R = 240 + 6*tb; A = O1[tb]; B = O2[tb]; f = FF[tb]
            a(f'v_accvgpr_read_b32 v20, a{A+8}\nv_accvgpr_read_b32 v21, a{B+8}\nv_fma_f32 v20, v20, v{f}, v21\nv_mov_b32 v21, v20')
            a('v_permlane32_swap_b32 v20, v21\nv_rcp_f32 v21, v21')
            a(f'v_mul_f32 v{f}, v{f}, v21')
            for i in range(6):
                a(f'v_accvgpr_read_b32 v22, a{B+2*i}\nv_accvgpr_read_b32 v23, a{B+2*i+1}\nv_accvgpr_read_b32 v9, a{A+2*i}\nv_accvgpr_read_b32 v10, a{A+2*i+1}')
                a(f'v_mul_f32 v22, v22, v21\nv_mul_f32 v23, v23, v21\nv_fma_f32 v22, v9, v{f}, v22\nv_fma_f32 v23, v10, v{f}, v23\nv_cvt_pk_bf16_f32 v{R+i}, v22, v23')
        body = a.lines; a.lines = a0
        real = [i for i, l in enumerate(body) if l.startswith('    ') and not l.strip().startswith(';')]
        N = len(real)
        sched = []
        for k, (g_, d_) in enumerate(plan):
            sched.append((OPT.get('bg_s0', 0.02) + OPT.get('bg_sd', 0.04)*k, branchy(*K.bg_store(k, g_, d_))))
        for t in touches: sched.append((OPT.get('bg_t', 0.30), t))
        for k, t in enumerate(wo): sched.append((OPT.get('bg_w0', 0.03) + OPT.get('bg_wspan', 0.75)*k/len(wo), t))
        pos = {}
        for fr, t in sched: pos.setdefault(real[min(N-1, int(fr*N))], []).append(t)
        for i, l in enumerate(body):
            a.raw(l)
            for t in pos.get(i, []):
                for line in t.split('\n'):
                    if line.endswith(':'): a.label(line[:-1])
                    else: a(line)
        a(f's_branch {Lend}')
    for w in range(4):
        if w: a.label(labels[w])
        variant(w)
    a.label(Lend)
```

```python
from common import *

TOUCH = True
K0LDS = [16384]
GATE = [0]
STF = ['']
GATE_SLEEP = [24]
H1TOUCH = False
N_GEMV, N_QKV, N_GU, N_WD, N_WO = 240, 160, 320, 192, 80
N_LN = 256

def ln_section(a):
    from kp import fin_mod, round4
    a.label('K0_LN')
    srd(a, 24, 20, 21, 0, ACT_BYTES)
    a('s_and_b32 s12, s2, 7\ns_sub_u32 s13, s2, 240\ns_lshr_b32 s13, s13, 3')
    a('v_lshlrev_b32 v3, 4, v2')
    Lw = a.newlabel('LN_W01')
    a(f's_cmp_lt_u32 s3, 2\ns_cbranch_scc1 {Lw}')
    a(f's_mul_i32 s20, s12, 327680\ns_mul_i32 s21, s13, 10240\ns_add_u32 s20, s20, s21\ns_sub_u32 s21, s3, 2\ns_mul_i32 s21, s21, 5120\ns_add_u32 s20, s20, s21\ns_add_u32 s20, s20, {WS_H1F}')
    touch(a, 32, 9, 95, 20, 40)
    a('s_endpgm')
    a.label(Lw)
    a('v_lshrrev_b32 v5, 4, v2\nv_and_b32 v4, 15, v2')
    a('s_lshl_b32 s19, s12, 8\ns_lshl_b32 s20, s13, 3\ns_add_u32 s19, s19, s20\ns_lshl_b32 s20, s3, 2\ns_add_u32 s19, s19, s20')
    a('v_add_u32 v5, s19, v5\nv_lshrrev_b32 v7, 1, v4\nv_and_b32 v8, 1, v4')
    X = 16; F = 36
    a('s_mov_b32 s40, s68\ns_mov_b32 s41, s69')
    a('v_mul_u32_u24 v6, 1280, v5\nv_lshl_add_u32 v6, v7, 5, v6\nv_lshl_add_u32 v6, v8, 3, v6')
    for i in range(5):
        a(f'buffer_load_dwordx2 v[{X+4*i}:{X+1+4*i}], v6, s[24:27], 0 offen offset:{i*256}')
        a(f'buffer_load_dwordx2 v[{X+2+4*i}:{X+3+4*i}], v6, s[24:27], 0 offen offset:{i*256+16}')
    a('v_and_b32 v10, 31, v5\nv_lshlrev_b32 v10, 4, v10\nv_lshl_add_u32 v10, v7, 10, v10\nv_lshl_add_u32 v10, v8, 9, v10')
    a('s_lshl_b32 s19, s12, 3\ns_lshr_b32 s20, s13, 2\ns_add_u32 s21, s19, s20\ns_mul_i32 s21, s21, 40960')
    a('s_waitcnt vmcnt(0)')
    for i in range(5):
        a(f's_add_u32 s20, s21, {WS_XF + i*8192}')
        a(f'buffer_store_dwordx4 v[{X+4*i}:{X+3+4*i}], v10, s[32:35], s20 offen')
    for i in range(20):
        a(f'v_lshlrev_b32 v{F+2*i}, 16, v{X+i}\nv_and_b32 v{F+1+2*i}, 0xffff0000, v{X+i}')
    a(f'v_pk_add_f32 v[12:13], v[{F}:{F+1}], v[{F+2}:{F+3}]\nv_pk_add_f32 v[14:15], v[{F+4}:{F+5}], v[{F+6}:{F+7}]')
    for i in range(4, 20, 2):
        a(f'v_pk_add_f32 v[12:13], v[12:13], v[{F+2*i}:{F+2*i+1}]\nv_pk_add_f32 v[14:15], v[14:15], v[{F+2*i+2}:{F+2*i+3}]')
    a('v_pk_add_f32 v[12:13], v[12:13], v[14:15]\nv_add_f32 v12, v12, v13')
    for rot in (8, 4, 2, 1):
        a(f'v_add_f32_dpp v12, v12, v12 row_ror:{rot} row_mask:0xf bank_mask:0xf')
    a(f'v_mul_f32 v12, {hex(f2u(-1.0/640))}, v12\nv_mov_b32 v13, v12')
    for i in range(20): a(f'v_pk_add_f32 v[{F+2*i}:{F+2*i+1}], v[{F+2*i}:{F+2*i+1}], v[12:13]')
    a(f'v_pk_mul_f32 v[14:15], v[{F}:{F+1}], v[{F}:{F+1}]\nv_pk_mul_f32 v[12:13], v[{F+2}:{F+3}], v[{F+2}:{F+3}]')
    for i in range(2, 20, 2):
        a(f'v_pk_fma_f32 v[14:15], v[{F+2*i}:{F+2*i+1}], v[{F+2*i}:{F+2*i+1}], v[14:15]\nv_pk_fma_f32 v[12:13], v[{F+2*i+2}:{F+2*i+3}], v[{F+2*i+2}:{F+2*i+3}], v[12:13]')
    a('v_pk_add_f32 v[14:15], v[14:15], v[12:13]\nv_add_f32 v14, v14, v15')
    for rot in (8, 4, 2, 1):
        a(f'v_add_f32_dpp v14, v14, v14 row_ror:{rot} row_mask:0xf bank_mask:0xf')
    a(f'v_mov_b32 v15, {hex(f2u(1e-5))}\nv_fmac_f32 v15, {hex(f2u(1.0/640))}, v14\nv_rsq_f32 v14, v15')
    a('v_mov_b32 v15, v14')
    for i in range(20): a(f'v_pk_mul_f32 v[{F+2*i}:{F+2*i+1}], v[{F+2*i}:{F+2*i+1}], v[14:15]')
    a.raw('    ; MARK 4')
    L = a.newlabel('LN_P'); Lo = a.newlabel('LN_PX')
    a(f's_cmp_eq_u32 s3, 1\ns_cbranch_scc1 {Lo}')
    a('v_mov_b32 v11, 0\ns_mov_b32 s18, 4000000')
    a.label(L)
    a(f's_sub_u32 s18, s18, 1\ns_cmp_eq_u32 s18, 0\ns_cbranch_scc1 {Lo}')
    a('global_load_dword v12, v11, s[40:41] sc1\ns_waitcnt vmcnt(0)\nv_cmp_eq_u32 vcc, 0, v12')
    a(f's_cbranch_vccz {Lo}\ns_sleep 2\ns_branch {L}')
    a.label(Lo)
    a('s_barrier')
    a.raw('    ; MARK 5')
    a(f's_mul_i32 s22, s3, 2560\ns_add_u32 s22, s22, {WS_MODP}')
    PR = (76, 16, 92 - 60)
    for r in range(2):
        b = (76, 16)[r]
        for p in range(4):
            a(f's_add_u32 s23, s22, {p*15360}\nbuffer_load_dwordx4 v[{b+4*p}:{b+4*p+3}], v3, s[32:35], s23 offen offset:{r*1024} sc1')
    a('v_lshrrev_b32 v9, 2, v2\nv_lshlrev_b32 v9, 6, v9\nv_and_b32 v11, 1, v2\nv_lshl_add_u32 v9, v11, 5, v9\nv_bfe_u32 v11, v2, 1, 1\nv_lshl_add_u32 v9, v11, 4, v9')
    a('s_mul_i32 s20, s3, 2560\nv_add_u32 v9, s20, v9')
    a('s_cmp_eq_u32 s3, 1\ns_cselect_b32 s20, 1.0, 0\nv_mov_b32 v12, s20')
    a('s_waitcnt vmcnt(4)')
    fin_mod(a, 76); round4(a, 76, 12)
    a('ds_write_b128 v9, v[76:79]')
    for p in range(4):
        a(f's_add_u32 s23, s22, {p*15360}\nbuffer_load_dwordx4 v[{76+4*p}:{76+4*p+3}], v3, s[32:35], s23 offen offset:2048 sc1')
    a('s_waitcnt vmcnt(4)')
    fin_mod(a, 16); round4(a, 16, 12)
    a('ds_write_b128 v9, v[16:19] offset:1024')
    a('s_waitcnt vmcnt(0)')
    fin_mod(a, 76); round4(a, 76, 12)
    a('s_mov_b32 exec_hi, 0\nds_write_b128 v9, v[76:79] offset:2048\ns_mov_b64 exec, -1')
    a.raw('    ; MARK 6')
    a('s_waitcnt lgkmcnt(0)\ns_barrier')
    a('v_lshlrev_b32 v9, 5, v4')
    for i in range(5):
        for hh in range(2):
            a(f'ds_read_b128 v[{76+4*hh}:{79+4*hh}], v9 offset:{2560 + i*512 + 16*hh}')
            a(f'ds_read_b128 v[{84+4*hh}:{87+4*hh}], v9 offset:{i*512 + 16*hh}')
        a('s_waitcnt lgkmcnt(0)')
        for k in range(4):
            q = 4*i + k
            a(f'v_pk_fma_f32 v[{F+2*q}:{F+2*q+1}], v[{F+2*q}:{F+2*q+1}], v[{76+2*k}:{77+2*k}], v[{84+2*k}:{85+2*k}]')
            a(f'v_cvt_pk_bf16_f32 v{16+q}, v{F+2*q}, v{F+2*q+1}')
        a(f's_add_u32 s20, s21, {WS_H1F + i*8192}')
        a(f'buffer_store_dwordx4 v[{16+4*i}:{19+4*i}], v10, s[32:35], s20 offen')
    a('s_endpgm')

def k0_prep(code_label=None, code_bytes=0, parts=('gemv', 'qkv', 'wo'), ngemv=240, ln=False):
    a = Asm()
    bl = N_GEMV + (N_LN if ln else 0)
    b0 = bl; b1 = b0 + N_QKV; b2 = b1 + (N_GU if 'gu' in parts else 0); b3 = b2 + (N_WD if 'wd' in parts else 0); b4 = b3 + N_WO
    a(f's_cmp_ge_u32 s2, {b4}\ns_cbranch_scc1 K0_END')
    a(f's_load_dwordx4 s[4:7], s[0:1], {KA_WQKV}')
    a(f's_load_dwordx4 s[8:11], s[0:1], {KA_WG}')
    a(f's_load_dwordx4 s[12:15], s[0:1], {KA_WD}')
    a(f's_load_dwordx2 s[16:17], s[0:1], {KA_WMOD}')
    a(f's_load_dwordx2 s[18:19], s[0:1], {KA_WS}')
    a(f's_load_dwordx2 s[20:21], s[0:1], {KA_X}')
    a(f's_load_dwordx2 s[68:69], s[0:1], {KA_DBG}')
    wave_id(a, 3, 1)
    a('v_and_b32 v2, 63, v0')
    a('s_waitcnt lgkmcnt(0)')
    a.raw('    ; MARK 0')
    ws_rebase(a, 18)
    srd(a, 32, 18, 19, 0, WS_END)
    def warmup():
        n = 2
        if ln:
            a('v_lshlrev_b32 v9, 7, v2')
            n = 0
        if not ln: srd(a, 56, 20, 21, 0, ACT_BYTES)
        if not ln:
            a('s_and_b32 s60, s2, 7\ns_lshl_b32 s60, s60, 8\ns_lshr_b32 s61, s2, 3\ns_lshl_b32 s61, s61, 3\ns_add_u32 s60, s60, s61\ns_lshl_b32 s61, s3, 1\ns_add_u32 s60, s60, s61\ns_mul_i32 s60, s60, 1280')
            a('v_lshlrev_b32 v9, 7, v2')
            a('s_mov_b64 exec, 0xfffff')
            a('buffer_load_dword v64, v9, s[56:59], s60 offen')
            if H1TOUCH:
                a(f's_and_b32 s60, s2, 7\ns_mul_i32 s60, s60, 327680\ns_lshr_b32 s61, s2, 3\ns_mul_i32 s61, s61, 10240\ns_add_u32 s60, s60, s61\ns_mul_i32 s61, s3, 2560\ns_add_u32 s60, s60, s61\ns_add_u32 s60, s60, {WS_H1F}')
                a('buffer_load_dword v66, v9, s[32:35], s60 offen')
            else: n -= 1
            a('s_mov_b64 exec, -1')
        if code_label:
            a('s_getpc_b64 s[60:61]')
            Lpc = a.newlabel('K0_PC'); a.label(Lpc)
            a(f's_add_u32 s60, s60, {code_label}-{Lpc}\ns_addc_u32 s61, s61, 0')
            a('s_lshr_b32 s62, s2, 3\ns_lshl_b32 s62, s62, 2\ns_add_u32 s62, s62, s3\ns_lshl_b32 s62, s62, 10\nv_add_u32 v9, s62, v9')
            a(f'v_min_u32 v9, {code_bytes}-{code_label}-4, v9')
            a('s_mov_b64 exec, 0xff')
            a('global_load_dword v65, v9, s[60:61]')
            a('s_mov_b64 exec, -1')
            n += 1
        return n
    a(f's_cmp_ge_u32 s2, {b0}\ns_cbranch_scc1 K0_RELAY')
    if ln: a(f's_cmp_ge_u32 s2, {N_GEMV}\ns_cbranch_scc1 K0_LN')
    if 'gemv' not in parts: a('s_endpgm')
    a(f's_cmp_ge_u32 s2, {ngemv}\ns_cbranch_scc1 K0_END')
    srd(a, 24, 16, 17, 0, 640*3840*2)
    srd(a, 28, 14, 15, 0, 1280)
    a('s_lshr_b32 s22, s2, 2\ns_and_b32 s23, s2, 3')
    a('v_lshrrev_b32 v3, 3, v0\nv_and_b32 v4, 7, v0')
    a('v_mul_u32_u24 v5, 7680, v3\nv_lshl_add_u32 v5, v4, 4, v5')
    a('v_lshlrev_b32 v6, 1, v3')
    a(f's_mul_i32 s36, s23, 320')
    for i in range(5):
        a(f'buffer_load_ushort v{10+i}, v6, s[28:31], s36 offen offset:{i*64}')
    a(f's_lshl_b32 s37, s22, 7\ns_mul_i32 s38, s23, {160*7680}\ns_add_u32 s37, s37, s38')
    for i in range(5):
        a(f'buffer_load_dwordx4 v[{16+4*i}:{19+4*i}], v5, s[24:27], s37 offen')
        if i < 4: a(f's_add_u32 s37, s37, {32*7680}')
    nw = warmup()
    a(f's_waitcnt vmcnt({5 + nw})')
    for i in range(5):
        a(f'v_lshlrev_b32 v{10+i}, 16, v{10+i}')
        a(f'v_mul_f32 v7, 0xbfb8aa3b, v{10+i}')
        a('v_exp_f32 v7, v7')
        a('v_add_f32 v7, 1.0, v7')
        a('v_rcp_f32 v7, v7')
        a(f'v_mul_f32 v7, v{10+i}, v7')
        a('v_cvt_pk_bf16_f32 v7, v7, v7')
        a(f'v_lshlrev_b32 v{10+i}, 16, v7')
    for i in range(5):
        a(f's_waitcnt vmcnt({4-i+nw})')
        if i == 4: a.raw('    ; MARK 1')
        for d in range(4):
            a(f'v_lshlrev_b32 v7, 16, v{16+4*i+d}')
            a(f'v_and_b32 v8, 0xffff0000, v{16+4*i+d}')
            if i == 0:
                a(f'v_mul_f32 v{44+2*d}, v10, v7\nv_mul_f32 v{45+2*d}, v10, v8')
            else:
                a(f'v_fmac_f32 v{44+2*d}, v{10+i}, v7\nv_fmac_f32 v{45+2*d}, v{10+i}, v8')
    for d in range(8):
        a(f'v_add_f32_dpp v{44+d}, v{44+d}, v{44+d} row_ror:8 row_mask:0xf bank_mask:0xf')
    a(f'v_lshrrev_b32 v7, 4, v0\nv_lshlrev_b32 v7, 3, v7\nv_and_b32 v8, 7, v0\nv_add_u32 v7, v7, v8\nv_lshlrev_b32 v7, 5, v7')
    a('s_mov_b32 exec_lo, 0x00ff00ff\ns_mov_b32 exec_hi, 0x00ff00ff')
    a('ds_write_b128 v7, v[44:47]\nds_write_b128 v7, v[48:51] offset:16')
    a('s_mov_b64 exec, -1')
    a('s_waitcnt lgkmcnt(0)\ns_barrier')
    a('s_cmp_lg_u32 s3, 0\ns_cbranch_scc1 K0_END')
    a(f'v_lshrrev_b32 v7, 3, v2\nv_lshlrev_b32 v7, 5, v7\nv_and_b32 v8, 7, v2\nv_lshl_add_u32 v7, v8, 2, v7')
    for r in range(16):
        a(f'ds_read_b32 v{16+r}, v7 offset:{r*256}')
    a('s_waitcnt lgkmcnt(0)')
    for st in (8, 4, 2, 1):
        for r in range(st):
            a(f'v_add_f32 v{16+r}, v{16+r}, v{16+r+st}')
    a(f's_mul_i32 s36, s23, {3840*4}\ns_lshl_b32 s37, s22, 8\ns_add_u32 s36, s36, s37\ns_add_u32 s36, s36, {WS_MODP}')
    a('v_lshlrev_b32 v7, 2, v2')
    if ln:
        Lpl = a.newlabel('K0_PL')
        a(f's_cmp_ge_u32 s2, 80\ns_cbranch_scc1 {Lpl}')
        a('buffer_store_dword v16, v7, s[32:35], s36 offen sc1')
        a('s_mov_b32 s40, s68\ns_mov_b32 s41, s69')
        a('s_waitcnt vmcnt(0)')
        a('v_mov_b32 v8, 128\nv_mov_b32 v9, 1\ns_mov_b64 exec, 1\nglobal_atomic_add v10, v8, v9, s[40:41] sc0 sc1')
        a.raw('    ; MARK 7')
        a('s_waitcnt vmcnt(0)')
        a.raw('    ; MARK 2')
        a('v_readfirstlane_b32 s42, v10\ns_cmp_lg_u32 s42, 79\ns_cbranch_scc1 K0_END')
        a('v_mov_b32 v8, 0\nglobal_store_dword v8, v9, s[40:41] sc1')
        a('s_endpgm')
        a.label(Lpl)
    a('buffer_store_dword v16, v7, s[32:35], s36 offen')
    a.raw('    ; MARK 2')
    a('s_endpgm')
    if ln: ln_section(a)
    a.label('K0_RELAY')
    Lw = a.newlabel('K0_NW')
    a(f's_cmp_ge_u32 s2, {256 if not ln else 0}\ns_cbranch_scc1 {Lw}')
    warmup()
    a.label(Lw)
    Lz = a.newlabel('K0_NZ')
    a(f's_cmp_ge_u32 s2, {b0 + 16}\ns_cbranch_scc1 {Lz}\ns_cmp_lg_u32 s3, 0\ns_cbranch_scc1 {Lz}')
    a('v_mov_b32 v8, 0\nv_mov_b32 v9, 0\nv_mov_b32 v10, 0\nv_mov_b32 v11, 0\nv_lshlrev_b32 v7, 4, v2')
    a(f's_sub_u32 s36, s2, {b0}\ns_lshl_b32 s36, s36, 10\ns_add_u32 s36, s36, {WS_FLAG}')
    a('buffer_store_dwordx4 v[8:11], v7, s[32:35], s36 offen')
    a.label(Lz)
    a("""v_lshrrev_b32 v20, 5, v2
         v_lshlrev_b32 v20, 2, v20
         v_bfe_u32 v8, v2, 2, 2
         v_add_u32 v20, v20, v8
         v_bfe_u32 v8, v2, 4, 1
         v_lshlrev_b32 v21, 5, v8
         v_and_b32 v9, 3, v2
         v_lshl_add_u32 v21, v9, 3, v21""")
    a('v_lshlrev_b32 v9, 4, v2')
    def dma(P, ninstr_total, src, ld, rowsrc, colsrc):
        cpr = P//16
        magic = (2**16 + cpr - 1)//cpr
        rows, rowbytes = ld
        srd(a, 56, src, src+1, 0, rows*rowbytes)
        per_wave = (ninstr_total + 3)//4
        for q in range(per_wave):
            L = a.newlabel('K0_DS')
            a(f's_mul_i32 s60, s3, {per_wave}\ns_add_u32 s60, s60, {q}')
            if (3*per_wave + q) >= ninstr_total:
                a(f's_cmp_ge_u32 s60, {ninstr_total}\ns_cbranch_scc1 {L}')
            a('s_lshl_b32 s61, s60, 6\nv_add_u32 v23, s61, v2')
            a(f's_mov_b32 s62, {magic}\nv_mul_lo_u32 v24, v23, s62\nv_lshrrev_b32 v24, 16, v24')
            a(f'v_mul_u32_u24 v25, {cpr}, v24\nv_sub_u32 v25, v23, v25')
            colsrc(); rowsrc()
            a(f'v_mul_u32_u24 v24, {rowbytes}, v24\nv_add_u32 v24, v24, v25')
            a('s_lshl_b32 m0, s60, 10')
            a('buffer_load_dwordx4 v24, s[56:59], s63 offen lds')
            a.label(L)
    def frag_out(P, colreg, coloff, out_s, outoff, half=False):
        a(f'v_mul_u32_u24 v26, {P}, v20\nv_add_u32 v26, v26, v{colreg}')
        a(f'ds_read_b64_tr_b16 v[28:29], v26 offset:{coloff}\nds_read_b64_tr_b16 v[30:31], v26 offset:{coloff + 8*P}')
        a('s_waitcnt lgkmcnt(0)')
        if half:
            a('s_mov_b32 exec_lo, 0xffff\ns_mov_b32 exec_hi, 0xffff')
            a(f'buffer_store_dwordx4 v[28:31], v22, s[32:35], s{out_s} offen offset:{outoff}{STF[0]}')
            a('s_mov_b64 exec, -1')
        else:
            a(f'buffer_store_dwordx4 v[28:31], v9, s[32:35], s{out_s} offen offset:{outoff}{STF[0]}')
        a('s_nop 1')
    a('v_lshrrev_b32 v22, 5, v2\nv_lshlrev_b32 v22, 8, v22\nv_and_b32 v8, 15, v2\nv_lshl_add_u32 v22, v8, 4, v22')
    a(f's_cmp_ge_u32 s2, {b1}\ns_cbranch_scc1 K0_R_GU')
    if 'qkv' not in parts: a('s_endpgm')
    a(f's_sub_u32 s40, s2, {b0}\ns_lshr_b32 s41, s40, 2\ns_and_b32 s42, s40, 3')
    a(f's_mul_i32 s63, s41, {16*3840}\ns_mul_i32 s43, s42, 320\ns_add_u32 s63, s63, s43')
    def colq():
        a('v_mul_u32_u24 v27, 3277, v25\nv_lshrrev_b32 v27, 16, v27\nv_lshlrev_b32 v25, 4, v25\nv_mul_u32_u24 v27, 960, v27\nv_add_u32 v25, v25, v27')
    dma(960, 15, 4, (640, 3840), lambda: None, colq)
    a('v_bfe_u32 v10, v2, 4, 1\nv_lshlrev_b32 v10, 2, v10\nv_and_b32 v11, 3, v2\nv_add_u32 v10, v10, v11')
    a('v_lshlrev_b32 v11, 3, v10\nv_add_u32 v12, 320, v11\nv_add_u32 v13, 592, v11\nv_cmp_lt_u32 vcc, 5, v10\nv_cndmask_b32 v12, v12, v13, vcc')
    a('v_mov_b32 v13, 672\nv_cmp_eq_u32 vcc, 5, v10\nv_cndmask_b32 v12, v12, v13, vcc')
    a('v_add_u32 v14, 656, v11\nv_subrev_u32 v13, 16, v11\nv_cmp_lt_u32 vcc, 1, v10\nv_cndmask_b32 v14, v14, v13, vcc')
    a('v_mov_b32 v13, 32\nv_cmp_eq_u32 vcc, 7, v10\nv_cndmask_b32 v14, v14, v13, vcc')
    a('s_waitcnt vmcnt(0)\ns_barrier')
    a.raw('    ; MARK 3')
    a('s_lshl_b32 s44, s3, 1\ns_mul_i32 s45, s44, 40\nv_add_u32 v12, s45, v12\nv_add_u32 v14, s45, v14')
    a(f's_lshl_b32 s46, s42, 3\ns_add_u32 s46, s46, s44\ns_mul_i32 s46, s46, 40\ns_add_u32 s46, s46, s41\ns_lshl_b32 s46, s46, 11\ns_add_u32 s46, s46, {WS_WQKV}')
    for hh in range(2):
        frag_out(960, 12, 40*hh, 46, 0); frag_out(960, 14, 40*hh, 46, 1024)
        if hh == 0: a(f's_add_u32 s46, s46, {40*2048}')
    a('s_endpgm')
    def gu_section():
        a(f's_sub_u32 s40, s2, {b1}\ns_lshr_b32 s41, s40, 3\ns_bfe_u32 s47, s40, 0x10002\ns_and_b32 s42, s40, 3')
        a(f's_mul_i32 s63, s41, {16*3072}\ns_mul_i32 s43, s42, 768\ns_add_u32 s63, s63, s43')
        a('s_cmp_eq_u32 s47, 0\ns_cselect_b32 s48, s8, s10\ns_cselect_b32 s49, s9, s11')
        dma(768, 12, 48, (640, 3072), lambda: None, lambda: a('v_lshlrev_b32 v25, 4, v25'))
        a('s_waitcnt vmcnt(0)\ns_barrier')
        a.raw('    ; MARK 3')
        a('s_mul_i32 s45, s3, 192\nv_add_u32 v12, s45, v21')
        a(f's_lshl_b32 s46, s42, 2\ns_add_u32 s46, s46, s3\ns_mul_i32 s46, s46, 40\ns_add_u32 s46, s46, s41\ns_mul_i32 s46, s46, 6144\ns_mul_i32 s47, s47, 3072\ns_add_u32 s46, s46, s47\ns_add_u32 s46, s46, {WS_WGU}')
        for ct in range(3): frag_out(768, 12, ct*64, 46, ct*1024)
        a('s_endpgm')

    a.label('K0_R_GU')
    if ln and GATE[0]:
        Lg_ = a.newlabel('K0_G'); Lgo = a.newlabel('K0_GO'); Lsk = a.newlabel('K0_GS')
        a(f's_cmp_ge_u32 s2, {b3 if GATE[0] == 1 else b4}\ns_cbranch_scc1 {Lsk}')
        a(f's_mov_b32 s40, s68\ns_mov_b32 s41, s69\nv_mov_b32 v11, 0\ns_mov_b32 s18, 4000000')
        a(f's_cmp_lg_u32 s3, 0\ns_cbranch_scc1 {Lgo}')
        a.label(Lg_)
        a(f's_sub_u32 s18, s18, 1\ns_cmp_eq_u32 s18, 0\ns_cbranch_scc1 {Lgo}')
        a('global_load_dword v12, v11, s[40:41] sc1\ns_waitcnt vmcnt(0)\nv_cmp_eq_u32 vcc, 0, v12')
        a(f's_cbranch_vccz {Lgo}\ns_sleep {GATE_SLEEP[0]}\ns_branch {Lg_}')
        a.label(Lgo)
        a('s_barrier')
        a.label(Lsk)
    a(f's_cmp_ge_u32 s2, {b2}\ns_cbranch_scc1 K0_R_WD')
    if 'gu' in parts: gu_section()
    def tile80(name, base_id, src, ld, npair, ws_off, rowsrc):
        a(f's_sub_u32 s40, s2, {base_id}\ns_lshr_b32 s41, s40, 1\ns_and_b32 s42, s40, 1')
        a(f's_mul_i32 s63, s42, 640')
        dma(640, 10, src, ld, rowsrc, lambda: a('v_lshlrev_b32 v25, 4, v25'))
        a('s_waitcnt vmcnt(0)\ns_barrier')
        a.raw('    ; MARK 3')
        a('s_mul_i32 s45, s3, 160\nv_add_u32 v12, s45, v21')
        a(f's_lshl_b32 s46, s42, 2\ns_add_u32 s46, s46, s3\ns_mul_i32 s46, s46, {npair}\ns_lshr_b32 s47, s41, 1\ns_add_u32 s46, s46, s47\ns_mul_i32 s46, s46, 5120\ns_add_u32 s46, s46, {ws_off}')
        a('s_and_b32 s47, s41, 1\ns_lshl_b32 s48, s47, 11\ns_add_u32 s48, s48, s46\ns_lshl_b32 s47, s47, 9\ns_add_u32 s47, s47, 4096\ns_add_u32 s47, s47, s46')
        frag_out(640, 12, 0, 48, 0); frag_out(640, 12, 64, 48, 1024)
        frag_out(640, 12, 128, 47, 0, half=True)
        a('s_endpgm')
    a.label('K0_R_WD')
    a(f's_cmp_ge_u32 s2, {b3}\ns_cbranch_scc1 K0_R_WO')
    if 'wd' in parts: tile80('wd', b2, 12, (1536, 1280), 48, WS_WD, lambda: a('s_lshl_b32 s62, s41, 4\nv_add_u32 v24, s62, v24'))
    a.label('K0_R_WO')
    if 'wo' not in parts: a('s_endpgm')
    def rowsrc_wo():
        L1 = a.newlabel('K0_WOL'); L2 = a.newlabel('K0_WOE')
        a(f's_cmp_ge_u32 s41, 32\ns_cbranch_scc1 {L1}')
        a('s_mul_i32 s62, s41, 20\nv_add_u32 v24, s62, v24')
        a(f's_branch {L2}')
        a.label(L1)
        a('s_sub_u32 s62, s41, 32\ns_mul_i32 s62, s62, 80\ns_add_u32 s62, s62, 16')
        a('v_bfe_u32 v27, v24, 2, 1\nv_mul_u32_u24 v27, 40, v27\nv_lshrrev_b32 v19, 3, v24\nv_mul_u32_u24 v19, 20, v19\nv_and_b32 v24, 3, v24\nv_add_u32 v24, v24, v27\nv_add_u32 v24, v24, v19\nv_add_u32 v24, s62, v24')
        a.label(L2)
    tile80('wo', b3, 6, (640, 1280), 20, WS_WO, rowsrc_wo)
    a.label('K0_END')
    a('s_endpgm')
    return dict(name='k0_kernel', body=a.text(), grid=b4, block=256, lds=K0LDS[0], vgpr=(96 if ln else 72), sgpr=70)
```

```python
from common import *
import math

SPIN = 2000000
LH = 81920
LFAST = LH + 2560
LK = 114176
LV = LK + 24576
LONES = 159488
LFAST2 = 110592
NEG = -30000.0
KP_O = WS_H1F
WS_H2F = WS_H1F
KP_X1 = WS_XF

def store2(a, text_fn):
    L1 = a.newlabel('ST_S'); L2 = a.newlabel('ST_E')
    a(f's_cmp_eq_u32 s14, 0\ns_cbranch_scc1 {L1}')
    text_fn('')
    a(f's_branch {L2}')
    a.label(L1)
    text_fn(' sc1')
    a.label(L2)

def poll(a, vaddr, cond_reg='v20', sbase='s[4:5]', n=1, spin=None):
    L = a.newlabel('POLL'); Lo = a.newlabel('POLLX')
    a(f's_mov_b32 s18, {spin or SPIN}')
    a.label(L)
    a(f's_sub_u32 s18, s18, 1\ns_cmp_eq_u32 s18, 0\ns_cbranch_scc1 {Lo}')
    a(f'global_load_dword {cond_reg}, {vaddr}, {sbase} sc1')
    a('s_waitcnt vmcnt(0)')
    a(f'v_cmp_eq_u32 vcc, 0, {cond_reg}')
    a(f's_cbranch_vccnz {L}')
    a.label(Lo)

def poll_bg(a):
    L = a.newlabel('PBG'); Lo = a.newlabel('PBGX'); Ls = a.newlabel('PBGS')
    a(f's_cmp_lg_u32 s3, 1\ns_cbranch_scc1 {Ls}')
    a(f'v_add_u32 v18, {FL_BG}, v3\ns_mov_b32 s18, {SPIN}')
    a.label(L)
    a(f's_sub_u32 s18, s18, 1\ns_cmp_eq_u32 s18, 0\ns_cbranch_scc1 {Lo}')
    a('global_load_dwordx4 v[20:23], v18, s[4:5] sc1\ns_waitcnt vmcnt(0)')
    a('v_min_u32 v20, v20, v21\nv_min_u32 v22, v22, v23\nv_min_u32 v20, v20, v22\nv_cmp_eq_u32 vcc, 0, v20')
    a(f's_cbranch_vccnz {L}')
    a.label(Lo)
    a.label(Ls)

def gbar(a, flag, local=True, during=None, also_set=None):
    L = a.newlabel('GB'); Ld = a.newlabel('GBD')
    a('s_barrier')
    a(f's_cmp_lg_u32 s3, 0\ns_cbranch_scc1 {Ld if during else L}')
    a(f's_lshl_b32 s19, s12, 7\ns_add_u32 s19, s19, {flag}')
    a(f's_lshl_b32 s20, s13, 2\ns_add_u32 s20, s20, s19\nv_mov_b32 v18, s20\nv_mov_b32 v19, 1')
    a('s_mov_b64 exec, 1')
    if local: store2(a, lambda f: a(f'global_store_dword v18, v19, s[4:5]{f}'))
    else: a('global_store_dword v18, v19, s[4:5] sc1')
    if also_set is not None:
        a(f's_lshl_b32 s20, s2, 2\ns_add_u32 s20, s20, {also_set}\nv_mov_b32 v18, s20\nglobal_store_dword v18, v19, s[4:5] sc1')
    a('s_mov_b64 exec, -1')
    a('v_and_b32 v18, 31, v2\nv_lshlrev_b32 v18, 2, v18\nv_add_u32 v18, s19, v18')
    poll(a, 'v18')
    if during:
        a(f's_branch {L}')
        a.label(Ld)
        during()
    a.label(L)
    a('s_barrier')

def fin_mod(a, base, nq_valid_exec=None):
    for e in range(4):
        a(f'v_add_f32 v{base+e}, v{base+e}, v{base+4+e}\nv_add_f32 v{base+8+e}, v{base+8+e}, v{base+12+e}\nv_add_f32 v{base+e}, v{base+e}, v{base+8+e}')

def round_pack(a, base, vone, out):
    a(f'v_cvt_pk_bf16_f32 v{out}, v{base}, v{base+1}\nv_cvt_pk_bf16_f32 v{out+1}, v{base+2}, v{base+3}')
    a(f'v_lshlrev_b32 v{base}, 16, v{out}\nv_and_b32 v{base+1}, 0xffff0000, v{out}\nv_lshlrev_b32 v{base+2}, 16, v{out+1}\nv_and_b32 v{base+3}, 0xffff0000, v{out+1}')
    for e in range(4): a(f'v_add_f32 v{base+e}, v{base+e}, v{vone}')
    a(f'v_cvt_pk_bf16_f32 v{out}, v{base}, v{base+1}\nv_cvt_pk_bf16_f32 v{out+1}, v{base+2}, v{base+3}')

def cperm_pos_bytes(a, vcol4, out, tmp):
    a(f'v_lshrrev_b32 v{out}, 2, v{vcol4}\nv_lshlrev_b32 v{out}, 5, v{out}')
    a(f'v_and_b32 v{tmp}, 1, v{vcol4}\nv_lshl_add_u32 v{out}, v{tmp}, 4, v{out}')
    a(f'v_bfe_u32 v{tmp}, v{vcol4}, 1, 1\nv_lshl_add_u32 v{out}, v{tmp}, 3, v{out}')

LHF = 81920
LFAST = LHF + 5120


def round4(a, base, vone):
    t = base + 4
    for rep in range(2):
        a(f'v_cvt_pk_bf16_f32 v{t}, v{base}, v{base+1}\nv_cvt_pk_bf16_f32 v{t+1}, v{base+2}, v{base+3}')
        a(f'v_lshlrev_b32 v{base}, 16, v{t}\nv_and_b32 v{base+1}, 0xffff0000, v{t}\nv_lshlrev_b32 v{base+2}, 16, v{t+1}\nv_and_b32 v{base+3}, 0xffff0000, v{t+1}')
        if rep == 0:
            for e in range(4): a(f'v_add_f32 v{base+e}, v{base+e}, v{vone}')

def bg_setup(a):
    a('s_lshl_b32 s30, s2, 1')
    a('v_lshrrev_b32 v14, 3, v2\nv_and_b32 v15, 7, v2')
    Ld = a.newlabel('BG_D'); Le = a.newlabel('BG_E')
    a(f's_cmp_ge_u32 s2, 160\ns_cbranch_scc1 {Ld}')
    a(f's_lshr_b32 s19, s30, 3\ns_mul_i32 s43, s19, 49152\ns_and_b32 s20, s30, 3\ns_mul_i32 s20, s20, 768\ns_add_u32 s43, s43, s20')
    a('s_bitcmp1_b32 s30, 2\ns_cselect_b32 s32, s38, s36\ns_cselect_b32 s33, s39, s37')
    a(f's_and_b32 s20, s30, 3\ns_mul_i32 s31, s20, {4*40*6144}\ns_mul_i32 s19, s19, 6144\ns_add_u32 s31, s31, s19\ns_bfe_u32 s19, s30, 0x10002\ns_mul_i32 s19, s19, 3072\ns_add_u32 s31, s31, s19\ns_add_u32 s31, s31, {WS_WGU}')
    a('v_mul_u32_u24 v8, 3072, v14\nv_lshl_add_u32 v8, v15, 4, v8')
    a('v_lshlrev_b32 v14, 6, v14\nv_and_b32 v11, 3, v15\nv_lshl_add_u32 v14, v11, 4, v14\nv_lshrrev_b32 v11, 2, v15')
    a(f'v_mul_u32_u24 v15, {40*6144 - 2048}, v11\nv_add_u32 v15, v15, v14\nv_lshl_add_u32 v14, v11, 10, v14')
    a(f's_branch {Le}')
    a.label(Ld)
    a(f's_sub_u32 s30, s30, 320\ns_lshr_b32 s19, s30, 1\ns_mul_i32 s43, s19, 20480')
    a('s_mov_b32 s32, s40\ns_mov_b32 s33, s41')
    a(f's_lshr_b32 s31, s30, 2\ns_mul_i32 s31, s31, 5120\ns_add_u32 s31, s31, {WS_WD}\ns_and_b32 s30, s19, 1')
    a('v_mul_u32_u24 v8, 1280, v14\nv_lshl_add_u32 v8, v15, 4, v8')
    a.label(Le)
    a('s_mov_b32 s34, 1966080\ns_mov_b32 s35, 0x20000')

def bg_plan(w):
    gu = [(i, rh, m) for i in range(2) for m in range(6) for rh in range(2)]
    dn = [(i, rh, m) for i in range(2) for m in range(5) for rh in range(2)]
    g = gu[w-1::3]; d = dn[w-1::3]
    return [(g[k], d[k] if k < len(d) else None) for k in range(8)]

def bg_load(k, gu, dn):
    i, rh, m = gu
    return (f's_add_u32 s19, s43, {i*768 + rh*8*3072}\nbuffer_load_dwordx4 a[{4*k}:{4*k+3}], v8, s[32:35], s19 offen offset:{128*m}',
            (f's_add_u32 s19, s43, {dn[0]*640 + dn[1]*8*1280}\nbuffer_load_dwordx4 a[{4*k}:{4*k+3}], v8, s[32:35], s19 offen offset:{128*dn[2]}' if dn
             else f'buffer_load_dwordx4 a[{4*k}:{4*k+3}], v8, s[32:35], s43 offen'))

def bg_store(k, gu, dn):
    i, rh, m = gu
    b = 2*m
    off = i*4*40*6144 + (b//3)*40*6144 + (b % 3)*1024 + rh*512
    tg = f's_add_u32 s23, s31, {off}\nbuffer_store_dwordx4 a[{4*k}:{4*k+3}], v{15 if (b % 3) == 2 else 14}, s[8:11], s23 offen sc1'
    if dn is None: return tg, 's_nop 0'
    i, rh, m = dn
    t = f'v_add_u32 v11, {8*m}, v15\nv_mul_u32_u24 v12, 6554, v11\nv_lshrrev_b32 v12, 16, v12\nv_mul_u32_u24 v8, 10, v12\nv_sub_u32 v11, v11, v8'
    t += f'\nv_mul_u32_u24 v12, {48*5}, v12\nv_lshlrev_b32 v12, 10, v12'
    t += f'\ns_lshl_b32 s19, s30, 11\ns_add_u32 s19, s19, {rh*512}\ns_lshl_b32 s23, s30, 9\ns_add_u32 s23, s23, {4096 + rh*256}'
    t += '\nv_cmp_lt_u32 s[20:21], 7, v11\nv_and_b32 v8, 3, v11\nv_lshlrev_b32 v8, 4, v8\nv_lshrrev_b32 v11, 2, v11\nv_lshlrev_b32 v11, 10, v11'
    t += '\nv_lshl_add_u32 v11, v14, 6, v11\nv_add_u32 v11, s19, v11\nv_add_u32 v12, v12, v8\nv_lshlrev_b32 v8, 5, v14\nv_add_u32 v8, s23, v8\nv_cndmask_b32_e64 v11, v11, v8, s[20:21]\nv_add_u32 v12, v12, v11'
    t += f'\ns_add_u32 s23, s31, {i*4*48*5120}\nbuffer_store_dwordx4 a[{4*k}:{4*k+3}], v12, s[8:11], s23 offen sc1'
    return tg, t

LSYNC = LFAST + 16
def lds_arrive(a, off):
    a(f'v_mov_b32 v18, {LSYNC + off}\nv_mov_b32 v19, 1\ns_mov_b64 exec, 1\nds_add_u32 v18, v19\ns_mov_b64 exec, -1')
def lds_spin(a, off, n):
    L = a.newlabel('LSP'); Lo = a.newlabel('LSPX')
    a(f'v_mov_b32 v18, {LSYNC + off}\ns_mov_b32 s18, {SPIN}')
    a.label(L)
    a(f's_sub_u32 s18, s18, 1\ns_cmp_eq_u32 s18, 0\ns_cbranch_scc1 {Lo}')
    a(f'ds_read_b32 v19, v18\ns_waitcnt lgkmcnt(0)\nv_readfirstlane_b32 s19, v19\ns_cmp_lt_u32 s19, {n}\ns_cbranch_scc1 {L}')
    a.label(Lo)

def phase_h(a):
    a(f'v_mov_b32 v18, {LSYNC}\nv_mov_b32 v20, 0\nv_mov_b32 v21, 0\nv_mov_b32 v22, 0\nv_mov_b32 v23, 0\nds_write_b128 v18, v[20:23]\ns_waitcnt lgkmcnt(0)\ns_barrier')
    Lw23 = a.newlabel('H_W23'); Lend = a.newlabel('H_END')
    a(f's_cmp_ge_u32 s3, 2\ns_cbranch_scc1 {Lw23}')
    a('s_setprio 3')
    a('v_lshrrev_b32 v5, 4, v2\nv_and_b32 v4, 15, v2')
    a('s_lshl_b32 s19, s12, 8\ns_lshl_b32 s20, s13, 3\ns_add_u32 s19, s19, s20\ns_lshl_b32 s20, s3, 2\ns_add_u32 s19, s19, s20')
    a('v_add_u32 v5, s19, v5')
    a('v_lshrrev_b32 v7, 1, v4\nv_and_b32 v8, 1, v4')
    a(f's_mul_i32 s21, s3, 2560\ns_add_u32 s21, s21, {WS_MODP}')
    for p in range(4):
        for r in range(3):
            a(f'buffer_load_dwordx4 v[{24+16*r+4*p}:{27+16*r+4*p}], v3, s[8:11], s21 offen offset:{r*1024}')
        if p < 3: a('s_add_u32 s21, s21, 15360')
    srd(a, 24, 16, 17, 0, ACT_BYTES)
    a('v_mul_u32_u24 v6, 1280, v5\nv_lshl_add_u32 v6, v7, 5, v6\nv_lshl_add_u32 v6, v8, 3, v6')
    for i in range(5):
        a(f'buffer_load_dwordx2 v[{192+4*i}:{193+4*i}], v6, s[24:27], 0 offen offset:{i*256}')
        a(f'buffer_load_dwordx2 v[{194+4*i}:{195+4*i}], v6, s[24:27], 0 offen offset:{i*256+16}')
    Lx = a.newlabel('H_XT'); Lx2 = a.newlabel('H_XT2')
    a('s_getreg_b32 s15, hwreg(HW_REG_XCC_ID, 0, 4)\ns_add_u32 s15, s15, 1')
    a(f's_cmp_lg_u32 s3, 1\ns_cbranch_scc1 {Lx}')
    a(f's_lshl_b32 s19, s12, 7\ns_lshl_b32 s20, s13, 2\ns_add_u32 s19, s19, s20\ns_add_u32 s19, s19, {FL_XT}')
    a('v_mov_b32 v18, s19\nv_mov_b32 v19, s15\ns_mov_b64 exec, 1')
    a('global_store_dword v18, v19, s[4:5] sc1')
    a('s_mov_b64 exec, -1')
    a('s_waitcnt vmcnt(11)')
    a(f's_branch {Lx2}')
    a.label(Lx)
    a('s_waitcnt vmcnt(10)')
    a.label(Lx2)
    a.raw('    ; MARK 0')
    a('v_lshrrev_b32 v14, 2, v2\nv_lshlrev_b32 v14, 6, v14\nv_and_b32 v15, 1, v2\nv_lshl_add_u32 v14, v15, 5, v14\nv_bfe_u32 v15, v2, 1, 1\nv_lshl_add_u32 v14, v15, 4, v14')
    a(f's_mul_i32 s20, s3, 2560\ns_add_u32 s20, s20, {LHF}\nv_add_u32 v14, s20, v14')
    a('s_cmp_eq_u32 s3, 1\ns_cselect_b32 s20, 1.0, 0\nv_mov_b32 v12, s20')
    for r in range(3):
        b = 24 + 16*r
        fin_mod(a, b); round4(a, b, 12)
        if r == 2: a('s_mov_b32 exec_hi, 0')
        a(f'ds_write_b128 v14, v[{b}:{b+3}] offset:{r*1024}')
        if r == 2: a('s_mov_b64 exec, -1')
    a('s_waitcnt lgkmcnt(0)')
    lds_arrive(a, 0)
    X = 192; F = 124
    a('s_waitcnt vmcnt(0)')
    a(f's_lshl_b32 s19, s12, 7\ns_add_u32 s19, s19, {FL_XT}\nv_and_b32 v22, 31, v2\nv_lshlrev_b32 v22, 2, v22\nv_add_u32 v22, s19, v22')
    a('global_load_dword v20, v22, s[4:5] sc1')
    for i in range(20):
        a(f'v_lshlrev_b32 v{F+2*i}, 16, v{X+i}\nv_and_b32 v{F+1+2*i}, 0xffff0000, v{X+i}')
    a(f'v_pk_add_f32 v[12:13], v[{F}:{F+1}], v[{F+2}:{F+3}]\nv_pk_add_f32 v[14:15], v[{F+4}:{F+5}], v[{F+6}:{F+7}]')
    for i in range(4, 20, 2):
        a(f'v_pk_add_f32 v[12:13], v[12:13], v[{F+2*i}:{F+2*i+1}]\nv_pk_add_f32 v[14:15], v[14:15], v[{F+2*i+2}:{F+2*i+3}]')
    a('v_pk_add_f32 v[12:13], v[12:13], v[14:15]\nv_add_f32 v12, v12, v13')
    for rot in (8, 4, 2, 1):
        a(f'v_add_f32_dpp v12, v12, v12 row_ror:{rot} row_mask:0xf bank_mask:0xf')
    a(f'v_mul_f32 v12, {hex(f2u(-1.0/640))}, v12\nv_mov_b32 v13, v12')
    for i in range(20): a(f'v_pk_add_f32 v[{F+2*i}:{F+2*i+1}], v[{F+2*i}:{F+2*i+1}], v[12:13]')
    a(f'v_pk_mul_f32 v[14:15], v[{F}:{F+1}], v[{F}:{F+1}]\nv_pk_mul_f32 v[16:17], v[{F+2}:{F+3}], v[{F+2}:{F+3}]')
    for i in range(2, 20, 2):
        a(f'v_pk_fma_f32 v[14:15], v[{F+2*i}:{F+2*i+1}], v[{F+2*i}:{F+2*i+1}], v[14:15]\nv_pk_fma_f32 v[16:17], v[{F+2*i+2}:{F+2*i+3}], v[{F+2*i+2}:{F+2*i+3}], v[16:17]')
    a('v_pk_add_f32 v[14:15], v[14:15], v[16:17]\nv_add_f32 v14, v14, v15')
    for rot in (8, 4, 2, 1):
        a(f'v_add_f32_dpp v14, v14, v14 row_ror:{rot} row_mask:0xf bank_mask:0xf')
    a(f'v_mov_b32 v15, {hex(f2u(1e-5))}\nv_fmac_f32 v15, {hex(f2u(1.0/640))}, v14\nv_rsq_f32 v14, v15')
    a('v_mov_b32 v15, v14')
    Lp = a.newlabel('H_XP'); Lpo = a.newlabel('H_XPO')
    a(f's_waitcnt vmcnt(0)\nv_cmp_eq_u32 vcc, 0, v20\ns_cbranch_vccz {Lpo}')
    poll(a, 'v22')
    a.label(Lpo)
    a('v_cmp_ne_u32 vcc, s15, v20\ns_cmp_eq_u64 vcc, 0\ns_cselect_b32 s14, 1, 0')
    a(f'v_mov_b32 v18, {LFAST}\nv_mov_b32 v19, s14\nds_write_b32 v18, v19')
    lds_spin(a, 0, 2)
    a(f'v_lshlrev_b32 v9, 5, v4\nv_add_u32 v9, {LHF}, v9')
    A1 = 24; SA = 64
    for i in range(5):
        for hh in range(2):
            a(f'ds_read_b128 v[{A1+8*i+4*hh}:{A1+8*i+4*hh+3}], v9 offset:{2560 + i*512 + 16*hh}')
            a(f'ds_read_b128 v[{SA+8*i+4*hh}:{SA+8*i+4*hh+3}], v9 offset:{i*512 + 16*hh}')
    for i in range(20): a(f'v_pk_mul_f32 v[{F+2*i}:{F+2*i+1}], v[{F+2*i}:{F+2*i+1}], v[14:15]')
    for i in range(5):
        a(f's_waitcnt lgkmcnt({min(15, 16 - 4*i)})')
        for k in range(4*i, 4*i+4):
            a(f'v_pk_fma_f32 v[{F+2*k}:{F+2*k+1}], v[{F+2*k}:{F+2*k+1}], v[{A1+2*k}:{A1+2*k+1}], v[{SA+2*k}:{SA+2*k+1}]')
            a(f'v_cvt_pk_bf16_f32 v{164+k}, v{F+2*k}, v{F+2*k+1}')
    a('v_and_b32 v10, 31, v5\nv_lshlrev_b32 v10, 4, v10\nv_lshl_add_u32 v10, v7, 10, v10\nv_lshl_add_u32 v10, v8, 9, v10')
    a('s_lshl_b32 s19, s12, 3\ns_lshr_b32 s20, s13, 2\ns_add_u32 s21, s19, s20\ns_mul_i32 s21, s21, 40960')
    def st(f):
        for i in range(5):
            a(f's_add_u32 s20, s21, {WS_H1F + i*8192}')
            a(f'buffer_store_dwordx4 v[{164+4*i}:{167+4*i}], v10, s[8:11], s20 offen{f}')
    store2(a, st)
    a('s_waitcnt vmcnt(0)')
    a.raw('    ; MARK 1')
    Lw1 = a.newlabel('H_W1'); Lst = a.newlabel('H_ST')
    a(f's_cmp_eq_u32 s3, 1\ns_cbranch_scc1 {Lw1}')
    lds_spin(a, 4, 1)
    a(f's_lshl_b32 s22, s12, 7\ns_add_u32 s22, s22, {FL_H}\ns_lshl_b32 s20, s13, 2\ns_add_u32 s20, s20, s22\nv_mov_b32 v18, s20\nv_mov_b32 v19, 1\ns_mov_b64 exec, 1')
    store2(a, lambda f: a(f'global_store_dword v18, v19, s[4:5]{f}'))
    a('s_mov_b64 exec, -1')
    a('v_and_b32 v18, 31, v2\nv_lshlrev_b32 v18, 2, v18\nv_add_u32 v18, s22, v18')
    poll(a, 'v18')
    a(f's_branch {Lst}')
    a.label(Lw1)
    lds_arrive(a, 4)
    a.label(Lst)
    def st2(f):
        for i in range(5):
            a(f's_add_u32 s20, s21, {WS_XF + i*8192}')
            a(f'buffer_store_dwordx4 v[{X+4*i}:{X+3+4*i}], v10, s[8:11], s20 offen{f}')
    if not OPT.get('noxf'): store2(a, st2)
    a(f's_branch {Lend}')
    a.label(Lw23)
    if OPT.get('tlbwarm'):
        a('v_lshlrev_b32 v9, 21, v2\ns_mov_b64 exec, 0x3ffffff')
        a('buffer_load_dword v255, v9, s[8:11], 0 offen')
        a('s_mov_b64 exec, 3')
        a('global_load_dword v255, v9, s[6:7]')
        a('s_mov_b64 exec, 1')
        for r in (36, 38, 40): a(f'global_load_dword v255, v9, s[{r}:{r+1}]')
        a('s_mov_b64 exec, -1')
    if OPT.get('h_touch', 1):
        a(f's_mul_i32 s20, s12, 327680\ns_mul_i32 s21, s13, 10240\ns_add_u32 s20, s20, s21\ns_sub_u32 s21, s3, 2\ns_mul_i32 s21, s21, 5120\ns_add_u32 s20, s20, s21\ns_add_u32 s20, s20, {WS_H1F}')
        touch(a, 8, 9, 255, 20, 40)
    if OPT.get('kv_touch'):
        a(f's_mul_i32 s20, s12, {KVH_STRIDE}\ns_mul_i32 s21, s13, 20480\ns_add_u32 s20, s20, s21\ns_sub_u32 s21, s3, 2\ns_mul_i32 s21, s21, 10240\ns_add_u32 s20, s20, s21\ns_add_u32 s20, s20, {WS_KVH}')
        touch(a, 8, 9, 255, 20, 80)
    a(f's_mul_i32 s20, s13, 81920\ns_sub_u32 s21, s3, 2\ns_lshl_b32 s21, s21, 12\ns_add_u32 s20, s20, s21\ns_add_u32 s20, s20, {WS_WQKV}')
    PB = OPT.get('a_preB', 10)
    for i in range(PB):
        a(f's_add_u32 m0, s21, {i*8192}')
        for q in range(4): a(f'buffer_load_dwordx4 v3, s[8:11], s20 offen offset:{q*1024} lds')
        if i < PB-1: a('s_add_u32 s20, s20, 8192')
    L3 = a.newlabel('H_T3')
    a(f's_cmp_eq_u32 s3, 3\ns_cbranch_scc0 {L3}')
    a('s_mul_i32 s20, s13, 20\ns_add_u32 s20, s20, 320\nv_add_u32 v10, s20, v2\nv_lshlrev_b32 v11, 4, v10')
    for p in range(4):
        a(f's_mov_b32 s20, {WS_MODP + p*15360}')
        a(f'buffer_load_dwordx4 v[{44+4*p}:{47+4*p}], v11, s[8:11], s20 offen')
    a.label(L3)
    a('s_waitcnt vmcnt(0)')
    L4 = a.newlabel('H_T4')
    a(f's_cmp_eq_u32 s3, 3\ns_cbranch_scc0 {L4}')
    fin_mod(a, 44)
    a('v_mul_u32_u24 v12, 410, v10\nv_lshrrev_b32 v12, 16, v12')
    a('v_mul_u32_u24 v13, 160, v12\nv_sub_u32 v13, v10, v13')
    cperm_pos_bytes(a, 13, 14, 15)
    a('v_mul_u32_u24 v15, 1280, v12\nv_add_u32 v14, v14, v15')
    a('v_cmp_eq_u32 vcc, 4, v12\nv_cndmask_b32_e64 v12, 0, 1.0, vcc')
    round_pack(a, 44, 12, 48)
    a(f's_lshl_b32 s20, s12, 13\ns_add_u32 s20, s20, {WS_MODF}')
    a('s_mov_b32 exec_lo, 0xfffff\ns_mov_b32 exec_hi, 0')
    a('buffer_store_dwordx2 v[48:49], v14, s[8:11], s20 offen sc1')
    a('s_mov_b64 exec, -1')
    a.label(L4)
    a.label(Lend)
    a.raw('    ; MARK 19')
    a('s_setprio 0')
    a('s_waitcnt lgkmcnt(0)\ns_barrier')
    a(f'v_mov_b32 v18, {LFAST}\nds_read_b32 v19, v18\ns_waitcnt lgkmcnt(0)\nv_readfirstlane_b32 s14, v19')
    a.raw('    ; MARK 2')


def phase_start(a):
    Lx = a.newlabel('S_XT')
    a('s_getreg_b32 s15, hwreg(HW_REG_XCC_ID, 0, 4)\ns_add_u32 s15, s15, 1')
    a(f's_cmp_lg_u32 s3, 1\ns_cbranch_scc1 {Lx}')
    a(f's_lshl_b32 s19, s12, 7\ns_lshl_b32 s20, s13, 2\ns_add_u32 s19, s19, s20\ns_add_u32 s19, s19, {FL_XT}')
    a('v_mov_b32 v18, s19\nv_mov_b32 v19, s15\ns_mov_b64 exec, 1')
    a('global_store_dword v18, v19, s[4:5] sc1')
    a('s_mov_b64 exec, -1')
    a.label(Lx)
    a('s_mul_i32 s20, s13, 20\ns_mul_i32 s21, s3, 5\ns_add_u32 s20, s20, s21\ns_add_u32 s20, s20, 320\nv_add_u32 v140, s20, v2\nv_lshlrev_b32 v141, 4, v140')
    for p in range(4):
        a(f's_mov_b32 s20, {WS_MODP + p*15360}')
        a(f'buffer_load_dwordx4 v[{144+4*p}:{147+4*p}], v141, s[8:11], s20 offen')
    a.raw('    ; MARK 2')

def modf_side():
    b = Asm()
    fin_mod(b, 144)
    b('v_mul_u32_u24 v142, 410, v140\nv_lshrrev_b32 v142, 16, v142')
    b('v_mul_u32_u24 v143, 160, v142\nv_sub_u32 v143, v140, v143')
    cperm_pos_bytes(b, 143, 160, 161)
    b('v_mul_u32_u24 v161, 1280, v142\nv_add_u32 v160, v160, v161')
    b('v_cmp_eq_u32 vcc, 4, v142\ns_nop 1\nv_cndmask_b32_e64 v142, 0, 1.0, vcc')
    round_pack(b, 144, 142, 148)
    b(f's_lshl_b32 s29, s12, 13\ns_add_u32 s29, s29, {WS_MODF}')
    out = [l.strip() for l in b.lines]
    out.append('s_mov_b64 exec, 31\nbuffer_store_dwordx2 v[148:149], v160, s[8:11], s29 offen sc1\ns_mov_b64 exec, -1')
    return out

ACC_A = 40
QF = 224
OPT = dict(a_pre=3, a_pace=2, a_ahead=5, a_sc=' sc1', a_preB=5, bg=0, lnk0=0, noxf=1, at_probe=5, at_fetch=6)
def phase_a(a):
    vm = Vm(a)
    a('s_lshl_b32 s19, s12, 3\ns_add_u32 s20, s19, s3\ns_sub_u32 s21, 7, s3\ns_add_u32 s21, s19, s21')
    a(f's_mul_i32 s22, s20, 40960\ns_add_u32 s22, s22, {WS_H1F}\ns_mul_i32 s23, s21, 40960\ns_add_u32 s23, s23, {WS_H1F}')
    def opsA(c):
        ops = []
        for tb in range(2):
            ops.append((f's_add_u32 s{24+tb}, s{22+tb}, {c*4096}', False))
            for q in range(4):
                f = (2*(4*c + q) + tb) % 64
                ops.append((f'buffer_load_dwordx4 a[{4*f}:{4*f+3}], v3, s[8:11], s{24+tb} offen offset:{q*1024}{OPT["a_sc"]}', True))
        return ops
    a('v_add_u32 v5, 0x10000, v3')
    def read_frag(ks, ct, r):
        off = (ks*2 + ct)*1024
        return f'ds_read_b128 v[{r}:{r+3}], v{3 if off < 65536 else 5} offset:{off % 65536}'
    def mfmas(ks, ct, r, first):
        out = []
        for tb in range(2):
            d = ACC_A + (tb*2 + ct)*16; f = (2*ks + tb) % 64
            out.append(f'v_mfma_f32_32x32x16_bf16 v[{d}:{d+15}], v[{r}:{r+3}], a[{4*f}:{4*f+3}], ' + ('0' if first else f'v[{d}:{d+15}]'))
        return out
    PB = OPT.get('a_preB', 10)
    a(f's_mul_i32 s26, s13, 81920\ns_lshl_b32 s27, s3, 11\ns_add_u32 s26, s26, s27\ns_add_u32 s26, s26, {WS_WQKV}')
    def opsB(c):
        return [(f's_add_u32 m0, s27, {c*8192}', False), (f's_add_u32 s28, s26, {c*8192}', False),
                ('buffer_load_dwordx4 v3, s[8:11], s28 offen lds', True), ('buffer_load_dwordx4 v3, s[8:11], s28 offen offset:1024 lds', True)]
    side = None
    if OPT.get('lnk0', 1):
        side = ['s_nop 0']*4 + modf_side()
    gemm2(a, vm, 40, 4, 2, opsA, opsB, PB, read_frag, mfmas, 16, pd=2, pre=OPT['a_pre'], pace=OPT['a_pace'], ahead=OPT['a_ahead'], barriers=(PB < 10), side=side)
    a.raw('    ; MARK 3')
    a('v_and_b32 v6, 31, v2\nv_lshrrev_b32 v7, 5, v2')
    a(f'v_lshlrev_b32 v8, 4, v0\nv_add_u32 v8, {LK + 5*4096}, v8\nv_mov_b32 v12, 0\nv_mov_b32 v13, 0\nv_mov_b32 v14, 0\nv_mov_b32 v15, 0')
    Lb = a.newlabel('A_NB')
    a(f's_cmp_lg_u32 s12, 0\ns_cbranch_scc1 {Lb}')
    nb = f2u(NEG) >> 16
    a(f'v_mov_b32 v9, {nb}\nv_cmp_gt_u32 vcc, 128, v0\nv_cndmask_b32 v12, 0, v9, vcc\nv_mov_b32 v14, v12')
    a.label(Lb)
    a('ds_write_b128 v8, v[12:15]')
    a(f'v_mov_b32 v12, 0x3f803f80\nv_mov_b32 v13, 0x3f803f80\nv_mov_b32 v14, 0x3f803f80\nv_mov_b32 v15, 0x3f803f80')
    a(f'v_lshlrev_b32 v8, 4, v0\nv_add_u32 v8, {LONES}, v8\nds_write_b128 v8, v[12:15]')
    a('v_cmp_gt_u32 vcc, 16, v0\ns_and_saveexec_b64 s[26:27], vcc\nds_write_b128 v8, v[12:15] offset:4096\ns_mov_b64 exec, s[26:27]')
    Lz = a.newlabel('A_NZ')
    a(f's_cmp_lg_u32 s12, 0\ns_cbranch_scc1 {Lz}')
    a('v_mov_b32 v12, 0\nv_mov_b32 v13, 0\nv_mov_b32 v14, 0\nv_mov_b32 v15, 0')
    a(f'v_and_b32 v8, 127, v0\nv_lshlrev_b32 v8, 4, v8\nv_lshrrev_b32 v9, 7, v0')
    a(f'v_mul_u32_u24 v10, 4096, v9\nv_add_u32 v10, v10, v8\nv_add_u32 v10, {LK}, v10')
    for gg in (0, 2): a(f'ds_write_b128 v10, v[12:15] offset:{gg*4096}')
    a(f'v_mul_u32_u24 v11, 4128, v9\nv_add_u32 v11, v11, v8\nv_add_u32 v11, {LV}, v11')
    for gg in (0, 2): a(f'ds_write_b128 v11, v[12:15] offset:{gg*4128}')
    a(f'v_cmp_gt_u32 vcc, 128, v0\ns_and_saveexec_b64 s[26:27], vcc\nds_write_b128 v10, v[12:15] offset:{4*4096}\nds_write_b128 v11, v[12:15] offset:{4*4128}\ns_mov_b64 exec, s[26:27]')
    a.label(Lz)
    a(f'v_mul_u32_u24 v8, 4096, v7\nv_add_u32 v8, {LK}, v8\nv_mul_u32_u24 v9, 4128, v7\nv_add_u32 v9, {LV}, v9')
    a(f'v_mov_b32 v10, {LK + 4*4096}\nv_mov_b32 v11, {LV + 4*4128}\nv_cmp_eq_u32 vcc, 1, v7\nv_cndmask_b32 v10, v10, v11, vcc')
    a(f's_mul_i32 s24, s12, {KVH_STRIDE}\ns_mul_i32 s25, s13, 20480\ns_add_u32 s24, s24, s25\ns_add_u32 s24, s24, {WS_KVH}')
    a('v_lshlrev_b32 v11, 11, v7')
    a(f'v_mov_b32 v12, {4*2048}\nv_mov_b32 v13, {9*2048}\nv_cndmask_b32 v12, v12, v13, vcc')
    for tb in range(2):
        a(f's_sub_u32 s25, s{20+tb}, s19\ns_lshl_b32 s25, s25, 5\nv_add_u32 v14, s25, v6\nv_lshlrev_b32 v14, 3, v14')
        a('v_mov_b32 v15, v14')
        a('v_add_u32 v14, 2048, v14')
        P = 120 + 10*tb
        quads = [(0, 0), (0, 1), (0, 2), (0, 3), (1, 0)]
        for i, (ct, q) in enumerate(quads):
            d = ACC_A + (tb*2 + ct)*16 + 4*q
            a(f'v_cvt_pk_bf16_f32 v{P+2*i}, v{d}, v{d+1}\nv_cvt_pk_bf16_f32 v{P+2*i+1}, v{d+2}, v{d+3}')
        a(f'v_add_u32 v21, v8, v14\nds_write_b64 v21, v[{P}:{P+1}]\nds_write_b64 v21, v[{P+2}:{P+3}] offset:8192')
        a(f'v_add_u32 v22, v10, v14\nds_write_b64 v22, v[{P+4}:{P+5}]')
        a(f'v_add_u32 v23, v9, v14\nds_write_b64 v23, v[{P+6}:{P+7}]\nds_write_b64 v23, v[{P+8}:{P+9}] offset:{2*4128}')
        Ls = a.newlabel('A_NS')
        a(f's_cmp_eq_u32 s12, 7\ns_cbranch_scc1 {Ls}')
        a('v_add_u32 v21, v11, v15\nv_add_u32 v22, v12, v15')
        a(f'buffer_store_dwordx2 v[{P}:{P+1}], v21, s[8:11], s24 offen sc1')
        a(f's_add_u32 s25, s24, {2*2048}\nbuffer_store_dwordx2 v[{P+2}:{P+3}], v21, s[8:11], s25 offen sc1')
        a(f'buffer_store_dwordx2 v[{P+4}:{P+5}], v22, s[8:11], s24 offen sc1')
        a(f's_add_u32 s25, s24, {5*2048}\nbuffer_store_dwordx2 v[{P+6}:{P+7}], v21, s[8:11], s25 offen sc1')
        a(f's_add_u32 s25, s24, {7*2048}\nbuffer_store_dwordx2 v[{P+8}:{P+9}], v21, s[8:11], s25 offen sc1')
        a.label(Ls)
        Q = QF + 8*tb
        for i, q in enumerate((1, 2, 3)):
            d = ACC_A + (tb*2 + 1)*16 + 4*q
            a(f'v_cvt_pk_bf16_f32 v{Q+2*i}, v{d}, v{d+1}\nv_cvt_pk_bf16_f32 v{Q+2*i+1}, v{d+2}, v{d+3}')
        a(f'v_mov_b32 v21, 0x3f80\nv_cndmask_b32 v{Q+4}, v{Q+4}, v21, vcc\nv_cndmask_b32_e64 v{Q+5}, v{Q+5}, 0, vcc\nv_mov_b32 v{Q+6}, 0\nv_mov_b32 v{Q+7}, 0')
    a('s_waitcnt lgkmcnt(0)\ns_barrier')
    a.raw('    ; MARK 4')

def phase_b(a):
    import sys as _sys
    from kp_attn import attention
    attention(a, _sys.modules[__name__])
    a.raw('    ; MARK 6')
    a(f's_lshl_b32 s19, s12, 3\ns_add_u32 s20, s19, s3\ns_sub_u32 s21, 7, s3\ns_add_u32 s21, s21, s19\ns_mul_i32 s20, s20, 40960\ns_mul_i32 s21, s21, 40960')
    a(f's_lshl_b32 s22, s13, 10\ns_add_u32 s22, s22, {KP_O}')
    a(f's_lshr_b32 s23, s13, 2\ns_add_u32 s23, s23, 32\ns_lshl_b32 s23, s23, 10\ns_bfe_u32 s25, s13, 0x10001\ns_lshl_b32 s25, s25, 9\ns_add_u32 s23, s23, s25\ns_and_b32 s25, s13, 1\ns_lshl_b32 s25, s25, 3\ns_add_u32 s23, s23, s25\ns_add_u32 s23, s23, {KP_O}')
    def st(f):
        for tb in range(2):
            R = 240 + 6*tb
            a(f's_add_u32 s25, s{20+tb}, s22\nbuffer_store_dwordx4 v[{R}:{R+3}], v3, s[8:11], s25 offen{f}')
        a('s_mov_b32 exec_hi, 0')
        for tb in range(2):
            R = 240 + 6*tb
            a(f's_add_u32 s25, s{20+tb}, s23\nbuffer_store_dwordx2 v[{R+4}:{R+5}], v3, s[8:11], s25 offen{f}')
        a('s_mov_b64 exec, -1')
    store2(a, st)
    a('s_waitcnt vmcnt(0)')
    gbar(a, FL_O, also_set=FL_BG)
    a.raw('    ; MARK 7')

def kp_kernel(upto='E'):
    a = Asm()
    a('s_cmp_ge_u32 s2, 256\ns_cbranch_scc1 KP_END')
    a(f's_load_dwordx2 s[4:5], s[0:1], {KA_WS}')
    a(f's_load_dwordx2 s[6:7], s[0:1], {KA_OUT}')
    a(f's_load_dwordx2 s[16:17], s[0:1], {KA_X}')
    a(f's_load_dwordx4 s[36:39], s[0:1], {KA_WG}')
    ka40 = KA_X if OPT.get('noxf') else KA_WD
    a(f's_load_dwordx2 s[40:41], s[0:1], {ka40}')
    wave_id(a, 3, 1)
    a('v_and_b32 v2, 63, v0\nv_lshlrev_b32 v3, 4, v2')
    if OPT.get('perm_roles'): a('s_lshr_b32 s12, s2, 5\ns_and_b32 s13, s2, 31\ns_mov_b32 s14, 0')
    else: a('s_and_b32 s12, s2, 7\ns_lshr_b32 s13, s2, 3\ns_mov_b32 s14, 0')
    a('s_waitcnt lgkmcnt(0)')
    ws_rebase(a, 4)
    srd(a, 8, 4, 5, 0, WS_END)
    if OPT.get('lnk0', 1):
        OPT['a_preB'] = OPT.get('a_preB0', 0)
        phase_start(a)
    else: phase_h(a)
    if upto != 'H':
        phase_a(a)
        phase_b(a)
    if upto not in ('H', 'B'):
        from kp2 import phase_c, phase_d, phase_e
        phase_c(a)
        if upto != 'C':
            phase_d(a)
            if upto != 'D': phase_e(a)
    a.label('KP_END')
    a('s_endpgm')
    a.label('KP_CODE_END')
    return dict(name='kp_kernel', body=a.text(), grid=256, block=256, lds=163840, vgpr=256, agpr=256, sgpr=44, sgpr_real=96)
```

```python
from common import *
from kp import store2, gbar, poll, poll_bg, OPT, WS_H2F, KP_O, KP_X1

def BSC(): return ' sc1' if OPT.get('bg', 1) and OPT.get('b_sc1', 1) else ''
LX = 102400

def roles80(a):
    a('s_and_b32 s26, s3, 1\ns_lshr_b32 s27, s3, 1\ns_lshr_b32 s15, s13, 2')
    a('s_lshl_b32 s29, s12, 3\ns_and_b32 s19, s13, 3\ns_lshl_b32 s19, s19, 1\ns_add_u32 s29, s29, s19\ns_add_u32 s29, s29, s26')

def main80(a, vm, nks_total, ws_act, ws_w, nslot, preB, ACC, WB, barriers, pre, pace, ahead, tr=False):
    nks = nks_total//2; npair = nks//2; nchunk = nks//4
    half_bytes = nslot*10240
    a(f's_and_b32 s22, s29, 7\ns_mul_i32 s22, s22, {nks_total}\ns_mul_i32 s19, s27, {nks}\ns_add_u32 s22, s22, s19\ns_lshl_b32 s22, s22, 10')
    a(f's_add_u32 s19, s12, 7\ns_and_b32 s19, s19, 7\ns_mul_i32 s19, s19, {KVH_STRIDE}\ns_add_u32 s22, s22, s19\ns_add_u32 s22, s22, {ws_act}')
    a(f's_mul_i32 s23, s15, {2*npair}\ns_mul_i32 s19, s27, {npair}\ns_add_u32 s23, s23, s19\ns_add_u32 s23, s23, s26\ns_mul_i32 s23, s23, 5120\ns_add_u32 s23, s23, {ws_w}')
    a(f's_mul_i32 s30, s27, {half_bytes}\ns_mul_i32 s19, s26, 5120\ns_add_u32 s30, s30, s19')
    a(f's_mul_i32 s19, s27, {half_bytes}\nv_add_u32 v4, s19, v3')
    a('v_lshrrev_b32 v5, 5, v2\nv_lshlrev_b32 v5, 8, v5\nv_and_b32 v6, 15, v2\nv_lshl_add_u32 v5, v6, 4, v5\nv_add_u32 v5, s19, v5\nv_add_u32 v5, 4096, v5')
    def rot(c, mul, base, dst):
        return [(f's_add_u32 s33, s35, {c}', False), (f's_sub_u32 s21, s33, {nchunk}', False), (f's_cmp_ge_u32 s33, {nchunk}', False),
                ('s_cselect_b32 s33, s21, s33', False), (f's_mul_i32 s33, s33, {mul}', False), (f's_add_u32 s{dst}, s{base}, s33', False)]
    def opsB(c):
        slot = c % nslot
        ops = [(f's_add_u32 m0, s30, {slot*10240}', False)] + rot(c, 10240, 23, 24)
        for q in range(4): ops.append((f'buffer_load_dwordx4 v3, s[8:11], s24 offen offset:{q*1024}{BSC()} lds', True))
        ops += [(f's_add_u32 m0, s30, {slot*10240 + 4096}', False), (f's_add_u32 s24, s24, 4096', False)]
        ops.append((f'buffer_load_dwordx4 v3, s[8:11], s24 offen{BSC()} lds', True))
        return ops
    TA = OPT.get('e_ta', 0)
    if TA:
        a('s_and_b32 s19, s13, 3\ns_lshl_b32 s19, s19, 2\ns_add_u32 s19, s19, s3\ns_mul_i32 s19, s19, 10\ns_cmp_ge_u32 s19, 80\ns_cselect_b32 s20, 1, 0')
        a(f's_mul_i32 s21, s20, 80\ns_sub_u32 s19, s19, s21\ns_lshl_b32 s19, s19, 7\ns_mul_i32 s20, s20, {npair*5120}\ns_add_u32 s19, s19, s20\ns_mul_i32 s20, s15, {2*npair*5120}\ns_add_u32 s19, s19, s20\ns_add_u32 s34, s19, {ws_w}')
        a('v_lshlrev_b32 v9, 7, v2')
    def opsT(c):
        if not TA or c >= nchunk: return []
        return [(f's_add_u32 s20, s34, {c*10240}', False), ('s_mov_b64 exec, 0x3ff\nbuffer_load_dword v10, v9, s[8:11], s20 offen\ns_mov_b64 exec, -1', True)]
    def opsA(c):
        ops = sum((opsT(k) for k in range(preB, preB + TA)), []) if c == 0 else opsT(preB + TA - 1 + c)
        ops = ops + rot(c, 4096, 22, 25)
        for q in range(4):
            ks = 4*c + q
            ops.append((f'buffer_load_dwordx4 a[{4*ks}:{4*ks+3}], v3, s[8:11], s25 offen offset:{q*1024} sc1', True))
        return ops
    if tr:
        a('v_lshrrev_b32 v6, 5, v2\nv_lshlrev_b32 v6, 2, v6\nv_bfe_u32 v4, v2, 2, 2\nv_add_u32 v6, v6, v4\nv_and_b32 v4, 3, v2\nv_lshlrev_b32 v4, 3, v4')
        a('v_lshl_add_u32 v5, v6, 5, v4\nv_lshl_add_u32 v4, v6, 6, v4\nv_bfe_u32 v6, v2, 4, 1\nv_lshl_add_u32 v4, v6, 5, v4')
        a(f's_mul_i32 s19, s27, {half_bytes}\nv_add_u32 v4, s19, v4\nv_add_u32 v5, s19, v5\nv_add_u32 v5, 4096, v5')
    def read_frag(ks, ct, r):
        c = ks // 4; slot = c % nslot
        base = slot*10240 + ((ks >> 1) & 1)*5120
        if tr:
            if ct < 2:
                o = base + (ks & 1)*2048 + ct*1024
                return f'ds_read_b64_tr_b16 v[{r}:{r+1}], v4 offset:{o}\nds_read_b64_tr_b16 v[{r+2}:{r+3}], v4 offset:{o+512}'
            o = base + (ks & 1)*512
            return f'ds_read_b64_tr_b16 v[{r}:{r+1}], v5 offset:{o}\nds_read_b64_tr_b16 v[{r+2}:{r+3}], v5 offset:{o+256}'
        if ct < 2: return f'ds_read_b128 v[{r}:{r+3}], v4 offset:{base + (ks & 1)*2048 + ct*1024}'
        return f'ds_read_b128 v[{r}:{r+3}], v5 offset:{base + (ks & 1)*512}'
    def mfmas(ks, ct, r, first):
        d = ACC + 16*ct
        return [f'v_mfma_f32_32x32x16_bf16 v[{d}:{d+15}], v[{r}:{r+3}], a[{4*ks}:{4*ks+3}], ' + ('0' if first else f'v[{d}:{d+15}]')]
    gemm2(a, vm, nks, 4, 3, opsA, opsB, preB, read_frag, mfmas, WB, pd=2, pre=pre, nslot=nslot, pace=pace, ahead=ahead, barriers=barriers, nlgkm=(2 if tr else 1))

def exchange80(a, ACC, T, region):
    def q(i): return ACC + 4*i
    L1 = a.newlabel('X_KH1'); L2 = a.newlabel('X_W')
    a(f's_mul_i32 s19, s3, 6144\ns_add_u32 s19, s19, {region}\nv_add_u32 v6, s19, v3')
    a(f's_cmp_eq_u32 s27, 1\ns_cbranch_scc1 {L1}')
    for i in range(6, 10): a(f'ds_write_b128 v6, v[{q(i)}:{q(i)+3}] offset:{(i-6)*1024}')
    a(f's_branch {L2}')
    a.label(L1)
    for i in range(6): a(f'ds_write_b128 v6, v[{q(i)}:{q(i)+3}] offset:{i*1024}')
    a.label(L2)
    a('s_waitcnt lgkmcnt(0)\ns_barrier')
    a(f's_xor_b32 s19, s3, 2\ns_mul_i32 s19, s19, 6144\ns_add_u32 s19, s19, {region}\nv_add_u32 v6, s19, v3')
    L3 = a.newlabel('X_R1'); L4 = a.newlabel('X_RD')
    a(f's_cmp_eq_u32 s27, 1\ns_cbranch_scc1 {L3}')
    for i in range(6): a(f'ds_read_b128 v[{T+4*i}:{T+4*i+3}], v6 offset:{i*1024}')
    for i in range(6):
        a(f's_waitcnt lgkmcnt({5-i})')
        for e in range(4): a(f'v_add_f32 v{q(i)+e}, v{q(i)+e}, v{T+4*i+e}')
    a(f's_branch {L4}')
    a.label(L3)
    for i in range(4): a(f'ds_read_b128 v[{T+4*i}:{T+4*i+3}], v6 offset:{i*1024}')
    for i in range(4):
        a(f's_waitcnt lgkmcnt({3-i})')
        for e in range(4): a(f'v_add_f32 v{q(i)+e}, v{q(6+i)+e}, v{T+4*i+e}')
    a.label(L4)

def prefetch_blocks(a, nblk, gbase_sgpr, contiguous=True, lds_map=None):
    L = a.newlabel('PF_N')
    per = (nblk + 2)//3
    a(f's_cmp_eq_u32 s3, 0\ns_cbranch_scc1 {L}')
    a(f's_sub_u32 s19, s3, 1\ns_mul_i32 s19, s19, {per*1024}\ns_add_u32 s20, s{gbase_sgpr}, s19')
    for i in range(per):
        if i % 4 == 0:
            a(f's_add_u32 m0, s19, {i*1024}')
            if i: a('s_add_u32 s20, s20, 4096')
        guard = (2*per + i >= nblk)
        if guard:
            L2 = a.newlabel('PF_S'); a(f's_cmp_eq_u32 s3, 3\ns_cbranch_scc1 {L2}')
        a(f'buffer_load_dwordx4 v3, s[8:11], s20 offen offset:{(i%4)*1024}{BSC()} lds')
        if guard: a.label(L2)
    a.label(L)
    return per

def wait_stores(a, npf):
    L1 = a.newlabel('WS_A'); L2 = a.newlabel('WS_B')
    a(f's_cmp_eq_u32 s3, 0\ns_cbranch_scc1 {L1}')
    a(f's_waitcnt vmcnt({npf})')
    a(f's_branch {L2}')
    a.label(L1)
    a('s_waitcnt vmcnt(0)')
    a.label(L2)

def phase_c(a):
    vm = Vm(a)
    roles80(a)
    ACC = 64; WB = 16
    XR = 112; GA = 124; A2 = 136; SB = 148
    a('s_mul_i32 s28, s15, 5\ns_mul_i32 s19, s27, 3\ns_add_u32 s28, s28, s19')
    a('s_mul_i32 s31, s29, 40\ns_add_u32 s31, s31, s28\ns_lshl_b32 s31, s31, 10')
    a('v_lshrrev_b32 v7, 5, v2\nv_lshlrev_b32 v7, 4, v7')
    a(f's_lshl_b32 s32, s28, 5\ns_lshl_b32 s19, s12, 13\ns_add_u32 s32, s32, s19\ns_add_u32 s32, s32, {WS_MODF}')
    def extra_ops():
        ops = []
        if not OPT.get('noxf'):
            ops = [(f's_add_u32 s19, s31, {WS_XF}', False)]
            for i in range(3): ops.append((f'buffer_load_dwordx4 v[{XR+4*i}:{XR+4*i+3}], v3, s[8:11], s19 offen offset:{i*1024} sc1', True))
        for seg, R in ((2, GA), (4, A2), (3, SB)):
            ops.append((f's_add_u32 s19, s32, {seg*1280}', False))
            for i in range(3): ops.append((f'buffer_load_dwordx4 v[{R+4*i}:{R+4*i+3}], v7, s[8:11], s19 offen offset:{i*32} sc1', True))
        return ops
    nks = 20
    a(f's_mul_i32 s22, s29, 40\ns_mul_i32 s19, s27, {nks}\ns_add_u32 s22, s22, s19\ns_lshl_b32 s22, s22, 10\ns_add_u32 s22, s22, {KP_O}')
    half_bytes = 5*10240
    a(f's_mul_i32 s19, s27, {half_bytes}\nv_add_u32 v4, s19, v3')
    a('v_lshrrev_b32 v5, 5, v2\nv_lshlrev_b32 v5, 8, v5\nv_and_b32 v6, 15, v2\nv_lshl_add_u32 v5, v6, 4, v5\nv_add_u32 v5, s19, v5\nv_add_u32 v5, 4096, v5')
    def opsA(c):
        ops = [(f's_add_u32 s25, s22, {c*4096}', False)]
        for q in range(4):
            ks = 4*c + q
            ops.append((f'buffer_load_dwordx4 a[{4*ks}:{4*ks+3}], v3, s[8:11], s25 offen offset:{q*1024} sc1', True))
        return ops
    def read_frag(ks, ct, r):
        base = (ks//4)*10240 + ((ks >> 1) & 1)*5120
        if ct < 2: return f'ds_read_b128 v[{r}:{r+3}], v4 offset:{base + (ks & 1)*2048 + ct*1024}'
        return f'ds_read_b128 v[{r}:{r+3}], v5 offset:{base + (ks & 1)*512}'
    def mfmas(ks, ct, r, first):
        d = ACC + 16*ct
        return [f'v_mfma_f32_32x32x16_bf16 v[{d}:{d+15}], v[{r}:{r+3}], a[{4*ks}:{4*ks+3}], ' + ('0' if first else f'v[{d}:{d+15}]')]
    if OPT.get('noxf'):
        for i in range(12): a(f'v_accvgpr_read_b32 v{XR+i}, a{136+i}')
    opsA2 = lambda c: opsA(c) + (extra_ops() if c == 4 else [])
    gemm2(a, vm, nks, 4, 3, opsA2, None, 99, read_frag, mfmas, WB, pd=2, pre=OPT.get('c_pre', 2), pace=1, ahead=5, barriers=False)
    a.raw('    ; MARK 10')
    exchange80(a, ACC, 16, LX)
    a('v_mov_b32 v8, 0\nv_mov_b32 v9, 0')
    X1 = 160
    PK = 184; PH = 196
    L = a.newlabel('C_F2')
    def frag1(i):
        for p in range(4):
            d = ACC + 8*i + 2*p; x = XR + 4*i + p; g = GA + 4*i + p
            a(f'v_lshlrev_b32 v10, 16, v{x}\nv_lshlrev_b32 v11, 16, v{g}\nv_fma_f32 v12, v11, v{d}, v10')
            a(f'v_and_b32 v10, 0xffff0000, v{x}\nv_and_b32 v11, 0xffff0000, v{g}\nv_fma_f32 v13, v11, v{d+1}, v10')
            a(f'v_cvt_pk_bf16_f32 v{PK+4*i+p}, v12, v13')
            lo = X1 + 8*i + 2*p
            a(f'v_lshlrev_b32 v{lo}, 16, v{PK+4*i+p}\nv_and_b32 v{lo+1}, 0xffff0000, v{PK+4*i+p}')
            a(f'v_add_f32 v8, v8, v{lo}\nv_fmac_f32 v9, v{lo}, v{lo}\nv_add_f32 v8, v8, v{lo+1}\nv_fmac_f32 v9, v{lo+1}, v{lo+1}')
    frag1(0); frag1(1)
    a(f's_cmp_eq_u32 s27, 1\ns_cbranch_scc1 {L}')
    frag1(2)
    a.label(L)
    a('v_mov_b32 v10, v8\nv_mov_b32 v11, v9')
    a('v_permlane32_swap_b32 v8, v10\nv_permlane32_swap_b32 v9, v11')
    a('v_add_f32 v8, v8, v10\nv_add_f32 v9, v9, v11')
    a(f's_lshl_b32 s19, s29, 4\ns_lshl_b32 s20, s15, 1\ns_add_u32 s19, s19, s20\ns_add_u32 s19, s19, s27\ns_lshl_b32 s33, s19, 8\ns_add_u32 s33, s33, {WS_STAT}')
    a('v_lshlrev_b32 v10, 3, v2')
    def st1(f):
        a('s_mov_b32 exec_hi, 0')
        a(f'buffer_store_dwordx2 v[8:9], v10, s[8:11], s33 offen{f}')
        a('s_mov_b64 exec, -1')
        for i in range(3 if not OPT.get('noxf') else 0):
            Ls = None
            if i == 2:
                Ls = a.newlabel('C_S2'); a(f's_cmp_eq_u32 s27, 1\ns_cbranch_scc1 {Ls}')
            a(f's_add_u32 s19, s31, {KP_X1 + i*1024}\nbuffer_store_dwordx4 v[{PK+4*i}:{PK+4*i+3}], v3, s[8:11], s19 offen{f}')
            if Ls: a.label(Ls)
    store2(a, st1)
    a(f's_lshr_b32 s34, s13, 1\ns_mul_i32 s34, s34, 245760\ns_add_u32 s34, s34, {WS_WGU}')
    if OPT.get('d_rotg'): a('s_mul_i32 s19, s12, 24576\ns_add_u32 s34, s34, s19')
    else: a(f's_and_b32 s19, s13, 1\ns_mul_i32 s19, s19, {5*24576*OPT.get("d_rot", 0)}\ns_add_u32 s34, s34, s19')
    a('s_waitcnt vmcnt(0)')
    a.raw('    ; MARK 11')
    gbar(a, FL_C, during=((lambda: poll_bg(a)) if OPT.get('bg', 1) else None))
    a.raw('    ; MARK 12')
    ST = 16
    a('v_and_b32 v10, 31, v2\nv_lshrrev_b32 v11, 5, v2\nv_lshlrev_b32 v12, 3, v10\nv_lshl_add_u32 v12, v11, 11, v12')
    a(f's_lshl_b32 s19, s29, 12\ns_add_u32 s19, s19, {WS_STAT}')
    for i in range(8): a(f'buffer_load_dwordx2 v[{ST+2*i}:{ST+2*i+1}], v12, s[8:11], s19 offen offset:{i*256} sc1')
    a('s_waitcnt vmcnt(0)')
    for i in range(1, 8): a(f'v_add_f32 v{ST}, v{ST}, v{ST+2*i}\nv_add_f32 v{ST+1}, v{ST+1}, v{ST+2*i+1}')
    a(f'v_mov_b32 v10, v{ST}\nv_mov_b32 v11, v{ST+1}')
    a(f'v_permlane32_swap_b32 v{ST}, v10\nv_permlane32_swap_b32 v{ST+1}, v11')
    a(f'v_add_f32 v10, v{ST}, v10\nv_add_f32 v11, v{ST+1}, v11')
    inv = hex(f2u(1.0/640))
    a(f'v_mul_f32 v10, {inv}, v10\nv_mul_f32 v11, {inv}, v11\nv_fma_f32 v11, -v10, v10, v11\nv_max_f32 v11, 0, v11\nv_add_f32 v11, {hex(f2u(1e-5))}, v11\nv_rsq_f32 v11, v11')
    L = a.newlabel('C_H2')
    def frag2(i):
        for p in range(4):
            lo = X1 + 8*i + 2*p; s2 = A2 + 4*i + p; sb = SB + 4*i + p
            a(f'v_sub_f32 v{lo}, v{lo}, v10\nv_sub_f32 v{lo+1}, v{lo+1}, v10\nv_mul_f32 v{lo}, v{lo}, v11\nv_mul_f32 v{lo+1}, v{lo+1}, v11')
            a(f'v_lshlrev_b32 v12, 16, v{s2}\nv_lshlrev_b32 v13, 16, v{sb}\nv_fma_f32 v{lo}, v{lo}, v12, v13')
            a(f'v_and_b32 v12, 0xffff0000, v{s2}\nv_and_b32 v13, 0xffff0000, v{sb}\nv_fma_f32 v{lo+1}, v{lo+1}, v12, v13')
            a(f'v_cvt_pk_bf16_f32 v{PH+4*i+p}, v{lo}, v{lo+1}')
    frag2(0); frag2(1)
    a(f's_cmp_eq_u32 s27, 1\ns_cbranch_scc1 {L}')
    frag2(2)
    a.label(L)
    def st2(f):
        for i in range(3):
            Ls = None
            if i == 2:
                Ls = a.newlabel('C_S3'); a(f's_cmp_eq_u32 s27, 1\ns_cbranch_scc1 {Ls}')
            a(f's_add_u32 s19, s31, {WS_H2F + i*1024}\nbuffer_store_dwordx4 v[{PH+4*i}:{PH+4*i+3}], v3, s[8:11], s19 offen{f}')
            if Ls: a.label(Ls)
    store2(a, st2)
    a('s_waitcnt vmcnt(0)')
    a.raw('    ; MARK 13')
    gbar(a, FL_UT, during=(lambda: prefetch_blocks(a, 24*OPT.get('d_preB', 1), 34)) if OPT.get('d_preB', 1) else None)
    a.raw('    ; MARK 8')

def phase_d(a):
    vm = Vm(a)
    NSLOT = 6; CB = 24576
    a('s_lshr_b32 s15, s13, 1\ns_and_b32 s19, s13, 1\ns_lshl_b32 s19, s19, 2\ns_lshl_b32 s29, s12, 3\ns_add_u32 s29, s29, s19\ns_add_u32 s29, s29, s3')
    a(f's_mul_i32 s22, s29, 40960\ns_add_u32 s22, s22, {WS_H2F}')
    a(f's_mul_i32 s23, s15, 245760\ns_mul_i32 s30, s3, 6144\ns_add_u32 s23, s23, s30\ns_add_u32 s23, s23, {WS_WGU}')
    R = OPT.get('d_rot', 0)
    a(f's_and_b32 s19, s13, 1\ns_mul_i32 s20, s19, {5*CB*R}\ns_sub_u32 s27, s23, s20\ns_add_u32 s23, s23, s20\ns_mul_i32 s20, s19, {5*4096*R}\ns_sub_u32 s26, s22, s20\ns_add_u32 s22, s22, s20')
    def drot(c, mul, base, dst):
        return [(f's_add_u32 s33, s12, {c}', False), ('s_sub_u32 s21, s33, 10', False), ('s_cmp_ge_u32 s33, 10', False),
                ('s_cselect_b32 s33, s21, s33', False), (f's_mul_i32 s33, s33, {mul}', False), (f's_add_u32 s{dst}, s{base}, s33', False)]
    def opsB(c):
        slot = c % NSLOT
        if OPT.get('d_noB'): return [('s_nop 0', True)]
        if OPT.get('d_rotg'):
            ops = [(f's_add_u32 m0, s30, {slot*CB}', False)] + drot(c, CB, 23, 24)
        else:
            ops = [(f's_add_u32 m0, s30, {slot*CB}', False), (f's_add_u32 s24, s{23 if c < 5 else 27}, {c*CB}', False)]
        for q in range(4): ops.append((f'buffer_load_dwordx4 v3, s[8:11], s24 offen offset:{q*1024}{BSC()} lds', True))
        ops += [(f's_add_u32 m0, s30, {slot*CB + 4096}', False), ('s_add_u32 s24, s24, 4096', False)]
        for q in range(2): ops.append((f'buffer_load_dwordx4 v3, s[8:11], s24 offen offset:{q*1024}{BSC()} lds', True))
        return ops
    TA = OPT.get('d_ta', 0); PB = OPT.get('d_preB', 1)
    if TA:
        a(f's_and_b32 s19, s13, 1\ns_lshl_b32 s19, s19, 2\ns_add_u32 s19, s19, s3\ns_mul_i32 s19, s19, {24*128}\ns_mul_i32 s20, s15, 245760\ns_add_u32 s19, s19, s20\ns_add_u32 s34, s19, {WS_WGU}')
        a('v_lshlrev_b32 v9, 7, v2')
    def opsT(c):
        if not TA or c >= 10: return []
        return [(f's_add_u32 s20, s34, {c*CB}', False), ('s_mov_b64 exec, 0xffffff\nbuffer_load_dword v10, v9, s[8:11], s20 offen\ns_mov_b64 exec, -1', True)]
    def opsA(c):
        ops = sum((opsT(k) for k in range(PB, PB + TA)), []) if c == 0 else opsT(PB + TA - 1 + c)
        if OPT.get('d_rotg'): ops = ops + drot(c, 4096, 22, 25)
        else: ops = ops + [(f's_add_u32 s25, s{22 if c < 5 else 26}, {c*4096}', False)]
        for q in range(4):
            ks = 4*c + q
            ops.append((f'buffer_load_dwordx4 a[{4*ks}:{4*ks+3}], v3, s[8:11], s25 offen offset:{q*1024} sc1', True))
        return ops
    ACC = 88
    TR = bool(OPT.get('bg', 1))
    def read_frag(ks, ct, r):
        off = ((ks//4) % NSLOT)*CB + ((ks & 3)*6 + ct)*1024
        if TR:
            return f'ds_read_b64_tr_b16 v[{r}:{r+1}], v{4 + off//65536} offset:{off % 65536}\nds_read_b64_tr_b16 v[{r+2}:{r+3}], v{4 + off//65536} offset:{off % 65536 + 512}'
        return f'ds_read_b128 v[{r}:{r+3}], v{4 + off//65536} offset:{off % 65536}'
    if TR:
        a('v_lshrrev_b32 v6, 5, v2\nv_lshlrev_b32 v6, 2, v6\nv_bfe_u32 v4, v2, 2, 2\nv_add_u32 v6, v6, v4\nv_and_b32 v4, 3, v2\nv_lshlrev_b32 v4, 3, v4')
        a('v_lshl_add_u32 v4, v6, 6, v4\nv_bfe_u32 v6, v2, 4, 1\nv_lshl_add_u32 v4, v6, 5, v4')
        a('v_add_u32 v5, 0x10000, v4\nv_add_u32 v6, 0x20000, v4')
    else:
        a('v_mov_b32 v4, v3\nv_add_u32 v5, 0x10000, v3\nv_add_u32 v6, 0x20000, v3')
    def mfmas(ks, ct, r, first):
        d = ACC + 16*ct
        if OPT.get('d_nomfma'): return ['s_nop 7']
        return [f'v_mfma_f32_32x32x16_bf16 v[{d}:{d+15}], v[{r}:{r+3}], a[{4*ks}:{4*ks+3}], ' + ('0' if first else f'v[{d}:{d+15}]')]
    gemm2(a, vm, 40, 4, 6, opsA, opsB, OPT.get('d_preB', 1), read_frag, mfmas, 16, pd=(1 if TR else 2), pre=OPT.get('d_pre', 2), nslot=NSLOT, pace=OPT.get('d_pace', 2), ahead=OPT.get('d_ahead', 4), barriers=True, nlgkm=(2 if TR else 1))
    a.raw('    ; MARK 14')
    a(f's_and_b32 s22, s29, 7\ns_mul_i32 s22, s22, 96\ns_mul_i32 s19, s15, 6\ns_add_u32 s22, s22, s19\ns_lshl_b32 s22, s22, 10')
    a(f's_add_u32 s19, s12, 7\ns_and_b32 s19, s19, 7\ns_mul_i32 s19, s19, {KVH_STRIDE}\ns_add_u32 s22, s22, s19\ns_add_u32 s22, s22, {WS_KVH}')
    for ct in range(3):
        for q in range(4):
            g = ACC + 16*ct + 4*q; u = ACC + 16*(3+ct) + 4*q
            for e in range(4): a(f'v_mul_f32 v{g+e}, v{g+e}, v{u+e}')
            o = 16 + 8*ct + 2*q
            a(f'v_cvt_pk_bf16_f32 v{o}, v{g}, v{g+1}\nv_cvt_pk_bf16_f32 v{o+1}, v{g+2}, v{g+3}')
    def st(f):
        for k in range(6):
            if k == 4: a('s_add_u32 s22, s22, 4096')
            a(f'buffer_store_dwordx4 v[{16+4*k}:{19+4*k}], v3, s[8:11], s22 offen offset:{(k % 4)*1024}{f}')
    store2(a, st)
    a(f's_lshr_b32 s15, s13, 2\ns_mul_i32 s34, s15, {48*5120}\ns_add_u32 s34, s34, {WS_WD}')
    if OPT.get('e_rotg', 1): a('s_mul_i32 s19, s12, 10240\ns_add_u32 s34, s34, s19')
    else: a(f's_and_b32 s19, s13, 3\ns_mul_i32 s19, s19, {3*10240*OPT.get("e_rot", 0)}\ns_add_u32 s34, s34, s19')
    def out_touch():
        pass
    def pf_wd():
      a('s_sub_u32 s19, s3, 1\ns_mul_i32 s19, s19, 20')
      for i in range(20):
          if i in (0, 10):
              a(f's_add_u32 s20, s19, {i}\ns_cmp_ge_u32 s20, 30\ns_cselect_b32 s21, 1, 0\ns_mul_i32 s25, s21, 30\ns_sub_u32 s20, s20, s25\ns_lshl_b32 s20, s20, 10')
              a(f's_mul_i32 s25, s21, {24*5120}\ns_add_u32 s25, s25, s20\ns_add_u32 s25, s25, s34\ns_mul_i32 s21, s21, 61440\ns_add_u32 s21, s21, s20')
          k = i % 10
          if k % 4 == 0:
              a(f's_add_u32 m0, s21, {k*1024}')
              if k: a('s_add_u32 s25, s25, 4096')
          a(f'buffer_load_dwordx4 v3, s[8:11], s25 offen offset:{(k % 4)*1024}{BSC()} lds')
    a('s_waitcnt vmcnt(0)')
    a.raw('    ; MARK 15')
    gbar(a, FL_D, during=pf_wd)
    a.raw('    ; MARK 16')

def phase_e(a):
    vm = Vm(a)
    roles80(a)
    srd(a, 36, 6, 7, 0, ACT_BYTES)
    ACC = 64; WB = 16; XR = 112; GB = 124
    a('s_mul_i32 s28, s15, 5\ns_mul_i32 s19, s27, 3\ns_add_u32 s28, s28, s19')
    a('s_mul_i32 s31, s29, 40\ns_add_u32 s31, s31, s28\ns_lshl_b32 s31, s31, 10')
    a('v_lshrrev_b32 v7, 5, v2\nv_lshlrev_b32 v7, 4, v7')
    a(f's_lshl_b32 s32, s28, 5\ns_lshl_b32 s19, s12, 13\ns_add_u32 s19, s19, s32\ns_add_u32 s19, s19, {WS_MODF + 5*1280}')
    for i in range(3): vm.issue(f'buffer_load_dwordx4 v[{GB+4*i}:{GB+4*i+3}], v7, s[8:11], s19 offen offset:{i*32} sc1', 'x')
    if OPT.get('noxf'): XR = 184
    else:
        a(f's_add_u32 s19, s31, {KP_X1}')
        for i in range(3): vm.issue(f'buffer_load_dwordx4 v[{XR+4*i}:{XR+4*i+3}], v3, s[8:11], s19 offen offset:{i*1024} sc1', 'x')
    if OPT.get('wbl2'):
        Lwb = a.newlabel('E_WB')
        a(f's_cmp_lg_u32 s13, {OPT.get("wbl2_j", 0)}\ns_cbranch_scc1 {Lwb}\ns_cmp_lg_u32 s3, 0\ns_cbranch_scc1 {Lwb}')
        a('buffer_wbl2 sc1')
        a.label(Lwb)
    if OPT.get('e_rotg', 1): a('s_mov_b32 s35, s12')
    else: a('s_and_b32 s35, s13, 3\ns_mul_i32 s35, s35, ' + str(3*OPT.get('e_rot', 0)))
    main80(a, vm, 96, WS_KVH, WS_WD, 6, 3, ACC, WB, True, OPT.get('e_pre', 2), OPT.get('e_pace', 1), OPT.get('e_ahead', 4), tr=bool(OPT.get('bg', 1)))
    a.raw('    ; MARK 17')
    a('s_waitcnt lgkmcnt(0)\ns_barrier')
    exchange80(a, ACC, 16, 0)
    a('v_and_b32 v8, 31, v2\ns_lshl_b32 s19, s29, 5\nv_add_u32 v8, s19, v8\nv_mul_u32_u24 v8, 1280, v8\nv_add_u32 v8, v8, v7')
    L = a.newlabel('E_F2')
    def frag(i):
        for p in range(4):
            d = ACC + 8*i + 2*p; x = XR + 4*i + p; g = GB + 4*i + p
            a(f'v_lshlrev_b32 v10, 16, v{x}\nv_lshlrev_b32 v11, 16, v{g}\nv_fma_f32 v12, v11, v{d}, v10')
            a(f'v_and_b32 v10, 0xffff0000, v{x}\nv_and_b32 v11, 0xffff0000, v{g}\nv_fma_f32 v13, v11, v{d+1}, v10')
            a(f'v_cvt_pk_bf16_f32 v{16+4*i+p}, v12, v13')
        b = 16 + 4*i
        a(f'v_permlane32_swap_b32 v{b}, v{b+2}\nv_permlane32_swap_b32 v{b+1}, v{b+3}')
        a(f'buffer_store_dwordx4 v[{b}:{b+3}], v8, s[36:39], s32 offen offset:{i*32}' + OPT.get('out_fl', ''))
    frag(0); frag(1)
    a(f's_cmp_eq_u32 s27, 1\ns_cbranch_scc1 {L}')
    frag(2)
    a.label(L)
```

```python
from common import *
import math

def attention(a, K):
    OPT = K.OPT; LK, LV, LONES, QF, NEG = K.LK, K.LV, K.LONES, K.QF, K.NEG
    use_bg = OPT.get('bg', 1)
    if use_bg: K.bg_setup(a)
    a(f's_lshr_b32 s26, s13, 2\ns_mul_i32 s26, s26, 102400\ns_mul_i32 s27, s3, 25600\ns_add_u32 s26, s26, s27\ns_add_u32 s26, s26, {WS_WO}')
    wo = []
    for i in range(25):
        t = ''
        if i % 4 == 0:
            t += f's_add_u32 m0, s27, {i*1024}\n'
            if i: t += 's_add_u32 s26, s26, 4096\n'
        t += f'buffer_load_dwordx4 v3, s[8:11], s26 offen offset:{(i%4)*1024} lds'
        wo.append(t)
    a(f's_add_u32 s19, s12, 7\ns_and_b32 s19, s19, 7\ns_mul_i32 s19, s19, {KVH_STRIDE}\ns_add_u32 s19, s19, {WS_KVH}')
    a(f's_mul_i32 s20, s13, 24576\ns_mul_i32 s21, s3, 6144\ns_add_u32 s20, s20, s21\ns_add_u32 s20, s20, s19')
    a(f's_lshl_b32 s21, s13, 12\ns_lshl_b32 s22, s3, 10\ns_add_u32 s21, s21, s22\ns_add_u32 s21, s21, s19\ns_add_u32 s21, s21, 655360')
    a('s_cmp_eq_u32 s12, 0\ns_cselect_b32 s16, s20, s21\ns_cselect_b32 s25, 48, 8')
    a(f's_lshl_b32 s22, s12, 15\ns_lshl_b32 s23, s13, 10\ns_add_u32 s22, s22, s23\ns_lshl_b32 s23, s3, 8\ns_add_u32 s22, s22, s23\ns_add_u32 s17, s22, {WS_STAT}')
    a('v_lshlrev_b32 v4, 7, v2')
    touches = ['s_bfm_b64 exec, s25, 0\nbuffer_load_dword v5, v4, s[8:11], s16 offen\ns_mov_b64 exec, 3\nbuffer_load_dword v5, v4, s[8:11], s17 offen\ns_mov_b64 exec, -1']
    xres = []
    if OPT.get('noxf'):
        assert not use_bg
        a('s_mov_b32 s32, s40\ns_mov_b32 s33, s41\ns_mov_b32 s34, 2621440\ns_mov_b32 s35, 0x20000')
        a('s_lshl_b32 s19, s12, 8\ns_and_b32 s20, s13, 3\ns_lshl_b32 s20, s20, 6\ns_add_u32 s19, s19, s20\ns_and_b32 s20, s3, 1\ns_lshl_b32 s20, s20, 5\ns_add_u32 s19, s19, s20')
        a('v_and_b32 v8, 31, v2\nv_add_u32 v8, s19, v8\nv_mul_u32_u24 v8, 1280, v8\nv_lshrrev_b32 v14, 5, v2\nv_lshl_add_u32 v8, v14, 3, v8')
        a('s_lshr_b32 s19, s13, 2\ns_mul_i32 s19, s19, 5\ns_lshr_b32 s20, s3, 1\ns_mul_i32 s20, s20, 3\ns_add_u32 s19, s19, s20\ns_lshl_b32 s43, s19, 5')
        for i in range(3):
            xres.append(f'buffer_load_dwordx2 a[{136+4*i}:{137+4*i}], v8, s[32:35], s43 offen offset:{32*i}')
            xres.append(f'buffer_load_dwordx2 a[{138+4*i}:{139+4*i}], v8, s[32:35], s43 offen offset:{32*i+16}')
    M0 = 28; M8 = 44; PBUF = 60; S0 = 76
    Sreg = lambda s: S0 + 16*s
    KBUF = 32; VBUF = 48; O1 = (72, 88); O2 = (104, 120)
    NM = (24, 26); MRAW = (252, 253); FF = (222, 223)
    cs = math.log2(math.e)/math.sqrt(20.0)
    a(f's_mov_b32 s28, {hex(f2u(cs))}\ns_mov_b32 s29, {hex(f2u(cs))}')
    a('v_and_b32 v6, 31, v2\nv_lshrrev_b32 v7, 5, v2')
    a(f'v_lshlrev_b32 v9, 3, v6\nv_lshl_add_u32 v9, v7, 12, v9\nv_add_u32 v9, {LK}, v9')
    a('s_lshl_b32 s19, s3, 8\ns_sub_u32 s20, 7, s3\ns_lshl_b32 s20, s20, 8')
    a('v_add_u32 v16, s19, v9\nv_add_u32 v18, s20, v9')
    for b in range(2): a(f'v_accvgpr_write_b32 a{KBUF+8*b+6}, 0\nv_accvgpr_write_b32 a{KBUF+8*b+7}, 0')
    a('v_bfe_u32 v10, v2, 4, 1\nv_lshlrev_b32 v10, 2, v10\nv_and_b32 v11, 3, v2\nv_add_u32 v10, v10, v11')
    a(f'v_mul_u32_u24 v11, 4128, v10\nv_add_u32 v11, {LV}, v11\nv_lshlrev_b32 v12, 5, v10\nv_add_u32 v12, {LONES}, v12')
    a('v_cmp_gt_u32 vcc, 5, v10\nv_lshlrev_b32 v13, 2, v7\nv_sub_u32 v13, v6, v13\nv_cndmask_b32 v10, v12, v11, vcc')
    a('v_bfe_u32 v11, v2, 2, 2\nv_lshl_add_u32 v11, v7, 2, v11\nv_lshl_add_u32 v10, v11, 3, v10')
    a('v_add_u32 v17, s19, v10\nv_add_u32 v19, s20, v10')
    a(f'v_mov_b32 v220, {hex(f2u(NEG))}')
    VK = (16, 18); VV = (17, 19)
    sp = ['vcc', 's[20:21]', 's[22:23]']
    krs = [(r & 3) + 8*(r >> 2) for r in range(16)]
    mask_code = []
    for r in range(18):
        if r < 16: mask_code.append(f'v_cmp_gt_i32 {sp[r % 3]}, {krs[r]}, v13')
        if r >= 2:
            q = r - 2
            mask_code += [f'v_cndmask_b32_e64 v{M0+q}, v220, 0, {sp[q % 3]}', f'v_cndmask_b32_e64 v{M8+q}, 0, v220, {sp[q % 3]}']
    Lend = a.newlabel('AT_END')
    labels = [a.newlabel(f'AT_W{w}') for w in range(4)]
    a(f's_cmp_eq_u32 s3, 1\ns_cbranch_scc1 {labels[1]}\ns_cmp_eq_u32 s3, 2\ns_cbranch_scc1 {labels[2]}\ns_cmp_eq_u32 s3, 3\ns_cbranch_scc1 {labels[3]}')

    def variant(w):
        lg = Lg(a)
        cnt = dict(k=0, v=0)
        kb = {}; vb = {}
        def kread(tb, j):
            b = KBUF + 8*(cnt['k'] & 1); cnt['k'] += 1
            for o, off in ((0, 0), (2, 8192), (4, 16384)):
                lg.issue(f'ds_read_b64 a[{b+o}:{b+o+1}], v{VK[tb]} offset:{off + j*256}', ('k', tb, j))
            kb[(tb, j)] = b
        def vread(tb, j):
            b = VBUF + 8*(cnt['v'] % 3); cnt['v'] += 1
            for s in range(2):
                lg.issue(f'ds_read_b64_tr_b16 a[{b+4*s}:{b+4*s+1}], v{VV[tb]} offset:{j*256 + s*128}', ('v', tb, j))
                lg.issue(f'ds_read_b64_tr_b16 a[{b+4*s+2}:{b+4*s+3}], v{VV[tb]} offset:{j*256 + s*128 + 64}', ('v', tb, j))
            vb[(tb, j)] = b
        def qk_items(tb, j, slot):
            Q = QF + 8*tb; d = Sreg(slot)
            c0 = f'v[{M0}:{M0+15}]' if j == 0 else (f'v[{M8}:{M8+15}]' if j == 8 else '0')
            def m0():
                lg.wait(('k', tb, j)); b = kb[(tb, j)]
                a(f'v_mfma_f32_32x32x16_bf16 v[{d}:{d+15}], a[{b}:{b+3}], v[{Q}:{Q+3}], {c0}')
            def m1():
                b = kb[(tb, j)]
                a(f'v_mfma_f32_32x32x16_bf16 v[{d}:{d+15}], a[{b+4}:{b+7}], v[{Q+4}:{Q+7}], v[{d}:{d+15}]')
            return [m0, m1]
        def pv_items(tb, j, slot, O, first):
            pb = PBUF + 8*(slot & 1)
            def mk(s):
                def f():
                    if s == 0: lg.wait(('v', tb, j))
                    v = vb[(tb, j)]
                    c0 = '0' if (first and s == 0) else f'a[{O}:{O+15}]'
                    a(f'v_mfma_f32_32x32x16_bf16 a[{O}:{O+15}], a[{v+4*s}:{v+4*s+3}], v[{pb+4*s}:{pb+4*s+3}], {c0}')
                return f
            return [mk(0), mk(1)]
        def interleave(valu, items, first=3):
            wts = [2 if t.startswith('v_exp') else 1 for t in valu]
            tot = sum(wts); n = len(items); k = 0; acc = 0
            for t, ww in zip(valu, wts):
                while k < n and acc >= first + k*(tot - first)/n:
                    items[k](); k += 1
                a(t); acc += ww
            while k < n:
                items[k](); k += 1
        def maxchain(slots):
            regs = [Sreg(s) + r for s in slots for r in range(16)]
            out = [f'v_max3_f32 v{20+c}, v{regs[c]}, v{regs[4+c]}, v{regs[8+c]}' for c in range(4)]
            idx = regs[12:]; k = 0
            while idx:
                c = 20 + (k % 4); k += 1
                if len(idx) >= 2:
                    x, y = idx.pop(0), idx.pop(0); out.append(f'v_max3_f32 v{c}, v{c}, v{x}, v{y}')
                else:
                    x = idx.pop(0); out.append(f'v_max_f32 v{c}, v{c}, v{x}')
            out += ['v_max3_f32 v20, v20, v21, v22', 'v_max_f32 v20, v20, v23', 'v_mov_b32 v21, v20', 'v_permlane32_swap_b32 v20, v21', 'v_max_f32 v20, v20, v21']
            return out
        def softmax_list(slot, nm):
            d = Sreg(slot); pb = PBUF + 8*(slot & 1)
            return ([f'v_pk_fma_f32 v[{d+r}:{d+r+1}], v[{d+r}:{d+r+1}], s[28:29], v[{nm}:{nm+1}]' for r in range(0, 16, 2)]
                    + [f'v_exp_f32 v{d+r}, v{d+r}' for r in range(16)] + [f'v_cvt_pk_bf16_f32 v{pb+i}, v{d+2*i}, v{d+2*i+1}' for i in range(8)])
        def stage(tiles, O, shadow, hooks, stage2):
            n = len(tiles)
            order = sorted(range(n), key=lambda s: (tiles[s][1] in (0, 8)) and bool(shadow))
            kread(*tiles[order[0]])
            items = []
            for i, s in enumerate(order):
                its = qk_items(tiles[s][0], tiles[s][1], s)
                def first(f=its[0], nx=(order[i+1] if i+1 < n else None)):
                    if nx is not None: kread(*tiles[nx])
                    f()
                items += [first, its[1]]
            nm_early = 2*sum(1 for s in order if not (tiles[s][1] in (0, 8)))
            if shadow:
                interleave(shadow, items[:nm_early], first=0)
                for it in items[nm_early:]: it()
            else:
                for it in items: it()
            vread(*tiles[0])
            for tb in range(2):
                slots = [s for s in range(n) if tiles[s][0] == tb]
                for t in maxchain(slots): a(t)
                if not stage2:
                    a(f'v_mov_b32 v{MRAW[tb]}, v20')
                else:
                    a(f'v_max_f32 v20, v20, v{MRAW[tb]}\nv_sub_f32 v21, v{MRAW[tb]}, v20\nv_mul_f32 v21, s28, v21\nv_exp_f32 v{FF[tb]}, v21')
                a(f'v_mul_f32 v{NM[tb]}, {hex(f2u(-cs))}, v20\nv_mov_b32 v{NM[tb]+1}, v{NM[tb]}')
            seen = set()
            for s in range(n + 1):
                items = []
                if s >= 1:
                    tb, j = tiles[s-1]
                    items = pv_items(tb, j, s-1, O[tb], tb not in seen); seen.add(tb)
                if s < n:
                    if s + 1 < n: vread(*tiles[s+1])
                    interleave(softmax_list(s, NM[tiles[s][0]]), items)
                    if s in hooks: hooks[s]()
                else:
                    for it in items: it()
        T1 = [(0, jj) for jj in range(8-w, 9)] + [(1, jj) for jj in range(w+1, 9)]
        T2 = [(0, jj) for jj in range(0, 8-w)] + [(1, jj) for jj in range(0, w+1)]
        assert len(T1) == 9 and len(T2) == 9
        nbg_early = (8 if (use_bg and w >= 1 and OPT.get('bg_early', 1)) else 0)
        def publish():
            a(f's_waitcnt vmcnt({nbg_early})\ns_barrier')
            if w == 0:
                a(f's_lshl_b32 s19, s12, 7\ns_add_u32 s19, s19, {FL_KV}\ns_lshl_b32 s20, s13, 2\ns_add_u32 s20, s20, s19\nv_mov_b32 v221, s20\nv_mov_b32 v222, 1')
                a('s_mov_b64 exec, 1\nglobal_store_dword v221, v222, s[4:5] sc1\ns_mov_b64 exec, -1')
                a('s_cmp_eq_u32 s12, 0\ns_cselect_b32 s21, 0, 128\ns_sub_u32 s20, s20, s21')
                a('v_and_b32 v221, 31, v2\nv_lshlrev_b32 v221, 2, v221\nv_add_u32 v221, s19, v221\nv_mov_b32 v222, s20\nv_cmp_lt_u32 vcc, 31, v2\nv_cndmask_b32 v221, v221, v222, vcc')
        def probe():
            if w == 0:
                if OPT.get('lnk0', 1):
                    a(f's_lshl_b32 s19, s12, 7\ns_add_u32 s19, s19, {FL_XT}\nv_and_b32 v223, 31, v2\nv_lshlrev_b32 v223, 2, v223\nv_add_u32 v223, s19, v223')
                    a('global_load_dword v23, v223, s[4:5] sc1')
                a('global_load_dword v222, v221, s[4:5] sc1')
        def fetch():
            if w == 0:
                L = a.newlabel('AT_P'); Lo = a.newlabel('AT_PX')
                a(f's_mov_b32 s18, {K.SPIN}\ns_waitcnt vmcnt(0)\nv_cmp_eq_u32 vcc, 0, v222\ns_cbranch_vccz {Lo}')
                a('global_load_dword v20, v221, s[4:5] sc1\ns_sleep 2\nglobal_load_dword v21, v221, s[4:5] sc1\ns_sleep 2')
                a.label(L)
                a('global_load_dword v22, v221, s[4:5] sc1\ns_waitcnt vmcnt(2)\nv_cmp_eq_u32 vcc, 0, v20')
                a(f's_cbranch_vccz {Lo}')
                a('global_load_dword v20, v221, s[4:5] sc1\ns_waitcnt vmcnt(2)\nv_cmp_eq_u32 vcc, 0, v21')
                a(f's_cbranch_vccz {Lo}')
                a('global_load_dword v21, v221, s[4:5] sc1\ns_waitcnt vmcnt(2)\nv_cmp_eq_u32 vcc, 0, v22')
                a(f's_cbranch_vccz {Lo}')
                a(f's_sub_u32 s18, s18, 1\ns_cmp_lg_u32 s18, 0\ns_cbranch_scc1 {L}')
                a.label(Lo)
            if w == 0 and OPT.get('lnk0', 1):
                L2 = a.newlabel('AT_X'); L2o = a.newlabel('AT_XO')
                a(f's_waitcnt vmcnt(0)\ns_mov_b32 s18, {K.SPIN}')
                a.label(L2)
                a(f'v_cmp_eq_u32 vcc, 0, v23\ns_cbranch_vccz {L2o}\ns_sub_u32 s18, s18, 1\ns_cmp_eq_u32 s18, 0\ns_cbranch_scc1 {L2o}')
                a(f'global_load_dword v23, v223, s[4:5] sc1\ns_waitcnt vmcnt(0)\ns_branch {L2}')
                a.label(L2o)
                a('v_cmp_ne_u32 vcc, s15, v23\ns_cmp_eq_u64 vcc, 0\ns_cselect_b32 s14, 1, 0')
                a(f'v_mov_b32 v20, {K.LFAST2}\nv_mov_b32 v21, s14\nds_write_b32 v20, v21\ns_waitcnt lgkmcnt(0)')
            a('s_barrier')
            Ls = a.newlabel('AT_NH')
            a(f's_cmp_eq_u32 s12, 0\ns_cbranch_scc1 {Ls}')
            a(f's_sub_u32 s22, s24, {KVH_STRIDE - 5*w*1024}')
            for q in range(5):
                ii = 5*w + q; piece, half = ii >> 1, ii & 1
                dst = (LK + piece*4096 if piece < 5 else LV + (piece-5)*4128) + half*1024
                a(f's_mov_b32 m0, {dst}')
                if q: a('s_add_u32 s22, s22, 1024')
                a('buffer_load_dwordx4 v3, s[8:11], s22 offen sc1 lds')
            a.label(Ls)
        def branchy(tg, td):
            Ld = a.newlabel('BS_D'); Le = a.newlabel('BS_E')
            return f's_cmp_ge_u32 s2, 160\ns_cbranch_scc1 {Ld}\n' + tg + f'\ns_branch {Le}\n{Ld}:\n' + td + f'\n{Le}:'
        def emit_text(t):
            for line in t.split('\n'):
                if line.endswith(':'): a.label(line[:-1])
                else: a(line)
        plan = K.bg_plan(w) if (use_bg and w >= 1) else []
        hooks = {}
        def add_hook(slot, fn):
            prev = hooks.get(slot)
            hooks[slot] = (lambda: (prev(), fn())) if prev else fn
        add_hook(OPT.get('at_pub', 1), publish)
        if not OPT.get('bg_early', 1):
            for k, (g_, d_) in enumerate(plan):
                add_hook(min(8, OPT.get('at_pub', 1) + (k*OPT.get('bg_spread', 4))//8), lambda k=k, g_=g_, d_=d_: emit_text(branchy(*K.bg_load(k, g_, d_))))
        else:
            for k, (g_, d_) in enumerate(plan): emit_text(branchy(*K.bg_load(k, g_, d_)))
        add_hook(OPT.get('at_probe', 6), probe)
        add_hook(OPT.get('at_fetch', 7), fetch)
        stage(T1, O1, list(mask_code), hooks, False)
        a('s_waitcnt vmcnt(0) lgkmcnt(0)\ns_barrier')
        if OPT.get('lnk0', 1): a(f'v_mov_b32 v20, {K.LFAST2}\nds_read_b32 v21, v20\ns_waitcnt lgkmcnt(0)\nv_readfirstlane_b32 s14, v21')
        if w == 0: a.raw('    ; MARK 5')
        a0 = a.lines; a.lines = []
        stage(T2, O2, None, {}, True)
        for tb in range(2):
            R = 240 + 6*tb; A = O1[tb]; B = O2[tb]; f = FF[tb]
            a(f'v_accvgpr_read_b32 v20, a{A+8}\nv_accvgpr_read_b32 v21, a{B+8}\nv_fma_f32 v20, v20, v{f}, v21\nv_mov_b32 v21, v20')
            a('v_permlane32_swap_b32 v20, v21\nv_rcp_f32 v21, v21')
            a(f'v_mul_f32 v{f}, v{f}, v21')
            for i in range(6):
                a(f'v_accvgpr_read_b32 v22, a{B+2*i}\nv_accvgpr_read_b32 v23, a{B+2*i+1}\nv_accvgpr_read_b32 v9, a{A+2*i}\nv_accvgpr_read_b32 v10, a{A+2*i+1}')
                a(f'v_mul_f32 v22, v22, v21\nv_mul_f32 v23, v23, v21\nv_fma_f32 v22, v9, v{f}, v22\nv_fma_f32 v23, v10, v{f}, v23\nv_cvt_pk_bf16_f32 v{R+i}, v22, v23')
        body = a.lines; a.lines = a0
        real = [i for i, l in enumerate(body) if l.startswith('    ') and not l.strip().startswith(';')]
        N = len(real)
        sched = []
        if OPT.get('noxf'):
            for k, t in enumerate(xres): sched.append((OPT.get('xres_f', 0.10) + 0.05*k, t))
        for k, (g_, d_) in enumerate(plan):
            sched.append((OPT.get('bg_s0', 0.02) + OPT.get('bg_sd', 0.04)*k, branchy(*K.bg_store(k, g_, d_))))
        for t in touches: sched.append((OPT.get('bg_t', 0.30), t))
        for k, t in enumerate(wo): sched.append((OPT.get('bg_w0', 0.03) + OPT.get('bg_wspan', 0.75)*k/len(wo), t))
        pos = {}
        for fr, t in sched: pos.setdefault(real[min(N-1, int(fr*N))], []).append(t)
        for i, l in enumerate(body):
            a.raw(l)
            for t in pos.get(i, []):
                for line in t.split('\n'):
                    if line.endswith(':'): a.label(line[:-1])
                    else: a(line)
        a(f's_branch {Lend}')
    for w in range(4):
        if w: a.label(labels[w])
        variant(w)
    a.label(Lend)
```

```python
import sys
sys.path.insert(0,'work')
from common import *
src = open('pE.s').read()
def probe(name, mb, write=False):
    a = Asm()
    a(f's_cmp_ge_u32 s2, 256\ns_cbranch_scc1 {name}_E')
    a(f's_load_dwordx2 s[4:5], s[0:1], {KA_WS}\ns_waitcnt lgkmcnt(0)')
    per = mb*1024*1024//256
    a(f's_mul_i32 s6, s2, {per}\ns_add_u32 s6, s6, 0x8000000\ns_add_u32 s4, s4, s6\ns_addc_u32 s5, s5, 0\nv_lshlrev_b32 v1, 4, v0')
    n = per//4096
    if n:
        a(f's_mov_b32 s8, {n}')
        a.label(f'{name}_L')
        a('global_store_dwordx4 v1, v[4:7], s[4:5]' if write else 'global_load_dwordx4 v[4:7], v1, s[4:5]')
        a(f'v_add_u32 v1, 4096, v1\ns_sub_u32 s8, s8, 1\ns_cmp_lg_u32 s8, 0\ns_cbranch_scc1 {name}_L')
        a('s_waitcnt vmcnt(0)')
    a.label(f'{name}_E'); a('s_endpgm')
    return dict(name=name, body=a.text(), grid=256, block=256, lds=0, vgpr=16, sgpr=16)
for tag, mb, wr in (('p0', 0, False), ('r32', 32, False), ('w32', 32, True), ('r8', 8, False)):
    k = probe('pr_kernel', mb, wr)
    body = fix_hazards(k['body'])
    s = src.replace("; @launch kernel=k0_kernel", "; @launch kernel=pr_kernel grid=(256,1,1) block=(256,1,1) lds=0\n; @launch kernel=k0_kernel", 1)
    s = s.replace(".text\n", ".text\n" + kernel_header('pr_kernel') + body + "\n", 1)
    s = s.replace('.section .rodata,"a"\n', '.section .rodata,"a"\n' + kernel_desc('pr_kernel', 16, 0, 16), 1)
    open(f'pr_{tag}.s', 'w').write(s)
```

```python
from common import *
import math

SPIN = 2000000
LH = 81920
LFAST = LH + 2560
LK = 114176
LV = LK + 24576
LONES = 159488
LFAST2 = 110592
NEG = -30000.0
KP_O = WS_H1F
WS_H2F = WS_H1F
KP_X1 = WS_XF

def store2(a, text_fn):
    L1 = a.newlabel('ST_S'); L2 = a.newlabel('ST_E')
    a(f's_cmp_eq_u32 s14, 0\ns_cbranch_scc1 {L1}')
    text_fn('')
    a(f's_branch {L2}')
    a.label(L1)
    text_fn(' sc1')
    a.label(L2)

def poll(a, vaddr, cond_reg='v20', sbase='s[4:5]', n=1, spin=None, pipe=False):
    L = a.newlabel('POLL'); Lo = a.newlabel('POLLX')
    a(f's_mov_b32 s18, {spin or SPIN}')
    if pipe:
        a(f'global_load_dword v252, {vaddr}, {sbase} sc1\ns_nop 7\ns_nop 7\nglobal_load_dword v253, {vaddr}, {sbase} sc1\ns_nop 7\ns_nop 7')
        a.label(L)
        for x, y in ((254, 252), (252, 253), (253, 254)):
            a(f'global_load_dword v{x}, {vaddr}, {sbase} sc1\ns_waitcnt vmcnt(2)\nv_cmp_eq_u32 vcc, 0, v{y}\ns_cbranch_vccz {Lo}')
        a(f's_sub_u32 s18, s18, 1\ns_cmp_lg_u32 s18, 0\ns_cbranch_scc1 {L}')
        a.label(Lo)
        return
    a.label(L)
    a(f's_sub_u32 s18, s18, 1\ns_cmp_eq_u32 s18, 0\ns_cbranch_scc1 {Lo}')
    a(f'global_load_dword {cond_reg}, {vaddr}, {sbase} sc1')
    a('s_waitcnt vmcnt(0)')
    a(f'v_cmp_eq_u32 vcc, 0, {cond_reg}')
    a(f's_cbranch_vccnz {L}')
    a.label(Lo)

def poll_bg(a):
    L = a.newlabel('PBG'); Lo = a.newlabel('PBGX'); Ls = a.newlabel('PBGS')
    a(f's_cmp_lg_u32 s3, 1\ns_cbranch_scc1 {Ls}')
    a(f'v_add_u32 v18, {FL_BG}, v3\ns_mov_b32 s18, {SPIN}')
    a.label(L)
    a(f's_sub_u32 s18, s18, 1\ns_cmp_eq_u32 s18, 0\ns_cbranch_scc1 {Lo}')
    a('global_load_dwordx4 v[20:23], v18, s[4:5] sc1\ns_waitcnt vmcnt(0)')
    a('v_min_u32 v20, v20, v21\nv_min_u32 v22, v22, v23\nv_min_u32 v20, v20, v22\nv_cmp_eq_u32 vcc, 0, v20')
    a(f's_cbranch_vccnz {L}')
    a.label(Lo)
    a.label(Ls)

def gbar(a, flag, local=True, during=None, also_set=None):
    L = a.newlabel('GB'); Ld = a.newlabel('GBD')
    a('s_barrier')
    a(f's_cmp_lg_u32 s3, 0\ns_cbranch_scc1 {Ld if during else L}')
    a(f's_lshl_b32 s19, s12, 7\ns_add_u32 s19, s19, {flag}')
    a(f's_lshl_b32 s20, s13, 2\ns_add_u32 s20, s20, s19\nv_mov_b32 v18, s20\nv_mov_b32 v19, 1')
    a('s_mov_b64 exec, 1')
    if local: store2(a, lambda f: a(f'global_store_dword v18, v19, s[4:5]{f}'))
    else: a('global_store_dword v18, v19, s[4:5] sc1')
    if also_set is not None:
        a(f's_lshl_b32 s20, s2, 2\ns_add_u32 s20, s20, {also_set}\nv_mov_b32 v18, s20\nglobal_store_dword v18, v19, s[4:5] sc1')
    a('s_mov_b64 exec, -1')
    a('v_and_b32 v18, 31, v2\nv_lshlrev_b32 v18, 2, v18\nv_add_u32 v18, s19, v18')
    poll(a, 'v18', pipe=bool(OPT.get('pipepoll', 1)))
    if during:
        a(f's_branch {L}')
        a.label(Ld)
        during()
    a.label(L)
    a('s_barrier')

def fin_mod(a, base, nq_valid_exec=None):
    for e in range(4):
        a(f'v_add_f32 v{base+e}, v{base+e}, v{base+4+e}\nv_add_f32 v{base+8+e}, v{base+8+e}, v{base+12+e}\nv_add_f32 v{base+e}, v{base+e}, v{base+8+e}')

def round_pack(a, base, vone, out):
    a(f'v_cvt_pk_bf16_f32 v{out}, v{base}, v{base+1}\nv_cvt_pk_bf16_f32 v{out+1}, v{base+2}, v{base+3}')
    a(f'v_lshlrev_b32 v{base}, 16, v{out}\nv_and_b32 v{base+1}, 0xffff0000, v{out}\nv_lshlrev_b32 v{base+2}, 16, v{out+1}\nv_and_b32 v{base+3}, 0xffff0000, v{out+1}')
    for e in range(4): a(f'v_add_f32 v{base+e}, v{base+e}, v{vone}')
    a(f'v_cvt_pk_bf16_f32 v{out}, v{base}, v{base+1}\nv_cvt_pk_bf16_f32 v{out+1}, v{base+2}, v{base+3}')

def cperm_pos_bytes(a, vcol4, out, tmp):
    a(f'v_lshrrev_b32 v{out}, 2, v{vcol4}\nv_lshlrev_b32 v{out}, 5, v{out}')
    a(f'v_and_b32 v{tmp}, 1, v{vcol4}\nv_lshl_add_u32 v{out}, v{tmp}, 4, v{out}')
    a(f'v_bfe_u32 v{tmp}, v{vcol4}, 1, 1\nv_lshl_add_u32 v{out}, v{tmp}, 3, v{out}')

LHF = 81920
LFAST = LHF + 5120


def round4(a, base, vone):
    t = base + 4
    for rep in range(2):
        a(f'v_cvt_pk_bf16_f32 v{t}, v{base}, v{base+1}\nv_cvt_pk_bf16_f32 v{t+1}, v{base+2}, v{base+3}')
        a(f'v_lshlrev_b32 v{base}, 16, v{t}\nv_and_b32 v{base+1}, 0xffff0000, v{t}\nv_lshlrev_b32 v{base+2}, 16, v{t+1}\nv_and_b32 v{base+3}, 0xffff0000, v{t+1}')
        if rep == 0:
            for e in range(4): a(f'v_add_f32 v{base+e}, v{base+e}, v{vone}')

def bg_setup(a):
    a('s_lshl_b32 s30, s2, 1')
    a('v_lshrrev_b32 v14, 3, v2\nv_and_b32 v15, 7, v2')
    Ld = a.newlabel('BG_D'); Le = a.newlabel('BG_E')
    a(f's_cmp_ge_u32 s2, 160\ns_cbranch_scc1 {Ld}')
    a(f's_lshr_b32 s19, s30, 3\ns_mul_i32 s43, s19, 49152\ns_and_b32 s20, s30, 3\ns_mul_i32 s20, s20, 768\ns_add_u32 s43, s43, s20')
    a('s_bitcmp1_b32 s30, 2\ns_cselect_b32 s32, s38, s36\ns_cselect_b32 s33, s39, s37')
    a(f's_and_b32 s20, s30, 3\ns_mul_i32 s31, s20, {4*40*6144}\ns_mul_i32 s19, s19, 6144\ns_add_u32 s31, s31, s19\ns_bfe_u32 s19, s30, 0x10002\ns_mul_i32 s19, s19, 3072\ns_add_u32 s31, s31, s19\ns_add_u32 s31, s31, {WS_WGU}')
    a('v_mul_u32_u24 v8, 3072, v14\nv_lshl_add_u32 v8, v15, 4, v8')
    a('v_lshlrev_b32 v14, 6, v14\nv_and_b32 v11, 3, v15\nv_lshl_add_u32 v14, v11, 4, v14\nv_lshrrev_b32 v11, 2, v15')
    a(f'v_mul_u32_u24 v15, {40*6144 - 2048}, v11\nv_add_u32 v15, v15, v14\nv_lshl_add_u32 v14, v11, 10, v14')
    a(f's_branch {Le}')
    a.label(Ld)
    a(f's_sub_u32 s30, s30, 320\ns_lshr_b32 s19, s30, 1\ns_mul_i32 s43, s19, 20480')
    a('s_mov_b32 s32, s40\ns_mov_b32 s33, s41')
    a(f's_lshr_b32 s31, s30, 2\ns_mul_i32 s31, s31, 5120\ns_add_u32 s31, s31, {WS_WD}\ns_and_b32 s30, s19, 1')
    a('v_mul_u32_u24 v8, 1280, v14\nv_lshl_add_u32 v8, v15, 4, v8')
    a.label(Le)
    a('s_mov_b32 s34, 1966080\ns_mov_b32 s35, 0x20000')

def bg_plan(w):
    gu = [(i, rh, m) for i in range(2) for m in range(6) for rh in range(2)]
    dn = [(i, rh, m) for i in range(2) for m in range(5) for rh in range(2)]
    g = gu[w-1::3]; d = dn[w-1::3]
    return [(g[k], d[k] if k < len(d) else None) for k in range(8)]

def bg_load(k, gu, dn):
    i, rh, m = gu
    return (f's_add_u32 s19, s43, {i*768 + rh*8*3072}\nbuffer_load_dwordx4 a[{4*k}:{4*k+3}], v8, s[32:35], s19 offen offset:{128*m}',
            (f's_add_u32 s19, s43, {dn[0]*640 + dn[1]*8*1280}\nbuffer_load_dwordx4 a[{4*k}:{4*k+3}], v8, s[32:35], s19 offen offset:{128*dn[2]}' if dn
             else f'buffer_load_dwordx4 a[{4*k}:{4*k+3}], v8, s[32:35], s43 offen'))

def bg_store(k, gu, dn):
    i, rh, m = gu
    b = 2*m
    off = i*4*40*6144 + (b//3)*40*6144 + (b % 3)*1024 + rh*512
    tg = f's_add_u32 s23, s31, {off}\nbuffer_store_dwordx4 a[{4*k}:{4*k+3}], v{15 if (b % 3) == 2 else 14}, s[8:11], s23 offen sc1'
    if dn is None: return tg, 's_nop 0'
    i, rh, m = dn
    t = f'v_add_u32 v11, {8*m}, v15\nv_mul_u32_u24 v12, 6554, v11\nv_lshrrev_b32 v12, 16, v12\nv_mul_u32_u24 v8, 10, v12\nv_sub_u32 v11, v11, v8'
    t += f'\nv_mul_u32_u24 v12, {48*5}, v12\nv_lshlrev_b32 v12, 10, v12'
    t += f'\ns_lshl_b32 s19, s30, 11\ns_add_u32 s19, s19, {rh*512}\ns_lshl_b32 s23, s30, 9\ns_add_u32 s23, s23, {4096 + rh*256}'
    t += '\nv_cmp_lt_u32 s[20:21], 7, v11\nv_and_b32 v8, 3, v11\nv_lshlrev_b32 v8, 4, v8\nv_lshrrev_b32 v11, 2, v11\nv_lshlrev_b32 v11, 10, v11'
    t += '\nv_lshl_add_u32 v11, v14, 6, v11\nv_add_u32 v11, s19, v11\nv_add_u32 v12, v12, v8\nv_lshlrev_b32 v8, 5, v14\nv_add_u32 v8, s23, v8\nv_cndmask_b32_e64 v11, v11, v8, s[20:21]\nv_add_u32 v12, v12, v11'
    t += f'\ns_add_u32 s23, s31, {i*4*48*5120}\nbuffer_store_dwordx4 a[{4*k}:{4*k+3}], v12, s[8:11], s23 offen sc1'
    return tg, t

LSYNC = LFAST + 16
def lds_arrive(a, off):
    a(f'v_mov_b32 v18, {LSYNC + off}\nv_mov_b32 v19, 1\ns_mov_b64 exec, 1\nds_add_u32 v18, v19\ns_mov_b64 exec, -1')
def lds_spin(a, off, n):
    L = a.newlabel('LSP'); Lo = a.newlabel('LSPX')
    a(f'v_mov_b32 v18, {LSYNC + off}\ns_mov_b32 s18, {SPIN}')
    a.label(L)
    a(f's_sub_u32 s18, s18, 1\ns_cmp_eq_u32 s18, 0\ns_cbranch_scc1 {Lo}')
    a(f'ds_read_b32 v19, v18\ns_waitcnt lgkmcnt(0)\nv_readfirstlane_b32 s19, v19\ns_cmp_lt_u32 s19, {n}\ns_cbranch_scc1 {L}')
    a.label(Lo)

def phase_h(a):
    a(f'v_mov_b32 v18, {LSYNC}\nv_mov_b32 v20, 0\nv_mov_b32 v21, 0\nv_mov_b32 v22, 0\nv_mov_b32 v23, 0\nds_write_b128 v18, v[20:23]\ns_waitcnt lgkmcnt(0)\ns_barrier')
    Lw23 = a.newlabel('H_W23'); Lend = a.newlabel('H_END')
    a(f's_cmp_ge_u32 s3, 2\ns_cbranch_scc1 {Lw23}')
    a('s_setprio 3')
    a('v_lshrrev_b32 v5, 4, v2\nv_and_b32 v4, 15, v2')
    a('s_lshl_b32 s19, s12, 8\ns_lshl_b32 s20, s13, 3\ns_add_u32 s19, s19, s20\ns_lshl_b32 s20, s3, 2\ns_add_u32 s19, s19, s20')
    a('v_add_u32 v5, s19, v5')
    a('v_lshrrev_b32 v7, 1, v4\nv_and_b32 v8, 1, v4')
    a(f's_mul_i32 s21, s3, 2560\ns_add_u32 s21, s21, {WS_MODP}')
    for p in range(4):
        for r in range(3):
            a(f'buffer_load_dwordx4 v[{24+16*r+4*p}:{27+16*r+4*p}], v3, s[8:11], s21 offen offset:{r*1024}')
        if p < 3: a('s_add_u32 s21, s21, 15360')
    srd(a, 24, 16, 17, 0, ACT_BYTES)
    a('v_mul_u32_u24 v6, 1280, v5\nv_lshl_add_u32 v6, v7, 5, v6\nv_lshl_add_u32 v6, v8, 3, v6')
    for i in range(5):
        a(f'buffer_load_dwordx2 v[{192+4*i}:{193+4*i}], v6, s[24:27], 0 offen offset:{i*256}')
        a(f'buffer_load_dwordx2 v[{194+4*i}:{195+4*i}], v6, s[24:27], 0 offen offset:{i*256+16}')
    Lx = a.newlabel('H_XT'); Lx2 = a.newlabel('H_XT2')
    a('s_getreg_b32 s15, hwreg(HW_REG_XCC_ID, 0, 4)\ns_add_u32 s15, s15, 1')
    a(f's_cmp_lg_u32 s3, 1\ns_cbranch_scc1 {Lx}')
    a(f's_lshl_b32 s19, s12, 7\ns_lshl_b32 s20, s13, 2\ns_add_u32 s19, s19, s20\ns_add_u32 s19, s19, {FL_XT}')
    a('v_mov_b32 v18, s19\nv_mov_b32 v19, s15\ns_mov_b64 exec, 1')
    a('global_store_dword v18, v19, s[4:5] sc1')
    a('s_mov_b64 exec, -1')
    a('s_waitcnt vmcnt(11)')
    a(f's_branch {Lx2}')
    a.label(Lx)
    a('s_waitcnt vmcnt(10)')
    a.label(Lx2)
    a.raw('    ; MARK 0')
    a('v_lshrrev_b32 v14, 2, v2\nv_lshlrev_b32 v14, 6, v14\nv_and_b32 v15, 1, v2\nv_lshl_add_u32 v14, v15, 5, v14\nv_bfe_u32 v15, v2, 1, 1\nv_lshl_add_u32 v14, v15, 4, v14')
    a(f's_mul_i32 s20, s3, 2560\ns_add_u32 s20, s20, {LHF}\nv_add_u32 v14, s20, v14')
    a('s_cmp_eq_u32 s3, 1\ns_cselect_b32 s20, 1.0, 0\nv_mov_b32 v12, s20')
    for r in range(3):
        b = 24 + 16*r
        fin_mod(a, b); round4(a, b, 12)
        if r == 2: a('s_mov_b32 exec_hi, 0')
        a(f'ds_write_b128 v14, v[{b}:{b+3}] offset:{r*1024}')
        if r == 2: a('s_mov_b64 exec, -1')
    a('s_waitcnt lgkmcnt(0)')
    lds_arrive(a, 0)
    X = 192; F = 124
    a('s_waitcnt vmcnt(0)')
    a(f's_lshl_b32 s19, s12, 7\ns_add_u32 s19, s19, {FL_XT}\nv_and_b32 v22, 31, v2\nv_lshlrev_b32 v22, 2, v22\nv_add_u32 v22, s19, v22')
    a('global_load_dword v20, v22, s[4:5] sc1')
    for i in range(20):
        a(f'v_lshlrev_b32 v{F+2*i}, 16, v{X+i}\nv_and_b32 v{F+1+2*i}, 0xffff0000, v{X+i}')
    a(f'v_pk_add_f32 v[12:13], v[{F}:{F+1}], v[{F+2}:{F+3}]\nv_pk_add_f32 v[14:15], v[{F+4}:{F+5}], v[{F+6}:{F+7}]')
    for i in range(4, 20, 2):
        a(f'v_pk_add_f32 v[12:13], v[12:13], v[{F+2*i}:{F+2*i+1}]\nv_pk_add_f32 v[14:15], v[14:15], v[{F+2*i+2}:{F+2*i+3}]')
    a('v_pk_add_f32 v[12:13], v[12:13], v[14:15]\nv_add_f32 v12, v12, v13')
    for rot in (8, 4, 2, 1):
        a(f'v_add_f32_dpp v12, v12, v12 row_ror:{rot} row_mask:0xf bank_mask:0xf')
    a(f'v_mul_f32 v12, {hex(f2u(-1.0/640))}, v12\nv_mov_b32 v13, v12')
    for i in range(20): a(f'v_pk_add_f32 v[{F+2*i}:{F+2*i+1}], v[{F+2*i}:{F+2*i+1}], v[12:13]')
    a(f'v_pk_mul_f32 v[14:15], v[{F}:{F+1}], v[{F}:{F+1}]\nv_pk_mul_f32 v[16:17], v[{F+2}:{F+3}], v[{F+2}:{F+3}]')
    for i in range(2, 20, 2):
        a(f'v_pk_fma_f32 v[14:15], v[{F+2*i}:{F+2*i+1}], v[{F+2*i}:{F+2*i+1}], v[14:15]\nv_pk_fma_f32 v[16:17], v[{F+2*i+2}:{F+2*i+3}], v[{F+2*i+2}:{F+2*i+3}], v[16:17]')
    a('v_pk_add_f32 v[14:15], v[14:15], v[16:17]\nv_add_f32 v14, v14, v15')
    for rot in (8, 4, 2, 1):
        a(f'v_add_f32_dpp v14, v14, v14 row_ror:{rot} row_mask:0xf bank_mask:0xf')
    a(f'v_mov_b32 v15, {hex(f2u(1e-5))}\nv_fmac_f32 v15, {hex(f2u(1.0/640))}, v14\nv_rsq_f32 v14, v15')
    a('v_mov_b32 v15, v14')
    Lp = a.newlabel('H_XP'); Lpo = a.newlabel('H_XPO')
    a(f's_waitcnt vmcnt(0)\nv_cmp_eq_u32 vcc, 0, v20\ns_cbranch_vccz {Lpo}')
    poll(a, 'v22')
    a.label(Lpo)
    a('v_cmp_ne_u32 vcc, s15, v20\ns_cmp_eq_u64 vcc, 0\ns_cselect_b32 s14, 1, 0')
    a(f'v_mov_b32 v18, {LFAST}\nv_mov_b32 v19, s14\nds_write_b32 v18, v19')
    lds_spin(a, 0, 2)
    a(f'v_lshlrev_b32 v9, 5, v4\nv_add_u32 v9, {LHF}, v9')
    A1 = 24; SA = 64
    for i in range(5):
        for hh in range(2):
            a(f'ds_read_b128 v[{A1+8*i+4*hh}:{A1+8*i+4*hh+3}], v9 offset:{2560 + i*512 + 16*hh}')
            a(f'ds_read_b128 v[{SA+8*i+4*hh}:{SA+8*i+4*hh+3}], v9 offset:{i*512 + 16*hh}')
    for i in range(20): a(f'v_pk_mul_f32 v[{F+2*i}:{F+2*i+1}], v[{F+2*i}:{F+2*i+1}], v[14:15]')
    for i in range(5):
        a(f's_waitcnt lgkmcnt({min(15, 16 - 4*i)})')
        for k in range(4*i, 4*i+4):
            a(f'v_pk_fma_f32 v[{F+2*k}:{F+2*k+1}], v[{F+2*k}:{F+2*k+1}], v[{A1+2*k}:{A1+2*k+1}], v[{SA+2*k}:{SA+2*k+1}]')
            a(f'v_cvt_pk_bf16_f32 v{164+k}, v{F+2*k}, v{F+2*k+1}')
    a('v_and_b32 v10, 31, v5\nv_lshlrev_b32 v10, 4, v10\nv_lshl_add_u32 v10, v7, 10, v10\nv_lshl_add_u32 v10, v8, 9, v10')
    a('s_lshl_b32 s19, s12, 3\ns_lshr_b32 s20, s13, 2\ns_add_u32 s21, s19, s20\ns_mul_i32 s21, s21, 40960')
    def st(f):
        for i in range(5):
            a(f's_add_u32 s20, s21, {WS_H1F + i*8192}')
            a(f'buffer_store_dwordx4 v[{164+4*i}:{167+4*i}], v10, s[8:11], s20 offen{f}')
    store2(a, st)
    a('s_waitcnt vmcnt(0)')
    a.raw('    ; MARK 1')
    Lw1 = a.newlabel('H_W1'); Lst = a.newlabel('H_ST')
    a(f's_cmp_eq_u32 s3, 1\ns_cbranch_scc1 {Lw1}')
    lds_spin(a, 4, 1)
    a(f's_lshl_b32 s22, s12, 7\ns_add_u32 s22, s22, {FL_H}\ns_lshl_b32 s20, s13, 2\ns_add_u32 s20, s20, s22\nv_mov_b32 v18, s20\nv_mov_b32 v19, 1\ns_mov_b64 exec, 1')
    store2(a, lambda f: a(f'global_store_dword v18, v19, s[4:5]{f}'))
    a('s_mov_b64 exec, -1')
    a('v_and_b32 v18, 31, v2\nv_lshlrev_b32 v18, 2, v18\nv_add_u32 v18, s22, v18')
    poll(a, 'v18')
    a(f's_branch {Lst}')
    a.label(Lw1)
    lds_arrive(a, 4)
    a.label(Lst)
    def st2(f):
        for i in range(5):
            a(f's_add_u32 s20, s21, {WS_XF + i*8192}')
            a(f'buffer_store_dwordx4 v[{X+4*i}:{X+3+4*i}], v10, s[8:11], s20 offen{f}')
    if not OPT.get('noxf'): store2(a, st2)
    a(f's_branch {Lend}')
    a.label(Lw23)
    if OPT.get('tlbwarm'):
        a('v_lshlrev_b32 v9, 21, v2\ns_mov_b64 exec, 0x3ffffff')
        a('buffer_load_dword v255, v9, s[8:11], 0 offen')
        a('s_mov_b64 exec, 3')
        a('global_load_dword v255, v9, s[6:7]')
        a('s_mov_b64 exec, 1')
        for r in (36, 38, 40): a(f'global_load_dword v255, v9, s[{r}:{r+1}]')
        a('s_mov_b64 exec, -1')
    if OPT.get('h_touch', 1):
        a(f's_mul_i32 s20, s12, 327680\ns_mul_i32 s21, s13, 10240\ns_add_u32 s20, s20, s21\ns_sub_u32 s21, s3, 2\ns_mul_i32 s21, s21, 5120\ns_add_u32 s20, s20, s21\ns_add_u32 s20, s20, {WS_H1F}')
        touch(a, 8, 9, 255, 20, 40)
    if OPT.get('kv_touch'):
        a(f's_mul_i32 s20, s12, {KVH_STRIDE}\ns_mul_i32 s21, s13, 20480\ns_add_u32 s20, s20, s21\ns_sub_u32 s21, s3, 2\ns_mul_i32 s21, s21, 10240\ns_add_u32 s20, s20, s21\ns_add_u32 s20, s20, {WS_KVH}')
        touch(a, 8, 9, 255, 20, 80)
    a(f's_mul_i32 s20, s13, 81920\ns_sub_u32 s21, s3, 2\ns_lshl_b32 s21, s21, 12\ns_add_u32 s20, s20, s21\ns_add_u32 s20, s20, {WS_WQKV}')
    PB = OPT.get('a_preB', 10)
    for i in range(PB):
        a(f's_add_u32 m0, s21, {i*8192}')
        for q in range(4): a(f'buffer_load_dwordx4 v3, s[8:11], s20 offen offset:{q*1024} lds')
        if i < PB-1: a('s_add_u32 s20, s20, 8192')
    L3 = a.newlabel('H_T3')
    a(f's_cmp_eq_u32 s3, 3\ns_cbranch_scc0 {L3}')
    a('s_mul_i32 s20, s13, 20\ns_add_u32 s20, s20, 320\nv_add_u32 v10, s20, v2\nv_lshlrev_b32 v11, 4, v10')
    for p in range(4):
        a(f's_mov_b32 s20, {WS_MODP + p*15360}')
        a(f'buffer_load_dwordx4 v[{44+4*p}:{47+4*p}], v11, s[8:11], s20 offen')
    a.label(L3)
    a('s_waitcnt vmcnt(0)')
    L4 = a.newlabel('H_T4')
    a(f's_cmp_eq_u32 s3, 3\ns_cbranch_scc0 {L4}')
    fin_mod(a, 44)
    a('v_mul_u32_u24 v12, 410, v10\nv_lshrrev_b32 v12, 16, v12')
    a('v_mul_u32_u24 v13, 160, v12\nv_sub_u32 v13, v10, v13')
    cperm_pos_bytes(a, 13, 14, 15)
    a('v_mul_u32_u24 v15, 1280, v12\nv_add_u32 v14, v14, v15')
    a('v_cmp_eq_u32 vcc, 4, v12\nv_cndmask_b32_e64 v12, 0, 1.0, vcc')
    round_pack(a, 44, 12, 48)
    a(f's_lshl_b32 s20, s12, 13\ns_add_u32 s20, s20, {WS_MODF}')
    a('s_mov_b32 exec_lo, 0xfffff\ns_mov_b32 exec_hi, 0')
    a('buffer_store_dwordx2 v[48:49], v14, s[8:11], s20 offen sc1')
    a('s_mov_b64 exec, -1')
    a.label(L4)
    a.label(Lend)
    a.raw('    ; MARK 19')
    a('s_setprio 0')
    a('s_waitcnt lgkmcnt(0)\ns_barrier')
    a(f'v_mov_b32 v18, {LFAST}\nds_read_b32 v19, v18\ns_waitcnt lgkmcnt(0)\nv_readfirstlane_b32 s14, v19')
    a.raw('    ; MARK 2')


def phase_start(a):
    Lx = a.newlabel('S_XT')
    a('s_getreg_b32 s15, hwreg(HW_REG_XCC_ID, 0, 4)\ns_add_u32 s15, s15, 1')
    a(f's_cmp_lg_u32 s3, 1\ns_cbranch_scc1 {Lx}')
    a(f's_lshl_b32 s19, s12, 7\ns_lshl_b32 s20, s13, 2\ns_add_u32 s19, s19, s20\ns_add_u32 s19, s19, {FL_XT}')
    a('v_mov_b32 v18, s19\nv_mov_b32 v19, s15\ns_mov_b64 exec, 1')
    a('global_store_dword v18, v19, s[4:5] sc1')
    a('s_mov_b64 exec, -1')
    a.label(Lx)
    a('s_mul_i32 s20, s13, 20\ns_mul_i32 s21, s3, 5\ns_add_u32 s20, s20, s21\ns_add_u32 s20, s20, 320\nv_add_u32 v140, s20, v2\nv_lshlrev_b32 v141, 4, v140')
    for p in range(4):
        a(f's_mov_b32 s20, {WS_MODP + p*15360}')
        a(f'buffer_load_dwordx4 v[{144+4*p}:{147+4*p}], v141, s[8:11], s20 offen')
    a.raw('    ; MARK 2')

def modf_side():
    b = Asm()
    fin_mod(b, 144)
    b('v_mul_u32_u24 v142, 410, v140\nv_lshrrev_b32 v142, 16, v142')
    b('v_mul_u32_u24 v143, 160, v142\nv_sub_u32 v143, v140, v143')
    cperm_pos_bytes(b, 143, 160, 161)
    b('v_mul_u32_u24 v161, 1280, v142\nv_add_u32 v160, v160, v161')
    b('v_cmp_eq_u32 vcc, 4, v142\ns_nop 1\nv_cndmask_b32_e64 v142, 0, 1.0, vcc')
    round_pack(b, 144, 142, 148)
    b(f's_lshl_b32 s29, s12, 13\ns_add_u32 s29, s29, {WS_MODF}')
    out = [l.strip() for l in b.lines]
    out.append('s_mov_b64 exec, 31\nbuffer_store_dwordx2 v[148:149], v160, s[8:11], s29 offen sc1\ns_mov_b64 exec, -1')
    return out

ACC_A = 40
QF = 224
OPT = dict(a_pre=3, a_pace=2, a_ahead=5, a_sc=' sc1', a_preB=5, bg=0, lnk0=0, noxf=1, at_probe=5, at_fetch=6, k0st=' sc1')
def phase_a(a):
    vm = Vm(a)
    a('s_lshl_b32 s19, s12, 3\ns_add_u32 s20, s19, s3\ns_sub_u32 s21, 7, s3\ns_add_u32 s21, s19, s21')
    a(f's_mul_i32 s22, s20, 40960\ns_add_u32 s22, s22, {WS_H1F}\ns_mul_i32 s23, s21, 40960\ns_add_u32 s23, s23, {WS_H1F}')
    def opsA(c):
        ops = []
        for tb in range(2):
            ops.append((f's_add_u32 s{24+tb}, s{22+tb}, {c*4096}', False))
            for q in range(4):
                f = (2*(4*c + q) + tb) % 64
                ops.append((f'buffer_load_dwordx4 a[{4*f}:{4*f+3}], v3, s[8:11], s{24+tb} offen offset:{q*1024}{OPT["a_sc"]}', True))
        return ops
    a('v_add_u32 v5, 0x10000, v3')
    def read_frag(ks, ct, r):
        off = (ks*2 + ct)*1024
        return f'ds_read_b128 v[{r}:{r+3}], v{3 if off < 65536 else 5} offset:{off % 65536}'
    def mfmas(ks, ct, r, first):
        out = []
        for tb in range(2):
            d = ACC_A + (tb*2 + ct)*16; f = (2*ks + tb) % 64
            out.append(f'v_mfma_f32_32x32x16_bf16 v[{d}:{d+15}], v[{r}:{r+3}], a[{4*f}:{4*f+3}], ' + ('0' if first else f'v[{d}:{d+15}]'))
        return out
    PB = OPT.get('a_preB', 10)
    a(f's_mul_i32 s26, s13, 81920\ns_lshl_b32 s27, s3, 11\ns_add_u32 s26, s26, s27\ns_add_u32 s26, s26, {WS_WQKV}')
    def opsB(c):
        return [(f's_add_u32 m0, s27, {c*8192}', False), (f's_add_u32 s28, s26, {c*8192}', False),
                ('buffer_load_dwordx4 v3, s[8:11], s28 offen lds', True), ('buffer_load_dwordx4 v3, s[8:11], s28 offen offset:1024 lds', True)]
    side = None
    if OPT.get('lnk0', 1):
        side = ['s_nop 0']*4 + modf_side()
    gemm2(a, vm, 40, 4, 2, opsA, opsB, PB, read_frag, mfmas, 16, pd=2, pre=OPT['a_pre'], pace=OPT['a_pace'], ahead=OPT['a_ahead'], barriers=(PB < 10), side=side)
    a.raw('    ; MARK 3')
    a('v_and_b32 v6, 31, v2\nv_lshrrev_b32 v7, 5, v2')
    a(f'v_lshlrev_b32 v8, 4, v0\nv_add_u32 v8, {LK + 5*4096}, v8\nv_mov_b32 v12, 0\nv_mov_b32 v13, 0\nv_mov_b32 v14, 0\nv_mov_b32 v15, 0')
    Lb = a.newlabel('A_NB')
    a(f's_cmp_lg_u32 s12, 0\ns_cbranch_scc1 {Lb}')
    nb = f2u(NEG) >> 16
    a(f'v_mov_b32 v9, {nb}\nv_cmp_gt_u32 vcc, 128, v0\nv_cndmask_b32 v12, 0, v9, vcc\nv_mov_b32 v14, v12')
    a.label(Lb)
    a('ds_write_b128 v8, v[12:15]')
    a(f'v_mov_b32 v12, 0x3f803f80\nv_mov_b32 v13, 0x3f803f80\nv_mov_b32 v14, 0x3f803f80\nv_mov_b32 v15, 0x3f803f80')
    a(f'v_lshlrev_b32 v8, 4, v0\nv_add_u32 v8, {LONES}, v8\nds_write_b128 v8, v[12:15]')
    a('v_cmp_gt_u32 vcc, 16, v0\ns_and_saveexec_b64 s[26:27], vcc\nds_write_b128 v8, v[12:15] offset:4096\ns_mov_b64 exec, s[26:27]')
    Lz = a.newlabel('A_NZ')
    a(f's_cmp_lg_u32 s12, 0\ns_cbranch_scc1 {Lz}')
    a('v_mov_b32 v12, 0\nv_mov_b32 v13, 0\nv_mov_b32 v14, 0\nv_mov_b32 v15, 0')
    a(f'v_and_b32 v8, 127, v0\nv_lshlrev_b32 v8, 4, v8\nv_lshrrev_b32 v9, 7, v0')
    a(f'v_mul_u32_u24 v10, 4096, v9\nv_add_u32 v10, v10, v8\nv_add_u32 v10, {LK}, v10')
    for gg in (0, 2): a(f'ds_write_b128 v10, v[12:15] offset:{gg*4096}')
    a(f'v_mul_u32_u24 v11, 4128, v9\nv_add_u32 v11, v11, v8\nv_add_u32 v11, {LV}, v11')
    for gg in (0, 2): a(f'ds_write_b128 v11, v[12:15] offset:{gg*4128}')
    a(f'v_cmp_gt_u32 vcc, 128, v0\ns_and_saveexec_b64 s[26:27], vcc\nds_write_b128 v10, v[12:15] offset:{4*4096}\nds_write_b128 v11, v[12:15] offset:{4*4128}\ns_mov_b64 exec, s[26:27]')
    a.label(Lz)
    a(f'v_mul_u32_u24 v8, 4096, v7\nv_add_u32 v8, {LK}, v8\nv_mul_u32_u24 v9, 4128, v7\nv_add_u32 v9, {LV}, v9')
    a(f'v_mov_b32 v10, {LK + 4*4096}\nv_mov_b32 v11, {LV + 4*4128}\nv_cmp_eq_u32 vcc, 1, v7\nv_cndmask_b32 v10, v10, v11, vcc')
    a(f's_mul_i32 s24, s12, {KVH_STRIDE}\ns_mul_i32 s25, s13, 20480\ns_add_u32 s24, s24, s25\ns_add_u32 s24, s24, {WS_KVH}')
    a('v_lshlrev_b32 v11, 11, v7')
    a(f'v_mov_b32 v12, {4*2048}\nv_mov_b32 v13, {9*2048}\nv_cndmask_b32 v12, v12, v13, vcc')
    for tb in range(2):
        a(f's_sub_u32 s25, s{20+tb}, s19\ns_lshl_b32 s25, s25, 5\nv_add_u32 v14, s25, v6\nv_lshlrev_b32 v14, 3, v14')
        a('v_mov_b32 v15, v14')
        a('v_add_u32 v14, 2048, v14')
        P = 120 + 10*tb
        quads = [(0, 0), (0, 1), (0, 2), (0, 3), (1, 0)]
        for i, (ct, q) in enumerate(quads):
            d = ACC_A + (tb*2 + ct)*16 + 4*q
            a(f'v_cvt_pk_bf16_f32 v{P+2*i}, v{d}, v{d+1}\nv_cvt_pk_bf16_f32 v{P+2*i+1}, v{d+2}, v{d+3}')
        a(f'v_add_u32 v21, v8, v14\nds_write_b64 v21, v[{P}:{P+1}]\nds_write_b64 v21, v[{P+2}:{P+3}] offset:8192')
        a(f'v_add_u32 v22, v10, v14\nds_write_b64 v22, v[{P+4}:{P+5}]')
        a(f'v_add_u32 v23, v9, v14\nds_write_b64 v23, v[{P+6}:{P+7}]\nds_write_b64 v23, v[{P+8}:{P+9}] offset:{2*4128}')
        Ls = a.newlabel('A_NS')
        a(f's_cmp_eq_u32 s12, 7\ns_cbranch_scc1 {Ls}')
        a('v_add_u32 v21, v11, v15\nv_add_u32 v22, v12, v15')
        a(f'buffer_store_dwordx2 v[{P}:{P+1}], v21, s[8:11], s24 offen sc1')
        a(f's_add_u32 s25, s24, {2*2048}\nbuffer_store_dwordx2 v[{P+2}:{P+3}], v21, s[8:11], s25 offen sc1')
        a(f'buffer_store_dwordx2 v[{P+4}:{P+5}], v22, s[8:11], s24 offen sc1')
        a(f's_add_u32 s25, s24, {5*2048}\nbuffer_store_dwordx2 v[{P+6}:{P+7}], v21, s[8:11], s25 offen sc1')
        a(f's_add_u32 s25, s24, {7*2048}\nbuffer_store_dwordx2 v[{P+8}:{P+9}], v21, s[8:11], s25 offen sc1')
        a.label(Ls)
        Q = QF + 8*tb
        for i, q in enumerate((1, 2, 3)):
            d = ACC_A + (tb*2 + 1)*16 + 4*q
            a(f'v_cvt_pk_bf16_f32 v{Q+2*i}, v{d}, v{d+1}\nv_cvt_pk_bf16_f32 v{Q+2*i+1}, v{d+2}, v{d+3}')
        a(f'v_mov_b32 v21, 0x3f80\nv_cndmask_b32 v{Q+4}, v{Q+4}, v21, vcc\nv_cndmask_b32_e64 v{Q+5}, v{Q+5}, 0, vcc\nv_mov_b32 v{Q+6}, 0\nv_mov_b32 v{Q+7}, 0')
    a('s_waitcnt lgkmcnt(0)\ns_barrier')
    a.raw('    ; MARK 4')

def phase_b(a):
    import sys as _sys
    from kp_attn import attention
    attention(a, _sys.modules[__name__])
    a.raw('    ; MARK 6')
    a(f's_lshl_b32 s19, s12, 3\ns_add_u32 s20, s19, s3\ns_sub_u32 s21, 7, s3\ns_add_u32 s21, s21, s19\ns_mul_i32 s20, s20, 40960\ns_mul_i32 s21, s21, 40960')
    a(f's_lshl_b32 s22, s13, 10\ns_add_u32 s22, s22, {KP_O}')
    a(f's_lshr_b32 s23, s13, 2\ns_add_u32 s23, s23, 32\ns_lshl_b32 s23, s23, 10\ns_bfe_u32 s25, s13, 0x10001\ns_lshl_b32 s25, s25, 9\ns_add_u32 s23, s23, s25\ns_and_b32 s25, s13, 1\ns_lshl_b32 s25, s25, 3\ns_add_u32 s23, s23, s25\ns_add_u32 s23, s23, {KP_O}')
    def st(f):
        for tb in range(2):
            R = 240 + 6*tb
            a(f's_add_u32 s25, s{20+tb}, s22\nbuffer_store_dwordx4 v[{R}:{R+3}], v3, s[8:11], s25 offen{f}')
        a('s_mov_b32 exec_hi, 0')
        for tb in range(2):
            R = 240 + 6*tb
            a(f's_add_u32 s25, s{20+tb}, s23\nbuffer_store_dwordx2 v[{R+4}:{R+5}], v3, s[8:11], s25 offen{f}')
        a('s_mov_b64 exec, -1')
    store2(a, st)
    a('s_waitcnt vmcnt(0)')
    gbar(a, FL_O, also_set=FL_BG)
    a.raw('    ; MARK 7')

def kp_kernel(upto='E'):
    a = Asm()
    a('s_cmp_ge_u32 s2, 256\ns_cbranch_scc1 KP_END')
    a(f's_load_dwordx2 s[4:5], s[0:1], {KA_WS}')
    a(f's_load_dwordx2 s[6:7], s[0:1], {KA_OUT}')
    a(f's_load_dwordx2 s[16:17], s[0:1], {KA_X}')
    a(f's_load_dwordx4 s[36:39], s[0:1], {KA_WG}')
    ka40 = KA_X if OPT.get('noxf') else KA_WD
    a(f's_load_dwordx2 s[40:41], s[0:1], {ka40}')
    wave_id(a, 3, 1)
    a('v_and_b32 v2, 63, v0\nv_lshlrev_b32 v3, 4, v2')
    if OPT.get('perm_roles'): a('s_lshr_b32 s12, s2, 5\ns_and_b32 s13, s2, 31\ns_mov_b32 s14, 0')
    else: a('s_and_b32 s12, s2, 7\ns_lshr_b32 s13, s2, 3\ns_mov_b32 s14, 0')
    a('s_waitcnt lgkmcnt(0)')
    ws_rebase(a, 4)
    srd(a, 8, 4, 5, 0, WS_END)
    if OPT.get('lnk0', 1):
        OPT['a_preB'] = OPT.get('a_preB0', 0)
        phase_start(a)
    else: phase_h(a)
    if upto != 'H':
        phase_a(a)
        phase_b(a)
    if upto not in ('H', 'B'):
        from kp2 import phase_c, phase_d, phase_e
        phase_c(a)
        if upto != 'C':
            phase_d(a)
            if upto != 'D': phase_e(a)
    a.label('KP_END')
    a('s_endpgm')
    a.label('KP_CODE_END')
    return dict(name='kp_kernel', body=a.text(), grid=256, block=256, lds=163840, vgpr=256, agpr=256, sgpr=44, sgpr_real=96)
```

```python
from common import *
import math

SPIN = 2000000
LH = 81920
LFAST = LH + 2560
LK = 114176
LV = LK + 24576
LONES = 159488
LFAST2 = 110592
NEG = -30000.0
KP_O = WS_H1F
WS_H2F = WS_H1F
KP_X1 = WS_XF

def store2(a, text_fn):
    L1 = a.newlabel('ST_S'); L2 = a.newlabel('ST_E')
    a(f's_cmp_eq_u32 s14, 0\ns_cbranch_scc1 {L1}')
    text_fn('')
    a(f's_branch {L2}')
    a.label(L1)
    text_fn(' sc1')
    a.label(L2)

def poll(a, vaddr, cond_reg='v20', sbase='s[4:5]', n=1, spin=None, pipe=False):
    L = a.newlabel('POLL'); Lo = a.newlabel('POLLX')
    a(f's_mov_b32 s18, {spin or SPIN}')
    if pipe:
        a(f'global_load_dword v252, {vaddr}, {sbase} sc1\ns_nop 7\ns_nop 7\nglobal_load_dword v253, {vaddr}, {sbase} sc1\ns_nop 7\ns_nop 7')
        a.label(L)
        for x, y in ((254, 252), (252, 253), (253, 254)):
            a(f'global_load_dword v{x}, {vaddr}, {sbase} sc1\ns_waitcnt vmcnt(2)\nv_cmp_eq_u32 vcc, 0, v{y}\ns_cbranch_vccz {Lo}')
        a(f's_sub_u32 s18, s18, 1\ns_cmp_lg_u32 s18, 0\ns_cbranch_scc1 {L}')
        a.label(Lo)
        return
    a.label(L)
    a(f's_sub_u32 s18, s18, 1\ns_cmp_eq_u32 s18, 0\ns_cbranch_scc1 {Lo}')
    a(f'global_load_dword {cond_reg}, {vaddr}, {sbase} sc1')
    a('s_waitcnt vmcnt(0)')
    a(f'v_cmp_eq_u32 vcc, 0, {cond_reg}')
    a(f's_cbranch_vccnz {L}')
    a.label(Lo)

def poll_bg(a):
    L = a.newlabel('PBG'); Lo = a.newlabel('PBGX'); Ls = a.newlabel('PBGS')
    a(f's_cmp_lg_u32 s3, 1\ns_cbranch_scc1 {Ls}')
    a(f'v_add_u32 v18, {FL_BG}, v3\ns_mov_b32 s18, {SPIN}')
    a.label(L)
    a(f's_sub_u32 s18, s18, 1\ns_cmp_eq_u32 s18, 0\ns_cbranch_scc1 {Lo}')
    a('global_load_dwordx4 v[20:23], v18, s[4:5] sc1\ns_waitcnt vmcnt(0)')
    a('v_min_u32 v20, v20, v21\nv_min_u32 v22, v22, v23\nv_min_u32 v20, v20, v22\nv_cmp_eq_u32 vcc, 0, v20')
    a(f's_cbranch_vccnz {L}')
    a.label(Lo)
    a.label(Ls)

def gbar(a, flag, local=True, during=None, also_set=None):
    L = a.newlabel('GB'); Ld = a.newlabel('GBD')
    a('s_barrier')
    a(f's_cmp_lg_u32 s3, 0\ns_cbranch_scc1 {Ld if during else L}')
    a(f's_lshl_b32 s19, s12, 7\ns_add_u32 s19, s19, {flag}')
    a(f's_lshl_b32 s20, s13, 2\ns_add_u32 s20, s20, s19\nv_mov_b32 v18, s20\nv_mov_b32 v19, 1')
    a('s_mov_b64 exec, 1')
    if local: store2(a, lambda f: a(f'global_store_dword v18, v19, s[4:5]{f}'))
    else: a('global_store_dword v18, v19, s[4:5] sc1')
    if also_set is not None:
        a(f's_lshl_b32 s20, s2, 2\ns_add_u32 s20, s20, {also_set}\nv_mov_b32 v18, s20\nglobal_store_dword v18, v19, s[4:5] sc1')
    a('s_mov_b64 exec, -1')
    a('v_and_b32 v18, 31, v2\nv_lshlrev_b32 v18, 2, v18\nv_add_u32 v18, s19, v18')
    poll(a, 'v18', pipe=bool(OPT.get('pipepoll', 1)))
    if during:
        a(f's_branch {L}')
        a.label(Ld)
        during()
    a.label(L)
    a('s_barrier')

def fin_mod(a, base, nq_valid_exec=None):
    for e in range(4):
        a(f'v_add_f32 v{base+e}, v{base+e}, v{base+4+e}\nv_add_f32 v{base+8+e}, v{base+8+e}, v{base+12+e}\nv_add_f32 v{base+e}, v{base+e}, v{base+8+e}')

def round_pack(a, base, vone, out):
    a(f'v_cvt_pk_bf16_f32 v{out}, v{base}, v{base+1}\nv_cvt_pk_bf16_f32 v{out+1}, v{base+2}, v{base+3}')
    a(f'v_lshlrev_b32 v{base}, 16, v{out}\nv_and_b32 v{base+1}, 0xffff0000, v{out}\nv_lshlrev_b32 v{base+2}, 16, v{out+1}\nv_and_b32 v{base+3}, 0xffff0000, v{out+1}')
    for e in range(4): a(f'v_add_f32 v{base+e}, v{base+e}, v{vone}')
    a(f'v_cvt_pk_bf16_f32 v{out}, v{base}, v{base+1}\nv_cvt_pk_bf16_f32 v{out+1}, v{base+2}, v{base+3}')

def cperm_pos_bytes(a, vcol4, out, tmp):
    a(f'v_lshrrev_b32 v{out}, 2, v{vcol4}\nv_lshlrev_b32 v{out}, 5, v{out}')
    a(f'v_and_b32 v{tmp}, 1, v{vcol4}\nv_lshl_add_u32 v{out}, v{tmp}, 4, v{out}')
    a(f'v_bfe_u32 v{tmp}, v{vcol4}, 1, 1\nv_lshl_add_u32 v{out}, v{tmp}, 3, v{out}')

LHF = 81920
LFAST = LHF + 5120


def round4(a, base, vone):
    t = base + 4
    for rep in range(2):
        a(f'v_cvt_pk_bf16_f32 v{t}, v{base}, v{base+1}\nv_cvt_pk_bf16_f32 v{t+1}, v{base+2}, v{base+3}')
        a(f'v_lshlrev_b32 v{base}, 16, v{t}\nv_and_b32 v{base+1}, 0xffff0000, v{t}\nv_lshlrev_b32 v{base+2}, 16, v{t+1}\nv_and_b32 v{base+3}, 0xffff0000, v{t+1}')
        if rep == 0:
            for e in range(4): a(f'v_add_f32 v{base+e}, v{base+e}, v{vone}')

def bg_setup(a):
    a('s_lshl_b32 s30, s2, 1')
    a('v_lshrrev_b32 v14, 3, v2\nv_and_b32 v15, 7, v2')
    Ld = a.newlabel('BG_D'); Le = a.newlabel('BG_E')
    a(f's_cmp_ge_u32 s2, 160\ns_cbranch_scc1 {Ld}')
    a(f's_lshr_b32 s19, s30, 3\ns_mul_i32 s43, s19, 49152\ns_and_b32 s20, s30, 3\ns_mul_i32 s20, s20, 768\ns_add_u32 s43, s43, s20')
    a('s_bitcmp1_b32 s30, 2\ns_cselect_b32 s32, s38, s36\ns_cselect_b32 s33, s39, s37')
    a(f's_and_b32 s20, s30, 3\ns_mul_i32 s31, s20, {4*40*6144}\ns_mul_i32 s19, s19, 6144\ns_add_u32 s31, s31, s19\ns_bfe_u32 s19, s30, 0x10002\ns_mul_i32 s19, s19, 3072\ns_add_u32 s31, s31, s19\ns_add_u32 s31, s31, {WS_WGU}')
    a('v_mul_u32_u24 v8, 3072, v14\nv_lshl_add_u32 v8, v15, 4, v8')
    a('v_lshlrev_b32 v14, 6, v14\nv_and_b32 v11, 3, v15\nv_lshl_add_u32 v14, v11, 4, v14\nv_lshrrev_b32 v11, 2, v15')
    a(f'v_mul_u32_u24 v15, {40*6144 - 2048}, v11\nv_add_u32 v15, v15, v14\nv_lshl_add_u32 v14, v11, 10, v14')
    a(f's_branch {Le}')
    a.label(Ld)
    a(f's_sub_u32 s30, s30, 320\ns_lshr_b32 s19, s30, 1\ns_mul_i32 s43, s19, 20480')
    a('s_mov_b32 s32, s40\ns_mov_b32 s33, s41')
    a(f's_lshr_b32 s31, s30, 2\ns_mul_i32 s31, s31, 5120\ns_add_u32 s31, s31, {WS_WD}\ns_and_b32 s30, s19, 1')
    a('v_mul_u32_u24 v8, 1280, v14\nv_lshl_add_u32 v8, v15, 4, v8')
    a.label(Le)
    a('s_mov_b32 s34, 1966080\ns_mov_b32 s35, 0x20000')

def bg_plan(w):
    gu = [(i, rh, m) for i in range(2) for m in range(6) for rh in range(2)]
    dn = [(i, rh, m) for i in range(2) for m in range(5) for rh in range(2)]
    g = gu[w-1::3]; d = dn[w-1::3]
    return [(g[k], d[k] if k < len(d) else None) for k in range(8)]

def bg_load(k, gu, dn):
    i, rh, m = gu
    return (f's_add_u32 s19, s43, {i*768 + rh*8*3072}\nbuffer_load_dwordx4 a[{4*k}:{4*k+3}], v8, s[32:35], s19 offen offset:{128*m}',
            (f's_add_u32 s19, s43, {dn[0]*640 + dn[1]*8*1280}\nbuffer_load_dwordx4 a[{4*k}:{4*k+3}], v8, s[32:35], s19 offen offset:{128*dn[2]}' if dn
             else f'buffer_load_dwordx4 a[{4*k}:{4*k+3}], v8, s[32:35], s43 offen'))

def bg_store(k, gu, dn):
    i, rh, m = gu
    b = 2*m
    off = i*4*40*6144 + (b//3)*40*6144 + (b % 3)*1024 + rh*512
    tg = f's_add_u32 s23, s31, {off}\nbuffer_store_dwordx4 a[{4*k}:{4*k+3}], v{15 if (b % 3) == 2 else 14}, s[8:11], s23 offen sc1'
    if dn is None: return tg, 's_nop 0'
    i, rh, m = dn
    t = f'v_add_u32 v11, {8*m}, v15\nv_mul_u32_u24 v12, 6554, v11\nv_lshrrev_b32 v12, 16, v12\nv_mul_u32_u24 v8, 10, v12\nv_sub_u32 v11, v11, v8'
    t += f'\nv_mul_u32_u24 v12, {48*5}, v12\nv_lshlrev_b32 v12, 10, v12'
    t += f'\ns_lshl_b32 s19, s30, 11\ns_add_u32 s19, s19, {rh*512}\ns_lshl_b32 s23, s30, 9\ns_add_u32 s23, s23, {4096 + rh*256}'
    t += '\nv_cmp_lt_u32 s[20:21], 7, v11\nv_and_b32 v8, 3, v11\nv_lshlrev_b32 v8, 4, v8\nv_lshrrev_b32 v11, 2, v11\nv_lshlrev_b32 v11, 10, v11'
    t += '\nv_lshl_add_u32 v11, v14, 6, v11\nv_add_u32 v11, s19, v11\nv_add_u32 v12, v12, v8\nv_lshlrev_b32 v8, 5, v14\nv_add_u32 v8, s23, v8\nv_cndmask_b32_e64 v11, v11, v8, s[20:21]\nv_add_u32 v12, v12, v11'
    t += f'\ns_add_u32 s23, s31, {i*4*48*5120}\nbuffer_store_dwordx4 a[{4*k}:{4*k+3}], v12, s[8:11], s23 offen sc1'
    return tg, t

LSYNC = LFAST + 16
def lds_arrive(a, off):
    a(f'v_mov_b32 v18, {LSYNC + off}\nv_mov_b32 v19, 1\ns_mov_b64 exec, 1\nds_add_u32 v18, v19\ns_mov_b64 exec, -1')
def lds_spin(a, off, n):
    L = a.newlabel('LSP'); Lo = a.newlabel('LSPX')
    a(f'v_mov_b32 v18, {LSYNC + off}\ns_mov_b32 s18, {SPIN}')
    a.label(L)
    a(f's_sub_u32 s18, s18, 1\ns_cmp_eq_u32 s18, 0\ns_cbranch_scc1 {Lo}')
    a(f'ds_read_b32 v19, v18\ns_waitcnt lgkmcnt(0)\nv_readfirstlane_b32 s19, v19\ns_cmp_lt_u32 s19, {n}\ns_cbranch_scc1 {L}')
    a.label(Lo)

def phase_h(a):
    a(f'v_mov_b32 v18, {LSYNC}\nv_mov_b32 v20, 0\nv_mov_b32 v21, 0\nv_mov_b32 v22, 0\nv_mov_b32 v23, 0\nds_write_b128 v18, v[20:23]\ns_waitcnt lgkmcnt(0)\ns_barrier')
    Lw23 = a.newlabel('H_W23'); Lend = a.newlabel('H_END')
    a(f's_cmp_ge_u32 s3, 2\ns_cbranch_scc1 {Lw23}')
    a('s_setprio 3')
    a('v_lshrrev_b32 v5, 4, v2\nv_and_b32 v4, 15, v2')
    a('s_lshl_b32 s19, s12, 8\ns_lshl_b32 s20, s13, 3\ns_add_u32 s19, s19, s20\ns_lshl_b32 s20, s3, 2\ns_add_u32 s19, s19, s20')
    a('v_add_u32 v5, s19, v5')
    a('v_lshrrev_b32 v7, 1, v4\nv_and_b32 v8, 1, v4')
    a(f's_mul_i32 s21, s3, 2560\ns_add_u32 s21, s21, {WS_MODP}')
    for p in range(4):
        for r in range(3):
            a(f'buffer_load_dwordx4 v[{24+16*r+4*p}:{27+16*r+4*p}], v3, s[8:11], s21 offen offset:{r*1024}')
        if p < 3: a('s_add_u32 s21, s21, 15360')
    srd(a, 24, 16, 17, 0, ACT_BYTES)
    a('v_mul_u32_u24 v6, 1280, v5\nv_lshl_add_u32 v6, v7, 5, v6\nv_lshl_add_u32 v6, v8, 3, v6')
    for i in range(5):
        a(f'buffer_load_dwordx2 v[{192+4*i}:{193+4*i}], v6, s[24:27], 0 offen offset:{i*256}')
        a(f'buffer_load_dwordx2 v[{194+4*i}:{195+4*i}], v6, s[24:27], 0 offen offset:{i*256+16}')
    Lx = a.newlabel('H_XT'); Lx2 = a.newlabel('H_XT2')
    a('s_getreg_b32 s15, hwreg(HW_REG_XCC_ID, 0, 4)\ns_add_u32 s15, s15, 1')
    a(f's_cmp_lg_u32 s3, 1\ns_cbranch_scc1 {Lx}')
    a(f's_lshl_b32 s19, s12, 7\ns_lshl_b32 s20, s13, 2\ns_add_u32 s19, s19, s20\ns_add_u32 s19, s19, {FL_XT}')
    a('v_mov_b32 v18, s19\nv_mov_b32 v19, s15\ns_mov_b64 exec, 1')
    a('global_store_dword v18, v19, s[4:5] sc1')
    a('s_mov_b64 exec, -1')
    a('s_waitcnt vmcnt(11)')
    a(f's_branch {Lx2}')
    a.label(Lx)
    a('s_waitcnt vmcnt(10)')
    a.label(Lx2)
    a.raw('    ; MARK 0')
    a('v_lshrrev_b32 v14, 2, v2\nv_lshlrev_b32 v14, 6, v14\nv_and_b32 v15, 1, v2\nv_lshl_add_u32 v14, v15, 5, v14\nv_bfe_u32 v15, v2, 1, 1\nv_lshl_add_u32 v14, v15, 4, v14')
    a(f's_mul_i32 s20, s3, 2560\ns_add_u32 s20, s20, {LHF}\nv_add_u32 v14, s20, v14')
    a('s_cmp_eq_u32 s3, 1\ns_cselect_b32 s20, 1.0, 0\nv_mov_b32 v12, s20')
    for r in range(3):
        b = 24 + 16*r
        fin_mod(a, b); round4(a, b, 12)
        if r == 2: a('s_mov_b32 exec_hi, 0')
        a(f'ds_write_b128 v14, v[{b}:{b+3}] offset:{r*1024}')
        if r == 2: a('s_mov_b64 exec, -1')
    a('s_waitcnt lgkmcnt(0)')
    lds_arrive(a, 0)
    X = 192; F = 124
    a('s_waitcnt vmcnt(0)')
    a(f's_lshl_b32 s19, s12, 7\ns_add_u32 s19, s19, {FL_XT}\nv_and_b32 v22, 31, v2\nv_lshlrev_b32 v22, 2, v22\nv_add_u32 v22, s19, v22')
    a('global_load_dword v20, v22, s[4:5] sc1')
    for i in range(20):
        a(f'v_lshlrev_b32 v{F+2*i}, 16, v{X+i}\nv_and_b32 v{F+1+2*i}, 0xffff0000, v{X+i}')
    a(f'v_pk_add_f32 v[12:13], v[{F}:{F+1}], v[{F+2}:{F+3}]\nv_pk_add_f32 v[14:15], v[{F+4}:{F+5}], v[{F+6}:{F+7}]')
    for i in range(4, 20, 2):
        a(f'v_pk_add_f32 v[12:13], v[12:13], v[{F+2*i}:{F+2*i+1}]\nv_pk_add_f32 v[14:15], v[14:15], v[{F+2*i+2}:{F+2*i+3}]')
    a('v_pk_add_f32 v[12:13], v[12:13], v[14:15]\nv_add_f32 v12, v12, v13')
    for rot in (8, 4, 2, 1):
        a(f'v_add_f32_dpp v12, v12, v12 row_ror:{rot} row_mask:0xf bank_mask:0xf')
    a(f'v_mul_f32 v12, {hex(f2u(-1.0/640))}, v12\nv_mov_b32 v13, v12')
    for i in range(20): a(f'v_pk_add_f32 v[{F+2*i}:{F+2*i+1}], v[{F+2*i}:{F+2*i+1}], v[12:13]')
    a(f'v_pk_mul_f32 v[14:15], v[{F}:{F+1}], v[{F}:{F+1}]\nv_pk_mul_f32 v[16:17], v[{F+2}:{F+3}], v[{F+2}:{F+3}]')
    for i in range(2, 20, 2):
        a(f'v_pk_fma_f32 v[14:15], v[{F+2*i}:{F+2*i+1}], v[{F+2*i}:{F+2*i+1}], v[14:15]\nv_pk_fma_f32 v[16:17], v[{F+2*i+2}:{F+2*i+3}], v[{F+2*i+2}:{F+2*i+3}], v[16:17]')
    a('v_pk_add_f32 v[14:15], v[14:15], v[16:17]\nv_add_f32 v14, v14, v15')
    for rot in (8, 4, 2, 1):
        a(f'v_add_f32_dpp v14, v14, v14 row_ror:{rot} row_mask:0xf bank_mask:0xf')
    a(f'v_mov_b32 v15, {hex(f2u(1e-5))}\nv_fmac_f32 v15, {hex(f2u(1.0/640))}, v14\nv_rsq_f32 v14, v15')
    a('v_mov_b32 v15, v14')
    Lp = a.newlabel('H_XP'); Lpo = a.newlabel('H_XPO')
    a(f's_waitcnt vmcnt(0)\nv_cmp_eq_u32 vcc, 0, v20\ns_cbranch_vccz {Lpo}')
    poll(a, 'v22')
    a.label(Lpo)
    a('v_cmp_ne_u32 vcc, s15, v20\ns_cmp_eq_u64 vcc, 0\ns_cselect_b32 s14, 1, 0')
    a(f'v_mov_b32 v18, {LFAST}\nv_mov_b32 v19, s14\nds_write_b32 v18, v19')
    lds_spin(a, 0, 2)
    a(f'v_lshlrev_b32 v9, 5, v4\nv_add_u32 v9, {LHF}, v9')
    A1 = 24; SA = 64
    for i in range(5):
        for hh in range(2):
            a(f'ds_read_b128 v[{A1+8*i+4*hh}:{A1+8*i+4*hh+3}], v9 offset:{2560 + i*512 + 16*hh}')
            a(f'ds_read_b128 v[{SA+8*i+4*hh}:{SA+8*i+4*hh+3}], v9 offset:{i*512 + 16*hh}')
    for i in range(20): a(f'v_pk_mul_f32 v[{F+2*i}:{F+2*i+1}], v[{F+2*i}:{F+2*i+1}], v[14:15]')
    for i in range(5):
        a(f's_waitcnt lgkmcnt({min(15, 16 - 4*i)})')
        for k in range(4*i, 4*i+4):
            a(f'v_pk_fma_f32 v[{F+2*k}:{F+2*k+1}], v[{F+2*k}:{F+2*k+1}], v[{A1+2*k}:{A1+2*k+1}], v[{SA+2*k}:{SA+2*k+1}]')
            a(f'v_cvt_pk_bf16_f32 v{164+k}, v{F+2*k}, v{F+2*k+1}')
    a('v_and_b32 v10, 31, v5\nv_lshlrev_b32 v10, 4, v10\nv_lshl_add_u32 v10, v7, 10, v10\nv_lshl_add_u32 v10, v8, 9, v10')
    a('s_lshl_b32 s19, s12, 3\ns_lshr_b32 s20, s13, 2\ns_add_u32 s21, s19, s20\ns_mul_i32 s21, s21, 40960')
    def st(f):
        for i in range(5):
            a(f's_add_u32 s20, s21, {WS_H1F + i*8192}')
            a(f'buffer_store_dwordx4 v[{164+4*i}:{167+4*i}], v10, s[8:11], s20 offen{f}')
    store2(a, st)
    a('s_waitcnt vmcnt(0)')
    a.raw('    ; MARK 1')
    Lw1 = a.newlabel('H_W1'); Lst = a.newlabel('H_ST')
    a(f's_cmp_eq_u32 s3, 1\ns_cbranch_scc1 {Lw1}')
    lds_spin(a, 4, 1)
    a(f's_lshl_b32 s22, s12, 7\ns_add_u32 s22, s22, {FL_H}\ns_lshl_b32 s20, s13, 2\ns_add_u32 s20, s20, s22\nv_mov_b32 v18, s20\nv_mov_b32 v19, 1\ns_mov_b64 exec, 1')
    store2(a, lambda f: a(f'global_store_dword v18, v19, s[4:5]{f}'))
    a('s_mov_b64 exec, -1')
    a('v_and_b32 v18, 31, v2\nv_lshlrev_b32 v18, 2, v18\nv_add_u32 v18, s22, v18')
    poll(a, 'v18')
    a(f's_branch {Lst}')
    a.label(Lw1)
    lds_arrive(a, 4)
    a.label(Lst)
    def st2(f):
        for i in range(5):
            a(f's_add_u32 s20, s21, {WS_XF + i*8192}')
            a(f'buffer_store_dwordx4 v[{X+4*i}:{X+3+4*i}], v10, s[8:11], s20 offen{f}')
    if not OPT.get('noxf'): store2(a, st2)
    a(f's_branch {Lend}')
    a.label(Lw23)
    if OPT.get('tlbwarm'):
        a('v_lshlrev_b32 v9, 21, v2\ns_mov_b64 exec, 0x3ffffff')
        a('buffer_load_dword v255, v9, s[8:11], 0 offen')
        a('s_mov_b64 exec, 3')
        a('global_load_dword v255, v9, s[6:7]')
        a('s_mov_b64 exec, 1')
        for r in (36, 38, 40): a(f'global_load_dword v255, v9, s[{r}:{r+1}]')
        a('s_mov_b64 exec, -1')
    if OPT.get('h_touch', 1):
        a(f's_mul_i32 s20, s12, 327680\ns_mul_i32 s21, s13, 10240\ns_add_u32 s20, s20, s21\ns_sub_u32 s21, s3, 2\ns_mul_i32 s21, s21, 5120\ns_add_u32 s20, s20, s21\ns_add_u32 s20, s20, {WS_H1F}')
        touch(a, 8, 9, 255, 20, 40)
    if OPT.get('kv_touch'):
        a(f's_mul_i32 s20, s12, {KVH_STRIDE}\ns_mul_i32 s21, s13, 20480\ns_add_u32 s20, s20, s21\ns_sub_u32 s21, s3, 2\ns_mul_i32 s21, s21, 10240\ns_add_u32 s20, s20, s21\ns_add_u32 s20, s20, {WS_KVH}')
        touch(a, 8, 9, 255, 20, 80)
    a(f's_mul_i32 s20, s13, 81920\ns_sub_u32 s21, s3, 2\ns_lshl_b32 s21, s21, 12\ns_add_u32 s20, s20, s21\ns_add_u32 s20, s20, {WS_WQKV}')
    PB = OPT.get('a_preB', 10)
    for i in range(PB):
        a(f's_add_u32 m0, s21, {i*8192}')
        for q in range(4): a(f'buffer_load_dwordx4 v3, s[8:11], s20 offen offset:{q*1024} lds')
        if i < PB-1: a('s_add_u32 s20, s20, 8192')
    L3 = a.newlabel('H_T3')
    a(f's_cmp_eq_u32 s3, 3\ns_cbranch_scc0 {L3}')
    a('s_mul_i32 s20, s13, 20\ns_add_u32 s20, s20, 320\nv_add_u32 v10, s20, v2\nv_lshlrev_b32 v11, 4, v10')
    for p in range(4):
        a(f's_mov_b32 s20, {WS_MODP + p*15360}')
        a(f'buffer_load_dwordx4 v[{44+4*p}:{47+4*p}], v11, s[8:11], s20 offen')
    a.label(L3)
    a('s_waitcnt vmcnt(0)')
    L4 = a.newlabel('H_T4')
    a(f's_cmp_eq_u32 s3, 3\ns_cbranch_scc0 {L4}')
    fin_mod(a, 44)
    a('v_mul_u32_u24 v12, 410, v10\nv_lshrrev_b32 v12, 16, v12')
    a('v_mul_u32_u24 v13, 160, v12\nv_sub_u32 v13, v10, v13')
    cperm_pos_bytes(a, 13, 14, 15)
    a('v_mul_u32_u24 v15, 1280, v12\nv_add_u32 v14, v14, v15')
    a('v_cmp_eq_u32 vcc, 4, v12\nv_cndmask_b32_e64 v12, 0, 1.0, vcc')
    round_pack(a, 44, 12, 48)
    a(f's_lshl_b32 s20, s12, 13\ns_add_u32 s20, s20, {WS_MODF}')
    a('s_mov_b32 exec_lo, 0xfffff\ns_mov_b32 exec_hi, 0')
    a('buffer_store_dwordx2 v[48:49], v14, s[8:11], s20 offen sc1')
    a('s_mov_b64 exec, -1')
    a.label(L4)
    a.label(Lend)
    a.raw('    ; MARK 19')
    a('s_setprio 0')
    a('s_waitcnt lgkmcnt(0)\ns_barrier')
    a(f'v_mov_b32 v18, {LFAST}\nds_read_b32 v19, v18\ns_waitcnt lgkmcnt(0)\nv_readfirstlane_b32 s14, v19')
    a.raw('    ; MARK 2')


def phase_start(a):
    Lx = a.newlabel('S_XT')
    a('s_getreg_b32 s15, hwreg(HW_REG_XCC_ID, 0, 4)\ns_add_u32 s15, s15, 1')
    a(f's_cmp_lg_u32 s3, 1\ns_cbranch_scc1 {Lx}')
    a(f's_lshl_b32 s19, s12, 7\ns_lshl_b32 s20, s13, 2\ns_add_u32 s19, s19, s20\ns_add_u32 s19, s19, {FL_XT}')
    a('v_mov_b32 v18, s19\nv_mov_b32 v19, s15\ns_mov_b64 exec, 1')
    a('global_store_dword v18, v19, s[4:5] sc1')
    a('s_mov_b64 exec, -1')
    a.label(Lx)
    a('s_mul_i32 s20, s13, 20\ns_mul_i32 s21, s3, 5\ns_add_u32 s20, s20, s21\ns_add_u32 s20, s20, 320\nv_add_u32 v140, s20, v2\nv_lshlrev_b32 v141, 4, v140')
    for p in range(4):
        a(f's_mov_b32 s20, {WS_MODP + p*15360}')
        a(f'buffer_load_dwordx4 v[{144+4*p}:{147+4*p}], v141, s[8:11], s20 offen')
    a.raw('    ; MARK 2')


def a_side():
    b = Asm(); items = []
    def item():
        items.append('\n'.join(l.strip() for l in b.lines)); b.lines = []
    b('v_and_b32 v6, 31, v2\nv_lshrrev_b32 v7, 5, v2'); item()
    b(f'v_lshlrev_b32 v8, 4, v0\nv_add_u32 v8, {LK + 5*4096}, v8'); item()
    b('v_mov_b32 v12, 0\nv_mov_b32 v13, 0'); item()
    b('v_mov_b32 v14, 0\nv_mov_b32 v15, 0'); item()
    Lb = b.newlabel('A_NB')
    nb = f2u(NEG) >> 16
    b(f's_cmp_lg_u32 s12, 0\ns_cbranch_scc1 {Lb}\nv_mov_b32 v9, {nb}\nv_cmp_gt_u32 vcc, 128, v0\ns_nop 1\nv_cndmask_b32 v12, 0, v9, vcc\nv_mov_b32 v14, v12')
    b.label(Lb); b('ds_write_b128 v8, v[12:15]'); item()
    b('v_mov_b32 v12, 0x3f803f80\nv_mov_b32 v13, 0x3f803f80'); item()
    b('v_mov_b32 v14, 0x3f803f80\nv_mov_b32 v15, 0x3f803f80'); item()
    b(f'v_lshlrev_b32 v8, 4, v0\nv_add_u32 v8, {LONES}, v8'); item()
    b('ds_write_b128 v8, v[12:15]\ns_mov_b64 exec, 0xffff\ns_cmp_eq_u32 s3, 0\ns_cselect_b64 exec, exec, 0') if False else None
    b('ds_write_b128 v8, v[12:15]'); item()
    Lo = b.newlabel('A_NO')
    b(f's_cmp_lg_u32 s3, 0\ns_cbranch_scc1 {Lo}\ns_mov_b64 exec, 0xffff\nds_write_b128 v8, v[12:15] offset:4096\ns_mov_b64 exec, -1'); b.label(Lo); item()
    Lz = b.newlabel('A_NZ')
    b(f's_cmp_lg_u32 s12, 0\ns_cbranch_scc1 {Lz}')
    b('v_mov_b32 v12, 0\nv_mov_b32 v13, 0\nv_mov_b32 v14, 0\nv_mov_b32 v15, 0')
    b('v_and_b32 v8, 127, v0\nv_lshlrev_b32 v8, 4, v8\nv_lshrrev_b32 v9, 7, v0')
    b(f'v_mul_u32_u24 v10, 4096, v9\nv_add_u32 v10, v10, v8\nv_add_u32 v10, {LK}, v10')
    for gg in (0, 2): b(f'ds_write_b128 v10, v[12:15] offset:{gg*4096}')
    b(f'v_mul_u32_u24 v11, 4128, v9\nv_add_u32 v11, v11, v8\nv_add_u32 v11, {LV}, v11')
    for gg in (0, 2): b(f'ds_write_b128 v11, v[12:15] offset:{gg*4128}')
    Lz2 = b.newlabel('A_NZ2')
    b(f's_cmp_ge_u32 s3, 2\ns_cbranch_scc1 {Lz2}\nds_write_b128 v10, v[12:15] offset:{4*4096}\nds_write_b128 v11, v[12:15] offset:{4*4128}')
    b.label(Lz2); b.label(Lz); item()
    b(f'v_mul_u32_u24 v8, 4096, v7\nv_add_u32 v8, {LK}, v8'); item()
    b(f'v_mul_u32_u24 v9, 4128, v7\nv_add_u32 v9, {LV}, v9'); item()
    b(f'v_mov_b32 v10, {LK + 4*4096}\nv_mov_b32 v11, {LV + 4*4128}'); item()
    b('v_cmp_eq_u32 vcc, 1, v7'); item()
    b('v_cndmask_b32 v10, v10, v11, vcc'); item()
    b(f's_mul_i32 s31, s12, {KVH_STRIDE}\ns_mul_i32 s29, s13, 20480\ns_add_u32 s31, s31, s29\ns_add_u32 s31, s31, {WS_KVH}'); item()
    b(f'v_lshlrev_b32 v11, 11, v7\nv_mov_b32 v12, {4*2048}'); item()
    b(f'v_mov_b32 v13, {9*2048}'); item()
    b('v_cndmask_b32 v12, v12, v13, vcc'); item()
    for tb in range(2):
        b(f's_sub_u32 s29, s{20+tb}, s19\ns_lshl_b32 s29, s29, 5\nv_add_u32 v{14+tb}, s29, v6'); item()
        b(f'v_lshlrev_b32 v{14+tb}, 3, v{14+tb}'); item()
    return items

def modf_side():
    b = Asm()
    fin_mod(b, 144)
    b('v_mul_u32_u24 v142, 410, v140\nv_lshrrev_b32 v142, 16, v142')
    b('v_mul_u32_u24 v143, 160, v142\nv_sub_u32 v143, v140, v143')
    cperm_pos_bytes(b, 143, 160, 161)
    b('v_mul_u32_u24 v161, 1280, v142\nv_add_u32 v160, v160, v161')
    b('v_cmp_eq_u32 vcc, 4, v142\ns_nop 1\nv_cndmask_b32_e64 v142, 0, 1.0, vcc')
    round_pack(b, 144, 142, 148)
    b(f's_lshl_b32 s29, s12, 13\ns_add_u32 s29, s29, {WS_MODF}')
    out = [l.strip() for l in b.lines]
    out.append('s_mov_b64 exec, 31\nbuffer_store_dwordx2 v[148:149], v160, s[8:11], s29 offen sc1\ns_mov_b64 exec, -1')
    return out

ACC_A = 40
QF = 224
OPT = dict(a_pre=3, a_pace=2, a_ahead=5, a_sc=' sc1', a_preB=5, bg=0, lnk0=0, noxf=1, at_probe=5, at_fetch=6, k0st=' sc1')
def phase_a(a):
    vm = Vm(a)
    a('s_lshl_b32 s19, s12, 3\ns_add_u32 s20, s19, s3\ns_sub_u32 s21, 7, s3\ns_add_u32 s21, s19, s21')
    a(f's_mul_i32 s22, s20, 40960\ns_add_u32 s22, s22, {WS_H1F}\ns_mul_i32 s23, s21, 40960\ns_add_u32 s23, s23, {WS_H1F}')
    def opsA(c):
        ops = []
        for tb in range(2):
            ops.append((f's_add_u32 s{24+tb}, s{22+tb}, {c*4096}', False))
            for q in range(4):
                f = (2*(4*c + q) + tb) % 64
                ops.append((f'buffer_load_dwordx4 a[{4*f}:{4*f+3}], v3, s[8:11], s{24+tb} offen offset:{q*1024}{OPT["a_sc"]}', True))
        return ops
    a('v_add_u32 v5, 0x10000, v3')
    def read_frag(ks, ct, r):
        off = (ks*2 + ct)*1024
        return f'ds_read_b128 v[{r}:{r+3}], v{3 if off < 65536 else 5} offset:{off % 65536}'
    def mfmas(ks, ct, r, first):
        out = []
        for tb in range(2):
            d = ACC_A + (tb*2 + ct)*16; f = (2*ks + tb) % 64
            out.append(f'v_mfma_f32_32x32x16_bf16 v[{d}:{d+15}], v[{r}:{r+3}], a[{4*f}:{4*f+3}], ' + ('0' if first else f'v[{d}:{d+15}]'))
        return out
    PB = OPT.get('a_preB', 10)
    a(f's_mul_i32 s26, s13, 81920\ns_lshl_b32 s27, s3, 11\ns_add_u32 s26, s26, s27\ns_add_u32 s26, s26, {WS_WQKV}')
    def opsB(c):
        return [(f's_add_u32 m0, s27, {c*8192}', False), (f's_add_u32 s28, s26, {c*8192}', False),
                ('buffer_load_dwordx4 v3, s[8:11], s28 offen lds', True), ('buffer_load_dwordx4 v3, s[8:11], s28 offen offset:1024 lds', True)]
    side = ['s_nop 0']*8 + a_side()
    if OPT.get('lnk0', 1):
        side = side + modf_side()
    gemm2(a, vm, 40, 4, 2, opsA, opsB, PB, read_frag, mfmas, 16, pd=2, pre=OPT['a_pre'], pace=OPT['a_pace'], ahead=OPT['a_ahead'], barriers=(PB < 10), side=side)
    a.raw('    ; MARK 3')
    for tb in range(2):
        P = 120 + 10*tb
        quads = [(0, 0), (0, 1), (0, 2), (0, 3), (1, 0)]
        for i, (ct, q) in enumerate(quads):
            d = ACC_A + (tb*2 + ct)*16 + 4*q
            a(f'v_cvt_pk_bf16_f32 v{P+2*i}, v{d}, v{d+1}\nv_cvt_pk_bf16_f32 v{P+2*i+1}, v{d+2}, v{d+3}')
        Ls = a.newlabel('A_NS')
        tk = 14 + tb
        a(f's_cmp_eq_u32 s12, 7\ns_cbranch_scc1 {Ls}')
        a(f'v_add_u32 v21, v11, v{tk}\nv_add_u32 v22, v12, v{tk}')
        a(f'buffer_store_dwordx2 v[{P}:{P+1}], v21, s[8:11], s31 offen sc1')
        a(f's_add_u32 s25, s31, {2*2048}\nbuffer_store_dwordx2 v[{P+2}:{P+3}], v21, s[8:11], s25 offen sc1')
        a(f'buffer_store_dwordx2 v[{P+4}:{P+5}], v22, s[8:11], s31 offen sc1')
        a(f's_add_u32 s25, s31, {5*2048}\nbuffer_store_dwordx2 v[{P+6}:{P+7}], v21, s[8:11], s25 offen sc1')
        a(f's_add_u32 s25, s31, {7*2048}\nbuffer_store_dwordx2 v[{P+8}:{P+9}], v21, s[8:11], s25 offen sc1')
        a.label(Ls)
    a('s_mov_b32 s24, s31\nv_cmp_eq_u32 vcc, 1, v7')
    for tb in range(2):
        P = 120 + 10*tb; tk = 14 + tb
        a(f'v_add_u32 v20, 2048, v{tk}')
        a(f'v_add_u32 v21, v8, v20\nds_write_b64 v21, v[{P}:{P+1}]\nds_write_b64 v21, v[{P+2}:{P+3}] offset:8192')
        a(f'v_add_u32 v22, v10, v20\nds_write_b64 v22, v[{P+4}:{P+5}]')
        a(f'v_add_u32 v23, v9, v20\nds_write_b64 v23, v[{P+6}:{P+7}]\nds_write_b64 v23, v[{P+8}:{P+9}] offset:{2*4128}')
        Q = QF + 8*tb
        for i, q in enumerate((1, 2, 3)):
            d = ACC_A + (tb*2 + 1)*16 + 4*q
            a(f'v_cvt_pk_bf16_f32 v{Q+2*i}, v{d}, v{d+1}\nv_cvt_pk_bf16_f32 v{Q+2*i+1}, v{d+2}, v{d+3}')
        a(f'v_mov_b32 v21, 0x3f80\nv_cndmask_b32 v{Q+4}, v{Q+4}, v21, vcc\nv_cndmask_b32_e64 v{Q+5}, v{Q+5}, 0, vcc\nv_mov_b32 v{Q+6}, 0\nv_mov_b32 v{Q+7}, 0')
    a('s_waitcnt lgkmcnt(0)\ns_barrier')
    a.raw('    ; MARK 4')

def phase_b(a):
    import sys as _sys
    from kp_attn import attention
    attention(a, _sys.modules[__name__])
    a.raw('    ; MARK 6')
    a(f's_lshl_b32 s19, s12, 3\ns_add_u32 s20, s19, s3\ns_sub_u32 s21, 7, s3\ns_add_u32 s21, s21, s19\ns_mul_i32 s20, s20, 40960\ns_mul_i32 s21, s21, 40960')
    a(f's_lshl_b32 s22, s13, 10\ns_add_u32 s22, s22, {KP_O}')
    a(f's_lshr_b32 s23, s13, 2\ns_add_u32 s23, s23, 32\ns_lshl_b32 s23, s23, 10\ns_bfe_u32 s25, s13, 0x10001\ns_lshl_b32 s25, s25, 9\ns_add_u32 s23, s23, s25\ns_and_b32 s25, s13, 1\ns_lshl_b32 s25, s25, 3\ns_add_u32 s23, s23, s25\ns_add_u32 s23, s23, {KP_O}')
    def st(f):
        for tb in range(2):
            R = 240 + 6*tb
            a(f's_add_u32 s25, s{20+tb}, s22\nbuffer_store_dwordx4 v[{R}:{R+3}], v3, s[8:11], s25 offen{f}')
        a('s_mov_b32 exec_hi, 0')
        for tb in range(2):
            R = 240 + 6*tb
            a(f's_add_u32 s25, s{20+tb}, s23\nbuffer_store_dwordx2 v[{R+4}:{R+5}], v3, s[8:11], s25 offen{f}')
        a('s_mov_b64 exec, -1')
    store2(a, st)
    a('s_waitcnt vmcnt(0)')
    gbar(a, FL_O, also_set=FL_BG)
    a.raw('    ; MARK 7')

def kp_kernel(upto='E'):
    a = Asm()
    a('s_cmp_ge_u32 s2, 256\ns_cbranch_scc1 KP_END')
    a(f's_load_dwordx2 s[4:5], s[0:1], {KA_WS}')
    a(f's_load_dwordx2 s[6:7], s[0:1], {KA_OUT}')
    a(f's_load_dwordx2 s[16:17], s[0:1], {KA_X}')
    a(f's_load_dwordx4 s[36:39], s[0:1], {KA_WG}')
    ka40 = KA_X if OPT.get('noxf') else KA_WD
    a(f's_load_dwordx2 s[40:41], s[0:1], {ka40}')
    wave_id(a, 3, 1)
    a('v_and_b32 v2, 63, v0\nv_lshlrev_b32 v3, 4, v2')
    if OPT.get('perm_roles'): a('s_lshr_b32 s12, s2, 5\ns_and_b32 s13, s2, 31\ns_mov_b32 s14, 0')
    else: a('s_and_b32 s12, s2, 7\ns_lshr_b32 s13, s2, 3\ns_mov_b32 s14, 0')
    a('s_waitcnt lgkmcnt(0)')
    ws_rebase(a, 4)
    srd(a, 8, 4, 5, 0, WS_END)
    if OPT.get('lnk0', 1):
        OPT['a_preB'] = OPT.get('a_preB0', 0)
        phase_start(a)
    else: phase_h(a)
    if upto != 'H':
        phase_a(a)
        phase_b(a)
    if upto not in ('H', 'B'):
        from kp2 import phase_c, phase_d, phase_e
        phase_c(a)
        if upto != 'C':
            phase_d(a)
            if upto != 'D': phase_e(a)
    a.label('KP_END')
    a('s_endpgm')
    a.label('KP_CODE_END')
    return dict(name='kp_kernel', body=a.text(), grid=256, block=256, lds=163840, vgpr=256, agpr=256, sgpr=44, sgpr_real=96)
```

```python
from common import *
from kp import store2, gbar, poll, poll_bg, OPT, WS_H2F, KP_O, KP_X1

def BSC(): return ' sc1' if OPT.get('bg', 1) and OPT.get('b_sc1', 1) else ''
LX = 102400

def roles80(a):
    a('s_and_b32 s26, s3, 1\ns_lshr_b32 s27, s3, 1\ns_lshr_b32 s15, s13, 2')
    a('s_lshl_b32 s29, s12, 3\ns_and_b32 s19, s13, 3\ns_lshl_b32 s19, s19, 1\ns_add_u32 s29, s29, s19\ns_add_u32 s29, s29, s26')

def main80(a, vm, nks_total, ws_act, ws_w, nslot, preB, ACC, WB, barriers, pre, pace, ahead, tr=False):
    nks = nks_total//2; npair = nks//2; nchunk = nks//4
    half_bytes = nslot*10240
    a(f's_and_b32 s22, s29, 7\ns_mul_i32 s22, s22, {nks_total}\ns_mul_i32 s19, s27, {nks}\ns_add_u32 s22, s22, s19\ns_lshl_b32 s22, s22, 10')
    a(f's_add_u32 s19, s12, 7\ns_and_b32 s19, s19, 7\ns_mul_i32 s19, s19, {KVH_STRIDE}\ns_add_u32 s22, s22, s19\ns_add_u32 s22, s22, {ws_act}')
    a(f's_mul_i32 s23, s15, {2*npair}\ns_mul_i32 s19, s27, {npair}\ns_add_u32 s23, s23, s19\ns_add_u32 s23, s23, s26\ns_mul_i32 s23, s23, 5120\ns_add_u32 s23, s23, {ws_w}')
    a(f's_mul_i32 s30, s27, {half_bytes}\ns_mul_i32 s19, s26, 5120\ns_add_u32 s30, s30, s19')
    a(f's_mul_i32 s19, s27, {half_bytes}\nv_add_u32 v4, s19, v3')
    a('v_lshrrev_b32 v5, 5, v2\nv_lshlrev_b32 v5, 8, v5\nv_and_b32 v6, 15, v2\nv_lshl_add_u32 v5, v6, 4, v5\nv_add_u32 v5, s19, v5\nv_add_u32 v5, 4096, v5')
    def rot(c, mul, base, dst):
        return [(f's_add_u32 s33, s35, {c}', False), (f's_sub_u32 s21, s33, {nchunk}', False), (f's_cmp_ge_u32 s33, {nchunk}', False),
                ('s_cselect_b32 s33, s21, s33', False), (f's_mul_i32 s33, s33, {mul}', False), (f's_add_u32 s{dst}, s{base}, s33', False)]
    def opsB(c):
        slot = c % nslot
        if OPT.get('e_noB'): return [('s_nop 0', True)]
        ops = [(f's_add_u32 m0, s30, {slot*10240}', False)] + rot(c, 10240, 23, 24)
        for q in range(4): ops.append((f'buffer_load_dwordx4 v3, s[8:11], s24 offen offset:{q*1024}{BSC()} lds', True))
        ops += [(f's_add_u32 m0, s30, {slot*10240 + 4096}', False), (f's_add_u32 s24, s24, 4096', False)]
        ops.append((f'buffer_load_dwordx4 v3, s[8:11], s24 offen{BSC()} lds', True))
        return ops
    TA = OPT.get('e_ta', 0)
    if TA:
        a('s_and_b32 s19, s13, 3\ns_lshl_b32 s19, s19, 2\ns_add_u32 s19, s19, s3\ns_mul_i32 s19, s19, 10\ns_cmp_ge_u32 s19, 80\ns_cselect_b32 s20, 1, 0')
        a(f's_mul_i32 s21, s20, 80\ns_sub_u32 s19, s19, s21\ns_lshl_b32 s19, s19, 7\ns_mul_i32 s20, s20, {npair*5120}\ns_add_u32 s19, s19, s20\ns_mul_i32 s20, s15, {2*npair*5120}\ns_add_u32 s19, s19, s20\ns_add_u32 s34, s19, {ws_w}')
        a('v_lshlrev_b32 v9, 7, v2')
    def opsT(c):
        if not TA or c >= nchunk: return []
        return [(f's_add_u32 s20, s34, {c*10240}', False), ('s_mov_b64 exec, 0x3ff\nbuffer_load_dword v10, v9, s[8:11], s20 offen\ns_mov_b64 exec, -1', True)]
    def opsA(c):
        ops = sum((opsT(k) for k in range(preB, preB + TA)), []) if c == 0 else opsT(preB + TA - 1 + c)
        ops = ops + rot(c, 4096, 22, 25)
        if OPT.get('e_noA') and c >= 2: return [('s_nop 0', True)]
        for q in range(4):
            ks = 4*c + q
            ops.append((f'buffer_load_dwordx4 a[{4*ks}:{4*ks+3}], v3, s[8:11], s25 offen offset:{q*1024} sc1', True))
        return ops
    if tr:
        a('v_lshrrev_b32 v6, 5, v2\nv_lshlrev_b32 v6, 2, v6\nv_bfe_u32 v4, v2, 2, 2\nv_add_u32 v6, v6, v4\nv_and_b32 v4, 3, v2\nv_lshlrev_b32 v4, 3, v4')
        a('v_lshl_add_u32 v5, v6, 5, v4\nv_lshl_add_u32 v4, v6, 6, v4\nv_bfe_u32 v6, v2, 4, 1\nv_lshl_add_u32 v4, v6, 5, v4')
        a(f's_mul_i32 s19, s27, {half_bytes}\nv_add_u32 v4, s19, v4\nv_add_u32 v5, s19, v5\nv_add_u32 v5, 4096, v5')
    def read_frag(ks, ct, r):
        c = ks // 4; slot = c % nslot
        base = slot*10240 + ((ks >> 1) & 1)*5120
        if tr:
            if ct < 2:
                o = base + (ks & 1)*2048 + ct*1024
                return f'ds_read_b64_tr_b16 v[{r}:{r+1}], v4 offset:{o}\nds_read_b64_tr_b16 v[{r+2}:{r+3}], v4 offset:{o+512}'
            o = base + (ks & 1)*512
            return f'ds_read_b64_tr_b16 v[{r}:{r+1}], v5 offset:{o}\nds_read_b64_tr_b16 v[{r+2}:{r+3}], v5 offset:{o+256}'
        if ct < 2: return f'ds_read_b128 v[{r}:{r+3}], v4 offset:{base + (ks & 1)*2048 + ct*1024}'
        return f'ds_read_b128 v[{r}:{r+3}], v5 offset:{base + (ks & 1)*512}'
    def mfmas(ks, ct, r, first):
        d = ACC + 16*ct
        if OPT.get('e_nomfma'): return ['s_nop 0']
        return [f'v_mfma_f32_32x32x16_bf16 v[{d}:{d+15}], v[{r}:{r+3}], a[{4*ks}:{4*ks+3}], ' + ('0' if first else f'v[{d}:{d+15}]')]
    gemm2(a, vm, nks, 4, 3, opsA, opsB, preB, read_frag, mfmas, WB, pd=2, pre=pre, nslot=nslot, pace=pace, ahead=ahead, barriers=barriers, nlgkm=(2 if tr else 1))

def exchange80(a, ACC, T, region):
    def q(i): return ACC + 4*i
    L1 = a.newlabel('X_KH1'); L2 = a.newlabel('X_W')
    a(f's_mul_i32 s19, s3, 6144\ns_add_u32 s19, s19, {region}\nv_add_u32 v6, s19, v3')
    a(f's_cmp_eq_u32 s27, 1\ns_cbranch_scc1 {L1}')
    for i in range(6, 10): a(f'ds_write_b128 v6, v[{q(i)}:{q(i)+3}] offset:{(i-6)*1024}')
    a(f's_branch {L2}')
    a.label(L1)
    for i in range(6): a(f'ds_write_b128 v6, v[{q(i)}:{q(i)+3}] offset:{i*1024}')
    a.label(L2)
    a('s_waitcnt lgkmcnt(0)\ns_barrier')
    a(f's_xor_b32 s19, s3, 2\ns_mul_i32 s19, s19, 6144\ns_add_u32 s19, s19, {region}\nv_add_u32 v6, s19, v3')
    L3 = a.newlabel('X_R1'); L4 = a.newlabel('X_RD')
    a(f's_cmp_eq_u32 s27, 1\ns_cbranch_scc1 {L3}')
    for i in range(6): a(f'ds_read_b128 v[{T+4*i}:{T+4*i+3}], v6 offset:{i*1024}')
    for i in range(6):
        a(f's_waitcnt lgkmcnt({5-i})')
        for e in range(4): a(f'v_add_f32 v{q(i)+e}, v{q(i)+e}, v{T+4*i+e}')
    a(f's_branch {L4}')
    a.label(L3)
    for i in range(4): a(f'ds_read_b128 v[{T+4*i}:{T+4*i+3}], v6 offset:{i*1024}')
    for i in range(4):
        a(f's_waitcnt lgkmcnt({3-i})')
        for e in range(4): a(f'v_add_f32 v{q(i)+e}, v{q(6+i)+e}, v{T+4*i+e}')
    a.label(L4)

def prefetch_blocks(a, nblk, gbase_sgpr, contiguous=True, lds_map=None):
    L = a.newlabel('PF_N')
    per = (nblk + 2)//3
    a(f's_cmp_eq_u32 s3, 0\ns_cbranch_scc1 {L}')
    a(f's_sub_u32 s19, s3, 1\ns_mul_i32 s19, s19, {per*1024}\ns_add_u32 s20, s{gbase_sgpr}, s19')
    for i in range(per):
        if i % 4 == 0:
            a(f's_add_u32 m0, s19, {i*1024}')
            if i: a('s_add_u32 s20, s20, 4096')
        guard = (2*per + i >= nblk)
        if guard:
            L2 = a.newlabel('PF_S'); a(f's_cmp_eq_u32 s3, 3\ns_cbranch_scc1 {L2}')
        a(f'buffer_load_dwordx4 v3, s[8:11], s20 offen offset:{(i%4)*1024}{BSC()} lds')
        if guard: a.label(L2)
    a.label(L)
    return per

def wait_stores(a, npf):
    L1 = a.newlabel('WS_A'); L2 = a.newlabel('WS_B')
    a(f's_cmp_eq_u32 s3, 0\ns_cbranch_scc1 {L1}')
    a(f's_waitcnt vmcnt({npf})')
    a(f's_branch {L2}')
    a.label(L1)
    a('s_waitcnt vmcnt(0)')
    a.label(L2)

def phase_c(a):
    vm = Vm(a)
    roles80(a)
    ACC = 64; WB = 16
    XR = 112; GA = 124; A2 = 136; SB = 148
    a('s_mul_i32 s28, s15, 5\ns_mul_i32 s19, s27, 3\ns_add_u32 s28, s28, s19')
    a('s_mul_i32 s31, s29, 40\ns_add_u32 s31, s31, s28\ns_lshl_b32 s31, s31, 10')
    a('v_lshrrev_b32 v7, 5, v2\nv_lshlrev_b32 v7, 4, v7')
    a(f's_lshl_b32 s32, s28, 5\ns_lshl_b32 s19, s12, 13\ns_add_u32 s32, s32, s19\ns_add_u32 s32, s32, {WS_MODF}')
    def extra_ops():
        ops = []
        if not OPT.get('noxf'):
            ops = [(f's_add_u32 s19, s31, {WS_XF}', False)]
            for i in range(3): ops.append((f'buffer_load_dwordx4 v[{XR+4*i}:{XR+4*i+3}], v3, s[8:11], s19 offen offset:{i*1024} sc1', True))
        for seg, R in ((2, GA), (4, A2), (3, SB)):
            ops.append((f's_add_u32 s19, s32, {seg*1280}', False))
            for i in range(3): ops.append((f'buffer_load_dwordx4 v[{R+4*i}:{R+4*i+3}], v7, s[8:11], s19 offen offset:{i*32} sc1', True))
        return ops
    nks = 20
    a(f's_mul_i32 s22, s29, 40\ns_mul_i32 s19, s27, {nks}\ns_add_u32 s22, s22, s19\ns_lshl_b32 s22, s22, 10\ns_add_u32 s22, s22, {KP_O}')
    half_bytes = 5*10240
    a(f's_mul_i32 s19, s27, {half_bytes}\nv_add_u32 v4, s19, v3')
    a('v_lshrrev_b32 v5, 5, v2\nv_lshlrev_b32 v5, 8, v5\nv_and_b32 v6, 15, v2\nv_lshl_add_u32 v5, v6, 4, v5\nv_add_u32 v5, s19, v5\nv_add_u32 v5, 4096, v5')
    def opsA(c):
        ops = [(f's_add_u32 s25, s22, {c*4096}', False)]
        for q in range(4):
            ks = 4*c + q
            ops.append((f'buffer_load_dwordx4 a[{4*ks}:{4*ks+3}], v3, s[8:11], s25 offen offset:{q*1024} sc1', True))
        return ops
    def read_frag(ks, ct, r):
        base = (ks//4)*10240 + ((ks >> 1) & 1)*5120
        if ct < 2: return f'ds_read_b128 v[{r}:{r+3}], v4 offset:{base + (ks & 1)*2048 + ct*1024}'
        return f'ds_read_b128 v[{r}:{r+3}], v5 offset:{base + (ks & 1)*512}'
    def mfmas(ks, ct, r, first):
        d = ACC + 16*ct
        return [f'v_mfma_f32_32x32x16_bf16 v[{d}:{d+15}], v[{r}:{r+3}], a[{4*ks}:{4*ks+3}], ' + ('0' if first else f'v[{d}:{d+15}]')]
    if OPT.get('noxf'):
        for i in range(12): a(f'v_accvgpr_read_b32 v{XR+i}, a{144+i}')
    opsA2 = lambda c: opsA(c) + (extra_ops() if c == 4 else [])
    gemm2(a, vm, nks, 4, 3, opsA2, None, 99, read_frag, mfmas, WB, pd=2, pre=OPT.get('c_pre', 2), pace=1, ahead=5, barriers=False)
    a.raw('    ; MARK 10')
    exchange80(a, ACC, 16, LX)
    a('v_mov_b32 v8, 0\nv_mov_b32 v9, 0')
    X1 = 160
    PK = 184; PH = 196
    L = a.newlabel('C_F2')
    def frag1(i):
        for p in range(4):
            d = ACC + 8*i + 2*p; x = XR + 4*i + p; g = GA + 4*i + p
            a(f'v_lshlrev_b32 v10, 16, v{x}\nv_lshlrev_b32 v11, 16, v{g}\nv_fma_f32 v12, v11, v{d}, v10')
            a(f'v_and_b32 v10, 0xffff0000, v{x}\nv_and_b32 v11, 0xffff0000, v{g}\nv_fma_f32 v13, v11, v{d+1}, v10')
            a(f'v_cvt_pk_bf16_f32 v{PK+4*i+p}, v12, v13')
            lo = X1 + 8*i + 2*p
            a(f'v_lshlrev_b32 v{lo}, 16, v{PK+4*i+p}\nv_and_b32 v{lo+1}, 0xffff0000, v{PK+4*i+p}')
            a(f'v_add_f32 v8, v8, v{lo}\nv_fmac_f32 v9, v{lo}, v{lo}\nv_add_f32 v8, v8, v{lo+1}\nv_fmac_f32 v9, v{lo+1}, v{lo+1}')
    frag1(0); frag1(1)
    a(f's_cmp_eq_u32 s27, 1\ns_cbranch_scc1 {L}')
    frag1(2)
    a.label(L)
    a('v_mov_b32 v10, v8\nv_mov_b32 v11, v9')
    a('v_permlane32_swap_b32 v8, v10\nv_permlane32_swap_b32 v9, v11')
    a('v_add_f32 v8, v8, v10\nv_add_f32 v9, v9, v11')
    a(f's_lshl_b32 s19, s29, 4\ns_lshl_b32 s20, s15, 1\ns_add_u32 s19, s19, s20\ns_add_u32 s19, s19, s27\ns_lshl_b32 s33, s19, 8\ns_add_u32 s33, s33, {WS_STAT}')
    a('v_lshlrev_b32 v10, 3, v2')
    def st1(f):
        a('s_mov_b32 exec_hi, 0')
        a(f'buffer_store_dwordx2 v[8:9], v10, s[8:11], s33 offen{f}')
        a('s_mov_b64 exec, -1')
        for i in range(3 if not OPT.get('noxf') else 0):
            Ls = None
            if i == 2:
                Ls = a.newlabel('C_S2'); a(f's_cmp_eq_u32 s27, 1\ns_cbranch_scc1 {Ls}')
            a(f's_add_u32 s19, s31, {KP_X1 + i*1024}\nbuffer_store_dwordx4 v[{PK+4*i}:{PK+4*i+3}], v3, s[8:11], s19 offen{f}')
            if Ls: a.label(Ls)
    store2(a, st1)
    a(f's_lshr_b32 s34, s13, 1\ns_mul_i32 s34, s34, 245760\ns_add_u32 s34, s34, {WS_WGU}')
    if OPT.get('d_rotg'): a('s_mul_i32 s19, s12, 24576\ns_add_u32 s34, s34, s19')
    else: a(f's_and_b32 s19, s13, 1\ns_mul_i32 s19, s19, {5*24576*OPT.get("d_rot", 0)}\ns_add_u32 s34, s34, s19')
    a('s_waitcnt vmcnt(0)')
    a.raw('    ; MARK 11')
    gbar(a, FL_C, during=((lambda: poll_bg(a)) if OPT.get('bg', 1) else None))
    a.raw('    ; MARK 12')
    ST = 16
    a('v_and_b32 v10, 31, v2\nv_lshrrev_b32 v11, 5, v2\nv_lshlrev_b32 v12, 3, v10\nv_lshl_add_u32 v12, v11, 11, v12')
    a(f's_lshl_b32 s19, s29, 12\ns_add_u32 s19, s19, {WS_STAT}')
    for i in range(8): a(f'buffer_load_dwordx2 v[{ST+2*i}:{ST+2*i+1}], v12, s[8:11], s19 offen offset:{i*256} sc1')
    a('s_waitcnt vmcnt(0)')
    for i in range(1, 8): a(f'v_add_f32 v{ST}, v{ST}, v{ST+2*i}\nv_add_f32 v{ST+1}, v{ST+1}, v{ST+2*i+1}')
    a(f'v_mov_b32 v10, v{ST}\nv_mov_b32 v11, v{ST+1}')
    a(f'v_permlane32_swap_b32 v{ST}, v10\nv_permlane32_swap_b32 v{ST+1}, v11')
    a(f'v_add_f32 v10, v{ST}, v10\nv_add_f32 v11, v{ST+1}, v11')
    inv = hex(f2u(1.0/640))
    a(f'v_mul_f32 v10, {inv}, v10\nv_mul_f32 v11, {inv}, v11\nv_fma_f32 v11, -v10, v10, v11\nv_max_f32 v11, 0, v11\nv_add_f32 v11, {hex(f2u(1e-5))}, v11\nv_rsq_f32 v11, v11')
    L = a.newlabel('C_H2')
    def frag2(i):
        for p in range(4):
            lo = X1 + 8*i + 2*p; s2 = A2 + 4*i + p; sb = SB + 4*i + p
            a(f'v_sub_f32 v{lo}, v{lo}, v10\nv_sub_f32 v{lo+1}, v{lo+1}, v10\nv_mul_f32 v{lo}, v{lo}, v11\nv_mul_f32 v{lo+1}, v{lo+1}, v11')
            a(f'v_lshlrev_b32 v12, 16, v{s2}\nv_lshlrev_b32 v13, 16, v{sb}\nv_fma_f32 v{lo}, v{lo}, v12, v13')
            a(f'v_and_b32 v12, 0xffff0000, v{s2}\nv_and_b32 v13, 0xffff0000, v{sb}\nv_fma_f32 v{lo+1}, v{lo+1}, v12, v13')
            a(f'v_cvt_pk_bf16_f32 v{PH+4*i+p}, v{lo}, v{lo+1}')
    frag2(0); frag2(1)
    a(f's_cmp_eq_u32 s27, 1\ns_cbranch_scc1 {L}')
    frag2(2)
    a.label(L)
    def st2(f):
        for i in range(3):
            Ls = None
            if i == 2:
                Ls = a.newlabel('C_S3'); a(f's_cmp_eq_u32 s27, 1\ns_cbranch_scc1 {Ls}')
            a(f's_add_u32 s19, s31, {WS_H2F + i*1024}\nbuffer_store_dwordx4 v[{PH+4*i}:{PH+4*i+3}], v3, s[8:11], s19 offen{f}')
            if Ls: a.label(Ls)
    store2(a, st2)
    a('s_waitcnt vmcnt(0)')
    a.raw('    ; MARK 13')
    gbar(a, FL_UT, during=(lambda: prefetch_blocks(a, 24*OPT.get('d_preB', 1), 34)) if OPT.get('d_preB', 1) else None)
    a.raw('    ; MARK 8')

def phase_d(a):
    vm = Vm(a)
    NSLOT = 6; CB = 24576
    a('s_lshr_b32 s15, s13, 1\ns_and_b32 s19, s13, 1\ns_lshl_b32 s19, s19, 2\ns_lshl_b32 s29, s12, 3\ns_add_u32 s29, s29, s19\ns_add_u32 s29, s29, s3')
    a(f's_mul_i32 s22, s29, 40960\ns_add_u32 s22, s22, {WS_H2F}')
    a(f's_mul_i32 s23, s15, 245760\ns_mul_i32 s30, s3, 6144\ns_add_u32 s23, s23, s30\ns_add_u32 s23, s23, {WS_WGU}')
    R = OPT.get('d_rot', 0)
    a(f's_and_b32 s19, s13, 1\ns_mul_i32 s20, s19, {5*CB*R}\ns_sub_u32 s27, s23, s20\ns_add_u32 s23, s23, s20\ns_mul_i32 s20, s19, {5*4096*R}\ns_sub_u32 s26, s22, s20\ns_add_u32 s22, s22, s20')
    def drot(c, mul, base, dst):
        return [(f's_add_u32 s33, s12, {c}', False), ('s_sub_u32 s21, s33, 10', False), ('s_cmp_ge_u32 s33, 10', False),
                ('s_cselect_b32 s33, s21, s33', False), (f's_mul_i32 s33, s33, {mul}', False), (f's_add_u32 s{dst}, s{base}, s33', False)]
    def opsB(c):
        slot = c % NSLOT
        if OPT.get('d_noB'): return [('s_nop 0', True)]
        if OPT.get('d_rotg'):
            ops = [(f's_add_u32 m0, s30, {slot*CB}', False)] + drot(c, CB, 23, 24)
        else:
            ops = [(f's_add_u32 m0, s30, {slot*CB}', False), (f's_add_u32 s24, s{23 if c < 5 else 27}, {c*CB}', False)]
        NT = ' nt' if OPT.get('d_nt') else ''
        for q in range(4): ops.append((f'buffer_load_dwordx4 v3, s[8:11], s24 offen offset:{q*1024}{BSC()}{NT} lds', True))
        ops += [(f's_add_u32 m0, s30, {slot*CB + 4096}', False), ('s_add_u32 s24, s24, 4096', False)]
        for q in range(2): ops.append((f'buffer_load_dwordx4 v3, s[8:11], s24 offen offset:{q*1024}{BSC()}{NT} lds', True))
        return ops
    TA = OPT.get('d_ta', 0); PB = OPT.get('d_preB', 1)
    if TA:
        a(f's_and_b32 s19, s13, 1\ns_lshl_b32 s19, s19, 2\ns_add_u32 s19, s19, s3\ns_mul_i32 s19, s19, {24*128}\ns_mul_i32 s20, s15, 245760\ns_add_u32 s19, s19, s20\ns_add_u32 s34, s19, {WS_WGU}')
        a('v_lshlrev_b32 v9, 7, v2')
    def opsT(c):
        if not TA or c >= 10: return []
        return [(f's_add_u32 s20, s34, {c*CB}', False), ('s_mov_b64 exec, 0xffffff\nbuffer_load_dword v10, v9, s[8:11], s20 offen\ns_mov_b64 exec, -1', True)]
    WT = OPT.get('d_wdtouch', 0)
    if WT:
        a(f's_mul_i32 s35, s13, 61440\ns_mul_i32 s19, s3, 1536\ns_add_u32 s35, s35, s19\ns_add_u32 s35, s35, {WS_WD}\nv_lshlrev_b32 v9, 7, v2')
    def opsW(c):
        if not WT: return []
        return [(f's_add_u32 s20, s35, {c*6144}', False), ('s_mov_b64 exec, 0xfff\nbuffer_load_dword v255, v9, s[8:11], s20 offen\ns_mov_b64 exec, -1', True)]
    def opsA(c):
        ops = sum((opsT(k) for k in range(PB, PB + TA)), []) if c == 0 else opsT(PB + TA - 1 + c)
        ops = opsW(c) + ops
        if OPT.get('d_rotg'): ops = ops + drot(c, 4096, 22, 25)
        else: ops = ops + [(f's_add_u32 s25, s{22 if c < 5 else 26}, {c*4096}', False)]
        for q in range(4):
            ks = 4*c + q
            ops.append((f'buffer_load_dwordx4 a[{4*ks}:{4*ks+3}], v3, s[8:11], s25 offen offset:{q*1024} sc1', True))
        return ops
    ACC = 88
    TR = bool(OPT.get('bg', 1))
    def read_frag(ks, ct, r):
        off = ((ks//4) % NSLOT)*CB + ((ks & 3)*6 + ct)*1024
        if TR:
            return f'ds_read_b64_tr_b16 v[{r}:{r+1}], v{4 + off//65536} offset:{off % 65536}\nds_read_b64_tr_b16 v[{r+2}:{r+3}], v{4 + off//65536} offset:{off % 65536 + 512}'
        return f'ds_read_b128 v[{r}:{r+3}], v{4 + off//65536} offset:{off % 65536}'
    if TR:
        a('v_lshrrev_b32 v6, 5, v2\nv_lshlrev_b32 v6, 2, v6\nv_bfe_u32 v4, v2, 2, 2\nv_add_u32 v6, v6, v4\nv_and_b32 v4, 3, v2\nv_lshlrev_b32 v4, 3, v4')
        a('v_lshl_add_u32 v4, v6, 6, v4\nv_bfe_u32 v6, v2, 4, 1\nv_lshl_add_u32 v4, v6, 5, v4')
        a('v_add_u32 v5, 0x10000, v4\nv_add_u32 v6, 0x20000, v4')
    else:
        a('v_mov_b32 v4, v3\nv_add_u32 v5, 0x10000, v3\nv_add_u32 v6, 0x20000, v3')
    def mfmas(ks, ct, r, first):
        d = ACC + 16*ct
        if OPT.get('d_nomfma'): return ['s_nop 7']
        return [f'v_mfma_f32_32x32x16_bf16 v[{d}:{d+15}], v[{r}:{r+3}], a[{4*ks}:{4*ks+3}], ' + ('0' if first else f'v[{d}:{d+15}]')]
    gemm2(a, vm, 40, 4, 6, opsA, opsB, OPT.get('d_preB', 1), read_frag, mfmas, 16, pd=(1 if TR else 2), pre=OPT.get('d_pre', 2), nslot=NSLOT, pace=OPT.get('d_pace', 2), ahead=OPT.get('d_ahead', 4), barriers=True, nlgkm=(2 if TR else 1))
    a.raw('    ; MARK 14')
    a(f's_and_b32 s22, s29, 7\ns_mul_i32 s22, s22, 96\ns_mul_i32 s19, s15, 6\ns_add_u32 s22, s22, s19\ns_lshl_b32 s22, s22, 10')
    a(f's_add_u32 s19, s12, 7\ns_and_b32 s19, s19, 7\ns_mul_i32 s19, s19, {KVH_STRIDE}\ns_add_u32 s22, s22, s19\ns_add_u32 s22, s22, {WS_KVH}')
    for ct in range(3):
        for q in range(4):
            g = ACC + 16*ct + 4*q; u = ACC + 16*(3+ct) + 4*q
            for e in range(4): a(f'v_mul_f32 v{g+e}, v{g+e}, v{u+e}')
            o = 16 + 8*ct + 2*q
            a(f'v_cvt_pk_bf16_f32 v{o}, v{g}, v{g+1}\nv_cvt_pk_bf16_f32 v{o+1}, v{g+2}, v{g+3}')
    def st(f):
        for k in range(6):
            if k == 4: a('s_add_u32 s22, s22, 4096')
            a(f'buffer_store_dwordx4 v[{16+4*k}:{19+4*k}], v3, s[8:11], s22 offen offset:{(k % 4)*1024}{f}')
    store2(a, st)
    a(f's_lshr_b32 s15, s13, 2\ns_mul_i32 s34, s15, {48*5120}\ns_add_u32 s34, s34, {WS_WD}')
    if OPT.get('e_rotg', 1): a('s_mul_i32 s19, s12, 10240\ns_add_u32 s34, s34, s19')
    else: a(f's_and_b32 s19, s13, 3\ns_mul_i32 s19, s19, {3*10240*OPT.get("e_rot", 0)}\ns_add_u32 s34, s34, s19')
    def out_touch():
        pass
    def pf_wd():
      a('s_sub_u32 s19, s3, 1\ns_mul_i32 s19, s19, 20')
      for i in range(20):
          if i in (0, 10):
              a(f's_add_u32 s20, s19, {i}\ns_cmp_ge_u32 s20, 30\ns_cselect_b32 s21, 1, 0\ns_mul_i32 s25, s21, 30\ns_sub_u32 s20, s20, s25\ns_lshl_b32 s20, s20, 10')
              a(f's_mul_i32 s25, s21, {24*5120}\ns_add_u32 s25, s25, s20\ns_add_u32 s25, s25, s34\ns_mul_i32 s21, s21, 61440\ns_add_u32 s21, s21, s20')
          k = i % 10
          if k % 4 == 0:
              a(f's_add_u32 m0, s21, {k*1024}')
              if k: a('s_add_u32 s25, s25, 4096')
          a(f'buffer_load_dwordx4 v3, s[8:11], s25 offen offset:{(k % 4)*1024}{BSC()} lds')
    a('s_waitcnt vmcnt(0)')
    a.raw('    ; MARK 15')
    gbar(a, FL_D, during=pf_wd)
    a.raw('    ; MARK 16')

def phase_e(a):
    vm = Vm(a)
    roles80(a)
    srd(a, 36, 6, 7, 0, ACT_BYTES)
    ACC = 64; WB = 16; XR = 112; GB = 124
    a('s_mul_i32 s28, s15, 5\ns_mul_i32 s19, s27, 3\ns_add_u32 s28, s28, s19')
    a('s_mul_i32 s31, s29, 40\ns_add_u32 s31, s31, s28\ns_lshl_b32 s31, s31, 10')
    a('v_lshrrev_b32 v7, 5, v2\nv_lshlrev_b32 v7, 4, v7')
    a(f's_lshl_b32 s32, s28, 5\ns_lshl_b32 s19, s12, 13\ns_add_u32 s19, s19, s32\ns_add_u32 s19, s19, {WS_MODF + 5*1280}')
    for i in range(3): vm.issue(f'buffer_load_dwordx4 v[{GB+4*i}:{GB+4*i+3}], v7, s[8:11], s19 offen offset:{i*32} sc1', 'x')
    if OPT.get('noxf'): XR = 184
    else:
        a(f's_add_u32 s19, s31, {KP_X1}')
        for i in range(3): vm.issue(f'buffer_load_dwordx4 v[{XR+4*i}:{XR+4*i+3}], v3, s[8:11], s19 offen offset:{i*1024} sc1', 'x')
    if OPT.get('wbl2'):
        Lwb = a.newlabel('E_WB')
        a(f's_cmp_lg_u32 s13, {OPT.get("wbl2_j", 0)}\ns_cbranch_scc1 {Lwb}\ns_cmp_lg_u32 s3, 0\ns_cbranch_scc1 {Lwb}')
        a('buffer_wbl2 sc1')
        a.label(Lwb)
    if OPT.get('e_rotg', 1): a('s_mov_b32 s35, s12')
    else: a('s_and_b32 s35, s13, 3\ns_mul_i32 s35, s35, ' + str(3*OPT.get('e_rot', 0)))
    main80(a, vm, 96, WS_KVH, WS_WD, 6, 3, ACC, WB, True, OPT.get('e_pre', 2), OPT.get('e_pace', 1), OPT.get('e_ahead', 4), tr=bool(OPT.get('bg', 1)))
    a.raw('    ; MARK 17')
    a('s_waitcnt lgkmcnt(0)\ns_barrier')
    exchange80(a, ACC, 16, 0)
    a('v_and_b32 v8, 31, v2\ns_lshl_b32 s19, s29, 5\nv_add_u32 v8, s19, v8\nv_mul_u32_u24 v8, 1280, v8\nv_add_u32 v8, v8, v7')
    L = a.newlabel('E_F2')
    def frag(i):
        for p in range(4):
            d = ACC + 8*i + 2*p; x = XR + 4*i + p; g = GB + 4*i + p
            a(f'v_lshlrev_b32 v10, 16, v{x}\nv_lshlrev_b32 v11, 16, v{g}\nv_fma_f32 v12, v11, v{d}, v10')
            a(f'v_and_b32 v10, 0xffff0000, v{x}\nv_and_b32 v11, 0xffff0000, v{g}\nv_fma_f32 v13, v11, v{d+1}, v10')
            a(f'v_cvt_pk_bf16_f32 v{16+4*i+p}, v12, v13')
        b = 16 + 4*i
        a(f'v_permlane32_swap_b32 v{b}, v{b+2}\nv_permlane32_swap_b32 v{b+1}, v{b+3}')
        a(f'buffer_store_dwordx4 v[{b}:{b+3}], v8, s[36:39], s32 offen offset:{i*32}' + OPT.get('out_fl', ''))
    frag(0); frag(1)
    a(f's_cmp_eq_u32 s27, 1\ns_cbranch_scc1 {L}')
    frag(2)
    a.label(L)
```

```python
from common import *
import math

def attention(a, K):
    OPT = K.OPT; LK, LV, LONES, QF, NEG = K.LK, K.LV, K.LONES, K.QF, K.NEG
    use_bg = OPT.get('bg', 1)
    if use_bg: K.bg_setup(a)
    a(f's_lshr_b32 s26, s13, 2\ns_mul_i32 s26, s26, 102400\ns_mul_i32 s27, s3, 25600\ns_add_u32 s26, s26, s27\ns_add_u32 s26, s26, {WS_WO}')
    wo = []
    for i in range(25):
        t = ''
        if i % 4 == 0:
            t += f's_add_u32 m0, s27, {i*1024}\n'
            if i: t += 's_add_u32 s26, s26, 4096\n'
        t += f'buffer_load_dwordx4 v3, s[8:11], s26 offen offset:{(i%4)*1024} lds'
        wo.append(t)
    a(f's_add_u32 s19, s12, 7\ns_and_b32 s19, s19, 7\ns_mul_i32 s19, s19, {KVH_STRIDE}\ns_add_u32 s19, s19, {WS_KVH}')
    a(f's_mul_i32 s20, s13, 24576\ns_mul_i32 s21, s3, 6144\ns_add_u32 s20, s20, s21\ns_add_u32 s20, s20, s19')
    a(f's_lshl_b32 s21, s13, 12\ns_lshl_b32 s22, s3, 10\ns_add_u32 s21, s21, s22\ns_add_u32 s21, s21, s19\ns_add_u32 s21, s21, 655360')
    a('s_cmp_eq_u32 s12, 0\ns_cselect_b32 s16, s20, s21\ns_cselect_b32 s25, 48, 8')
    a(f's_lshl_b32 s22, s12, 15\ns_lshl_b32 s23, s13, 10\ns_add_u32 s22, s22, s23\ns_lshl_b32 s23, s3, 8\ns_add_u32 s22, s22, s23\ns_add_u32 s17, s22, {WS_STAT}')
    a('v_lshlrev_b32 v4, 7, v2')
    touches = ['s_bfm_b64 exec, s25, 0\nbuffer_load_dword v5, v4, s[8:11], s16 offen\ns_mov_b64 exec, 3\nbuffer_load_dword v5, v4, s[8:11], s17 offen\ns_mov_b64 exec, -1']
    xres = []
    if OPT.get('noxf'):
        assert not use_bg
        a('s_mov_b32 s32, s40\ns_mov_b32 s33, s41\ns_mov_b32 s34, 2621440\ns_mov_b32 s35, 0x20000')
        a('s_lshl_b32 s19, s12, 8\ns_and_b32 s20, s13, 3\ns_lshl_b32 s20, s20, 6\ns_add_u32 s19, s19, s20\ns_and_b32 s20, s3, 1\ns_lshl_b32 s20, s20, 5\ns_add_u32 s19, s19, s20')
        a('v_and_b32 v8, 31, v2\nv_add_u32 v8, s19, v8\nv_mul_u32_u24 v8, 1280, v8\nv_lshrrev_b32 v14, 5, v2\nv_lshl_add_u32 v8, v14, 3, v8')
        a('s_lshr_b32 s19, s13, 2\ns_mul_i32 s19, s19, 5\ns_lshr_b32 s20, s3, 1\ns_mul_i32 s20, s20, 3\ns_add_u32 s19, s19, s20\ns_lshl_b32 s43, s19, 5')
        for i in range(3):
            xres.append(f'buffer_load_dwordx2 a[{144+4*i}:{145+4*i}], v8, s[32:35], s43 offen offset:{32*i}')
            xres.append(f'buffer_load_dwordx2 a[{146+4*i}:{147+4*i}], v8, s[32:35], s43 offen offset:{32*i+16}')
    M0 = 28; M8 = 44; PBUF = 60; S0 = 76
    Sreg = lambda s: S0 + 16*s
    KBUF = 32; VBUF = 56; O1 = (80, 96); O2 = (112, 128)
    NM = (24, 26); MRAW = (252, 253); FF = (222, 223)
    cs = math.log2(math.e)/math.sqrt(20.0)
    a(f's_mov_b32 s28, {hex(f2u(cs))}\ns_mov_b32 s29, {hex(f2u(cs))}')
    a('v_and_b32 v6, 31, v2\nv_lshrrev_b32 v7, 5, v2')
    a(f'v_lshlrev_b32 v9, 3, v6\nv_lshl_add_u32 v9, v7, 12, v9\nv_add_u32 v9, {LK}, v9')
    a('s_lshl_b32 s19, s3, 8\ns_sub_u32 s20, 7, s3\ns_lshl_b32 s20, s20, 8')
    a('v_add_u32 v16, s19, v9\nv_add_u32 v18, s20, v9')
    for b in range(3): a(f'v_accvgpr_write_b32 a{KBUF+8*b+6}, 0\nv_accvgpr_write_b32 a{KBUF+8*b+7}, 0')
    a('v_bfe_u32 v10, v2, 4, 1\nv_lshlrev_b32 v10, 2, v10\nv_and_b32 v11, 3, v2\nv_add_u32 v10, v10, v11')
    a(f'v_mul_u32_u24 v11, 4128, v10\nv_add_u32 v11, {LV}, v11\nv_lshlrev_b32 v12, 5, v10\nv_add_u32 v12, {LONES}, v12')
    a('v_cmp_gt_u32 vcc, 5, v10\nv_lshlrev_b32 v13, 2, v7\nv_sub_u32 v13, v6, v13\nv_cndmask_b32 v10, v12, v11, vcc')
    a('v_bfe_u32 v11, v2, 2, 2\nv_lshl_add_u32 v11, v7, 2, v11\nv_lshl_add_u32 v10, v11, 3, v10')
    a('v_add_u32 v17, s19, v10\nv_add_u32 v19, s20, v10')
    a(f'v_mov_b32 v220, {hex(f2u(NEG))}')
    VK = (16, 18); VV = (17, 19)
    sp = ['vcc', 's[20:21]', 's[22:23]']
    krs = [(r & 3) + 8*(r >> 2) for r in range(16)]
    mask_code = []
    for r in range(18):
        if r < 16: mask_code.append(f'v_cmp_gt_i32 {sp[r % 3]}, {krs[r]}, v13')
        if r >= 2:
            q = r - 2
            mask_code += [f'v_cndmask_b32_e64 v{M0+q}, v220, 0, {sp[q % 3]}', f'v_cndmask_b32_e64 v{M8+q}, 0, v220, {sp[q % 3]}']
    Lend = a.newlabel('AT_END')
    labels = [a.newlabel(f'AT_W{w}') for w in range(4)]
    a(f's_cmp_eq_u32 s3, 1\ns_cbranch_scc1 {labels[1]}\ns_cmp_eq_u32 s3, 2\ns_cbranch_scc1 {labels[2]}\ns_cmp_eq_u32 s3, 3\ns_cbranch_scc1 {labels[3]}')

    def variant(w):
        lg = Lg(a)
        cnt = dict(k=0, v=0)
        kb = {}; vb = {}
        def kread(tb, j):
            b = KBUF + 8*(cnt['k'] % 3); cnt['k'] += 1
            for o, off in ((0, 0), (2, 8192), (4, 16384)):
                lg.issue(f'ds_read_b64 a[{b+o}:{b+o+1}], v{VK[tb]} offset:{off + j*256}', ('k', tb, j))
            kb[(tb, j)] = b
        def vread(tb, j):
            b = VBUF + 8*(cnt['v'] % 3); cnt['v'] += 1
            for s in range(2):
                lg.issue(f'ds_read_b64_tr_b16 a[{b+4*s}:{b+4*s+1}], v{VV[tb]} offset:{j*256 + s*128}', ('v', tb, j))
                lg.issue(f'ds_read_b64_tr_b16 a[{b+4*s+2}:{b+4*s+3}], v{VV[tb]} offset:{j*256 + s*128 + 64}', ('v', tb, j))
            vb[(tb, j)] = b
        def qk_items(tb, j, slot):
            Q = QF + 8*tb; d = Sreg(slot)
            c0 = f'v[{M0}:{M0+15}]' if j == 0 else (f'v[{M8}:{M8+15}]' if j == 8 else '0')
            def m0():
                lg.wait(('k', tb, j)); b = kb[(tb, j)]
                a(f'v_mfma_f32_32x32x16_bf16 v[{d}:{d+15}], a[{b}:{b+3}], v[{Q}:{Q+3}], {c0}')
            def m1():
                b = kb[(tb, j)]
                a(f'v_mfma_f32_32x32x16_bf16 v[{d}:{d+15}], a[{b+4}:{b+7}], v[{Q+4}:{Q+7}], v[{d}:{d+15}]')
            return [m0, m1]
        def pv_items(tb, j, slot, O, first):
            pb = PBUF + 8*(slot & 1)
            def mk(s):
                def f():
                    if s == 0: lg.wait(('v', tb, j))
                    v = vb[(tb, j)]
                    c0 = '0' if (first and s == 0) else f'a[{O}:{O+15}]'
                    a(f'v_mfma_f32_32x32x16_bf16 a[{O}:{O+15}], a[{v+4*s}:{v+4*s+3}], v[{pb+4*s}:{pb+4*s+3}], {c0}')
                return f
            return [mk(0), mk(1)]
        def interleave(valu, items, first=3):
            wts = [2 if t.startswith('v_exp') else 1 for t in valu]
            tot = sum(wts); n = len(items); k = 0; acc = 0
            for t, ww in zip(valu, wts):
                while k < n and acc >= first + k*(tot - first)/n:
                    items[k](); k += 1
                a(t); acc += ww
            while k < n:
                items[k](); k += 1
        def maxchain(slots):
            regs = [Sreg(s) + r for s in slots for r in range(16)]
            out = [f'v_max3_f32 v{20+c}, v{regs[c]}, v{regs[4+c]}, v{regs[8+c]}' for c in range(4)]
            idx = regs[12:]; k = 0
            while idx:
                c = 20 + (k % 4); k += 1
                if len(idx) >= 2:
                    x, y = idx.pop(0), idx.pop(0); out.append(f'v_max3_f32 v{c}, v{c}, v{x}, v{y}')
                else:
                    x = idx.pop(0); out.append(f'v_max_f32 v{c}, v{c}, v{x}')
            out += ['v_max3_f32 v20, v20, v21, v22', 'v_max_f32 v20, v20, v23', 'v_mov_b32 v21, v20', 'v_permlane32_swap_b32 v20, v21', 'v_max_f32 v20, v20, v21']
            return out
        def softmax_list(slot, nm):
            d = Sreg(slot); pb = PBUF + 8*(slot & 1)
            sc = ([f'v_pk_fma_f32 v[{d+r}:{d+r+1}], v[{d+r}:{d+r+1}], s[28:29], v[{nm}:{nm+1}]' for r in range(0, 16, 2)] if OPT.get('pkfma', 1)
                  else [f'v_fma_f32 v{d+r}, v{d+r}, s28, v{nm}' for r in range(16)])
            return (sc + [f'v_exp_f32 v{d+r}, v{d+r}' for r in range(16)] + [f'v_cvt_pk_bf16_f32 v{pb+i}, v{d+2*i}, v{d+2*i+1}' for i in range(8)])
        def stage(tiles, O, shadow, hooks, stage2):
            n = len(tiles)
            order = sorted(range(n), key=lambda s: (tiles[s][1] in (0, 8)) and bool(shadow))
            kread(*tiles[order[0]]); kread(*tiles[order[1]])
            started = set()
            def max_ops(s):
                tb = tiles[s][0]; c = (20 + 2*tb, 21 + 2*tb); r = [Sreg(s) + k for k in range(16)]
                if tb not in started:
                    started.add(tb)
                    out = [f'v_max3_f32 v{c[0]}, v{r[0]}, v{r[1]}, v{r[2]}', f'v_max3_f32 v{c[1]}, v{r[3]}, v{r[4]}, v{r[5]}']; r = r[6:]
                else: out = []
                k = 0
                while r:
                    x, y = r.pop(0), r.pop(0); out.append(f'v_max3_f32 v{c[k & 1]}, v{c[k & 1]}, v{x}, v{y}'); k += 1
                return out
            fill = list(shadow or [])
            def take(k):
                for _ in range(min(k, len(fill))): a(fill.pop(0))
            for i, s in enumerate(order):
                its = qk_items(tiles[s][0], tiles[s][1], s)
                if tiles[s][1] in (0, 8) and shadow:
                    while any('v_cndmask' in t or 'v_cmp' in t for t in fill): take(1)
                if i + 2 < n: kread(*tiles[order[i+2]])
                its[0](); take(5)
                its[1]()
                if i >= 2: fill.extend(max_ops(order[i-2]))
                take(6)
            fill.extend(max_ops(order[n-2]));
            vread(*tiles[0])
            take(10**6)
            for t in max_ops(order[n-1]): a(t)
            for tb in range(2):
                c = (20 + 2*tb, 21 + 2*tb)
                a(f'v_max_f32 v{c[0]}, v{c[0]}, v{c[1]}\nv_mov_b32 v{c[1]}, v{c[0]}')
                a(f'v_permlane32_swap_b32 v{c[0]}, v{c[1]}')
                a(f'v_max_f32 v{c[0]}, v{c[0]}, v{c[1]}')
                if not stage2:
                    a(f'v_mov_b32 v{MRAW[tb]}, v{c[0]}')
                else:
                    a(f'v_max_f32 v{c[0]}, v{c[0]}, v{MRAW[tb]}\nv_sub_f32 v{c[1]}, v{MRAW[tb]}, v{c[0]}\nv_mul_f32 v{c[1]}, s28, v{c[1]}\nv_exp_f32 v{FF[tb]}, v{c[1]}')
                a(f'v_mul_f32 v{NM[tb]}, {hex(f2u(-cs))}, v{c[0]}\nv_mov_b32 v{NM[tb]+1}, v{NM[tb]}')
            seen = set()
            for s in range(n + 1):
                items = []
                if s >= 1:
                    tb, j = tiles[s-1]
                    items = pv_items(tb, j, s-1, O[tb], tb not in seen); seen.add(tb)
                if s < n:
                    if s + 1 < n: vread(*tiles[s+1])
                    interleave(softmax_list(s, NM[tiles[s][0]]), items)
                    if s in hooks: hooks[s]()
                else:
                    for it in items: it()
        T1 = [(0, jj) for jj in range(8-w, 9)] + [(1, jj) for jj in range(w+1, 9)]
        T2 = [(0, jj) for jj in range(0, 8-w)] + [(1, jj) for jj in range(0, w+1)]
        assert len(T1) == 9 and len(T2) == 9
        nbg_early = (8 if (use_bg and w >= 1 and OPT.get('bg_early', 1)) else 0)
        def publish():
            a(f's_waitcnt vmcnt({nbg_early})\ns_barrier')
            if w == 0:
                a(f's_lshl_b32 s19, s12, 7\ns_add_u32 s19, s19, {FL_KV}\ns_lshl_b32 s20, s13, 2\ns_add_u32 s20, s20, s19\nv_mov_b32 v221, s20\nv_mov_b32 v222, 1')
                a('s_mov_b64 exec, 1\nglobal_store_dword v221, v222, s[4:5] sc1\ns_mov_b64 exec, -1')
                a('s_cmp_eq_u32 s12, 0\ns_cselect_b32 s21, 0, 128\ns_sub_u32 s20, s20, s21')
                a('v_and_b32 v221, 31, v2\nv_lshlrev_b32 v221, 2, v221\nv_add_u32 v221, s19, v221\nv_mov_b32 v222, s20\nv_cmp_lt_u32 vcc, 31, v2\nv_cndmask_b32 v221, v221, v222, vcc')
        def probe():
            if w == 0:
                if OPT.get('lnk0', 1):
                    a(f's_lshl_b32 s19, s12, 7\ns_add_u32 s19, s19, {FL_XT}\nv_and_b32 v223, 31, v2\nv_lshlrev_b32 v223, 2, v223\nv_add_u32 v223, s19, v223')
                    a('global_load_dword v23, v223, s[4:5] sc1')
                a('global_load_dword v222, v221, s[4:5] sc1')
        def fetch():
            if w == 0:
                L = a.newlabel('AT_P'); Lo = a.newlabel('AT_PX')
                a(f's_mov_b32 s18, {K.SPIN}\ns_waitcnt vmcnt(0)\nv_cmp_eq_u32 vcc, 0, v222\ns_cbranch_vccz {Lo}')
                a('global_load_dword v20, v221, s[4:5] sc1\ns_sleep 2\nglobal_load_dword v21, v221, s[4:5] sc1\ns_sleep 2')
                a.label(L)
                a('global_load_dword v22, v221, s[4:5] sc1\ns_waitcnt vmcnt(2)\nv_cmp_eq_u32 vcc, 0, v20')
                a(f's_cbranch_vccz {Lo}')
                a('global_load_dword v20, v221, s[4:5] sc1\ns_waitcnt vmcnt(2)\nv_cmp_eq_u32 vcc, 0, v21')
                a(f's_cbranch_vccz {Lo}')
                a('global_load_dword v21, v221, s[4:5] sc1\ns_waitcnt vmcnt(2)\nv_cmp_eq_u32 vcc, 0, v22')
                a(f's_cbranch_vccz {Lo}')
                a(f's_sub_u32 s18, s18, 1\ns_cmp_lg_u32 s18, 0\ns_cbranch_scc1 {L}')
                a.label(Lo)
            if w == 0 and OPT.get('lnk0', 1):
                L2 = a.newlabel('AT_X'); L2o = a.newlabel('AT_XO')
                a(f's_waitcnt vmcnt(0)\ns_mov_b32 s18, {K.SPIN}')
                a.label(L2)
                a(f'v_cmp_eq_u32 vcc, 0, v23\ns_cbranch_vccz {L2o}\ns_sub_u32 s18, s18, 1\ns_cmp_eq_u32 s18, 0\ns_cbranch_scc1 {L2o}')
                a(f'global_load_dword v23, v223, s[4:5] sc1\ns_waitcnt vmcnt(0)\ns_branch {L2}')
                a.label(L2o)
                a('v_cmp_ne_u32 vcc, s15, v23\ns_cmp_eq_u64 vcc, 0\ns_cselect_b32 s14, 1, 0')
                a(f'v_mov_b32 v20, {K.LFAST2}\nv_mov_b32 v21, s14\nds_write_b32 v20, v21\ns_waitcnt lgkmcnt(0)')
            a('s_barrier')
            Ls = a.newlabel('AT_NH')
            a(f's_cmp_eq_u32 s12, 0\ns_cbranch_scc1 {Ls}')
            a(f's_sub_u32 s22, s24, {KVH_STRIDE - 5*w*1024}')
            for q in range(5):
                ii = 5*w + q; piece, half = ii >> 1, ii & 1
                dst = (LK + piece*4096 if piece < 5 else LV + (piece-5)*4128) + half*1024
                a(f's_mov_b32 m0, {dst}')
                if q: a('s_add_u32 s22, s22, 1024')
                a('buffer_load_dwordx4 v3, s[8:11], s22 offen sc1 lds')
            a.label(Ls)
        def branchy(tg, td):
            Ld = a.newlabel('BS_D'); Le = a.newlabel('BS_E')
            return f's_cmp_ge_u32 s2, 160\ns_cbranch_scc1 {Ld}\n' + tg + f'\ns_branch {Le}\n{Ld}:\n' + td + f'\n{Le}:'
        def emit_text(t):
            for line in t.split('\n'):
                if line.endswith(':'): a.label(line[:-1])
                else: a(line)
        plan = K.bg_plan(w) if (use_bg and w >= 1) else []
        hooks = {}
        def add_hook(slot, fn):
            prev = hooks.get(slot)
            hooks[slot] = (lambda: (prev(), fn())) if prev else fn
        add_hook(OPT.get('at_pub', 1), publish)
        GT = OPT.get('gu_touch', 0)
        if GT and w >= 1:
            nl = GT*192//2//3
            def gtouch(k):
                def f():
                    if k == 0:
                        a(f's_lshr_b32 s19, s13, 1\ns_mul_i32 s19, s19, 245760\ns_and_b32 s20, s13, 1\ns_mul_i32 s20, s20, {GT*192//2*128}\ns_add_u32 s19, s19, s20\ns_add_u32 s42, s19, {WS_WGU + (w-1)*nl*128}')
                    n = min(64, nl - 64*k)
                    ex = f's_mov_b64 exec, {hex((1 << n) - 1)}\n' if n < 32 else (f's_mov_b32 exec_lo, -1\ns_mov_b32 exec_hi, {hex((1 << (n-32)) - 1)}\n' if n < 64 else '')
                    a(ex + f'buffer_load_dword v255, v4, s[8:11], s42 offen' + ('\ns_mov_b64 exec, -1' if n < 64 else '') + '\ns_add_u32 s42, s42, 8192')
                return f
            for k in range((nl + 63)//64): add_hook(min(8, OPT.get('gu_t0', 1) + k), gtouch(k))
        if not OPT.get('bg_early', 1):
            for k, (g_, d_) in enumerate(plan):
                add_hook(min(8, OPT.get('at_pub', 1) + (k*OPT.get('bg_spread', 4))//8), lambda k=k, g_=g_, d_=d_: emit_text(branchy(*K.bg_load(k, g_, d_))))
        else:
            for k, (g_, d_) in enumerate(plan): emit_text(branchy(*K.bg_load(k, g_, d_)))
        add_hook(OPT.get('at_probe', 6), probe)
        add_hook(OPT.get('at_fetch', 7), fetch)
        stage(T1, O1, list(mask_code), hooks, False)
        NW1 = OPT.get('wo_s1n', 12)
        for t in wo[:NW1]: a(t)
        a(f's_waitcnt vmcnt({NW1}) lgkmcnt(0)\ns_barrier')
        if OPT.get('lnk0', 1): a(f'v_mov_b32 v20, {K.LFAST2}\nds_read_b32 v21, v20\ns_waitcnt lgkmcnt(0)\nv_readfirstlane_b32 s14, v21')
        if w == 0: a.raw('    ; MARK 5')
        a0 = a.lines; a.lines = []
        stage(T2, O2, None, {}, True)
        for tb in range(2):
            R = 240 + 6*tb; A = O1[tb]; B = O2[tb]; f = FF[tb]
            a(f'v_accvgpr_read_b32 v20, a{A+8}\nv_accvgpr_read_b32 v21, a{B+8}\nv_fma_f32 v20, v20, v{f}, v21\nv_mov_b32 v21, v20')
            a('v_permlane32_swap_b32 v20, v21\nv_rcp_f32 v21, v21')
            a(f'v_mul_f32 v{f}, v{f}, v21')
            for i in range(6):
                a(f'v_accvgpr_read_b32 v22, a{B+2*i}\nv_accvgpr_read_b32 v23, a{B+2*i+1}\nv_accvgpr_read_b32 v9, a{A+2*i}\nv_accvgpr_read_b32 v10, a{A+2*i+1}')
                a(f'v_mul_f32 v22, v22, v21\nv_mul_f32 v23, v23, v21\nv_fma_f32 v22, v9, v{f}, v22\nv_fma_f32 v23, v10, v{f}, v23\nv_cvt_pk_bf16_f32 v{R+i}, v22, v23')
        body = a.lines; a.lines = a0
        real = [i for i, l in enumerate(body) if l.startswith('    ') and not l.strip().startswith(';')]
        N = len(real)
        sched = []
        if OPT.get('noxf'):
            for k, t in enumerate(xres): sched.append((OPT.get('xres_f', 0.10) + 0.05*k, t))
        for k, (g_, d_) in enumerate(plan):
            sched.append((OPT.get('bg_s0', 0.02) + OPT.get('bg_sd', 0.04)*k, branchy(*K.bg_store(k, g_, d_))))
        for t in touches: sched.append((OPT.get('bg_t', 0.30), t))
        if not OPT.get('no_wo'):
            wo2 = wo[OPT.get('wo_s1n', 12):]
            for k, t in enumerate(wo2): sched.append((OPT.get('bg_w0', 0.05) + OPT.get('bg_wspan', 0.75)*k/max(1, len(wo2)), t))
        pos = {}
        for fr, t in sched: pos.setdefault(real[min(N-1, int(fr*N))], []).append(t)
        for i, l in enumerate(body):
            a.raw(l)
            for t in pos.get(i, []):
                for line in t.split('\n'):
                    if line.endswith(':'): a.label(line[:-1])
                    else: a(line)
        a(f's_branch {Lend}')
    for w in range(4):
        if w: a.label(labels[w])
        variant(w)
    a.label(Lend)
```

```python
from common import *
from kp import store2, gbar, poll, poll_bg, OPT, WS_H2F, KP_O, KP_X1

def BSC(): return ' sc1' if OPT.get('bg', 1) and OPT.get('b_sc1', 1) else ''
LX = 102400

def roles80(a):
    a('s_and_b32 s26, s3, 1\ns_lshr_b32 s27, s3, 1\ns_lshr_b32 s15, s13, 2')
    a('s_lshl_b32 s29, s12, 3\ns_and_b32 s19, s13, 3\ns_lshl_b32 s19, s19, 1\ns_add_u32 s29, s29, s19\ns_add_u32 s29, s29, s26')

def main80(a, vm, nks_total, ws_act, ws_w, nslot, preB, ACC, WB, barriers, pre, pace, ahead, tr=False, side=None):
    nks = nks_total//2; npair = nks//2; nchunk = nks//4
    half_bytes = nslot*10240
    a(f's_and_b32 s22, s29, 7\ns_mul_i32 s22, s22, {nks_total}\ns_mul_i32 s19, s27, {nks}\ns_add_u32 s22, s22, s19\ns_lshl_b32 s22, s22, 10')
    a(f's_add_u32 s19, s12, 7\ns_and_b32 s19, s19, 7\ns_mul_i32 s19, s19, {KVH_STRIDE}\ns_add_u32 s22, s22, s19\ns_add_u32 s22, s22, {ws_act}')
    a(f's_mul_i32 s23, s15, {2*npair}\ns_mul_i32 s19, s27, {npair}\ns_add_u32 s23, s23, s19\ns_add_u32 s23, s23, s26\ns_mul_i32 s23, s23, 5120\ns_add_u32 s23, s23, {ws_w}')
    a(f's_mul_i32 s30, s27, {half_bytes}\ns_mul_i32 s19, s26, 5120\ns_add_u32 s30, s30, s19')
    a(f's_mul_i32 s19, s27, {half_bytes}\nv_add_u32 v4, s19, v3')
    a('v_lshrrev_b32 v5, 5, v2\nv_lshlrev_b32 v5, 8, v5\nv_and_b32 v6, 15, v2\nv_lshl_add_u32 v5, v6, 4, v5\nv_add_u32 v5, s19, v5\nv_add_u32 v5, 4096, v5')
    def rot(c, mul, base, dst):
        return [(f's_add_u32 s33, s35, {c}', False), (f's_sub_u32 s21, s33, {nchunk}', False), (f's_cmp_ge_u32 s33, {nchunk}', False),
                ('s_cselect_b32 s33, s21, s33', False), (f's_mul_i32 s33, s33, {mul}', False), (f's_add_u32 s{dst}, s{base}, s33', False)]
    def opsB(c):
        slot = c % nslot
        if OPT.get('e_noB'): return [('s_nop 0', True)]
        ops = [(f's_add_u32 m0, s30, {slot*10240}', False)] + rot(c, 10240, 23, 24)
        for q in range(4): ops.append((f'buffer_load_dwordx4 v3, s[8:11], s24 offen offset:{q*1024}{BSC()} lds', True))
        ops += [(f's_add_u32 m0, s30, {slot*10240 + 4096}', False), (f's_add_u32 s24, s24, 4096', False)]
        ops.append((f'buffer_load_dwordx4 v3, s[8:11], s24 offen{BSC()} lds', True))
        return ops
    TA = OPT.get('e_ta', 0)
    if TA:
        a('s_and_b32 s19, s13, 3\ns_lshl_b32 s19, s19, 2\ns_add_u32 s19, s19, s3\ns_mul_i32 s19, s19, 10\ns_cmp_ge_u32 s19, 80\ns_cselect_b32 s20, 1, 0')
        a(f's_mul_i32 s21, s20, 80\ns_sub_u32 s19, s19, s21\ns_lshl_b32 s19, s19, 7\ns_mul_i32 s20, s20, {npair*5120}\ns_add_u32 s19, s19, s20\ns_mul_i32 s20, s15, {2*npair*5120}\ns_add_u32 s19, s19, s20\ns_add_u32 s34, s19, {ws_w}')
        a('v_lshlrev_b32 v9, 7, v2')
    def opsT(c):
        if not TA or c >= nchunk: return []
        return [(f's_add_u32 s20, s34, {c*10240}', False), ('s_mov_b64 exec, 0x3ff\nbuffer_load_dword v10, v9, s[8:11], s20 offen\ns_mov_b64 exec, -1', True)]
    def opsA(c):
        ops = sum((opsT(k) for k in range(preB, preB + TA)), []) if c == 0 else opsT(preB + TA - 1 + c)
        ops = ops + rot(c, 4096, 22, 25)
        if OPT.get('e_noA') and c >= 2: return [('s_nop 0', True)]
        for q in range(4):
            ks = 4*c + q
            ops.append((f'buffer_load_dwordx4 a[{4*ks}:{4*ks+3}], v3, s[8:11], s25 offen offset:{q*1024} sc1', True))
        return ops
    if tr:
        a('v_lshrrev_b32 v6, 5, v2\nv_lshlrev_b32 v6, 2, v6\nv_bfe_u32 v4, v2, 2, 2\nv_add_u32 v6, v6, v4\nv_and_b32 v4, 3, v2\nv_lshlrev_b32 v4, 3, v4')
        a('v_lshl_add_u32 v5, v6, 5, v4\nv_lshl_add_u32 v4, v6, 6, v4\nv_bfe_u32 v6, v2, 4, 1\nv_lshl_add_u32 v4, v6, 5, v4')
        a(f's_mul_i32 s19, s27, {half_bytes}\nv_add_u32 v4, s19, v4\nv_add_u32 v5, s19, v5\nv_add_u32 v5, 4096, v5')
    def read_frag(ks, ct, r):
        c = ks // 4; slot = c % nslot
        base = slot*10240 + ((ks >> 1) & 1)*5120
        if tr:
            if ct < 2:
                o = base + (ks & 1)*2048 + ct*1024
                return f'ds_read_b64_tr_b16 v[{r}:{r+1}], v4 offset:{o}\nds_read_b64_tr_b16 v[{r+2}:{r+3}], v4 offset:{o+512}'
            o = base + (ks & 1)*512
            return f'ds_read_b64_tr_b16 v[{r}:{r+1}], v5 offset:{o}\nds_read_b64_tr_b16 v[{r+2}:{r+3}], v5 offset:{o+256}'
        if ct < 2: return f'ds_read_b128 v[{r}:{r+3}], v4 offset:{base + (ks & 1)*2048 + ct*1024}'
        return f'ds_read_b128 v[{r}:{r+3}], v5 offset:{base + (ks & 1)*512}'
    def mfmas(ks, ct, r, first):
        d = ACC + 16*ct
        if OPT.get('e_nomfma'): return ['s_nop 0']
        return [f'v_mfma_f32_32x32x16_bf16 v[{d}:{d+15}], v[{r}:{r+3}], a[{4*ks}:{4*ks+3}], ' + ('0' if first else f'v[{d}:{d+15}]')]
    gemm2(a, vm, nks, 4, 3, opsA, opsB, preB, read_frag, mfmas, WB, pd=2, pre=pre, nslot=nslot, pace=pace, ahead=ahead, barriers=barriers, nlgkm=(2 if tr else 1), side=side)

def exchange80(a, ACC, T, region):
    def q(i): return ACC + 4*i
    L1 = a.newlabel('X_KH1'); L2 = a.newlabel('X_W')
    a(f's_mul_i32 s19, s3, 6144\ns_add_u32 s19, s19, {region}\nv_add_u32 v6, s19, v3')
    a(f's_cmp_eq_u32 s27, 1\ns_cbranch_scc1 {L1}')
    for i in range(6, 10): a(f'ds_write_b128 v6, v[{q(i)}:{q(i)+3}] offset:{(i-6)*1024}')
    a(f's_branch {L2}')
    a.label(L1)
    for i in range(6): a(f'ds_write_b128 v6, v[{q(i)}:{q(i)+3}] offset:{i*1024}')
    a.label(L2)
    a('s_waitcnt lgkmcnt(0)\ns_barrier')
    a(f's_xor_b32 s19, s3, 2\ns_mul_i32 s19, s19, 6144\ns_add_u32 s19, s19, {region}\nv_add_u32 v6, s19, v3')
    L3 = a.newlabel('X_R1'); L4 = a.newlabel('X_RD')
    a(f's_cmp_eq_u32 s27, 1\ns_cbranch_scc1 {L3}')
    for i in range(6): a(f'ds_read_b128 v[{T+4*i}:{T+4*i+3}], v6 offset:{i*1024}')
    for i in range(6):
        a(f's_waitcnt lgkmcnt({5-i})')
        for e in range(4): a(f'v_add_f32 v{q(i)+e}, v{q(i)+e}, v{T+4*i+e}')
    a(f's_branch {L4}')
    a.label(L3)
    for i in range(4): a(f'ds_read_b128 v[{T+4*i}:{T+4*i+3}], v6 offset:{i*1024}')
    for i in range(4):
        a(f's_waitcnt lgkmcnt({3-i})')
        for e in range(4): a(f'v_add_f32 v{q(i)+e}, v{q(6+i)+e}, v{T+4*i+e}')
    a.label(L4)

def prefetch_blocks(a, nblk, gbase_sgpr, contiguous=True, lds_map=None):
    L = a.newlabel('PF_N')
    per = (nblk + 2)//3
    a(f's_cmp_eq_u32 s3, 0\ns_cbranch_scc1 {L}')
    a(f's_sub_u32 s19, s3, 1\ns_mul_i32 s19, s19, {per*1024}\ns_add_u32 s20, s{gbase_sgpr}, s19')
    for i in range(per):
        if i % 4 == 0:
            a(f's_add_u32 m0, s19, {i*1024}')
            if i: a('s_add_u32 s20, s20, 4096')
        guard = (2*per + i >= nblk)
        if guard:
            L2 = a.newlabel('PF_S'); a(f's_cmp_eq_u32 s3, 3\ns_cbranch_scc1 {L2}')
        a(f'buffer_load_dwordx4 v3, s[8:11], s20 offen offset:{(i%4)*1024}{BSC()} lds')
        if guard: a.label(L2)
    a.label(L)
    return per

def wait_stores(a, npf):
    L1 = a.newlabel('WS_A'); L2 = a.newlabel('WS_B')
    a(f's_cmp_eq_u32 s3, 0\ns_cbranch_scc1 {L1}')
    a(f's_waitcnt vmcnt({npf})')
    a(f's_branch {L2}')
    a.label(L1)
    a('s_waitcnt vmcnt(0)')
    a.label(L2)

def phase_c(a):
    vm = Vm(a)
    roles80(a)
    ACC = 64; WB = 16
    XR = 112; GA = 124; A2 = 136; SB = 148
    a('s_mul_i32 s28, s15, 5\ns_mul_i32 s19, s27, 3\ns_add_u32 s28, s28, s19')
    a('s_mul_i32 s31, s29, 40\ns_add_u32 s31, s31, s28\ns_lshl_b32 s31, s31, 10')
    a('v_lshrrev_b32 v7, 5, v2\nv_lshlrev_b32 v7, 4, v7')
    a(f's_lshl_b32 s32, s28, 5\ns_lshl_b32 s19, s12, 13\ns_add_u32 s32, s32, s19\ns_add_u32 s32, s32, {WS_MODF}')
    def extra_ops():
        ops = []
        if not OPT.get('noxf'):
            ops = [(f's_add_u32 s19, s31, {WS_XF}', False)]
            for i in range(3): ops.append((f'buffer_load_dwordx4 v[{XR+4*i}:{XR+4*i+3}], v3, s[8:11], s19 offen offset:{i*1024} sc1', True))
        for seg, R in ((2, GA), (4, A2), (3, SB)):
            ops.append((f's_add_u32 s19, s32, {seg*1280}', False))
            for i in range(3): ops.append((f'buffer_load_dwordx4 v[{R+4*i}:{R+4*i+3}], v7, s[8:11], s19 offen offset:{i*32} sc1', True))
        return ops
    nks = 20
    a(f's_mul_i32 s22, s29, 40\ns_mul_i32 s19, s27, {nks}\ns_add_u32 s22, s22, s19\ns_lshl_b32 s22, s22, 10\ns_add_u32 s22, s22, {KP_O}')
    half_bytes = 5*10240
    a(f's_mul_i32 s19, s27, {half_bytes}\nv_add_u32 v4, s19, v3')
    a('v_lshrrev_b32 v5, 5, v2\nv_lshlrev_b32 v5, 8, v5\nv_and_b32 v6, 15, v2\nv_lshl_add_u32 v5, v6, 4, v5\nv_add_u32 v5, s19, v5\nv_add_u32 v5, 4096, v5')
    def opsA(c):
        ops = [(f's_add_u32 s25, s22, {c*4096}', False)]
        for q in range(4):
            ks = 4*c + q
            ops.append((f'buffer_load_dwordx4 a[{4*ks}:{4*ks+3}], v3, s[8:11], s25 offen offset:{q*1024} sc1', True))
        return ops
    def read_frag(ks, ct, r):
        base = (ks//4)*10240 + ((ks >> 1) & 1)*5120
        if ct < 2: return f'ds_read_b128 v[{r}:{r+3}], v4 offset:{base + (ks & 1)*2048 + ct*1024}'
        return f'ds_read_b128 v[{r}:{r+3}], v5 offset:{base + (ks & 1)*512}'
    def mfmas(ks, ct, r, first):
        d = ACC + 16*ct
        return [f'v_mfma_f32_32x32x16_bf16 v[{d}:{d+15}], v[{r}:{r+3}], a[{4*ks}:{4*ks+3}], ' + ('0' if first else f'v[{d}:{d+15}]')]
    CF = OPT.get('cfast', 1) and OPT.get('noxf')
    X1 = 160
    PK = 184; PH = 196
    if CF:
        XF = 112; GF = 136
        side = []
        for i in range(12):
            side += [f'v_accvgpr_read_b32 v10, a{144+i}', f'v_lshlrev_b32 v{XF+2*i}, 16, v10', f'v_and_b32 v{XF+2*i+1}, 0xffff0000, v10',
                     f'v_accvgpr_read_b32 v11, a{156+i}', f'v_lshlrev_b32 v{GF+2*i}, 16, v11', f'v_and_b32 v{GF+2*i+1}, 0xffff0000, v11']
        side = [side[2*k] + '\n' + side[2*k+1] for k in range(len(side)//2)]
        gemm2(a, vm, nks, 4, 3, opsA, None, 99, read_frag, mfmas, WB, pd=2, pre=OPT.get('c_pre', 2), pace=1, ahead=5, barriers=False, side=side)
    else:
        if OPT.get('noxf'):
            for i in range(12): a(f'v_accvgpr_read_b32 v{XR+i}, a{144+i}')
        opsA2 = lambda c: opsA(c) + (extra_ops() if c == 4 else [])
        gemm2(a, vm, nks, 4, 3, opsA2, None, 99, read_frag, mfmas, WB, pd=2, pre=OPT.get('c_pre', 2), pace=1, ahead=5, barriers=False)
    a.raw('    ; MARK 10')
    exchange80(a, ACC, 16, LX)
    L = a.newlabel('C_F2')
    if CF:
        def frag1(i):
            for p in range(4):
                d = ACC + 8*i + 2*p; q = 4*i + p; lo = X1 + 2*q
                a(f'v_fma_f32 v12, v{GF+2*q}, v{d}, v{XF+2*q}\nv_fma_f32 v13, v{GF+2*q+1}, v{d+1}, v{XF+2*q+1}')
                a(f'v_cvt_pk_bf16_f32 v{PK+q}, v12, v13')
                a(f'v_lshlrev_b32 v{lo}, 16, v{PK+q}\nv_and_b32 v{lo+1}, 0xffff0000, v{PK+q}')
                if q == 0: a(f'v_pk_add_f32 v[8:9], v[{lo}:{lo+1}], 0 op_sel_hi:[1,0]\nv_pk_mul_f32 v[10:11], v[{lo}:{lo+1}], v[{lo}:{lo+1}]') if False else a(f'v_mov_b32 v8, v{lo}\nv_mov_b32 v9, v{lo+1}\nv_pk_mul_f32 v[10:11], v[{lo}:{lo+1}], v[{lo}:{lo+1}]')
                else: a(f'v_pk_add_f32 v[8:9], v[8:9], v[{lo}:{lo+1}]\nv_pk_fma_f32 v[10:11], v[{lo}:{lo+1}], v[{lo}:{lo+1}], v[10:11]')
        frag1(0); frag1(1)
        a(f's_cmp_eq_u32 s27, 1\ns_cbranch_scc1 {L}')
        frag1(2)
        a.label(L)
        a('v_add_f32 v8, v8, v9\nv_add_f32 v9, v10, v11')
    else:
        a('v_mov_b32 v8, 0\nv_mov_b32 v9, 0')
        def frag1(i):
            for p in range(4):
                d = ACC + 8*i + 2*p; x = XR + 4*i + p; g = GA + 4*i + p
                a(f'v_lshlrev_b32 v10, 16, v{x}\nv_lshlrev_b32 v11, 16, v{g}\nv_fma_f32 v12, v11, v{d}, v10')
                a(f'v_and_b32 v10, 0xffff0000, v{x}\nv_and_b32 v11, 0xffff0000, v{g}\nv_fma_f32 v13, v11, v{d+1}, v10')
                a(f'v_cvt_pk_bf16_f32 v{PK+4*i+p}, v12, v13')
                lo = X1 + 8*i + 2*p
                a(f'v_lshlrev_b32 v{lo}, 16, v{PK+4*i+p}\nv_and_b32 v{lo+1}, 0xffff0000, v{PK+4*i+p}')
                a(f'v_add_f32 v8, v8, v{lo}\nv_fmac_f32 v9, v{lo}, v{lo}\nv_add_f32 v8, v8, v{lo+1}\nv_fmac_f32 v9, v{lo+1}, v{lo+1}')
        frag1(0); frag1(1)
        a(f's_cmp_eq_u32 s27, 1\ns_cbranch_scc1 {L}')
        frag1(2)
        a.label(L)
    a('v_mov_b32 v10, v8\nv_mov_b32 v11, v9')
    a('v_permlane32_swap_b32 v8, v10\nv_permlane32_swap_b32 v9, v11')
    a('v_add_f32 v8, v8, v10\nv_add_f32 v9, v9, v11')
    a(f's_lshl_b32 s19, s29, 4\ns_lshl_b32 s20, s15, 1\ns_add_u32 s19, s19, s20\ns_add_u32 s19, s19, s27\ns_lshl_b32 s33, s19, 8\ns_add_u32 s33, s33, {WS_STAT}')
    a('v_lshlrev_b32 v10, 3, v2')
    def st1(f):
        a('s_mov_b32 exec_hi, 0')
        a(f'buffer_store_dwordx2 v[8:9], v10, s[8:11], s33 offen{f}')
        a('s_mov_b64 exec, -1')
        for i in range(3 if not OPT.get('noxf') else 0):
            Ls = None
            if i == 2:
                Ls = a.newlabel('C_S2'); a(f's_cmp_eq_u32 s27, 1\ns_cbranch_scc1 {Ls}')
            a(f's_add_u32 s19, s31, {KP_X1 + i*1024}\nbuffer_store_dwordx4 v[{PK+4*i}:{PK+4*i+3}], v3, s[8:11], s19 offen{f}')
            if Ls: a.label(Ls)
    store2(a, st1)
    a(f's_lshr_b32 s34, s13, 1\ns_mul_i32 s34, s34, 245760\ns_add_u32 s34, s34, {WS_WGU}')
    if OPT.get('d_rotg'): a('s_mul_i32 s19, s12, 24576\ns_add_u32 s34, s34, s19')
    else: a(f's_and_b32 s19, s13, 1\ns_mul_i32 s19, s19, {5*24576*OPT.get("d_rot", 0)}\ns_add_u32 s34, s34, s19')
    a('s_waitcnt vmcnt(0)')
    a.raw('    ; MARK 11')
    gbar(a, FL_C, during=((lambda: poll_bg(a)) if OPT.get('bg', 1) else None))
    a.raw('    ; MARK 12')
    ST = 64 if CF else 16
    a('v_and_b32 v10, 31, v2\nv_lshrrev_b32 v11, 5, v2\nv_lshlrev_b32 v12, 3, v10\nv_lshl_add_u32 v12, v11, 11, v12')
    a(f's_lshl_b32 s19, s29, 12\ns_add_u32 s19, s19, {WS_STAT}')
    for i in range(8): a(f'buffer_load_dwordx2 v[{ST+2*i}:{ST+2*i+1}], v12, s[8:11], s19 offen offset:{i*256} sc1')
    if CF:
        AF = 16; SF = 40
        for i in range(12):
            a(f'v_accvgpr_read_b32 v10, a{168+i}\nv_accvgpr_read_b32 v11, a{180+i}')
            a(f'v_lshlrev_b32 v{AF+2*i}, 16, v10\nv_and_b32 v{AF+2*i+1}, 0xffff0000, v10\nv_lshlrev_b32 v{SF+2*i}, 16, v11\nv_and_b32 v{SF+2*i+1}, 0xffff0000, v11')
    a('s_waitcnt vmcnt(0)')
    for i in range(1, 8): a(f'v_pk_add_f32 v[{ST}:{ST+1}], v[{ST}:{ST+1}], v[{ST+2*i}:{ST+2*i+1}]')
    a(f'v_mov_b32 v10, v{ST}\nv_mov_b32 v11, v{ST+1}')
    a(f'v_permlane32_swap_b32 v{ST}, v10\nv_permlane32_swap_b32 v{ST+1}, v11')
    a(f'v_add_f32 v10, v{ST}, v10\nv_add_f32 v11, v{ST+1}, v11')
    inv = hex(f2u(1.0/640))
    a(f'v_mul_f32 v10, {inv}, v10\nv_mul_f32 v11, {inv}, v11\nv_fma_f32 v11, -v10, v10, v11\nv_max_f32 v11, 0, v11\nv_add_f32 v11, {hex(f2u(1e-5))}, v11\nv_rsq_f32 v11, v11')
    L = a.newlabel('C_H2')
    if CF:
        a('v_sub_f32 v12, 0, v10\nv_mov_b32 v14, v11\nv_mov_b32 v15, v11\nv_mov_b32 v13, v12')
        def frag2(i):
            for p in range(4):
                q = 4*i + p; lo = X1 + 2*q
                a(f'v_pk_mul_f32 v[{AF+2*q}:{AF+2*q+1}], v[{AF+2*q}:{AF+2*q+1}], v[14:15]')
                a(f'v_pk_fma_f32 v[{SF+2*q}:{SF+2*q+1}], v[{AF+2*q}:{AF+2*q+1}], v[12:13], v[{SF+2*q}:{SF+2*q+1}]')
                a(f'v_pk_fma_f32 v[{lo}:{lo+1}], v[{lo}:{lo+1}], v[{AF+2*q}:{AF+2*q+1}], v[{SF+2*q}:{SF+2*q+1}]')
                a(f'v_cvt_pk_bf16_f32 v{PH+q}, v{lo}, v{lo+1}')
    else:
        def frag2(i):
            for p in range(4):
                lo = X1 + 8*i + 2*p; s2 = A2 + 4*i + p; sb = SB + 4*i + p
                a(f'v_sub_f32 v{lo}, v{lo}, v10\nv_sub_f32 v{lo+1}, v{lo+1}, v10\nv_mul_f32 v{lo}, v{lo}, v11\nv_mul_f32 v{lo+1}, v{lo+1}, v11')
                a(f'v_lshlrev_b32 v12, 16, v{s2}\nv_lshlrev_b32 v13, 16, v{sb}\nv_fma_f32 v{lo}, v{lo}, v12, v13')
                a(f'v_and_b32 v12, 0xffff0000, v{s2}\nv_and_b32 v13, 0xffff0000, v{sb}\nv_fma_f32 v{lo+1}, v{lo+1}, v12, v13')
                a(f'v_cvt_pk_bf16_f32 v{PH+4*i+p}, v{lo}, v{lo+1}')
    frag2(0); frag2(1)
    a(f's_cmp_eq_u32 s27, 1\ns_cbranch_scc1 {L}')
    frag2(2)
    a.label(L)
    def st2(f):
        for i in range(3):
            Ls = None
            if i == 2:
                Ls = a.newlabel('C_S3'); a(f's_cmp_eq_u32 s27, 1\ns_cbranch_scc1 {Ls}')
            a(f's_add_u32 s19, s31, {WS_H2F + i*1024}\nbuffer_store_dwordx4 v[{PH+4*i}:{PH+4*i+3}], v3, s[8:11], s19 offen{f}')
            if Ls: a.label(Ls)
    store2(a, st2)
    a('s_waitcnt vmcnt(0)')
    a.raw('    ; MARK 13')
    gbar(a, FL_UT, during=(lambda: prefetch_blocks(a, 24*OPT.get('d_preB', 1), 34)) if OPT.get('d_preB', 1) else None)
    a.raw('    ; MARK 8')

def phase_d(a):
    vm = Vm(a)
    NSLOT = 6; CB = 24576
    a('s_lshr_b32 s15, s13, 1\ns_and_b32 s19, s13, 1\ns_lshl_b32 s19, s19, 2\ns_lshl_b32 s29, s12, 3\ns_add_u32 s29, s29, s19\ns_add_u32 s29, s29, s3')
    a(f's_mul_i32 s22, s29, 40960\ns_add_u32 s22, s22, {WS_H2F}')
    a(f's_mul_i32 s23, s15, 245760\ns_mul_i32 s30, s3, 6144\ns_add_u32 s23, s23, s30\ns_add_u32 s23, s23, {WS_WGU}')
    R = OPT.get('d_rot', 0)
    a(f's_and_b32 s19, s13, 1\ns_mul_i32 s20, s19, {5*CB*R}\ns_sub_u32 s27, s23, s20\ns_add_u32 s23, s23, s20\ns_mul_i32 s20, s19, {5*4096*R}\ns_sub_u32 s26, s22, s20\ns_add_u32 s22, s22, s20')
    def drot(c, mul, base, dst):
        return [(f's_add_u32 s33, s12, {c}', False), ('s_sub_u32 s21, s33, 10', False), ('s_cmp_ge_u32 s33, 10', False),
                ('s_cselect_b32 s33, s21, s33', False), (f's_mul_i32 s33, s33, {mul}', False), (f's_add_u32 s{dst}, s{base}, s33', False)]
    def opsB(c):
        slot = c % NSLOT
        if OPT.get('d_noB'): return [('s_nop 0', True)]
        if OPT.get('d_rotg'):
            ops = [(f's_add_u32 m0, s30, {slot*CB}', False)] + drot(c, CB, 23, 24)
        else:
            ops = [(f's_add_u32 m0, s30, {slot*CB}', False), (f's_add_u32 s24, s{23 if c < 5 else 27}, {c*CB}', False)]
        NT = ' nt' if OPT.get('d_nt') else ''
        for q in range(4): ops.append((f'buffer_load_dwordx4 v3, s[8:11], s24 offen offset:{q*1024}{BSC()}{NT} lds', True))
        ops += [(f's_add_u32 m0, s30, {slot*CB + 4096}', False), ('s_add_u32 s24, s24, 4096', False)]
        for q in range(2): ops.append((f'buffer_load_dwordx4 v3, s[8:11], s24 offen offset:{q*1024}{BSC()}{NT} lds', True))
        return ops
    TA = OPT.get('d_ta', 0); PB = OPT.get('d_preB', 1)
    if TA:
        a(f's_and_b32 s19, s13, 1\ns_lshl_b32 s19, s19, 2\ns_add_u32 s19, s19, s3\ns_mul_i32 s19, s19, {24*128}\ns_mul_i32 s20, s15, 245760\ns_add_u32 s19, s19, s20\ns_add_u32 s34, s19, {WS_WGU}')
        a('v_lshlrev_b32 v9, 7, v2')
    def opsT(c):
        if not TA or c >= 10: return []
        return [(f's_add_u32 s20, s34, {c*CB}', False), ('s_mov_b64 exec, 0xffffff\nbuffer_load_dword v10, v9, s[8:11], s20 offen\ns_mov_b64 exec, -1', True)]
    WT = OPT.get('d_wdtouch', 0)
    if WT:
        a(f's_mul_i32 s35, s13, 61440\ns_mul_i32 s19, s3, 1536\ns_add_u32 s35, s35, s19\ns_add_u32 s35, s35, {WS_WD}\nv_lshlrev_b32 v9, 7, v2')
    def opsW(c):
        if not WT: return []
        return [(f's_add_u32 s20, s35, {c*6144}', False), ('s_mov_b64 exec, 0xfff\nbuffer_load_dword v255, v9, s[8:11], s20 offen\ns_mov_b64 exec, -1', True)]
    def opsA(c):
        ops = sum((opsT(k) for k in range(PB, PB + TA)), []) if c == 0 else opsT(PB + TA - 1 + c)
        ops = opsW(c) + ops
        if OPT.get('d_rotg'): ops = ops + drot(c, 4096, 22, 25)
        else: ops = ops + [(f's_add_u32 s25, s{22 if c < 5 else 26}, {c*4096}', False)]
        for q in range(4):
            ks = 4*c + q
            ops.append((f'buffer_load_dwordx4 a[{4*ks}:{4*ks+3}], v3, s[8:11], s25 offen offset:{q*1024} sc1', True))
        return ops
    ACC = 88
    TR = bool(OPT.get('bg', 1))
    def read_frag(ks, ct, r):
        off = ((ks//4) % NSLOT)*CB + ((ks & 3)*6 + ct)*1024
        if TR:
            return f'ds_read_b64_tr_b16 v[{r}:{r+1}], v{4 + off//65536} offset:{off % 65536}\nds_read_b64_tr_b16 v[{r+2}:{r+3}], v{4 + off//65536} offset:{off % 65536 + 512}'
        return f'ds_read_b128 v[{r}:{r+3}], v{4 + off//65536} offset:{off % 65536}'
    if TR:
        a('v_lshrrev_b32 v6, 5, v2\nv_lshlrev_b32 v6, 2, v6\nv_bfe_u32 v4, v2, 2, 2\nv_add_u32 v6, v6, v4\nv_and_b32 v4, 3, v2\nv_lshlrev_b32 v4, 3, v4')
        a('v_lshl_add_u32 v4, v6, 6, v4\nv_bfe_u32 v6, v2, 4, 1\nv_lshl_add_u32 v4, v6, 5, v4')
        a('v_add_u32 v5, 0x10000, v4\nv_add_u32 v6, 0x20000, v4')
    else:
        a('v_mov_b32 v4, v3\nv_add_u32 v5, 0x10000, v3\nv_add_u32 v6, 0x20000, v3')
    def mfmas(ks, ct, r, first):
        d = ACC + 16*ct
        if OPT.get('d_nomfma'): return ['s_nop 7']
        return [f'v_mfma_f32_32x32x16_bf16 v[{d}:{d+15}], v[{r}:{r+3}], a[{4*ks}:{4*ks+3}], ' + ('0' if first else f'v[{d}:{d+15}]')]
    gemm2(a, vm, 40, 4, 6, opsA, opsB, OPT.get('d_preB', 1), read_frag, mfmas, 16, pd=(1 if TR else 2), pre=OPT.get('d_pre', 2), nslot=NSLOT, pace=OPT.get('d_pace', 2), ahead=OPT.get('d_ahead', 4), barriers=True, nlgkm=(2 if TR else 1))
    a.raw('    ; MARK 14')
    a(f's_and_b32 s22, s29, 7\ns_mul_i32 s22, s22, 96\ns_mul_i32 s19, s15, 6\ns_add_u32 s22, s22, s19\ns_lshl_b32 s22, s22, 10')
    a(f's_add_u32 s19, s12, 7\ns_and_b32 s19, s19, 7\ns_mul_i32 s19, s19, {KVH_STRIDE}\ns_add_u32 s22, s22, s19\ns_add_u32 s22, s22, {WS_KVH}')
    for ct in range(3):
        for q in range(4):
            g = ACC + 16*ct + 4*q; u = ACC + 16*(3+ct) + 4*q
            a(f'v_pk_mul_f32 v[{g}:{g+1}], v[{g}:{g+1}], v[{u}:{u+1}]\nv_pk_mul_f32 v[{g+2}:{g+3}], v[{g+2}:{g+3}], v[{u+2}:{u+3}]')
            o = 16 + 8*ct + 2*q
            a(f'v_cvt_pk_bf16_f32 v{o}, v{g}, v{g+1}\nv_cvt_pk_bf16_f32 v{o+1}, v{g+2}, v{g+3}')
    def st(f):
        for k in range(6):
            if k == 4: a('s_add_u32 s22, s22, 4096')
            a(f'buffer_store_dwordx4 v[{16+4*k}:{19+4*k}], v3, s[8:11], s22 offen offset:{(k % 4)*1024}{f}')
    store2(a, st)
    a(f's_lshr_b32 s15, s13, 2\ns_mul_i32 s34, s15, {48*5120}\ns_add_u32 s34, s34, {WS_WD}')
    if OPT.get('e_rotg', 1): a('s_mul_i32 s19, s12, 10240\ns_add_u32 s34, s34, s19')
    else: a(f's_and_b32 s19, s13, 3\ns_mul_i32 s19, s19, {3*10240*OPT.get("e_rot", 0)}\ns_add_u32 s34, s34, s19')
    def out_touch():
        pass
    def pf_wd():
      a('s_sub_u32 s19, s3, 1\ns_mul_i32 s19, s19, 20')
      for i in range(20):
          if i in (0, 10):
              a(f's_add_u32 s20, s19, {i}\ns_cmp_ge_u32 s20, 30\ns_cselect_b32 s21, 1, 0\ns_mul_i32 s25, s21, 30\ns_sub_u32 s20, s20, s25\ns_lshl_b32 s20, s20, 10')
              a(f's_mul_i32 s25, s21, {24*5120}\ns_add_u32 s25, s25, s20\ns_add_u32 s25, s25, s34\ns_mul_i32 s21, s21, 61440\ns_add_u32 s21, s21, s20')
          k = i % 10
          if k % 4 == 0:
              a(f's_add_u32 m0, s21, {k*1024}')
              if k: a('s_add_u32 s25, s25, 4096')
          a(f'buffer_load_dwordx4 v3, s[8:11], s25 offen offset:{(k % 4)*1024}{BSC()} lds')
    a('s_waitcnt vmcnt(0)')
    a.raw('    ; MARK 15')
    gbar(a, FL_D, during=pf_wd)
    a.raw('    ; MARK 16')

def phase_e(a):
    vm = Vm(a)
    roles80(a)
    srd(a, 36, 6, 7, 0, ACT_BYTES)
    ACC = 64; WB = 16; XR = 112; GB = 124
    a('s_mul_i32 s28, s15, 5\ns_mul_i32 s19, s27, 3\ns_add_u32 s28, s28, s19')
    a('s_mul_i32 s31, s29, 40\ns_add_u32 s31, s31, s28\ns_lshl_b32 s31, s31, 10')
    a('v_lshrrev_b32 v7, 5, v2\nv_lshlrev_b32 v7, 4, v7')
    a(f's_lshl_b32 s32, s28, 5\ns_lshl_b32 s19, s12, 13\ns_add_u32 s19, s19, s32\ns_add_u32 s19, s19, {WS_MODF + 5*1280}')
    for i in range(3): vm.issue(f'buffer_load_dwordx4 v[{GB+4*i}:{GB+4*i+3}], v7, s[8:11], s19 offen offset:{i*32} sc1', 'x')
    if OPT.get('noxf'): XR = 184
    else:
        a(f's_add_u32 s19, s31, {KP_X1}')
        for i in range(3): vm.issue(f'buffer_load_dwordx4 v[{XR+4*i}:{XR+4*i+3}], v3, s[8:11], s19 offen offset:{i*1024} sc1', 'x')
    XF = 136; GF = 196
    eside = []
    for i in range(12):
        eside += [f'v_lshlrev_b32 v{XF+2*i}, 16, v{XR+i}\nv_and_b32 v{XF+2*i+1}, 0xffff0000, v{XR+i}',
                  f'v_lshlrev_b32 v{GF+2*i}, 16, v{GB+i}\nv_and_b32 v{GF+2*i+1}, 0xffff0000, v{GB+i}']
    if OPT.get('wbl2'):
        Lwb = a.newlabel('E_WB')
        a(f's_cmp_lg_u32 s13, {OPT.get("wbl2_j", 0)}\ns_cbranch_scc1 {Lwb}\ns_cmp_lg_u32 s3, 0\ns_cbranch_scc1 {Lwb}')
        a('buffer_wbl2 sc1')
        a.label(Lwb)
    if OPT.get('e_rotg', 1): a('s_mov_b32 s35, s12')
    else: a('s_and_b32 s35, s13, 3\ns_mul_i32 s35, s35, ' + str(3*OPT.get('e_rot', 0)))
    main80(a, vm, 96, WS_KVH, WS_WD, 6, 3, ACC, WB, True, OPT.get('e_pre', 2), OPT.get('e_pace', 1), OPT.get('e_ahead', 4), tr=bool(OPT.get('bg', 1)), side=eside)
    a.raw('    ; MARK 17')
    exchange80(a, ACC, 16, 122880)
    a('v_and_b32 v8, 31, v2\ns_lshl_b32 s19, s29, 5\nv_add_u32 v8, s19, v8\nv_mul_u32_u24 v8, 1280, v8\nv_add_u32 v8, v8, v7')
    L = a.newlabel('E_F2')
    def frag(i):
        for p in range(4):
            d = ACC + 8*i + 2*p; q = 4*i + p
            a(f'v_pk_fma_f32 v[{d}:{d+1}], v[{GF+2*q}:{GF+2*q+1}], v[{d}:{d+1}], v[{XF+2*q}:{XF+2*q+1}]')
            a(f'v_cvt_pk_bf16_f32 v{16+4*i+p}, v{d}, v{d+1}')
        b = 16 + 4*i
        a(f'v_permlane32_swap_b32 v{b}, v{b+2}\nv_permlane32_swap_b32 v{b+1}, v{b+3}')
        a(f'buffer_store_dwordx4 v[{b}:{b+3}], v8, s[36:39], s32 offen offset:{i*32}' + OPT.get('out_fl', ''))
    frag(0); frag(1)
    a(f's_cmp_eq_u32 s27, 1\ns_cbranch_scc1 {L}')
    frag(2)
    a.label(L)
```

```python
from common import *
import math

def attention(a, K):
    OPT = K.OPT; LK, LV, LONES, QF, NEG = K.LK, K.LV, K.LONES, K.QF, K.NEG
    use_bg = OPT.get('bg', 1)
    if use_bg: K.bg_setup(a)
    a(f's_lshr_b32 s26, s13, 2\ns_mul_i32 s26, s26, 102400\ns_mul_i32 s27, s3, 25600\ns_add_u32 s26, s26, s27\ns_add_u32 s26, s26, {WS_WO}')
    wo = []
    for i in range(25):
        t = ''
        if i % 4 == 0:
            t += f's_add_u32 m0, s27, {i*1024}\n'
            if i: t += 's_add_u32 s26, s26, 4096\n'
        t += f'buffer_load_dwordx4 v3, s[8:11], s26 offen offset:{(i%4)*1024} lds'
        wo.append(t)
    a(f's_add_u32 s19, s12, 7\ns_and_b32 s19, s19, 7\ns_mul_i32 s19, s19, {KVH_STRIDE}\ns_add_u32 s19, s19, {WS_KVH}')
    a(f's_mul_i32 s20, s13, 24576\ns_mul_i32 s21, s3, 6144\ns_add_u32 s20, s20, s21\ns_add_u32 s20, s20, s19')
    a(f's_lshl_b32 s21, s13, 12\ns_lshl_b32 s22, s3, 10\ns_add_u32 s21, s21, s22\ns_add_u32 s21, s21, s19\ns_add_u32 s21, s21, 655360')
    a('s_cmp_eq_u32 s12, 0\ns_cselect_b32 s16, s20, s21\ns_cselect_b32 s25, 48, 8')
    a(f's_lshl_b32 s22, s12, 15\ns_lshl_b32 s23, s13, 10\ns_add_u32 s22, s22, s23\ns_lshl_b32 s23, s3, 8\ns_add_u32 s22, s22, s23\ns_add_u32 s17, s22, {WS_STAT}')
    a('v_lshlrev_b32 v4, 7, v2')
    touches = ['s_bfm_b64 exec, s25, 0\nbuffer_load_dword v255, v4, s[8:11], s16 offen\ns_mov_b64 exec, 3\nbuffer_load_dword v255, v4, s[8:11], s17 offen\ns_mov_b64 exec, -1']
    xres = []
    if OPT.get('noxf'):
        assert not use_bg
        a('s_mov_b32 s32, s40\ns_mov_b32 s33, s41\ns_mov_b32 s34, 2621440\ns_mov_b32 s35, 0x20000')
        a('s_lshl_b32 s19, s12, 8\ns_and_b32 s20, s13, 3\ns_lshl_b32 s20, s20, 6\ns_add_u32 s19, s19, s20\ns_and_b32 s20, s3, 1\ns_lshl_b32 s20, s20, 5\ns_add_u32 s19, s19, s20')
        a('v_and_b32 v8, 31, v2\nv_add_u32 v8, s19, v8\nv_mul_u32_u24 v8, 1280, v8\nv_lshrrev_b32 v14, 5, v2\nv_lshl_add_u32 v8, v14, 3, v8')
        a('s_lshr_b32 s19, s13, 2\ns_mul_i32 s19, s19, 5\ns_lshr_b32 s20, s3, 1\ns_mul_i32 s20, s20, 3\ns_add_u32 s19, s19, s20\ns_lshl_b32 s43, s19, 5')
        if OPT.get('cfast', 1):
            a(f's_lshl_b32 s30, s12, 13\ns_add_u32 s30, s30, s43\ns_add_u32 s30, s30, {WS_MODF}\nv_lshlrev_b32 v15, 4, v14')
            for n, seg in enumerate((2, 4, 3)):
                for i in range(3):
                    xres.append(f's_add_u32 s31, s30, {seg*1280}\nbuffer_load_dwordx4 a[{156+12*n+4*i}:{159+12*n+4*i}], v15, s[8:11], s31 offen offset:{32*i} sc1')
        for i in range(3):
            xres.append(f'buffer_load_dwordx2 a[{144+4*i}:{145+4*i}], v8, s[32:35], s43 offen offset:{32*i}')
            xres.append(f'buffer_load_dwordx2 a[{146+4*i}:{147+4*i}], v8, s[32:35], s43 offen offset:{32*i+16}')
    M0 = 28; M8 = 44; PBUF = 60; S0 = 76
    Sreg = lambda s: S0 + 16*s
    KBUF = 32; VBUF = 56; O1 = (80, 96); O2 = (112, 128)
    NM = (24, 26); MRAW = (252, 253); FF = (222, 223)
    cs = math.log2(math.e)/math.sqrt(20.0)
    a(f's_mov_b32 s28, {hex(f2u(cs))}\ns_mov_b32 s29, {hex(f2u(cs))}')
    a('v_and_b32 v6, 31, v2\nv_lshrrev_b32 v7, 5, v2')
    a(f'v_lshlrev_b32 v9, 3, v6\nv_lshl_add_u32 v9, v7, 12, v9\nv_add_u32 v9, {LK}, v9')
    a('s_lshl_b32 s19, s3, 8\ns_sub_u32 s20, 7, s3\ns_lshl_b32 s20, s20, 8')
    a('v_add_u32 v16, s19, v9\nv_add_u32 v18, s20, v9')
    for b in range(3): a(f'v_accvgpr_write_b32 a{KBUF+8*b+6}, 0\nv_accvgpr_write_b32 a{KBUF+8*b+7}, 0')
    a('v_bfe_u32 v10, v2, 4, 1\nv_lshlrev_b32 v10, 2, v10\nv_and_b32 v11, 3, v2\nv_add_u32 v10, v10, v11')
    a(f'v_mul_u32_u24 v11, 4128, v10\nv_add_u32 v11, {LV}, v11\nv_lshlrev_b32 v12, 5, v10\nv_add_u32 v12, {LONES}, v12')
    a('v_cmp_gt_u32 vcc, 5, v10\nv_lshlrev_b32 v13, 2, v7\nv_sub_u32 v13, v6, v13\nv_cndmask_b32 v10, v12, v11, vcc')
    a('v_bfe_u32 v11, v2, 2, 2\nv_lshl_add_u32 v11, v7, 2, v11\nv_lshl_add_u32 v10, v11, 3, v10')
    a('v_add_u32 v17, s19, v10\nv_add_u32 v19, s20, v10')
    a(f'v_mov_b32 v220, {hex(f2u(NEG))}')
    VK = (16, 18); VV = (17, 19)
    sp = ['vcc', 's[20:21]', 's[22:23]']
    krs = [(r & 3) + 8*(r >> 2) for r in range(16)]
    mask_code = []
    for r in range(18):
        if r < 16: mask_code.append(f'v_cmp_gt_i32 {sp[r % 3]}, {krs[r]}, v13')
        if r >= 2:
            q = r - 2
            mask_code += [f'v_cndmask_b32_e64 v{M0+q}, v220, 0, {sp[q % 3]}', f'v_cndmask_b32_e64 v{M8+q}, 0, v220, {sp[q % 3]}']
    Lend = a.newlabel('AT_END')
    labels = [a.newlabel(f'AT_W{w}') for w in range(4)]
    a(f's_cmp_eq_u32 s3, 1\ns_cbranch_scc1 {labels[1]}\ns_cmp_eq_u32 s3, 2\ns_cbranch_scc1 {labels[2]}\ns_cmp_eq_u32 s3, 3\ns_cbranch_scc1 {labels[3]}')

    def variant(w):
        lg = Lg(a)
        cnt = dict(k=0, v=0)
        kb = {}; vb = {}
        def kread(tb, j):
            b = KBUF + 8*(cnt['k'] % 3); cnt['k'] += 1
            for o, off in ((0, 0), (2, 8192), (4, 16384)):
                lg.issue(f'ds_read_b64 a[{b+o}:{b+o+1}], v{VK[tb]} offset:{off + j*256}', ('k', tb, j))
            kb[(tb, j)] = b
        def vread(tb, j):
            b = VBUF + 8*(cnt['v'] % 3); cnt['v'] += 1
            for s in range(2):
                lg.issue(f'ds_read_b64_tr_b16 a[{b+4*s}:{b+4*s+1}], v{VV[tb]} offset:{j*256 + s*128}', ('v', tb, j))
                lg.issue(f'ds_read_b64_tr_b16 a[{b+4*s+2}:{b+4*s+3}], v{VV[tb]} offset:{j*256 + s*128 + 64}', ('v', tb, j))
            vb[(tb, j)] = b
        def qk_items(tb, j, slot):
            Q = QF + 8*tb; d = Sreg(slot)
            c0 = f'v[{M0}:{M0+15}]' if j == 0 else (f'v[{M8}:{M8+15}]' if j == 8 else '0')
            def m0():
                lg.wait(('k', tb, j)); b = kb[(tb, j)]
                a(f'v_mfma_f32_32x32x16_bf16 v[{d}:{d+15}], a[{b}:{b+3}], v[{Q}:{Q+3}], {c0}')
            def m1():
                b = kb[(tb, j)]
                a(f'v_mfma_f32_32x32x16_bf16 v[{d}:{d+15}], a[{b+4}:{b+7}], v[{Q+4}:{Q+7}], v[{d}:{d+15}]')
            return [m0, m1]
        def pv_items(tb, j, slot, O, first):
            pb = PBUF + 8*(slot & 1)
            def mk(s):
                def f():
                    if s == 0: lg.wait(('v', tb, j))
                    v = vb[(tb, j)]
                    c0 = '0' if (first and s == 0) else f'a[{O}:{O+15}]'
                    a(f'v_mfma_f32_32x32x16_bf16 a[{O}:{O+15}], a[{v+4*s}:{v+4*s+3}], v[{pb+4*s}:{pb+4*s+3}], {c0}')
                return f
            return [mk(0), mk(1)]
        def interleave(valu, items, first=3):
            wts = [2 if t.startswith('v_exp') else 1 for t in valu]
            tot = sum(wts); n = len(items); k = 0; acc = 0
            for t, ww in zip(valu, wts):
                while k < n and acc >= first + k*(tot - first)/n:
                    items[k](); k += 1
                a(t); acc += ww
            while k < n:
                items[k](); k += 1
        def maxchain(slots):
            regs = [Sreg(s) + r for s in slots for r in range(16)]
            out = [f'v_max3_f32 v{20+c}, v{regs[c]}, v{regs[4+c]}, v{regs[8+c]}' for c in range(4)]
            idx = regs[12:]; k = 0
            while idx:
                c = 20 + (k % 4); k += 1
                if len(idx) >= 2:
                    x, y = idx.pop(0), idx.pop(0); out.append(f'v_max3_f32 v{c}, v{c}, v{x}, v{y}')
                else:
                    x = idx.pop(0); out.append(f'v_max_f32 v{c}, v{c}, v{x}')
            out += ['v_max3_f32 v20, v20, v21, v22', 'v_max_f32 v20, v20, v23', 'v_mov_b32 v21, v20', 'v_permlane32_swap_b32 v20, v21', 'v_max_f32 v20, v20, v21']
            return out
        def softmax_list(slot, nm):
            d = Sreg(slot); pb = PBUF + 8*(slot & 1)
            sc = ([f'v_pk_fma_f32 v[{d+r}:{d+r+1}], v[{d+r}:{d+r+1}], s[28:29], v[{nm}:{nm+1}]' for r in range(0, 16, 2)] if OPT.get('pkfma', 1)
                  else [f'v_fma_f32 v{d+r}, v{d+r}, s28, v{nm}' for r in range(16)])
            return (sc + [f'v_exp_f32 v{d+r}, v{d+r}' for r in range(16)] + [f'v_cvt_pk_bf16_f32 v{pb+i}, v{d+2*i}, v{d+2*i+1}' for i in range(8)])
        def stage(tiles, O, shadow, hooks, stage2):
            n = len(tiles)
            order = sorted(range(n), key=lambda s: (tiles[s][1] in (0, 8)) and bool(shadow))
            kread(*tiles[order[0]]); kread(*tiles[order[1]])
            started = set()
            def max_ops(s):
                tb = tiles[s][0]; c = (20 + 2*tb, 21 + 2*tb); r = [Sreg(s) + k for k in range(16)]
                if tb not in started:
                    started.add(tb)
                    out = [f'v_max3_f32 v{c[0]}, v{r[0]}, v{r[1]}, v{r[2]}', f'v_max3_f32 v{c[1]}, v{r[3]}, v{r[4]}, v{r[5]}']; r = r[6:]
                else: out = []
                k = 0
                while r:
                    x, y = r.pop(0), r.pop(0); out.append(f'v_max3_f32 v{c[k & 1]}, v{c[k & 1]}, v{x}, v{y}'); k += 1
                return out
            fill = list(shadow or [])
            def take(k):
                for _ in range(min(k, len(fill))): a(fill.pop(0))
            for i, s in enumerate(order):
                its = qk_items(tiles[s][0], tiles[s][1], s)
                if tiles[s][1] in (0, 8) and shadow:
                    while any('v_cndmask' in t or 'v_cmp' in t for t in fill): take(1)
                if i + 2 < n: kread(*tiles[order[i+2]])
                its[0](); take(5)
                its[1]()
                if i >= 2: fill.extend(max_ops(order[i-2]))
                take(6)
            fill.extend(max_ops(order[n-2]));
            vread(*tiles[0])
            take(10**6)
            for t in max_ops(order[n-1]): a(t)
            for tb in range(2):
                c = (20 + 2*tb, 21 + 2*tb)
                a(f'v_max_f32 v{c[0]}, v{c[0]}, v{c[1]}\nv_mov_b32 v{c[1]}, v{c[0]}')
                a(f'v_permlane32_swap_b32 v{c[0]}, v{c[1]}')
                a(f'v_max_f32 v{c[0]}, v{c[0]}, v{c[1]}')
                if not stage2:
                    a(f'v_mov_b32 v{MRAW[tb]}, v{c[0]}')
                else:
                    a(f'v_max_f32 v{c[0]}, v{c[0]}, v{MRAW[tb]}\nv_sub_f32 v{c[1]}, v{MRAW[tb]}, v{c[0]}\nv_mul_f32 v{c[1]}, s28, v{c[1]}\nv_exp_f32 v{FF[tb]}, v{c[1]}')
                a(f'v_mul_f32 v{NM[tb]}, {hex(f2u(-cs))}, v{c[0]}\nv_mov_b32 v{NM[tb]+1}, v{NM[tb]}')
            seen = set()
            for s in range(n + 1):
                items = []
                if s >= 1:
                    tb, j = tiles[s-1]
                    items = pv_items(tb, j, s-1, O[tb], tb not in seen); seen.add(tb)
                if s < n:
                    if s + 1 < n: vread(*tiles[s+1])
                    interleave(softmax_list(s, NM[tiles[s][0]]), items)
                    if s in hooks: hooks[s]()
                else:
                    for it in items: it()
        T1 = [(0, jj) for jj in range(8-w, 9)] + [(1, jj) for jj in range(w+1, 9)]
        T2 = [(0, jj) for jj in range(0, 8-w)] + [(1, jj) for jj in range(0, w+1)]
        assert len(T1) == 9 and len(T2) == 9
        nbg_early = (8 if (use_bg and w >= 1 and OPT.get('bg_early', 1)) else 0)
        def publish():
            a(f's_waitcnt vmcnt({nbg_early})\ns_barrier')
            if w == 0:
                a(f's_lshl_b32 s19, s12, 7\ns_add_u32 s19, s19, {FL_KV}\ns_lshl_b32 s20, s13, 2\ns_add_u32 s20, s20, s19\nv_mov_b32 v221, s20\nv_mov_b32 v222, 1')
                a('s_mov_b64 exec, 1\nglobal_store_dword v221, v222, s[4:5] sc1\ns_mov_b64 exec, -1')
                a('s_cmp_eq_u32 s12, 0\ns_cselect_b32 s21, 0, 128\ns_sub_u32 s20, s20, s21')
                a('v_and_b32 v221, 31, v2\nv_lshlrev_b32 v221, 2, v221\nv_add_u32 v221, s19, v221\nv_mov_b32 v222, s20\nv_cmp_lt_u32 vcc, 31, v2\nv_cndmask_b32 v221, v221, v222, vcc')
        def probe():
            if w == 0:
                if OPT.get('lnk0', 1):
                    a(f's_lshl_b32 s19, s12, 7\ns_add_u32 s19, s19, {FL_XT}\nv_and_b32 v223, 31, v2\nv_lshlrev_b32 v223, 2, v223\nv_add_u32 v223, s19, v223')
                    a('global_load_dword v23, v223, s[4:5] sc1')
                a('global_load_dword v222, v221, s[4:5] sc1')
        def fetch():
            if w == 0:
                L = a.newlabel('AT_P'); Lo = a.newlabel('AT_PX')
                a(f's_mov_b32 s18, {K.SPIN}\ns_waitcnt vmcnt(0)\nv_cmp_eq_u32 vcc, 0, v222\ns_cbranch_vccz {Lo}')
                a('global_load_dword v20, v221, s[4:5] sc1\ns_sleep 2\nglobal_load_dword v21, v221, s[4:5] sc1\ns_sleep 2')
                a.label(L)
                a('global_load_dword v22, v221, s[4:5] sc1\ns_waitcnt vmcnt(2)\nv_cmp_eq_u32 vcc, 0, v20')
                a(f's_cbranch_vccz {Lo}')
                a('global_load_dword v20, v221, s[4:5] sc1\ns_waitcnt vmcnt(2)\nv_cmp_eq_u32 vcc, 0, v21')
                a(f's_cbranch_vccz {Lo}')
                a('global_load_dword v21, v221, s[4:5] sc1\ns_waitcnt vmcnt(2)\nv_cmp_eq_u32 vcc, 0, v22')
                a(f's_cbranch_vccz {Lo}')
                a(f's_sub_u32 s18, s18, 1\ns_cmp_lg_u32 s18, 0\ns_cbranch_scc1 {L}')
                a.label(Lo)
            if w == 0 and OPT.get('lnk0', 1):
                L2 = a.newlabel('AT_X'); L2o = a.newlabel('AT_XO')
                a(f's_waitcnt vmcnt(0)\ns_mov_b32 s18, {K.SPIN}')
                a.label(L2)
                a(f'v_cmp_eq_u32 vcc, 0, v23\ns_cbranch_vccz {L2o}\ns_sub_u32 s18, s18, 1\ns_cmp_eq_u32 s18, 0\ns_cbranch_scc1 {L2o}')
                a(f'global_load_dword v23, v223, s[4:5] sc1\ns_waitcnt vmcnt(0)\ns_branch {L2}')
                a.label(L2o)
                a('v_cmp_ne_u32 vcc, s15, v23\ns_cmp_eq_u64 vcc, 0\ns_cselect_b32 s14, 1, 0')
                a(f'v_mov_b32 v20, {K.LFAST2}\nv_mov_b32 v21, s14\nds_write_b32 v20, v21\ns_waitcnt lgkmcnt(0)')
            a('s_barrier')
            Ls = a.newlabel('AT_NH')
            a(f's_cmp_eq_u32 s12, 0\ns_cbranch_scc1 {Ls}')
            a(f's_sub_u32 s22, s24, {KVH_STRIDE - 5*w*1024}')
            for q in range(5):
                ii = 5*w + q; piece, half = ii >> 1, ii & 1
                dst = (LK + piece*4096 if piece < 5 else LV + (piece-5)*4128) + half*1024
                a(f's_mov_b32 m0, {dst}')
                if q: a('s_add_u32 s22, s22, 1024')
                a('buffer_load_dwordx4 v3, s[8:11], s22 offen sc1 lds')
            a.label(Ls)
        def branchy(tg, td):
            Ld = a.newlabel('BS_D'); Le = a.newlabel('BS_E')
            return f's_cmp_ge_u32 s2, 160\ns_cbranch_scc1 {Ld}\n' + tg + f'\ns_branch {Le}\n{Ld}:\n' + td + f'\n{Le}:'
        def emit_text(t):
            for line in t.split('\n'):
                if line.endswith(':'): a.label(line[:-1])
                else: a(line)
        plan = K.bg_plan(w) if (use_bg and w >= 1) else []
        hooks = {}
        def add_hook(slot, fn):
            prev = hooks.get(slot)
            hooks[slot] = (lambda: (prev(), fn())) if prev else fn
        add_hook(OPT.get('at_pub', 1), publish)
        GT = OPT.get('gu_touch', 0)
        if GT and w >= 1:
            nl = GT*192//2//3
            def gtouch(k):
                def f():
                    if k == 0:
                        a(f's_lshr_b32 s19, s13, 1\ns_mul_i32 s19, s19, 245760\ns_and_b32 s20, s13, 1\ns_mul_i32 s20, s20, {GT*192//2*128}\ns_add_u32 s19, s19, s20\ns_add_u32 s42, s19, {WS_WGU + (w-1)*nl*128}')
                    n = min(64, nl - 64*k)
                    ex = f's_mov_b64 exec, {hex((1 << n) - 1)}\n' if n < 32 else (f's_mov_b32 exec_lo, -1\ns_mov_b32 exec_hi, {hex((1 << (n-32)) - 1)}\n' if n < 64 else '')
                    a(ex + f'buffer_load_dword v255, v4, s[8:11], s42 offen' + ('\ns_mov_b64 exec, -1' if n < 64 else '') + '\ns_add_u32 s42, s42, 8192')
                return f
            for k in range((nl + 63)//64): add_hook(min(8, OPT.get('gu_t0', 1) + k), gtouch(k))
        if not OPT.get('bg_early', 1):
            for k, (g_, d_) in enumerate(plan):
                add_hook(min(8, OPT.get('at_pub', 1) + (k*OPT.get('bg_spread', 4))//8), lambda k=k, g_=g_, d_=d_: emit_text(branchy(*K.bg_load(k, g_, d_))))
        else:
            for k, (g_, d_) in enumerate(plan): emit_text(branchy(*K.bg_load(k, g_, d_)))
        add_hook(OPT.get('at_probe', 6), probe)
        add_hook(OPT.get('at_fetch', 7), fetch)
        stage(T1, O1, list(mask_code), hooks, False)
        NW1 = OPT.get('wo_s1n', 12)
        for t in wo[:NW1]: a(t)
        a(f's_waitcnt vmcnt({NW1}) lgkmcnt(0)\ns_barrier')
        if OPT.get('lnk0', 1): a(f'v_mov_b32 v20, {K.LFAST2}\nds_read_b32 v21, v20\ns_waitcnt lgkmcnt(0)\nv_readfirstlane_b32 s14, v21')
        if w == 0: a.raw('    ; MARK 5')
        a0 = a.lines; a.lines = []
        stage(T2, O2, None, {}, True)
        for tb in range(2):
            R = 240 + 6*tb; A = O1[tb]; B = O2[tb]; f = FF[tb]
            a(f'v_accvgpr_read_b32 v20, a{A+8}\nv_accvgpr_read_b32 v21, a{B+8}\nv_fma_f32 v20, v20, v{f}, v21\nv_mov_b32 v21, v20')
            a('v_permlane32_swap_b32 v20, v21\nv_rcp_f32 v21, v21')
            a(f'v_mul_f32 v{f}, v{f}, v21')
            for i in range(6):
                a(f'v_accvgpr_read_b32 v22, a{B+2*i}\nv_accvgpr_read_b32 v23, a{B+2*i+1}\nv_accvgpr_read_b32 v9, a{A+2*i}\nv_accvgpr_read_b32 v10, a{A+2*i+1}')
                a(f'v_mul_f32 v22, v22, v21\nv_mul_f32 v23, v23, v21\nv_fma_f32 v22, v9, v{f}, v22\nv_fma_f32 v23, v10, v{f}, v23\nv_cvt_pk_bf16_f32 v{R+i}, v22, v23')
        body = a.lines; a.lines = a0
        real = [i for i, l in enumerate(body) if l.startswith('    ') and not l.strip().startswith(';')]
        N = len(real)
        sched = []
        if OPT.get('noxf'):
            for k, t in enumerate(xres): sched.append((OPT.get('xres_f', 0.06) + 0.04*k, t))
        for k, (g_, d_) in enumerate(plan):
            sched.append((OPT.get('bg_s0', 0.02) + OPT.get('bg_sd', 0.04)*k, branchy(*K.bg_store(k, g_, d_))))
        for t in touches: sched.append((OPT.get('bg_t', 0.30), t))
        if not OPT.get('no_wo'):
            wo2 = wo[OPT.get('wo_s1n', 12):]
            for k, t in enumerate(wo2): sched.append((OPT.get('bg_w0', 0.05) + OPT.get('bg_wspan', 0.75)*k/max(1, len(wo2)), t))
        pos = {}
        for fr, t in sched: pos.setdefault(real[min(N-1, int(fr*N) + OPT.get('stagger', 0)*w)], []).append(t)
        for i, l in enumerate(body):
            a.raw(l)
            for t in pos.get(i, []):
                for line in t.split('\n'):
                    if line.endswith(':'): a.label(line[:-1])
                    else: a(line)
        a(f's_branch {Lend}')
    for w in range(4):
        if w: a.label(labels[w])
        variant(w)
    a.label(Lend)
```

```python
from common import *
import math

SPIN = 2000000
LH = 81920
LFAST = LH + 2560
LK = 114176
LV = LK + 24576
LONES = 159488
LFAST2 = 110592
NEG = -30000.0
KP_O = WS_H1F
WS_H2F = WS_H1F
KP_X1 = WS_XF

def store2(a, text_fn):
    L1 = a.newlabel('ST_S'); L2 = a.newlabel('ST_E')
    a(f's_cmp_eq_u32 s14, 0\ns_cbranch_scc1 {L1}')
    text_fn('')
    a(f's_branch {L2}')
    a.label(L1)
    text_fn(' sc1')
    a.label(L2)

def poll(a, vaddr, cond_reg='v20', sbase='s[4:5]', n=1, spin=None, pipe=False):
    L = a.newlabel('POLL'); Lo = a.newlabel('POLLX')
    a(f's_mov_b32 s18, {spin or SPIN}')
    if pipe:
        a(f'global_load_dword v252, {vaddr}, {sbase} sc1\ns_nop 7\nglobal_load_dword v253, {vaddr}, {sbase} sc1\ns_nop 7')
        a.label(L)
        for x, y in ((254, 252), (252, 253), (253, 254)):
            a(f'global_load_dword v{x}, {vaddr}, {sbase} sc1\ns_waitcnt vmcnt(2)\nv_cmp_eq_u32 vcc, 0, v{y}\ns_cbranch_vccz {Lo}')
        a(f's_sub_u32 s18, s18, 1\ns_cmp_lg_u32 s18, 0\ns_cbranch_scc1 {L}')
        a.label(Lo)
        return
    a.label(L)
    a(f's_sub_u32 s18, s18, 1\ns_cmp_eq_u32 s18, 0\ns_cbranch_scc1 {Lo}')
    a(f'global_load_dword {cond_reg}, {vaddr}, {sbase} sc1')
    a('s_waitcnt vmcnt(0)')
    a(f'v_cmp_eq_u32 vcc, 0, {cond_reg}')
    a(f's_cbranch_vccnz {L}')
    a.label(Lo)

def poll_bg(a):
    L = a.newlabel('PBG'); Lo = a.newlabel('PBGX'); Ls = a.newlabel('PBGS')
    a(f's_cmp_lg_u32 s3, 1\ns_cbranch_scc1 {Ls}')
    a(f'v_add_u32 v18, {FL_BG}, v3\ns_mov_b32 s18, {SPIN}')
    a.label(L)
    a(f's_sub_u32 s18, s18, 1\ns_cmp_eq_u32 s18, 0\ns_cbranch_scc1 {Lo}')
    a('global_load_dwordx4 v[20:23], v18, s[4:5] sc1\ns_waitcnt vmcnt(0)')
    a('v_min_u32 v20, v20, v21\nv_min_u32 v22, v22, v23\nv_min_u32 v20, v20, v22\nv_cmp_eq_u32 vcc, 0, v20')
    a(f's_cbranch_vccnz {L}')
    a.label(Lo)
    a.label(Ls)

def gbar(a, flag, local=True, during=None, also_set=None):
    L = a.newlabel('GB'); Ld = a.newlabel('GBD')
    a('s_barrier')
    a(f's_cmp_lg_u32 s3, 0\ns_cbranch_scc1 {Ld if during else L}')
    a(f's_lshl_b32 s19, s12, 7\ns_add_u32 s19, s19, {flag}')
    a(f's_lshl_b32 s20, s13, 2\ns_add_u32 s20, s20, s19\nv_mov_b32 v18, s20\nv_mov_b32 v19, 1')
    a('s_mov_b64 exec, 1')
    if local: store2(a, lambda f: a(f'global_store_dword v18, v19, s[4:5]{f}'))
    else: a('global_store_dword v18, v19, s[4:5] sc1')
    if also_set is not None:
        a(f's_lshl_b32 s20, s2, 2\ns_add_u32 s20, s20, {also_set}\nv_mov_b32 v18, s20\nglobal_store_dword v18, v19, s[4:5] sc1')
    a('s_mov_b64 exec, -1')
    a('v_and_b32 v18, 31, v2\nv_lshlrev_b32 v18, 2, v18\nv_add_u32 v18, s19, v18')
    poll(a, 'v18', pipe=bool(OPT.get('pipepoll', 1)))
    if during:
        a(f's_branch {L}')
        a.label(Ld)
        during()
    a.label(L)
    a('s_barrier')

def fin_mod(a, base, nq_valid_exec=None):
    for e in range(4):
        a(f'v_add_f32 v{base+e}, v{base+e}, v{base+4+e}\nv_add_f32 v{base+8+e}, v{base+8+e}, v{base+12+e}\nv_add_f32 v{base+e}, v{base+e}, v{base+8+e}')

def round_pack(a, base, vone, out):
    a(f'v_cvt_pk_bf16_f32 v{out}, v{base}, v{base+1}\nv_cvt_pk_bf16_f32 v{out+1}, v{base+2}, v{base+3}')
    a(f'v_lshlrev_b32 v{base}, 16, v{out}\nv_and_b32 v{base+1}, 0xffff0000, v{out}\nv_lshlrev_b32 v{base+2}, 16, v{out+1}\nv_and_b32 v{base+3}, 0xffff0000, v{out+1}')
    for e in range(4): a(f'v_add_f32 v{base+e}, v{base+e}, v{vone}')
    a(f'v_cvt_pk_bf16_f32 v{out}, v{base}, v{base+1}\nv_cvt_pk_bf16_f32 v{out+1}, v{base+2}, v{base+3}')

def cperm_pos_bytes(a, vcol4, out, tmp):
    a(f'v_lshrrev_b32 v{out}, 2, v{vcol4}\nv_lshlrev_b32 v{out}, 5, v{out}')
    a(f'v_and_b32 v{tmp}, 1, v{vcol4}\nv_lshl_add_u32 v{out}, v{tmp}, 4, v{out}')
    a(f'v_bfe_u32 v{tmp}, v{vcol4}, 1, 1\nv_lshl_add_u32 v{out}, v{tmp}, 3, v{out}')

LHF = 81920
LFAST = LHF + 5120


def round4(a, base, vone):
    t = base + 4
    for rep in range(2):
        a(f'v_cvt_pk_bf16_f32 v{t}, v{base}, v{base+1}\nv_cvt_pk_bf16_f32 v{t+1}, v{base+2}, v{base+3}')
        a(f'v_lshlrev_b32 v{base}, 16, v{t}\nv_and_b32 v{base+1}, 0xffff0000, v{t}\nv_lshlrev_b32 v{base+2}, 16, v{t+1}\nv_and_b32 v{base+3}, 0xffff0000, v{t+1}')
        if rep == 0:
            for e in range(4): a(f'v_add_f32 v{base+e}, v{base+e}, v{vone}')

def bg_setup(a):
    a('s_lshl_b32 s30, s2, 1')
    a('v_lshrrev_b32 v14, 3, v2\nv_and_b32 v15, 7, v2')
    Ld = a.newlabel('BG_D'); Le = a.newlabel('BG_E')
    a(f's_cmp_ge_u32 s2, 160\ns_cbranch_scc1 {Ld}')
    a(f's_lshr_b32 s19, s30, 3\ns_mul_i32 s43, s19, 49152\ns_and_b32 s20, s30, 3\ns_mul_i32 s20, s20, 768\ns_add_u32 s43, s43, s20')
    a('s_bitcmp1_b32 s30, 2\ns_cselect_b32 s32, s38, s36\ns_cselect_b32 s33, s39, s37')
    a(f's_and_b32 s20, s30, 3\ns_mul_i32 s31, s20, {4*40*6144}\ns_mul_i32 s19, s19, 6144\ns_add_u32 s31, s31, s19\ns_bfe_u32 s19, s30, 0x10002\ns_mul_i32 s19, s19, 3072\ns_add_u32 s31, s31, s19\ns_add_u32 s31, s31, {WS_WGU}')
    a('v_mul_u32_u24 v8, 3072, v14\nv_lshl_add_u32 v8, v15, 4, v8')
    a('v_lshlrev_b32 v14, 6, v14\nv_and_b32 v11, 3, v15\nv_lshl_add_u32 v14, v11, 4, v14\nv_lshrrev_b32 v11, 2, v15')
    a(f'v_mul_u32_u24 v15, {40*6144 - 2048}, v11\nv_add_u32 v15, v15, v14\nv_lshl_add_u32 v14, v11, 10, v14')
    a(f's_branch {Le}')
    a.label(Ld)
    a(f's_sub_u32 s30, s30, 320\ns_lshr_b32 s19, s30, 1\ns_mul_i32 s43, s19, 20480')
    a('s_mov_b32 s32, s40\ns_mov_b32 s33, s41')
    a(f's_lshr_b32 s31, s30, 2\ns_mul_i32 s31, s31, 5120\ns_add_u32 s31, s31, {WS_WD}\ns_and_b32 s30, s19, 1')
    a('v_mul_u32_u24 v8, 1280, v14\nv_lshl_add_u32 v8, v15, 4, v8')
    a.label(Le)
    a('s_mov_b32 s34, 1966080\ns_mov_b32 s35, 0x20000')

def bg_plan(w):
    gu = [(i, rh, m) for i in range(2) for m in range(6) for rh in range(2)]
    dn = [(i, rh, m) for i in range(2) for m in range(5) for rh in range(2)]
    g = gu[w-1::3]; d = dn[w-1::3]
    return [(g[k], d[k] if k < len(d) else None) for k in range(8)]

def bg_load(k, gu, dn):
    i, rh, m = gu
    return (f's_add_u32 s19, s43, {i*768 + rh*8*3072}\nbuffer_load_dwordx4 a[{4*k}:{4*k+3}], v8, s[32:35], s19 offen offset:{128*m}',
            (f's_add_u32 s19, s43, {dn[0]*640 + dn[1]*8*1280}\nbuffer_load_dwordx4 a[{4*k}:{4*k+3}], v8, s[32:35], s19 offen offset:{128*dn[2]}' if dn
             else f'buffer_load_dwordx4 a[{4*k}:{4*k+3}], v8, s[32:35], s43 offen'))

def bg_store(k, gu, dn):
    i, rh, m = gu
    b = 2*m
    off = i*4*40*6144 + (b//3)*40*6144 + (b % 3)*1024 + rh*512
    tg = f's_add_u32 s23, s31, {off}\nbuffer_store_dwordx4 a[{4*k}:{4*k+3}], v{15 if (b % 3) == 2 else 14}, s[8:11], s23 offen sc1'
    if dn is None: return tg, 's_nop 0'
    i, rh, m = dn
    t = f'v_add_u32 v11, {8*m}, v15\nv_mul_u32_u24 v12, 6554, v11\nv_lshrrev_b32 v12, 16, v12\nv_mul_u32_u24 v8, 10, v12\nv_sub_u32 v11, v11, v8'
    t += f'\nv_mul_u32_u24 v12, {48*5}, v12\nv_lshlrev_b32 v12, 10, v12'
    t += f'\ns_lshl_b32 s19, s30, 11\ns_add_u32 s19, s19, {rh*512}\ns_lshl_b32 s23, s30, 9\ns_add_u32 s23, s23, {4096 + rh*256}'
    t += '\nv_cmp_lt_u32 s[20:21], 7, v11\nv_and_b32 v8, 3, v11\nv_lshlrev_b32 v8, 4, v8\nv_lshrrev_b32 v11, 2, v11\nv_lshlrev_b32 v11, 10, v11'
    t += '\nv_lshl_add_u32 v11, v14, 6, v11\nv_add_u32 v11, s19, v11\nv_add_u32 v12, v12, v8\nv_lshlrev_b32 v8, 5, v14\nv_add_u32 v8, s23, v8\nv_cndmask_b32_e64 v11, v11, v8, s[20:21]\nv_add_u32 v12, v12, v11'
    t += f'\ns_add_u32 s23, s31, {i*4*48*5120}\nbuffer_store_dwordx4 a[{4*k}:{4*k+3}], v12, s[8:11], s23 offen sc1'
    return tg, t

LSYNC = LFAST + 16
def lds_arrive(a, off):
    a(f'v_mov_b32 v18, {LSYNC + off}\nv_mov_b32 v19, 1\ns_mov_b64 exec, 1\nds_add_u32 v18, v19\ns_mov_b64 exec, -1')
def lds_spin(a, off, n):
    L = a.newlabel('LSP'); Lo = a.newlabel('LSPX')
    a(f'v_mov_b32 v18, {LSYNC + off}\ns_mov_b32 s18, {SPIN}')
    a.label(L)
    a(f's_sub_u32 s18, s18, 1\ns_cmp_eq_u32 s18, 0\ns_cbranch_scc1 {Lo}')
    a(f'ds_read_b32 v19, v18\ns_waitcnt lgkmcnt(0)\nv_readfirstlane_b32 s19, v19\ns_cmp_lt_u32 s19, {n}\ns_cbranch_scc1 {L}')
    a.label(Lo)

def phase_h(a):
    a(f'v_mov_b32 v18, {LSYNC}\nv_mov_b32 v20, 0\nv_mov_b32 v21, 0\nv_mov_b32 v22, 0\nv_mov_b32 v23, 0\nds_write_b128 v18, v[20:23]\ns_waitcnt lgkmcnt(0)\ns_barrier')
    Lw23 = a.newlabel('H_W23'); Lend = a.newlabel('H_END')
    a(f's_cmp_ge_u32 s3, 2\ns_cbranch_scc1 {Lw23}')
    a('s_setprio 3')
    a('v_lshrrev_b32 v5, 4, v2\nv_and_b32 v4, 15, v2')
    a('s_lshl_b32 s19, s12, 8\ns_lshl_b32 s20, s13, 3\ns_add_u32 s19, s19, s20\ns_lshl_b32 s20, s3, 2\ns_add_u32 s19, s19, s20')
    a('v_add_u32 v5, s19, v5')
    a('v_lshrrev_b32 v7, 1, v4\nv_and_b32 v8, 1, v4')
    a(f's_mul_i32 s21, s3, 2560\ns_add_u32 s21, s21, {WS_MODP}')
    for p in range(4):
        for r in range(3):
            a(f'buffer_load_dwordx4 v[{24+16*r+4*p}:{27+16*r+4*p}], v3, s[8:11], s21 offen offset:{r*1024}')
        if p < 3: a('s_add_u32 s21, s21, 15360')
    srd(a, 24, 16, 17, 0, ACT_BYTES)
    a('v_mul_u32_u24 v6, 1280, v5\nv_lshl_add_u32 v6, v7, 5, v6\nv_lshl_add_u32 v6, v8, 3, v6')
    for i in range(5):
        a(f'buffer_load_dwordx2 v[{192+4*i}:{193+4*i}], v6, s[24:27], 0 offen offset:{i*256}')
        a(f'buffer_load_dwordx2 v[{194+4*i}:{195+4*i}], v6, s[24:27], 0 offen offset:{i*256+16}')
    Lx = a.newlabel('H_XT'); Lx2 = a.newlabel('H_XT2')
    a('s_getreg_b32 s15, hwreg(HW_REG_XCC_ID, 0, 4)\ns_add_u32 s15, s15, 1')
    a(f's_cmp_lg_u32 s3, 1\ns_cbranch_scc1 {Lx}')
    a(f's_lshl_b32 s19, s12, 7\ns_lshl_b32 s20, s13, 2\ns_add_u32 s19, s19, s20\ns_add_u32 s19, s19, {FL_XT}')
    a('v_mov_b32 v18, s19\nv_mov_b32 v19, s15\ns_mov_b64 exec, 1')
    a('global_store_dword v18, v19, s[4:5] sc1')
    a('s_mov_b64 exec, -1')
    a('s_waitcnt vmcnt(11)')
    a(f's_branch {Lx2}')
    a.label(Lx)
    a('s_waitcnt vmcnt(10)')
    a.label(Lx2)
    a.raw('    ; MARK 0')
    a('v_lshrrev_b32 v14, 2, v2\nv_lshlrev_b32 v14, 6, v14\nv_and_b32 v15, 1, v2\nv_lshl_add_u32 v14, v15, 5, v14\nv_bfe_u32 v15, v2, 1, 1\nv_lshl_add_u32 v14, v15, 4, v14')
    a(f's_mul_i32 s20, s3, 2560\ns_add_u32 s20, s20, {LHF}\nv_add_u32 v14, s20, v14')
    a('s_cmp_eq_u32 s3, 1\ns_cselect_b32 s20, 1.0, 0\nv_mov_b32 v12, s20')
    for r in range(3):
        b = 24 + 16*r
        fin_mod(a, b); round4(a, b, 12)
        if r == 2: a('s_mov_b32 exec_hi, 0')
        a(f'ds_write_b128 v14, v[{b}:{b+3}] offset:{r*1024}')
        if r == 2: a('s_mov_b64 exec, -1')
    a('s_waitcnt lgkmcnt(0)')
    lds_arrive(a, 0)
    X = 192; F = 124
    a('s_waitcnt vmcnt(0)')
    a(f's_lshl_b32 s19, s12, 7\ns_add_u32 s19, s19, {FL_XT}\nv_and_b32 v22, 31, v2\nv_lshlrev_b32 v22, 2, v22\nv_add_u32 v22, s19, v22')
    a('global_load_dword v20, v22, s[4:5] sc1')
    for i in range(20):
        a(f'v_lshlrev_b32 v{F+2*i}, 16, v{X+i}\nv_and_b32 v{F+1+2*i}, 0xffff0000, v{X+i}')
    a(f'v_pk_add_f32 v[12:13], v[{F}:{F+1}], v[{F+2}:{F+3}]\nv_pk_add_f32 v[14:15], v[{F+4}:{F+5}], v[{F+6}:{F+7}]')
    for i in range(4, 20, 2):
        a(f'v_pk_add_f32 v[12:13], v[12:13], v[{F+2*i}:{F+2*i+1}]\nv_pk_add_f32 v[14:15], v[14:15], v[{F+2*i+2}:{F+2*i+3}]')
    a('v_pk_add_f32 v[12:13], v[12:13], v[14:15]\nv_add_f32 v12, v12, v13')
    for rot in (8, 4, 2, 1):
        a(f'v_add_f32_dpp v12, v12, v12 row_ror:{rot} row_mask:0xf bank_mask:0xf')
    a(f'v_mul_f32 v12, {hex(f2u(-1.0/640))}, v12\nv_mov_b32 v13, v12')
    for i in range(20): a(f'v_pk_add_f32 v[{F+2*i}:{F+2*i+1}], v[{F+2*i}:{F+2*i+1}], v[12:13]')
    a(f'v_pk_mul_f32 v[14:15], v[{F}:{F+1}], v[{F}:{F+1}]\nv_pk_mul_f32 v[16:17], v[{F+2}:{F+3}], v[{F+2}:{F+3}]')
    for i in range(2, 20, 2):
        a(f'v_pk_fma_f32 v[14:15], v[{F+2*i}:{F+2*i+1}], v[{F+2*i}:{F+2*i+1}], v[14:15]\nv_pk_fma_f32 v[16:17], v[{F+2*i+2}:{F+2*i+3}], v[{F+2*i+2}:{F+2*i+3}], v[16:17]')
    a('v_pk_add_f32 v[14:15], v[14:15], v[16:17]\nv_add_f32 v14, v14, v15')
    for rot in (8, 4, 2, 1):
        a(f'v_add_f32_dpp v14, v14, v14 row_ror:{rot} row_mask:0xf bank_mask:0xf')
    a(f'v_mov_b32 v15, {hex(f2u(1e-5))}\nv_fmac_f32 v15, {hex(f2u(1.0/640))}, v14\nv_rsq_f32 v14, v15')
    a('v_mov_b32 v15, v14')
    Lp = a.newlabel('H_XP'); Lpo = a.newlabel('H_XPO')
    a(f's_waitcnt vmcnt(0)\nv_cmp_eq_u32 vcc, 0, v20\ns_cbranch_vccz {Lpo}')
    poll(a, 'v22')
    a.label(Lpo)
    a('v_cmp_ne_u32 vcc, s15, v20\ns_cmp_eq_u64 vcc, 0\ns_cselect_b32 s14, 1, 0')
    a(f'v_mov_b32 v18, {LFAST}\nv_mov_b32 v19, s14\nds_write_b32 v18, v19')
    lds_spin(a, 0, 2)
    a(f'v_lshlrev_b32 v9, 5, v4\nv_add_u32 v9, {LHF}, v9')
    A1 = 24; SA = 64
    for i in range(5):
        for hh in range(2):
            a(f'ds_read_b128 v[{A1+8*i+4*hh}:{A1+8*i+4*hh+3}], v9 offset:{2560 + i*512 + 16*hh}')
            a(f'ds_read_b128 v[{SA+8*i+4*hh}:{SA+8*i+4*hh+3}], v9 offset:{i*512 + 16*hh}')
    for i in range(20): a(f'v_pk_mul_f32 v[{F+2*i}:{F+2*i+1}], v[{F+2*i}:{F+2*i+1}], v[14:15]')
    for i in range(5):
        a(f's_waitcnt lgkmcnt({min(15, 16 - 4*i)})')
        for k in range(4*i, 4*i+4):
            a(f'v_pk_fma_f32 v[{F+2*k}:{F+2*k+1}], v[{F+2*k}:{F+2*k+1}], v[{A1+2*k}:{A1+2*k+1}], v[{SA+2*k}:{SA+2*k+1}]')
            a(f'v_cvt_pk_bf16_f32 v{164+k}, v{F+2*k}, v{F+2*k+1}')
    a('v_and_b32 v10, 31, v5\nv_lshlrev_b32 v10, 4, v10\nv_lshl_add_u32 v10, v7, 10, v10\nv_lshl_add_u32 v10, v8, 9, v10')
    a('s_lshl_b32 s19, s12, 3\ns_lshr_b32 s20, s13, 2\ns_add_u32 s21, s19, s20\ns_mul_i32 s21, s21, 40960')
    def st(f):
        for i in range(5):
            a(f's_add_u32 s20, s21, {WS_H1F + i*8192}')
            a(f'buffer_store_dwordx4 v[{164+4*i}:{167+4*i}], v10, s[8:11], s20 offen{f}')
    store2(a, st)
    a('s_waitcnt vmcnt(0)')
    a.raw('    ; MARK 1')
    Lw1 = a.newlabel('H_W1'); Lst = a.newlabel('H_ST')
    a(f's_cmp_eq_u32 s3, 1\ns_cbranch_scc1 {Lw1}')
    lds_spin(a, 4, 1)
    a(f's_lshl_b32 s22, s12, 7\ns_add_u32 s22, s22, {FL_H}\ns_lshl_b32 s20, s13, 2\ns_add_u32 s20, s20, s22\nv_mov_b32 v18, s20\nv_mov_b32 v19, 1\ns_mov_b64 exec, 1')
    store2(a, lambda f: a(f'global_store_dword v18, v19, s[4:5]{f}'))
    a('s_mov_b64 exec, -1')
    a('v_and_b32 v18, 31, v2\nv_lshlrev_b32 v18, 2, v18\nv_add_u32 v18, s22, v18')
    poll(a, 'v18')
    a(f's_branch {Lst}')
    a.label(Lw1)
    lds_arrive(a, 4)
    a.label(Lst)
    def st2(f):
        for i in range(5):
            a(f's_add_u32 s20, s21, {WS_XF + i*8192}')
            a(f'buffer_store_dwordx4 v[{X+4*i}:{X+3+4*i}], v10, s[8:11], s20 offen{f}')
    if not OPT.get('noxf'): store2(a, st2)
    a(f's_branch {Lend}')
    a.label(Lw23)
    if OPT.get('tlbwarm'):
        a('v_lshlrev_b32 v9, 21, v2\ns_mov_b64 exec, 0x3ffffff')
        a('buffer_load_dword v255, v9, s[8:11], 0 offen')
        a('s_mov_b64 exec, 3')
        a('global_load_dword v255, v9, s[6:7]')
        a('s_mov_b64 exec, 1')
        for r in (36, 38, 40): a(f'global_load_dword v255, v9, s[{r}:{r+1}]')
        a('s_mov_b64 exec, -1')
    if OPT.get('h_touch', 1):
        a(f's_mul_i32 s20, s12, 327680\ns_mul_i32 s21, s13, 10240\ns_add_u32 s20, s20, s21\ns_sub_u32 s21, s3, 2\ns_mul_i32 s21, s21, 5120\ns_add_u32 s20, s20, s21\ns_add_u32 s20, s20, {WS_H1F}')
        touch(a, 8, 9, 255, 20, 40)
    if OPT.get('kv_touch'):
        a(f's_mul_i32 s20, s12, {KVH_STRIDE}\ns_mul_i32 s21, s13, 20480\ns_add_u32 s20, s20, s21\ns_sub_u32 s21, s3, 2\ns_mul_i32 s21, s21, 10240\ns_add_u32 s20, s20, s21\ns_add_u32 s20, s20, {WS_KVH}')
        touch(a, 8, 9, 255, 20, 80)
    a(f's_mul_i32 s20, s13, 81920\ns_sub_u32 s21, s3, 2\ns_lshl_b32 s21, s21, 12\ns_add_u32 s20, s20, s21\ns_add_u32 s20, s20, {WS_WQKV}')
    PB = OPT.get('a_preB', 10)
    for i in range(PB):
        a(f's_add_u32 m0, s21, {i*8192}')
        for q in range(4): a(f'buffer_load_dwordx4 v3, s[8:11], s20 offen offset:{q*1024} lds')
        if i < PB-1: a('s_add_u32 s20, s20, 8192')
    L3 = a.newlabel('H_T3')
    a(f's_cmp_eq_u32 s3, 3\ns_cbranch_scc0 {L3}')
    a('s_mul_i32 s20, s13, 20\ns_add_u32 s20, s20, 320\nv_add_u32 v10, s20, v2\nv_lshlrev_b32 v11, 4, v10')
    for p in range(4):
        a(f's_mov_b32 s20, {WS_MODP + p*15360}')
        a(f'buffer_load_dwordx4 v[{44+4*p}:{47+4*p}], v11, s[8:11], s20 offen')
    a.label(L3)
    a('s_waitcnt vmcnt(0)')
    L4 = a.newlabel('H_T4')
    a(f's_cmp_eq_u32 s3, 3\ns_cbranch_scc0 {L4}')
    fin_mod(a, 44)
    a('v_mul_u32_u24 v12, 410, v10\nv_lshrrev_b32 v12, 16, v12')
    a('v_mul_u32_u24 v13, 160, v12\nv_sub_u32 v13, v10, v13')
    cperm_pos_bytes(a, 13, 14, 15)
    a('v_mul_u32_u24 v15, 1280, v12\nv_add_u32 v14, v14, v15')
    a('v_cmp_eq_u32 vcc, 4, v12\nv_cndmask_b32_e64 v12, 0, 1.0, vcc')
    round_pack(a, 44, 12, 48)
    a(f's_lshl_b32 s20, s12, 13\ns_add_u32 s20, s20, {WS_MODF}')
    a('s_mov_b32 exec_lo, 0xfffff\ns_mov_b32 exec_hi, 0')
    a('buffer_store_dwordx2 v[48:49], v14, s[8:11], s20 offen sc1')
    a('s_mov_b64 exec, -1')
    a.label(L4)
    a.label(Lend)
    a.raw('    ; MARK 19')
    a('s_setprio 0')
    a('s_waitcnt lgkmcnt(0)\ns_barrier')
    a(f'v_mov_b32 v18, {LFAST}\nds_read_b32 v19, v18\ns_waitcnt lgkmcnt(0)\nv_readfirstlane_b32 s14, v19')
    a.raw('    ; MARK 2')


def phase_start(a):
    Lx = a.newlabel('S_XT')
    a('s_getreg_b32 s15, hwreg(HW_REG_XCC_ID, 0, 4)\ns_add_u32 s15, s15, 1')
    a(f's_cmp_lg_u32 s3, 1\ns_cbranch_scc1 {Lx}')
    a(f's_lshl_b32 s19, s12, 7\ns_lshl_b32 s20, s13, 2\ns_add_u32 s19, s19, s20\ns_add_u32 s19, s19, {FL_XT}')
    a('v_mov_b32 v18, s19\nv_mov_b32 v19, s15\ns_mov_b64 exec, 1')
    a('global_store_dword v18, v19, s[4:5] sc1')
    a('s_mov_b64 exec, -1')
    a.label(Lx)
    a('s_mul_i32 s20, s13, 20\ns_mul_i32 s21, s3, 5\ns_add_u32 s20, s20, s21\ns_add_u32 s20, s20, 320\nv_add_u32 v140, s20, v2\nv_lshlrev_b32 v141, 4, v140')
    for p in range(4):
        a(f's_mov_b32 s20, {WS_MODP + p*15360}')
        a(f'buffer_load_dwordx4 v[{144+4*p}:{147+4*p}], v141, s[8:11], s20 offen')
    a.raw('    ; MARK 2')


def a_side():
    b = Asm(); items = []
    def item():
        items.append('\n'.join(l.strip() for l in b.lines)); b.lines = []
    b('v_and_b32 v6, 31, v2\nv_lshrrev_b32 v7, 5, v2'); item()
    b(f'v_lshlrev_b32 v8, 4, v0\nv_add_u32 v8, {LK + 5*4096}, v8'); item()
    b('v_mov_b32 v12, 0\nv_mov_b32 v13, 0'); item()
    b('v_mov_b32 v14, 0\nv_mov_b32 v15, 0'); item()
    Lb = b.newlabel('A_NB')
    nb = f2u(NEG) >> 16
    b(f's_cmp_lg_u32 s12, 0\ns_cbranch_scc1 {Lb}\nv_mov_b32 v9, {nb}\nv_cmp_gt_u32 vcc, 128, v0\ns_nop 1\nv_cndmask_b32 v12, 0, v9, vcc\nv_mov_b32 v14, v12')
    b.label(Lb); b('ds_write_b128 v8, v[12:15]'); item()
    b('v_mov_b32 v12, 0x3f803f80\nv_mov_b32 v13, 0x3f803f80'); item()
    b('v_mov_b32 v14, 0x3f803f80\nv_mov_b32 v15, 0x3f803f80'); item()
    b(f'v_lshlrev_b32 v8, 4, v0\nv_add_u32 v8, {LONES}, v8'); item()
    b('ds_write_b128 v8, v[12:15]\ns_mov_b64 exec, 0xffff\ns_cmp_eq_u32 s3, 0\ns_cselect_b64 exec, exec, 0') if False else None
    b('ds_write_b128 v8, v[12:15]'); item()
    Lo = b.newlabel('A_NO')
    b(f's_cmp_lg_u32 s3, 0\ns_cbranch_scc1 {Lo}\ns_mov_b64 exec, 0xffff\nds_write_b128 v8, v[12:15] offset:4096\ns_mov_b64 exec, -1'); b.label(Lo); item()
    Lz = b.newlabel('A_NZ')
    b(f's_cmp_lg_u32 s12, 0\ns_cbranch_scc1 {Lz}')
    b('v_mov_b32 v12, 0\nv_mov_b32 v13, 0\nv_mov_b32 v14, 0\nv_mov_b32 v15, 0')
    b('v_and_b32 v8, 127, v0\nv_lshlrev_b32 v8, 4, v8\nv_lshrrev_b32 v9, 7, v0')
    b(f'v_mul_u32_u24 v10, 4096, v9\nv_add_u32 v10, v10, v8\nv_add_u32 v10, {LK}, v10')
    for gg in (0, 2): b(f'ds_write_b128 v10, v[12:15] offset:{gg*4096}')
    b(f'v_mul_u32_u24 v11, 4128, v9\nv_add_u32 v11, v11, v8\nv_add_u32 v11, {LV}, v11')
    for gg in (0, 2): b(f'ds_write_b128 v11, v[12:15] offset:{gg*4128}')
    Lz2 = b.newlabel('A_NZ2')
    b(f's_cmp_ge_u32 s3, 2\ns_cbranch_scc1 {Lz2}\nds_write_b128 v10, v[12:15] offset:{4*4096}\nds_write_b128 v11, v[12:15] offset:{4*4128}')
    b.label(Lz2); b.label(Lz); item()
    b(f'v_mul_u32_u24 v8, 4096, v7\nv_add_u32 v8, {LK}, v8'); item()
    b(f'v_mul_u32_u24 v9, 4128, v7\nv_add_u32 v9, {LV}, v9'); item()
    b(f'v_mov_b32 v10, {LK + 4*4096}\nv_mov_b32 v11, {LV + 4*4128}'); item()
    b('v_cmp_eq_u32 vcc, 1, v7'); item()
    b('v_cndmask_b32 v10, v10, v11, vcc'); item()
    b(f's_mul_i32 s31, s12, {KVH_STRIDE}\ns_mul_i32 s29, s13, 20480\ns_add_u32 s31, s31, s29\ns_add_u32 s31, s31, {WS_KVH}'); item()
    b(f'v_lshlrev_b32 v11, 11, v7\nv_mov_b32 v12, {4*2048}'); item()
    b(f'v_mov_b32 v13, {9*2048}'); item()
    b('v_cndmask_b32 v12, v12, v13, vcc'); item()
    for tb in range(2):
        b(f's_sub_u32 s29, s{20+tb}, s19\ns_lshl_b32 s29, s29, 5\nv_add_u32 v{14+tb}, s29, v6'); item()
        b(f'v_lshlrev_b32 v{14+tb}, 3, v{14+tb}'); item()
    return items

def modf_side():
    b = Asm()
    fin_mod(b, 144)
    b('v_mul_u32_u24 v142, 410, v140\nv_lshrrev_b32 v142, 16, v142')
    b('v_mul_u32_u24 v143, 160, v142\nv_sub_u32 v143, v140, v143')
    cperm_pos_bytes(b, 143, 160, 161)
    b('v_mul_u32_u24 v161, 1280, v142\nv_add_u32 v160, v160, v161')
    b('v_cmp_eq_u32 vcc, 4, v142\ns_nop 1\nv_cndmask_b32_e64 v142, 0, 1.0, vcc')
    round_pack(b, 144, 142, 148)
    b(f's_lshl_b32 s29, s12, 13\ns_add_u32 s29, s29, {WS_MODF}')
    out = [l.strip() for l in b.lines]
    out.append('s_mov_b64 exec, 31\nbuffer_store_dwordx2 v[148:149], v160, s[8:11], s29 offen sc1\ns_mov_b64 exec, -1')
    return out

ACC_A = 40
QF = 224
OPT = dict(a_pre=3, a_pace=2, a_ahead=5, a_sc=' sc1', a_preB=5, bg=0, lnk0=0, noxf=1, at_probe=5, at_fetch=6, k0st=' sc1')
def phase_a(a):
    vm = Vm(a)
    a('s_lshl_b32 s19, s12, 3\ns_add_u32 s20, s19, s3\ns_sub_u32 s21, 7, s3\ns_add_u32 s21, s19, s21')
    a(f's_mul_i32 s22, s20, 40960\ns_add_u32 s22, s22, {WS_H1F}\ns_mul_i32 s23, s21, 40960\ns_add_u32 s23, s23, {WS_H1F}')
    def opsA(c):
        ops = []
        for tb in range(2):
            ops.append((f's_add_u32 s{24+tb}, s{22+tb}, {c*4096}', False))
            for q in range(4):
                f = (2*(4*c + q) + tb) % 64
                ops.append((f'buffer_load_dwordx4 a[{4*f}:{4*f+3}], v3, s[8:11], s{24+tb} offen offset:{q*1024}{OPT["a_sc"]}', True))
        return ops
    a('v_add_u32 v5, 0x10000, v3')
    def read_frag(ks, ct, r):
        off = (ks*2 + ct)*1024
        return f'ds_read_b128 v[{r}:{r+3}], v{3 if off < 65536 else 5} offset:{off % 65536}'
    def mfmas(ks, ct, r, first):
        out = []
        for tb in range(2):
            d = ACC_A + (tb*2 + ct)*16; f = (2*ks + tb) % 64
            out.append(f'v_mfma_f32_32x32x16_bf16 v[{d}:{d+15}], v[{r}:{r+3}], a[{4*f}:{4*f+3}], ' + ('0' if first else f'v[{d}:{d+15}]'))
        return out
    PB = OPT.get('a_preB', 10)
    a(f's_mul_i32 s26, s13, 81920\ns_lshl_b32 s27, s3, 11\ns_add_u32 s26, s26, s27\ns_add_u32 s26, s26, {WS_WQKV}')
    def opsB(c):
        return [(f's_add_u32 m0, s27, {c*8192}', False), (f's_add_u32 s28, s26, {c*8192}', False),
                ('buffer_load_dwordx4 v3, s[8:11], s28 offen lds', True), ('buffer_load_dwordx4 v3, s[8:11], s28 offen offset:1024 lds', True)]
    side = ['s_nop 0']*8 + a_side()
    if OPT.get('lnk0', 1):
        side = side + modf_side()
    gemm2(a, vm, 40, 4, 2, opsA, opsB, PB, read_frag, mfmas, 16, pd=2, pre=OPT['a_pre'], pace=OPT['a_pace'], ahead=OPT['a_ahead'], barriers=(PB < 10), side=side)
    a.raw('    ; MARK 3')
    for tb in range(2):
        P = 120 + 10*tb
        quads = [(0, 0), (0, 1), (0, 2), (0, 3), (1, 0)]
        for i, (ct, q) in enumerate(quads):
            d = ACC_A + (tb*2 + ct)*16 + 4*q
            a(f'v_cvt_pk_bf16_f32 v{P+2*i}, v{d}, v{d+1}\nv_cvt_pk_bf16_f32 v{P+2*i+1}, v{d+2}, v{d+3}')
        Ls = a.newlabel('A_NS')
        tk = 14 + tb
        a(f's_cmp_eq_u32 s12, 7\ns_cbranch_scc1 {Ls}')
        a(f'v_add_u32 v21, v11, v{tk}\nv_add_u32 v22, v12, v{tk}')
        a(f'buffer_store_dwordx2 v[{P}:{P+1}], v21, s[8:11], s31 offen sc1')
        a(f's_add_u32 s25, s31, {2*2048}\nbuffer_store_dwordx2 v[{P+2}:{P+3}], v21, s[8:11], s25 offen sc1')
        a(f'buffer_store_dwordx2 v[{P+4}:{P+5}], v22, s[8:11], s31 offen sc1')
        a(f's_add_u32 s25, s31, {5*2048}\nbuffer_store_dwordx2 v[{P+6}:{P+7}], v21, s[8:11], s25 offen sc1')
        a(f's_add_u32 s25, s31, {7*2048}\nbuffer_store_dwordx2 v[{P+8}:{P+9}], v21, s[8:11], s25 offen sc1')
        a.label(Ls)
    a('s_mov_b32 s24, s31\nv_cmp_eq_u32 vcc, 1, v7')
    for tb in range(2):
        P = 120 + 10*tb; tk = 14 + tb
        a(f'v_add_u32 v20, 2048, v{tk}')
        a(f'v_add_u32 v21, v8, v20\nds_write_b64 v21, v[{P}:{P+1}]\nds_write_b64 v21, v[{P+2}:{P+3}] offset:8192')
        a(f'v_add_u32 v22, v10, v20\nds_write_b64 v22, v[{P+4}:{P+5}]')
        a(f'v_add_u32 v23, v9, v20\nds_write_b64 v23, v[{P+6}:{P+7}]\nds_write_b64 v23, v[{P+8}:{P+9}] offset:{2*4128}')
        Q = QF + 8*tb
        for i, q in enumerate((1, 2, 3)):
            d = ACC_A + (tb*2 + 1)*16 + 4*q
            a(f'v_cvt_pk_bf16_f32 v{Q+2*i}, v{d}, v{d+1}\nv_cvt_pk_bf16_f32 v{Q+2*i+1}, v{d+2}, v{d+3}')
        a(f'v_mov_b32 v21, 0x3f80\nv_cndmask_b32 v{Q+4}, v{Q+4}, v21, vcc\nv_cndmask_b32_e64 v{Q+5}, v{Q+5}, 0, vcc\nv_mov_b32 v{Q+6}, 0\nv_mov_b32 v{Q+7}, 0')
    a('s_waitcnt lgkmcnt(0)\ns_barrier')
    a.raw('    ; MARK 4')

def phase_b(a):
    import sys as _sys
    from kp_attn import attention
    attention(a, _sys.modules[__name__])
    a.raw('    ; MARK 6')
    a(f's_lshl_b32 s19, s12, 3\ns_add_u32 s20, s19, s3\ns_sub_u32 s21, 7, s3\ns_add_u32 s21, s21, s19\ns_mul_i32 s20, s20, 40960\ns_mul_i32 s21, s21, 40960')
    a(f's_lshl_b32 s22, s13, 10\ns_add_u32 s22, s22, {KP_O}')
    a(f's_lshr_b32 s23, s13, 2\ns_add_u32 s23, s23, 32\ns_lshl_b32 s23, s23, 10\ns_bfe_u32 s25, s13, 0x10001\ns_lshl_b32 s25, s25, 9\ns_add_u32 s23, s23, s25\ns_and_b32 s25, s13, 1\ns_lshl_b32 s25, s25, 3\ns_add_u32 s23, s23, s25\ns_add_u32 s23, s23, {KP_O}')
    def st(f):
        for tb in range(2):
            R = 240 + 6*tb
            a(f's_add_u32 s25, s{20+tb}, s22\nbuffer_store_dwordx4 v[{R}:{R+3}], v3, s[8:11], s25 offen{f}')
        a('s_mov_b32 exec_hi, 0')
        for tb in range(2):
            R = 240 + 6*tb
            a(f's_add_u32 s25, s{20+tb}, s23\nbuffer_store_dwordx2 v[{R+4}:{R+5}], v3, s[8:11], s25 offen{f}')
        a('s_mov_b64 exec, -1')
    store2(a, st)
    a('s_waitcnt vmcnt(0)')
    gbar(a, FL_O, also_set=FL_BG)
    a.raw('    ; MARK 7')

def kp_kernel(upto='E'):
    a = Asm()
    a('s_cmp_ge_u32 s2, 256\ns_cbranch_scc1 KP_END')
    a(f's_load_dwordx2 s[4:5], s[0:1], {KA_WS}')
    a(f's_load_dwordx2 s[6:7], s[0:1], {KA_OUT}')
    a(f's_load_dwordx2 s[16:17], s[0:1], {KA_X}')
    a(f's_load_dwordx4 s[36:39], s[0:1], {KA_WG}')
    ka40 = KA_X if OPT.get('noxf') else KA_WD
    a(f's_load_dwordx2 s[40:41], s[0:1], {ka40}')
    wave_id(a, 3, 1)
    a('v_and_b32 v2, 63, v0\nv_lshlrev_b32 v3, 4, v2')
    if OPT.get('perm_roles'): a('s_lshr_b32 s12, s2, 5\ns_and_b32 s13, s2, 31\ns_mov_b32 s14, 0')
    else: a('s_and_b32 s12, s2, 7\ns_lshr_b32 s13, s2, 3\ns_mov_b32 s14, 0')
    a('s_waitcnt lgkmcnt(0)')
    ws_rebase(a, 4)
    srd(a, 8, 4, 5, 0, WS_END)
    if OPT.get('lnk0', 1):
        OPT['a_preB'] = OPT.get('a_preB0', 0)
        phase_start(a)
    else: phase_h(a)
    def hoist(nxt):
        b = Asm(); nxt(b)
        k = 0
        if OPT.get('hoist', 1):
            while True:
                t = b.lines[k].strip()
                if t.startswith(('buffer_', 'global_', 'ds_', 's_waitcnt', 's_barrier', 's_cbranch', 's_branch', ';')) or t.endswith(':') or 'exec' in t or t.startswith('v_accvgpr'): break
                k += 1
            last_bar = max(i for i, l in enumerate(a.lines) if l.strip() == 's_barrier')
            first_bar = max(i for i, l in enumerate(a.lines[:last_bar]) if l.strip() == 's_barrier')
            w = max(i for i, l in enumerate(a.lines[:first_bar]) if l.strip() == 's_waitcnt vmcnt(0)')
            a.lines[w:w] = b.lines[:k]
        a.lines += b.lines[k:]
    if upto != 'H':
        phase_a(a)
        phase_b(a)
    if upto not in ('H', 'B'):
        from kp2 import phase_c, phase_d, phase_e
        hoist(phase_c)
        if upto != 'C':
            hoist(phase_d)
            if upto != 'D': hoist(phase_e)
    a.label('KP_END')
    a('s_endpgm')
    a.label('KP_CODE_END')
    return dict(name='kp_kernel', body=a.text(), grid=256, block=256, lds=163840, vgpr=256, agpr=256, sgpr=44, sgpr_real=96)
```

```python
from common import *
from kp import store2, gbar, poll, poll_bg, OPT, WS_H2F, KP_O, KP_X1

def BSC(): return ' sc1' if OPT.get('bg', 1) and OPT.get('b_sc1', 1) else ''
LX = 102400

def roles80(a):
    a('s_and_b32 s26, s3, 1\ns_lshr_b32 s27, s3, 1\ns_lshr_b32 s15, s13, 2')
    a('s_lshl_b32 s29, s12, 3\ns_and_b32 s19, s13, 3\ns_lshl_b32 s19, s19, 1\ns_add_u32 s29, s29, s19\ns_add_u32 s29, s29, s26')

def main80(a, vm, nks_total, ws_act, ws_w, nslot, preB, ACC, WB, barriers, pre, pace, ahead, tr=False, side=None, before=None):
    nks = nks_total//2; npair = nks//2; nchunk = nks//4
    half_bytes = nslot*10240
    a(f's_and_b32 s22, s29, 7\ns_mul_i32 s22, s22, {nks_total}\ns_mul_i32 s19, s27, {nks}\ns_add_u32 s22, s22, s19\ns_lshl_b32 s22, s22, 10')
    a(f's_add_u32 s19, s12, 7\ns_and_b32 s19, s19, 7\ns_mul_i32 s19, s19, {KVH_STRIDE}\ns_add_u32 s22, s22, s19\ns_add_u32 s22, s22, {ws_act}')
    a(f's_mul_i32 s23, s15, {2*npair}\ns_mul_i32 s19, s27, {npair}\ns_add_u32 s23, s23, s19\ns_add_u32 s23, s23, s26\ns_mul_i32 s23, s23, 5120\ns_add_u32 s23, s23, {ws_w}')
    a(f's_mul_i32 s30, s27, {half_bytes}\ns_mul_i32 s19, s26, 5120\ns_add_u32 s30, s30, s19')
    a(f's_mul_i32 s19, s27, {half_bytes}\nv_add_u32 v4, s19, v3')
    a('v_lshrrev_b32 v5, 5, v2\nv_lshlrev_b32 v5, 8, v5\nv_and_b32 v6, 15, v2\nv_lshl_add_u32 v5, v6, 4, v5\nv_add_u32 v5, s19, v5\nv_add_u32 v5, 4096, v5')
    def rot(c, mul, base, dst):
        return [(f's_add_u32 s33, s35, {c}', False), (f's_sub_u32 s21, s33, {nchunk}', False), (f's_cmp_ge_u32 s33, {nchunk}', False),
                ('s_cselect_b32 s33, s21, s33', False), (f's_mul_i32 s33, s33, {mul}', False), (f's_add_u32 s{dst}, s{base}, s33', False)]
    def opsB(c):
        slot = c % nslot
        if OPT.get('e_noB'): return [('s_nop 0', True)]
        ops = [(f's_add_u32 m0, s30, {slot*10240}', False)] + rot(c, 10240, 23, 24)
        for q in range(4): ops.append((f'buffer_load_dwordx4 v3, s[8:11], s24 offen offset:{q*1024}{BSC()} lds', True))
        ops += [(f's_add_u32 m0, s30, {slot*10240 + 4096}', False), (f's_add_u32 s24, s24, 4096', False)]
        ops.append((f'buffer_load_dwordx4 v3, s[8:11], s24 offen{BSC()} lds', True))
        return ops
    TA = OPT.get('e_ta', 0)
    if TA:
        a('s_and_b32 s19, s13, 3\ns_lshl_b32 s19, s19, 2\ns_add_u32 s19, s19, s3\ns_mul_i32 s19, s19, 10\ns_cmp_ge_u32 s19, 80\ns_cselect_b32 s20, 1, 0')
        a(f's_mul_i32 s21, s20, 80\ns_sub_u32 s19, s19, s21\ns_lshl_b32 s19, s19, 7\ns_mul_i32 s20, s20, {npair*5120}\ns_add_u32 s19, s19, s20\ns_mul_i32 s20, s15, {2*npair*5120}\ns_add_u32 s19, s19, s20\ns_add_u32 s34, s19, {ws_w}')
        a('v_lshlrev_b32 v9, 7, v2')
    def opsT(c):
        if not TA or c >= nchunk: return []
        return [(f's_add_u32 s20, s34, {c*10240}', False), ('s_mov_b64 exec, 0x3ff\nbuffer_load_dword v10, v9, s[8:11], s20 offen\ns_mov_b64 exec, -1', True)]
    def opsA(c):
        ops = sum((opsT(k) for k in range(preB, preB + TA)), []) if c == 0 else opsT(preB + TA - 1 + c)
        ops = ops + rot(c, 4096, 22, 25)
        if OPT.get('e_noA') and c >= 2: return [('s_nop 0', True)]
        for q in range(4):
            ks = 4*c + q
            ops.append((f'buffer_load_dwordx4 a[{4*ks}:{4*ks+3}], v3, s[8:11], s25 offen offset:{q*1024} sc1', True))
        return ops
    if tr:
        a('v_lshrrev_b32 v6, 5, v2\nv_lshlrev_b32 v6, 2, v6\nv_bfe_u32 v4, v2, 2, 2\nv_add_u32 v6, v6, v4\nv_and_b32 v4, 3, v2\nv_lshlrev_b32 v4, 3, v4')
        a('v_lshl_add_u32 v5, v6, 5, v4\nv_lshl_add_u32 v4, v6, 6, v4\nv_bfe_u32 v6, v2, 4, 1\nv_lshl_add_u32 v4, v6, 5, v4')
        a(f's_mul_i32 s19, s27, {half_bytes}\nv_add_u32 v4, s19, v4\nv_add_u32 v5, s19, v5\nv_add_u32 v5, 4096, v5')
    def read_frag(ks, ct, r):
        c = ks // 4; slot = c % nslot
        base = slot*10240 + ((ks >> 1) & 1)*5120
        if tr:
            if ct < 2:
                o = base + (ks & 1)*2048 + ct*1024
                return f'ds_read_b64_tr_b16 v[{r}:{r+1}], v4 offset:{o}\nds_read_b64_tr_b16 v[{r+2}:{r+3}], v4 offset:{o+512}'
            o = base + (ks & 1)*512
            return f'ds_read_b64_tr_b16 v[{r}:{r+1}], v5 offset:{o}\nds_read_b64_tr_b16 v[{r+2}:{r+3}], v5 offset:{o+256}'
        if ct < 2: return f'ds_read_b128 v[{r}:{r+3}], v4 offset:{base + (ks & 1)*2048 + ct*1024}'
        return f'ds_read_b128 v[{r}:{r+3}], v5 offset:{base + (ks & 1)*512}'
    def mfmas(ks, ct, r, first):
        d = ACC + 16*ct
        if OPT.get('e_nomfma'): return ['s_nop 0']
        return [f'v_mfma_f32_32x32x16_bf16 v[{d}:{d+15}], v[{r}:{r+3}], a[{4*ks}:{4*ks+3}], ' + ('0' if first else f'v[{d}:{d+15}]')]
    if before: before()
    gemm2(a, vm, nks, 4, 3, opsA, opsB, preB, read_frag, mfmas, WB, pd=2, pre=pre, nslot=nslot, pace=pace, ahead=ahead, barriers=barriers, nlgkm=(2 if tr else 1), side=side)

def exchange80(a, ACC, T, region):
    def q(i): return ACC + 4*i
    L1 = a.newlabel('X_KH1'); L2 = a.newlabel('X_W')
    a(f's_mul_i32 s19, s3, 6144\ns_add_u32 s19, s19, {region}\nv_add_u32 v6, s19, v3')
    a(f's_cmp_eq_u32 s27, 1\ns_cbranch_scc1 {L1}')
    for i in range(6, 10): a(f'ds_write_b128 v6, v[{q(i)}:{q(i)+3}] offset:{(i-6)*1024}')
    a(f's_branch {L2}')
    a.label(L1)
    for i in range(6): a(f'ds_write_b128 v6, v[{q(i)}:{q(i)+3}] offset:{i*1024}')
    a.label(L2)
    a('s_waitcnt lgkmcnt(0)\ns_barrier')
    a(f's_xor_b32 s19, s3, 2\ns_mul_i32 s19, s19, 6144\ns_add_u32 s19, s19, {region}\nv_add_u32 v6, s19, v3')
    L3 = a.newlabel('X_R1'); L4 = a.newlabel('X_RD')
    a(f's_cmp_eq_u32 s27, 1\ns_cbranch_scc1 {L3}')
    for i in range(6): a(f'ds_read_b128 v[{T+4*i}:{T+4*i+3}], v6 offset:{i*1024}')
    for i in range(6):
        a(f's_waitcnt lgkmcnt({5-i})')
        for e in range(4): a(f'v_add_f32 v{q(i)+e}, v{q(i)+e}, v{T+4*i+e}')
    a(f's_branch {L4}')
    a.label(L3)
    for i in range(4): a(f'ds_read_b128 v[{T+4*i}:{T+4*i+3}], v6 offset:{i*1024}')
    for i in range(4):
        a(f's_waitcnt lgkmcnt({3-i})')
        for e in range(4): a(f'v_add_f32 v{q(i)+e}, v{q(6+i)+e}, v{T+4*i+e}')
    a.label(L4)

def prefetch_blocks(a, nblk, gbase_sgpr, contiguous=True, lds_map=None):
    L = a.newlabel('PF_N')
    per = (nblk + 2)//3
    a(f's_cmp_eq_u32 s3, 0\ns_cbranch_scc1 {L}')
    a(f's_sub_u32 s19, s3, 1\ns_mul_i32 s19, s19, {per*1024}\ns_add_u32 s20, s{gbase_sgpr}, s19')
    for i in range(per):
        if i % 4 == 0:
            a(f's_add_u32 m0, s19, {i*1024}')
            if i: a('s_add_u32 s20, s20, 4096')
        guard = (2*per + i >= nblk)
        if guard:
            L2 = a.newlabel('PF_S'); a(f's_cmp_eq_u32 s3, 3\ns_cbranch_scc1 {L2}')
        a(f'buffer_load_dwordx4 v3, s[8:11], s20 offen offset:{(i%4)*1024}{BSC()} lds')
        if guard: a.label(L2)
    a.label(L)
    return per

def wait_stores(a, npf):
    L1 = a.newlabel('WS_A'); L2 = a.newlabel('WS_B')
    a(f's_cmp_eq_u32 s3, 0\ns_cbranch_scc1 {L1}')
    a(f's_waitcnt vmcnt({npf})')
    a(f's_branch {L2}')
    a.label(L1)
    a('s_waitcnt vmcnt(0)')
    a.label(L2)

def phase_c(a):
    vm = Vm(a)
    roles80(a)
    ACC = 64; WB = 16
    XR = 112; GA = 124; A2 = 136; SB = 148
    a('s_mul_i32 s28, s15, 5\ns_mul_i32 s19, s27, 3\ns_add_u32 s28, s28, s19')
    a('s_mul_i32 s31, s29, 40\ns_add_u32 s31, s31, s28\ns_lshl_b32 s31, s31, 10')
    a('v_lshrrev_b32 v7, 5, v2\nv_lshlrev_b32 v7, 4, v7')
    a(f's_lshl_b32 s32, s28, 5\ns_lshl_b32 s19, s12, 13\ns_add_u32 s32, s32, s19\ns_add_u32 s32, s32, {WS_MODF}')
    def extra_ops():
        ops = []
        if not OPT.get('noxf'):
            ops = [(f's_add_u32 s19, s31, {WS_XF}', False)]
            for i in range(3): ops.append((f'buffer_load_dwordx4 v[{XR+4*i}:{XR+4*i+3}], v3, s[8:11], s19 offen offset:{i*1024} sc1', True))
        for seg, R in ((2, GA), (4, A2), (3, SB)):
            ops.append((f's_add_u32 s19, s32, {seg*1280}', False))
            for i in range(3): ops.append((f'buffer_load_dwordx4 v[{R+4*i}:{R+4*i+3}], v7, s[8:11], s19 offen offset:{i*32} sc1', True))
        return ops
    nks = 20
    a(f's_mul_i32 s22, s29, 40\ns_mul_i32 s19, s27, {nks}\ns_add_u32 s22, s22, s19\ns_lshl_b32 s22, s22, 10\ns_add_u32 s22, s22, {KP_O}')
    half_bytes = 5*10240
    a(f's_mul_i32 s19, s27, {half_bytes}\nv_add_u32 v4, s19, v3')
    a('v_lshrrev_b32 v5, 5, v2\nv_lshlrev_b32 v5, 8, v5\nv_and_b32 v6, 15, v2\nv_lshl_add_u32 v5, v6, 4, v5\nv_add_u32 v5, s19, v5\nv_add_u32 v5, 4096, v5')
    def opsA(c):
        ops = [(f's_add_u32 s25, s22, {c*4096}', False)]
        for q in range(4):
            ks = 4*c + q
            ops.append((f'buffer_load_dwordx4 a[{4*ks}:{4*ks+3}], v3, s[8:11], s25 offen offset:{q*1024} sc1', True))
        return ops
    def read_frag(ks, ct, r):
        base = (ks//4)*10240 + ((ks >> 1) & 1)*5120
        if ct < 2: return f'ds_read_b128 v[{r}:{r+3}], v4 offset:{base + (ks & 1)*2048 + ct*1024}'
        return f'ds_read_b128 v[{r}:{r+3}], v5 offset:{base + (ks & 1)*512}'
    def mfmas(ks, ct, r, first):
        d = ACC + 16*ct
        return [f'v_mfma_f32_32x32x16_bf16 v[{d}:{d+15}], v[{r}:{r+3}], a[{4*ks}:{4*ks+3}], ' + ('0' if first else f'v[{d}:{d+15}]')]
    CF = OPT.get('cfast', 1) and OPT.get('noxf')
    X1 = 160
    PK = 184; PH = 196
    if CF:
        XF = 112; GF = 136
        side = []
        for i in range(12):
            side += [f'v_accvgpr_read_b32 v10, a{144+i}', f'v_lshlrev_b32 v{XF+2*i}, 16, v10', f'v_and_b32 v{XF+2*i+1}, 0xffff0000, v10',
                     f'v_accvgpr_read_b32 v11, a{156+i}', f'v_lshlrev_b32 v{GF+2*i}, 16, v11', f'v_and_b32 v{GF+2*i+1}, 0xffff0000, v11']
        side = [side[2*k] + '\n' + side[2*k+1] for k in range(len(side)//2)]
        gemm2(a, vm, nks, 4, 3, opsA, None, 99, read_frag, mfmas, WB, pd=2, pre=OPT.get('c_pre', 2), pace=1, ahead=5, barriers=False, side=side)
    else:
        if OPT.get('noxf'):
            for i in range(12): a(f'v_accvgpr_read_b32 v{XR+i}, a{144+i}')
        opsA2 = lambda c: opsA(c) + (extra_ops() if c == 4 else [])
        gemm2(a, vm, nks, 4, 3, opsA2, None, 99, read_frag, mfmas, WB, pd=2, pre=OPT.get('c_pre', 2), pace=1, ahead=5, barriers=False)
    a.raw('    ; MARK 10')
    exchange80(a, ACC, 16, LX)
    L = a.newlabel('C_F2')
    if CF:
        def frag1(i):
            for p in range(4):
                d = ACC + 8*i + 2*p; q = 4*i + p; lo = X1 + 2*q
                a(f'v_fma_f32 v12, v{GF+2*q}, v{d}, v{XF+2*q}\nv_fma_f32 v13, v{GF+2*q+1}, v{d+1}, v{XF+2*q+1}')
                a(f'v_cvt_pk_bf16_f32 v{PK+q}, v12, v13')
                a(f'v_lshlrev_b32 v{lo}, 16, v{PK+q}\nv_and_b32 v{lo+1}, 0xffff0000, v{PK+q}')
                if q == 0: a(f'v_pk_add_f32 v[8:9], v[{lo}:{lo+1}], 0 op_sel_hi:[1,0]\nv_pk_mul_f32 v[10:11], v[{lo}:{lo+1}], v[{lo}:{lo+1}]') if False else a(f'v_mov_b32 v8, v{lo}\nv_mov_b32 v9, v{lo+1}\nv_pk_mul_f32 v[10:11], v[{lo}:{lo+1}], v[{lo}:{lo+1}]')
                else: a(f'v_pk_add_f32 v[8:9], v[8:9], v[{lo}:{lo+1}]\nv_pk_fma_f32 v[10:11], v[{lo}:{lo+1}], v[{lo}:{lo+1}], v[10:11]')
        frag1(0); frag1(1)
        a(f's_cmp_eq_u32 s27, 1\ns_cbranch_scc1 {L}')
        frag1(2)
        a.label(L)
        a('v_add_f32 v8, v8, v9\nv_add_f32 v9, v10, v11')
    else:
        a('v_mov_b32 v8, 0\nv_mov_b32 v9, 0')
        def frag1(i):
            for p in range(4):
                d = ACC + 8*i + 2*p; x = XR + 4*i + p; g = GA + 4*i + p
                a(f'v_lshlrev_b32 v10, 16, v{x}\nv_lshlrev_b32 v11, 16, v{g}\nv_fma_f32 v12, v11, v{d}, v10')
                a(f'v_and_b32 v10, 0xffff0000, v{x}\nv_and_b32 v11, 0xffff0000, v{g}\nv_fma_f32 v13, v11, v{d+1}, v10')
                a(f'v_cvt_pk_bf16_f32 v{PK+4*i+p}, v12, v13')
                lo = X1 + 8*i + 2*p
                a(f'v_lshlrev_b32 v{lo}, 16, v{PK+4*i+p}\nv_and_b32 v{lo+1}, 0xffff0000, v{PK+4*i+p}')
                a(f'v_add_f32 v8, v8, v{lo}\nv_fmac_f32 v9, v{lo}, v{lo}\nv_add_f32 v8, v8, v{lo+1}\nv_fmac_f32 v9, v{lo+1}, v{lo+1}')
        frag1(0); frag1(1)
        a(f's_cmp_eq_u32 s27, 1\ns_cbranch_scc1 {L}')
        frag1(2)
        a.label(L)
    a('v_mov_b32 v10, v8\nv_mov_b32 v11, v9')
    a('v_permlane32_swap_b32 v8, v10\nv_permlane32_swap_b32 v9, v11')
    a('v_add_f32 v8, v8, v10\nv_add_f32 v9, v9, v11')
    a(f's_lshl_b32 s19, s29, 4\ns_lshl_b32 s20, s15, 1\ns_add_u32 s19, s19, s20\ns_add_u32 s19, s19, s27\ns_lshl_b32 s33, s19, 8\ns_add_u32 s33, s33, {WS_STAT}')
    a('v_lshlrev_b32 v10, 3, v2')
    def st1(f):
        a('s_mov_b32 exec_hi, 0')
        a(f'buffer_store_dwordx2 v[8:9], v10, s[8:11], s33 offen{f}')
        a('s_mov_b64 exec, -1')
        for i in range(3 if not OPT.get('noxf') else 0):
            Ls = None
            if i == 2:
                Ls = a.newlabel('C_S2'); a(f's_cmp_eq_u32 s27, 1\ns_cbranch_scc1 {Ls}')
            a(f's_add_u32 s19, s31, {KP_X1 + i*1024}\nbuffer_store_dwordx4 v[{PK+4*i}:{PK+4*i+3}], v3, s[8:11], s19 offen{f}')
            if Ls: a.label(Ls)
    store2(a, st1)
    a(f's_lshr_b32 s34, s13, 1\ns_mul_i32 s34, s34, 245760\ns_add_u32 s34, s34, {WS_WGU}')
    if OPT.get('d_rotg'): a('s_mul_i32 s19, s12, 24576\ns_add_u32 s34, s34, s19')
    else: a(f's_and_b32 s19, s13, 1\ns_mul_i32 s19, s19, {5*24576*OPT.get("d_rot", 0)}\ns_add_u32 s34, s34, s19')
    a('s_waitcnt vmcnt(0)')
    a.raw('    ; MARK 11')
    gbar(a, FL_C, during=((lambda: poll_bg(a)) if OPT.get('bg', 1) else None))
    a.raw('    ; MARK 12')
    ST = 64 if CF else 16
    a('v_and_b32 v10, 31, v2\nv_lshrrev_b32 v11, 5, v2\nv_lshlrev_b32 v12, 3, v10\nv_lshl_add_u32 v12, v11, 11, v12')
    a(f's_lshl_b32 s19, s29, 12\ns_add_u32 s19, s19, {WS_STAT}')
    for i in range(8): a(f'buffer_load_dwordx2 v[{ST+2*i}:{ST+2*i+1}], v12, s[8:11], s19 offen offset:{i*256} sc1')
    if CF:
        AF = 16; SF = 40
        for i in range(12):
            a(f'v_accvgpr_read_b32 v10, a{168+i}\nv_accvgpr_read_b32 v11, a{180+i}')
            a(f'v_lshlrev_b32 v{AF+2*i}, 16, v10\nv_and_b32 v{AF+2*i+1}, 0xffff0000, v10\nv_lshlrev_b32 v{SF+2*i}, 16, v11\nv_and_b32 v{SF+2*i+1}, 0xffff0000, v11')
    a('s_waitcnt vmcnt(0)')
    for i in range(1, 8): a(f'v_pk_add_f32 v[{ST}:{ST+1}], v[{ST}:{ST+1}], v[{ST+2*i}:{ST+2*i+1}]')
    a(f'v_mov_b32 v10, v{ST}\nv_mov_b32 v11, v{ST+1}')
    a(f'v_permlane32_swap_b32 v{ST}, v10\nv_permlane32_swap_b32 v{ST+1}, v11')
    a(f'v_add_f32 v10, v{ST}, v10\nv_add_f32 v11, v{ST+1}, v11')
    inv = hex(f2u(1.0/640))
    a(f'v_mul_f32 v10, {inv}, v10\nv_mul_f32 v11, {inv}, v11\nv_fma_f32 v11, -v10, v10, v11\nv_max_f32 v11, 0, v11\nv_add_f32 v11, {hex(f2u(1e-5))}, v11\nv_rsq_f32 v11, v11')
    L = a.newlabel('C_H2')
    if CF:
        a('v_sub_f32 v12, 0, v10\nv_mov_b32 v14, v11\nv_mov_b32 v15, v11\nv_mov_b32 v13, v12')
        def frag2(i):
            for p in range(4):
                q = 4*i + p; lo = X1 + 2*q
                a(f'v_pk_mul_f32 v[{AF+2*q}:{AF+2*q+1}], v[{AF+2*q}:{AF+2*q+1}], v[14:15]')
                a(f'v_pk_fma_f32 v[{SF+2*q}:{SF+2*q+1}], v[{AF+2*q}:{AF+2*q+1}], v[12:13], v[{SF+2*q}:{SF+2*q+1}]')
                a(f'v_pk_fma_f32 v[{lo}:{lo+1}], v[{lo}:{lo+1}], v[{AF+2*q}:{AF+2*q+1}], v[{SF+2*q}:{SF+2*q+1}]')
                a(f'v_cvt_pk_bf16_f32 v{PH+q}, v{lo}, v{lo+1}')
    else:
        def frag2(i):
            for p in range(4):
                lo = X1 + 8*i + 2*p; s2 = A2 + 4*i + p; sb = SB + 4*i + p
                a(f'v_sub_f32 v{lo}, v{lo}, v10\nv_sub_f32 v{lo+1}, v{lo+1}, v10\nv_mul_f32 v{lo}, v{lo}, v11\nv_mul_f32 v{lo+1}, v{lo+1}, v11')
                a(f'v_lshlrev_b32 v12, 16, v{s2}\nv_lshlrev_b32 v13, 16, v{sb}\nv_fma_f32 v{lo}, v{lo}, v12, v13')
                a(f'v_and_b32 v12, 0xffff0000, v{s2}\nv_and_b32 v13, 0xffff0000, v{sb}\nv_fma_f32 v{lo+1}, v{lo+1}, v12, v13')
                a(f'v_cvt_pk_bf16_f32 v{PH+4*i+p}, v{lo}, v{lo+1}')
    frag2(0); frag2(1)
    a(f's_cmp_eq_u32 s27, 1\ns_cbranch_scc1 {L}')
    frag2(2)
    a.label(L)
    def st2(f):
        for i in range(3):
            Ls = None
            if i == 2:
                Ls = a.newlabel('C_S3'); a(f's_cmp_eq_u32 s27, 1\ns_cbranch_scc1 {Ls}')
            a(f's_add_u32 s19, s31, {WS_H2F + i*1024}\nbuffer_store_dwordx4 v[{PH+4*i}:{PH+4*i+3}], v3, s[8:11], s19 offen{f}')
            if Ls: a.label(Ls)
    store2(a, st2)
    a('s_waitcnt vmcnt(0)')
    a.raw('    ; MARK 13')
    gbar(a, FL_UT, during=(lambda: prefetch_blocks(a, 24*OPT.get('d_preB', 1), 34)) if OPT.get('d_preB', 1) else None)
    a.raw('    ; MARK 8')

def phase_d(a):
    vm = Vm(a)
    NSLOT = 6; CB = 24576
    a('s_lshr_b32 s15, s13, 1\ns_and_b32 s19, s13, 1\ns_lshl_b32 s19, s19, 2\ns_lshl_b32 s29, s12, 3\ns_add_u32 s29, s29, s19\ns_add_u32 s29, s29, s3')
    a(f's_mul_i32 s22, s29, 40960\ns_add_u32 s22, s22, {WS_H2F}')
    a(f's_mul_i32 s23, s15, 245760\ns_mul_i32 s30, s3, 6144\ns_add_u32 s23, s23, s30\ns_add_u32 s23, s23, {WS_WGU}')
    R = OPT.get('d_rot', 0)
    a(f's_and_b32 s19, s13, 1\ns_mul_i32 s20, s19, {5*CB*R}\ns_sub_u32 s27, s23, s20\ns_add_u32 s23, s23, s20\ns_mul_i32 s20, s19, {5*4096*R}\ns_sub_u32 s26, s22, s20\ns_add_u32 s22, s22, s20')
    def drot(c, mul, base, dst):
        return [(f's_add_u32 s33, s12, {c}', False), ('s_sub_u32 s21, s33, 10', False), ('s_cmp_ge_u32 s33, 10', False),
                ('s_cselect_b32 s33, s21, s33', False), (f's_mul_i32 s33, s33, {mul}', False), (f's_add_u32 s{dst}, s{base}, s33', False)]
    def opsB(c):
        slot = c % NSLOT
        if OPT.get('d_noB'): return [('s_nop 0', True)]
        if OPT.get('d_rotg'):
            ops = [(f's_add_u32 m0, s30, {slot*CB}', False)] + drot(c, CB, 23, 24)
        else:
            ops = [(f's_add_u32 m0, s30, {slot*CB}', False), (f's_add_u32 s24, s{23 if c < 5 else 27}, {c*CB}', False)]
        NT = ' nt' if OPT.get('d_nt') else ''
        for q in range(4): ops.append((f'buffer_load_dwordx4 v3, s[8:11], s24 offen offset:{q*1024}{BSC()}{NT} lds', True))
        ops += [(f's_add_u32 m0, s30, {slot*CB + 4096}', False), ('s_add_u32 s24, s24, 4096', False)]
        for q in range(2): ops.append((f'buffer_load_dwordx4 v3, s[8:11], s24 offen offset:{q*1024}{BSC()}{NT} lds', True))
        return ops
    TA = OPT.get('d_ta', 0); PB = OPT.get('d_preB', 1)
    if TA:
        a(f's_and_b32 s19, s13, 1\ns_lshl_b32 s19, s19, 2\ns_add_u32 s19, s19, s3\ns_mul_i32 s19, s19, {24*128}\ns_mul_i32 s20, s15, 245760\ns_add_u32 s19, s19, s20\ns_add_u32 s34, s19, {WS_WGU}')
        a('v_lshlrev_b32 v9, 7, v2')
    def opsT(c):
        if not TA or c >= 10: return []
        return [(f's_add_u32 s20, s34, {c*CB}', False), ('s_mov_b64 exec, 0xffffff\nbuffer_load_dword v10, v9, s[8:11], s20 offen\ns_mov_b64 exec, -1', True)]
    WT = OPT.get('d_wdtouch', 0)
    if WT:
        a(f's_mul_i32 s35, s13, 61440\ns_mul_i32 s19, s3, 1536\ns_add_u32 s35, s35, s19\ns_add_u32 s35, s35, {WS_WD}\nv_lshlrev_b32 v9, 7, v2')
    def opsW(c):
        if not WT: return []
        return [(f's_add_u32 s20, s35, {c*6144}', False), ('s_mov_b64 exec, 0xfff\nbuffer_load_dword v255, v9, s[8:11], s20 offen\ns_mov_b64 exec, -1', True)]
    def opsA(c):
        ops = sum((opsT(k) for k in range(PB, PB + TA)), []) if c == 0 else opsT(PB + TA - 1 + c)
        ops = opsW(c) + ops
        if OPT.get('d_rotg'): ops = ops + drot(c, 4096, 22, 25)
        else: ops = ops + [(f's_add_u32 s25, s{22 if c < 5 else 26}, {c*4096}', False)]
        for q in range(4):
            ks = 4*c + q
            ops.append((f'buffer_load_dwordx4 a[{4*ks}:{4*ks+3}], v3, s[8:11], s25 offen offset:{q*1024} sc1', True))
        return ops
    ACC = 88
    TR = bool(OPT.get('bg', 1))
    def read_frag(ks, ct, r):
        off = ((ks//4) % NSLOT)*CB + ((ks & 3)*6 + ct)*1024
        if TR:
            return f'ds_read_b64_tr_b16 v[{r}:{r+1}], v{4 + off//65536} offset:{off % 65536}\nds_read_b64_tr_b16 v[{r+2}:{r+3}], v{4 + off//65536} offset:{off % 65536 + 512}'
        return f'ds_read_b128 v[{r}:{r+3}], v{4 + off//65536} offset:{off % 65536}'
    if TR:
        a('v_lshrrev_b32 v6, 5, v2\nv_lshlrev_b32 v6, 2, v6\nv_bfe_u32 v4, v2, 2, 2\nv_add_u32 v6, v6, v4\nv_and_b32 v4, 3, v2\nv_lshlrev_b32 v4, 3, v4')
        a('v_lshl_add_u32 v4, v6, 6, v4\nv_bfe_u32 v6, v2, 4, 1\nv_lshl_add_u32 v4, v6, 5, v4')
        a('v_add_u32 v5, 0x10000, v4\nv_add_u32 v6, 0x20000, v4')
    else:
        a('v_mov_b32 v4, v3\nv_add_u32 v5, 0x10000, v3\nv_add_u32 v6, 0x20000, v3')
    def mfmas(ks, ct, r, first):
        d = ACC + 16*ct
        if OPT.get('d_nomfma'): return ['s_nop 7']
        return [f'v_mfma_f32_32x32x16_bf16 v[{d}:{d+15}], v[{r}:{r+3}], a[{4*ks}:{4*ks+3}], ' + ('0' if first else f'v[{d}:{d+15}]')]
    gemm2(a, vm, 40, 4, 6, opsA, opsB, OPT.get('d_preB', 1), read_frag, mfmas, 16, pd=(1 if TR else 2), pre=OPT.get('d_pre', 2), nslot=NSLOT, pace=OPT.get('d_pace', 2), ahead=OPT.get('d_ahead', 4), barriers=True, nlgkm=(2 if TR else 1))
    a.raw('    ; MARK 14')
    a(f's_and_b32 s22, s29, 7\ns_mul_i32 s22, s22, 96\ns_mul_i32 s19, s15, 6\ns_add_u32 s22, s22, s19\ns_lshl_b32 s22, s22, 10')
    a(f's_add_u32 s19, s12, 7\ns_and_b32 s19, s19, 7\ns_mul_i32 s19, s19, {KVH_STRIDE}\ns_add_u32 s22, s22, s19\ns_add_u32 s22, s22, {WS_KVH}')
    for ct in range(3):
        for q in range(4):
            g = ACC + 16*ct + 4*q; u = ACC + 16*(3+ct) + 4*q
            a(f'v_pk_mul_f32 v[{g}:{g+1}], v[{g}:{g+1}], v[{u}:{u+1}]\nv_pk_mul_f32 v[{g+2}:{g+3}], v[{g+2}:{g+3}], v[{u+2}:{u+3}]')
            o = 16 + 8*ct + 2*q
            a(f'v_cvt_pk_bf16_f32 v{o}, v{g}, v{g+1}\nv_cvt_pk_bf16_f32 v{o+1}, v{g+2}, v{g+3}')
    def st(f):
        for k in range(6):
            if k == 4: a('s_add_u32 s22, s22, 4096')
            a(f'buffer_store_dwordx4 v[{16+4*k}:{19+4*k}], v3, s[8:11], s22 offen offset:{(k % 4)*1024}{f}')
    store2(a, st)
    a(f's_lshr_b32 s15, s13, 2\ns_mul_i32 s34, s15, {48*5120}\ns_add_u32 s34, s34, {WS_WD}')
    if OPT.get('e_rotg', 1): a('s_mul_i32 s19, s12, 10240\ns_add_u32 s34, s34, s19')
    else: a(f's_and_b32 s19, s13, 3\ns_mul_i32 s19, s19, {3*10240*OPT.get("e_rot", 0)}\ns_add_u32 s34, s34, s19')
    def out_touch():
        pass
    def pf_wd():
      a('s_sub_u32 s19, s3, 1\ns_mul_i32 s19, s19, 20')
      for i in range(20):
          if i in (0, 10):
              a(f's_add_u32 s20, s19, {i}\ns_cmp_ge_u32 s20, 30\ns_cselect_b32 s21, 1, 0\ns_mul_i32 s25, s21, 30\ns_sub_u32 s20, s20, s25\ns_lshl_b32 s20, s20, 10')
              a(f's_mul_i32 s25, s21, {24*5120}\ns_add_u32 s25, s25, s20\ns_add_u32 s25, s25, s34\ns_mul_i32 s21, s21, 61440\ns_add_u32 s21, s21, s20')
          k = i % 10
          if k % 4 == 0:
              a(f's_add_u32 m0, s21, {k*1024}')
              if k: a('s_add_u32 s25, s25, 4096')
          a(f'buffer_load_dwordx4 v3, s[8:11], s25 offen offset:{(k % 4)*1024}{BSC()} lds')
    a('s_waitcnt vmcnt(0)')
    a.raw('    ; MARK 15')
    gbar(a, FL_D, during=pf_wd)
    a.raw('    ; MARK 16')

def phase_e(a):
    vm = Vm(a)
    roles80(a)
    srd(a, 36, 6, 7, 0, ACT_BYTES)
    ACC = 64; WB = 16; XR = 112; GB = 124
    a('s_mul_i32 s28, s15, 5\ns_mul_i32 s19, s27, 3\ns_add_u32 s28, s28, s19')
    a('s_mul_i32 s31, s29, 40\ns_add_u32 s31, s31, s28\ns_lshl_b32 s31, s31, 10')
    a('v_lshrrev_b32 v7, 5, v2\nv_lshlrev_b32 v7, 4, v7')
    a(f's_lshl_b32 s32, s28, 5\ns_lshl_b32 s19, s12, 13\ns_add_u32 s19, s19, s32\ns_add_u32 s19, s19, {WS_MODF + 5*1280}')
    a('s_mov_b32 s42, s19')
    gb_loads = lambda: [vm.issue(f'buffer_load_dwordx4 v[{GB+4*i}:{GB+4*i+3}], v7, s[8:11], s42 offen offset:{i*32} sc1', 'x') for i in range(3)]
    if OPT.get('noxf'): XR = 184
    else:
        a(f's_add_u32 s19, s31, {KP_X1}')
        for i in range(3): vm.issue(f'buffer_load_dwordx4 v[{XR+4*i}:{XR+4*i+3}], v3, s[8:11], s19 offen offset:{i*1024} sc1', 'x')
    XF = 136; GF = 196
    eside = []
    for i in range(12):
        eside += [f'v_lshlrev_b32 v{XF+2*i}, 16, v{XR+i}\nv_and_b32 v{XF+2*i+1}, 0xffff0000, v{XR+i}',
                  f'v_lshlrev_b32 v{GF+2*i}, 16, v{GB+i}\nv_and_b32 v{GF+2*i+1}, 0xffff0000, v{GB+i}']
    if OPT.get('wbl2'):
        Lwb = a.newlabel('E_WB')
        a(f's_cmp_lg_u32 s13, {OPT.get("wbl2_j", 0)}\ns_cbranch_scc1 {Lwb}\ns_cmp_lg_u32 s3, 0\ns_cbranch_scc1 {Lwb}')
        a('buffer_wbl2 sc1')
        a.label(Lwb)
    if OPT.get('e_rotg', 1): a('s_mov_b32 s35, s12')
    else: a('s_and_b32 s35, s13, 3\ns_mul_i32 s35, s35, ' + str(3*OPT.get('e_rot', 0)))
    main80(a, vm, 96, WS_KVH, WS_WD, 6, 3, ACC, WB, True, OPT.get('e_pre', 2), OPT.get('e_pace', 1), OPT.get('e_ahead', 4), tr=bool(OPT.get('bg', 1)), side=eside, before=gb_loads)
    a.raw('    ; MARK 17')
    exchange80(a, ACC, 16, 122880)
    a('v_and_b32 v8, 31, v2\ns_lshl_b32 s19, s29, 5\nv_add_u32 v8, s19, v8\nv_mul_u32_u24 v8, 1280, v8\nv_add_u32 v8, v8, v7')
    L = a.newlabel('E_F2')
    def frag(i):
        for p in range(4):
            d = ACC + 8*i + 2*p; q = 4*i + p
            a(f'v_pk_fma_f32 v[{d}:{d+1}], v[{GF+2*q}:{GF+2*q+1}], v[{d}:{d+1}], v[{XF+2*q}:{XF+2*q+1}]')
            a(f'v_cvt_pk_bf16_f32 v{16+4*i+p}, v{d}, v{d+1}')
        b = 16 + 4*i
        a(f'v_permlane32_swap_b32 v{b}, v{b+2}\nv_permlane32_swap_b32 v{b+1}, v{b+3}')
        a(f'buffer_store_dwordx4 v[{b}:{b+3}], v8, s[36:39], s32 offen offset:{i*32}' + OPT.get('out_fl', ''))
    frag(0); frag(1)
    a(f's_cmp_eq_u32 s27, 1\ns_cbranch_scc1 {L}')
    frag(2)
    a.label(L)
```

```python
from common import *
import math

SPIN = 2000000
LH = 81920
LFAST = LH + 2560
LK = 114176
LV = LK + 24576
LONES = 159488
LFAST2 = 110592
NEG = -30000.0
KP_O = WS_H1F
WS_H2F = WS_H1F
KP_X1 = WS_XF

def store2(a, text_fn):
    L1 = a.newlabel('ST_S'); L2 = a.newlabel('ST_E')
    a(f's_cmp_eq_u32 s14, 0\ns_cbranch_scc1 {L1}')
    text_fn('')
    a(f's_branch {L2}')
    a.label(L1)
    text_fn(' sc1')
    a.label(L2)

def poll(a, vaddr, cond_reg='v20', sbase='s[4:5]', n=1, spin=None, pipe=False):
    L = a.newlabel('POLL'); Lo = a.newlabel('POLLX')
    a(f's_mov_b32 s18, {spin or SPIN}')
    if pipe:
        a(f'global_load_dword v252, {vaddr}, {sbase} sc1\ns_nop 7\nglobal_load_dword v253, {vaddr}, {sbase} sc1\ns_nop 7')
        a.label(L)
        for x, y in ((254, 252), (252, 253), (253, 254)):
            a(f'global_load_dword v{x}, {vaddr}, {sbase} sc1\ns_waitcnt vmcnt(2)\nv_cmp_eq_u32 vcc, 0, v{y}\ns_cbranch_vccz {Lo}')
        a(f's_sub_u32 s18, s18, 1\ns_cmp_lg_u32 s18, 0\ns_cbranch_scc1 {L}')
        a.label(Lo)
        return
    a.label(L)
    a(f's_sub_u32 s18, s18, 1\ns_cmp_eq_u32 s18, 0\ns_cbranch_scc1 {Lo}')
    a(f'global_load_dword {cond_reg}, {vaddr}, {sbase} sc1')
    a('s_waitcnt vmcnt(0)')
    a(f'v_cmp_eq_u32 vcc, 0, {cond_reg}')
    a(f's_cbranch_vccnz {L}')
    a.label(Lo)

def poll_bg(a):
    L = a.newlabel('PBG'); Lo = a.newlabel('PBGX'); Ls = a.newlabel('PBGS')
    a(f's_cmp_lg_u32 s3, 1\ns_cbranch_scc1 {Ls}')
    a(f'v_add_u32 v18, {FL_BG}, v3\ns_mov_b32 s18, {SPIN}')
    a.label(L)
    a(f's_sub_u32 s18, s18, 1\ns_cmp_eq_u32 s18, 0\ns_cbranch_scc1 {Lo}')
    a('global_load_dwordx4 v[20:23], v18, s[4:5] sc1\ns_waitcnt vmcnt(0)')
    a('v_min_u32 v20, v20, v21\nv_min_u32 v22, v22, v23\nv_min_u32 v20, v20, v22\nv_cmp_eq_u32 vcc, 0, v20')
    a(f's_cbranch_vccnz {L}')
    a.label(Lo)
    a.label(Ls)

def gbar_pre(a, flag):
    a(f's_lshl_b32 s19, s12, 7\ns_add_u32 s19, s19, {flag}\ns_lshl_b32 s20, s13, 2\ns_add_u32 s20, s20, s19')
    a('v_mov_b32 v250, s20\nv_and_b32 v251, 31, v2\nv_lshlrev_b32 v251, 2, v251\nv_add_u32 v251, s19, v251\nv_mov_b32 v249, 1')

def gbar(a, flag, local=True, during=None, also_set=None):
    L = a.newlabel('GB'); Ld = a.newlabel('GBD')
    a('s_barrier')
    a(f's_cmp_lg_u32 s3, 0\ns_cbranch_scc1 {Ld if during else L}')
    a('s_mov_b64 exec, 1')
    store2(a, lambda f: a(f'global_store_dword v250, v249, s[4:5]{f}'))
    if also_set is not None and OPT.get('bg'):
        a(f's_lshl_b32 s20, s2, 2\ns_add_u32 s20, s20, {also_set}\nv_mov_b32 v250, s20\nglobal_store_dword v250, v249, s[4:5] sc1')
    a('s_mov_b64 exec, -1')
    poll(a, 'v251', pipe=True)
    if during:
        a(f's_branch {L}')
        a.label(Ld)
        during()
    a.label(L)
    a('s_barrier')

def fin_mod(a, base, nq_valid_exec=None):
    for e in range(4):
        a(f'v_add_f32 v{base+e}, v{base+e}, v{base+4+e}\nv_add_f32 v{base+8+e}, v{base+8+e}, v{base+12+e}\nv_add_f32 v{base+e}, v{base+e}, v{base+8+e}')

def round_pack(a, base, vone, out):
    a(f'v_cvt_pk_bf16_f32 v{out}, v{base}, v{base+1}\nv_cvt_pk_bf16_f32 v{out+1}, v{base+2}, v{base+3}')
    a(f'v_lshlrev_b32 v{base}, 16, v{out}\nv_and_b32 v{base+1}, 0xffff0000, v{out}\nv_lshlrev_b32 v{base+2}, 16, v{out+1}\nv_and_b32 v{base+3}, 0xffff0000, v{out+1}')
    for e in range(4): a(f'v_add_f32 v{base+e}, v{base+e}, v{vone}')
    a(f'v_cvt_pk_bf16_f32 v{out}, v{base}, v{base+1}\nv_cvt_pk_bf16_f32 v{out+1}, v{base+2}, v{base+3}')

def cperm_pos_bytes(a, vcol4, out, tmp):
    a(f'v_lshrrev_b32 v{out}, 2, v{vcol4}\nv_lshlrev_b32 v{out}, 5, v{out}')
    a(f'v_and_b32 v{tmp}, 1, v{vcol4}\nv_lshl_add_u32 v{out}, v{tmp}, 4, v{out}')
    a(f'v_bfe_u32 v{tmp}, v{vcol4}, 1, 1\nv_lshl_add_u32 v{out}, v{tmp}, 3, v{out}')

LHF = 81920
LFAST = LHF + 5120


def round4(a, base, vone):
    t = base + 4
    for rep in range(2):
        a(f'v_cvt_pk_bf16_f32 v{t}, v{base}, v{base+1}\nv_cvt_pk_bf16_f32 v{t+1}, v{base+2}, v{base+3}')
        a(f'v_lshlrev_b32 v{base}, 16, v{t}\nv_and_b32 v{base+1}, 0xffff0000, v{t}\nv_lshlrev_b32 v{base+2}, 16, v{t+1}\nv_and_b32 v{base+3}, 0xffff0000, v{t+1}')
        if rep == 0:
            for e in range(4): a(f'v_add_f32 v{base+e}, v{base+e}, v{vone}')

def bg_setup(a):
    a('s_lshl_b32 s30, s2, 1')
    a('v_lshrrev_b32 v14, 3, v2\nv_and_b32 v15, 7, v2')
    Ld = a.newlabel('BG_D'); Le = a.newlabel('BG_E')
    a(f's_cmp_ge_u32 s2, 160\ns_cbranch_scc1 {Ld}')
    a(f's_lshr_b32 s19, s30, 3\ns_mul_i32 s43, s19, 49152\ns_and_b32 s20, s30, 3\ns_mul_i32 s20, s20, 768\ns_add_u32 s43, s43, s20')
    a('s_bitcmp1_b32 s30, 2\ns_cselect_b32 s32, s38, s36\ns_cselect_b32 s33, s39, s37')
    a(f's_and_b32 s20, s30, 3\ns_mul_i32 s31, s20, {4*40*6144}\ns_mul_i32 s19, s19, 6144\ns_add_u32 s31, s31, s19\ns_bfe_u32 s19, s30, 0x10002\ns_mul_i32 s19, s19, 3072\ns_add_u32 s31, s31, s19\ns_add_u32 s31, s31, {WS_WGU}')
    a('v_mul_u32_u24 v8, 3072, v14\nv_lshl_add_u32 v8, v15, 4, v8')
    a('v_lshlrev_b32 v14, 6, v14\nv_and_b32 v11, 3, v15\nv_lshl_add_u32 v14, v11, 4, v14\nv_lshrrev_b32 v11, 2, v15')
    a(f'v_mul_u32_u24 v15, {40*6144 - 2048}, v11\nv_add_u32 v15, v15, v14\nv_lshl_add_u32 v14, v11, 10, v14')
    a(f's_branch {Le}')
    a.label(Ld)
    a(f's_sub_u32 s30, s30, 320\ns_lshr_b32 s19, s30, 1\ns_mul_i32 s43, s19, 20480')
    a('s_mov_b32 s32, s40\ns_mov_b32 s33, s41')
    a(f's_lshr_b32 s31, s30, 2\ns_mul_i32 s31, s31, 5120\ns_add_u32 s31, s31, {WS_WD}\ns_and_b32 s30, s19, 1')
    a('v_mul_u32_u24 v8, 1280, v14\nv_lshl_add_u32 v8, v15, 4, v8')
    a.label(Le)
    a('s_mov_b32 s34, 1966080\ns_mov_b32 s35, 0x20000')

def bg_plan(w):
    gu = [(i, rh, m) for i in range(2) for m in range(6) for rh in range(2)]
    dn = [(i, rh, m) for i in range(2) for m in range(5) for rh in range(2)]
    g = gu[w-1::3]; d = dn[w-1::3]
    return [(g[k], d[k] if k < len(d) else None) for k in range(8)]

def bg_load(k, gu, dn):
    i, rh, m = gu
    return (f's_add_u32 s19, s43, {i*768 + rh*8*3072}\nbuffer_load_dwordx4 a[{4*k}:{4*k+3}], v8, s[32:35], s19 offen offset:{128*m}',
            (f's_add_u32 s19, s43, {dn[0]*640 + dn[1]*8*1280}\nbuffer_load_dwordx4 a[{4*k}:{4*k+3}], v8, s[32:35], s19 offen offset:{128*dn[2]}' if dn
             else f'buffer_load_dwordx4 a[{4*k}:{4*k+3}], v8, s[32:35], s43 offen'))

def bg_store(k, gu, dn):
    i, rh, m = gu
    b = 2*m
    off = i*4*40*6144 + (b//3)*40*6144 + (b % 3)*1024 + rh*512
    tg = f's_add_u32 s23, s31, {off}\nbuffer_store_dwordx4 a[{4*k}:{4*k+3}], v{15 if (b % 3) == 2 else 14}, s[8:11], s23 offen sc1'
    if dn is None: return tg, 's_nop 0'
    i, rh, m = dn
    t = f'v_add_u32 v11, {8*m}, v15\nv_mul_u32_u24 v12, 6554, v11\nv_lshrrev_b32 v12, 16, v12\nv_mul_u32_u24 v8, 10, v12\nv_sub_u32 v11, v11, v8'
    t += f'\nv_mul_u32_u24 v12, {48*5}, v12\nv_lshlrev_b32 v12, 10, v12'
    t += f'\ns_lshl_b32 s19, s30, 11\ns_add_u32 s19, s19, {rh*512}\ns_lshl_b32 s23, s30, 9\ns_add_u32 s23, s23, {4096 + rh*256}'
    t += '\nv_cmp_lt_u32 s[20:21], 7, v11\nv_and_b32 v8, 3, v11\nv_lshlrev_b32 v8, 4, v8\nv_lshrrev_b32 v11, 2, v11\nv_lshlrev_b32 v11, 10, v11'
    t += '\nv_lshl_add_u32 v11, v14, 6, v11\nv_add_u32 v11, s19, v11\nv_add_u32 v12, v12, v8\nv_lshlrev_b32 v8, 5, v14\nv_add_u32 v8, s23, v8\nv_cndmask_b32_e64 v11, v11, v8, s[20:21]\nv_add_u32 v12, v12, v11'
    t += f'\ns_add_u32 s23, s31, {i*4*48*5120}\nbuffer_store_dwordx4 a[{4*k}:{4*k+3}], v12, s[8:11], s23 offen sc1'
    return tg, t

LSYNC = LFAST + 16
def lds_arrive(a, off):
    a(f'v_mov_b32 v18, {LSYNC + off}\nv_mov_b32 v19, 1\ns_mov_b64 exec, 1\nds_add_u32 v18, v19\ns_mov_b64 exec, -1')
def lds_spin(a, off, n):
    L = a.newlabel('LSP'); Lo = a.newlabel('LSPX')
    a(f'v_mov_b32 v18, {LSYNC + off}\ns_mov_b32 s18, {SPIN}')
    a.label(L)
    a(f's_sub_u32 s18, s18, 1\ns_cmp_eq_u32 s18, 0\ns_cbranch_scc1 {Lo}')
    a(f'ds_read_b32 v19, v18\ns_waitcnt lgkmcnt(0)\nv_readfirstlane_b32 s19, v19\ns_cmp_lt_u32 s19, {n}\ns_cbranch_scc1 {L}')
    a.label(Lo)

def phase_h(a):
    a(f'v_mov_b32 v18, {LSYNC}\nv_mov_b32 v20, 0\nv_mov_b32 v21, 0\nv_mov_b32 v22, 0\nv_mov_b32 v23, 0\nds_write_b128 v18, v[20:23]\ns_waitcnt lgkmcnt(0)\ns_barrier')
    Lw23 = a.newlabel('H_W23'); Lend = a.newlabel('H_END')
    a(f's_cmp_ge_u32 s3, 2\ns_cbranch_scc1 {Lw23}')
    a('s_setprio 3')
    a('v_lshrrev_b32 v5, 4, v2\nv_and_b32 v4, 15, v2')
    a('s_lshl_b32 s19, s12, 8\ns_lshl_b32 s20, s13, 3\ns_add_u32 s19, s19, s20\ns_lshl_b32 s20, s3, 2\ns_add_u32 s19, s19, s20')
    a('v_add_u32 v5, s19, v5')
    a('v_lshrrev_b32 v7, 1, v4\nv_and_b32 v8, 1, v4')
    a(f's_mul_i32 s21, s3, 2560\ns_add_u32 s21, s21, {WS_MODP}')
    for p in range(4):
        for r in range(3):
            a(f'buffer_load_dwordx4 v[{24+16*r+4*p}:{27+16*r+4*p}], v3, s[8:11], s21 offen offset:{r*1024}')
        if p < 3: a('s_add_u32 s21, s21, 15360')
    srd(a, 24, 16, 17, 0, ACT_BYTES)
    a('v_mul_u32_u24 v6, 1280, v5\nv_lshl_add_u32 v6, v7, 5, v6\nv_lshl_add_u32 v6, v8, 3, v6')
    for i in range(5):
        a(f'buffer_load_dwordx2 v[{192+4*i}:{193+4*i}], v6, s[24:27], 0 offen offset:{i*256}')
        a(f'buffer_load_dwordx2 v[{194+4*i}:{195+4*i}], v6, s[24:27], 0 offen offset:{i*256+16}')
    Lx = a.newlabel('H_XT'); Lx2 = a.newlabel('H_XT2')
    a('s_getreg_b32 s15, hwreg(HW_REG_XCC_ID, 0, 4)\ns_add_u32 s15, s15, 1')
    a(f's_cmp_lg_u32 s3, 1\ns_cbranch_scc1 {Lx}')
    a(f's_lshl_b32 s19, s12, 7\ns_lshl_b32 s20, s13, 2\ns_add_u32 s19, s19, s20\ns_add_u32 s19, s19, {FL_XT}')
    a('v_mov_b32 v18, s19\nv_mov_b32 v19, s15\ns_mov_b64 exec, 1')
    a('global_store_dword v18, v19, s[4:5] sc1')
    a('s_mov_b64 exec, -1')
    a('s_waitcnt vmcnt(11)')
    a(f's_branch {Lx2}')
    a.label(Lx)
    a('s_waitcnt vmcnt(10)')
    a.label(Lx2)
    a.raw('    ; MARK 0')
    a('v_lshrrev_b32 v14, 2, v2\nv_lshlrev_b32 v14, 6, v14\nv_and_b32 v15, 1, v2\nv_lshl_add_u32 v14, v15, 5, v14\nv_bfe_u32 v15, v2, 1, 1\nv_lshl_add_u32 v14, v15, 4, v14')
    a(f's_mul_i32 s20, s3, 2560\ns_add_u32 s20, s20, {LHF}\nv_add_u32 v14, s20, v14')
    a('s_cmp_eq_u32 s3, 1\ns_cselect_b32 s20, 1.0, 0\nv_mov_b32 v12, s20')
    for r in range(3):
        b = 24 + 16*r
        fin_mod(a, b); round4(a, b, 12)
        if r == 2: a('s_mov_b32 exec_hi, 0')
        a(f'ds_write_b128 v14, v[{b}:{b+3}] offset:{r*1024}')
        if r == 2: a('s_mov_b64 exec, -1')
    a('s_waitcnt lgkmcnt(0)')
    lds_arrive(a, 0)
    X = 192; F = 124
    a('s_waitcnt vmcnt(0)')
    a(f's_lshl_b32 s19, s12, 7\ns_add_u32 s19, s19, {FL_XT}\nv_and_b32 v22, 31, v2\nv_lshlrev_b32 v22, 2, v22\nv_add_u32 v22, s19, v22')
    a('global_load_dword v20, v22, s[4:5] sc1')
    for i in range(20):
        a(f'v_lshlrev_b32 v{F+2*i}, 16, v{X+i}\nv_and_b32 v{F+1+2*i}, 0xffff0000, v{X+i}')
    a(f'v_pk_add_f32 v[12:13], v[{F}:{F+1}], v[{F+2}:{F+3}]\nv_pk_add_f32 v[14:15], v[{F+4}:{F+5}], v[{F+6}:{F+7}]')
    for i in range(4, 20, 2):
        a(f'v_pk_add_f32 v[12:13], v[12:13], v[{F+2*i}:{F+2*i+1}]\nv_pk_add_f32 v[14:15], v[14:15], v[{F+2*i+2}:{F+2*i+3}]')
    a('v_pk_add_f32 v[12:13], v[12:13], v[14:15]\nv_add_f32 v12, v12, v13')
    for rot in (8, 4, 2, 1):
        a(f'v_add_f32_dpp v12, v12, v12 row_ror:{rot} row_mask:0xf bank_mask:0xf')
    a(f'v_mul_f32 v12, {hex(f2u(-1.0/640))}, v12\nv_mov_b32 v13, v12')
    for i in range(20): a(f'v_pk_add_f32 v[{F+2*i}:{F+2*i+1}], v[{F+2*i}:{F+2*i+1}], v[12:13]')
    a(f'v_pk_mul_f32 v[14:15], v[{F}:{F+1}], v[{F}:{F+1}]\nv_pk_mul_f32 v[16:17], v[{F+2}:{F+3}], v[{F+2}:{F+3}]')
    for i in range(2, 20, 2):
        a(f'v_pk_fma_f32 v[14:15], v[{F+2*i}:{F+2*i+1}], v[{F+2*i}:{F+2*i+1}], v[14:15]\nv_pk_fma_f32 v[16:17], v[{F+2*i+2}:{F+2*i+3}], v[{F+2*i+2}:{F+2*i+3}], v[16:17]')
    a('v_pk_add_f32 v[14:15], v[14:15], v[16:17]\nv_add_f32 v14, v14, v15')
    for rot in (8, 4, 2, 1):
        a(f'v_add_f32_dpp v14, v14, v14 row_ror:{rot} row_mask:0xf bank_mask:0xf')
    a(f'v_mov_b32 v15, {hex(f2u(1e-5))}\nv_fmac_f32 v15, {hex(f2u(1.0/640))}, v14\nv_rsq_f32 v14, v15')
    a('v_mov_b32 v15, v14')
    Lp = a.newlabel('H_XP'); Lpo = a.newlabel('H_XPO')
    a(f's_waitcnt vmcnt(0)\nv_cmp_eq_u32 vcc, 0, v20\ns_cbranch_vccz {Lpo}')
    poll(a, 'v22')
    a.label(Lpo)
    a('v_cmp_ne_u32 vcc, s15, v20\ns_cmp_eq_u64 vcc, 0\ns_cselect_b32 s14, 1, 0')
    a(f'v_mov_b32 v18, {LFAST}\nv_mov_b32 v19, s14\nds_write_b32 v18, v19')
    lds_spin(a, 0, 2)
    a(f'v_lshlrev_b32 v9, 5, v4\nv_add_u32 v9, {LHF}, v9')
    A1 = 24; SA = 64
    for i in range(5):
        for hh in range(2):
            a(f'ds_read_b128 v[{A1+8*i+4*hh}:{A1+8*i+4*hh+3}], v9 offset:{2560 + i*512 + 16*hh}')
            a(f'ds_read_b128 v[{SA+8*i+4*hh}:{SA+8*i+4*hh+3}], v9 offset:{i*512 + 16*hh}')
    for i in range(20): a(f'v_pk_mul_f32 v[{F+2*i}:{F+2*i+1}], v[{F+2*i}:{F+2*i+1}], v[14:15]')
    for i in range(5):
        a(f's_waitcnt lgkmcnt({min(15, 16 - 4*i)})')
        for k in range(4*i, 4*i+4):
            a(f'v_pk_fma_f32 v[{F+2*k}:{F+2*k+1}], v[{F+2*k}:{F+2*k+1}], v[{A1+2*k}:{A1+2*k+1}], v[{SA+2*k}:{SA+2*k+1}]')
            a(f'v_cvt_pk_bf16_f32 v{164+k}, v{F+2*k}, v{F+2*k+1}')
    a('v_and_b32 v10, 31, v5\nv_lshlrev_b32 v10, 4, v10\nv_lshl_add_u32 v10, v7, 10, v10\nv_lshl_add_u32 v10, v8, 9, v10')
    a('s_lshl_b32 s19, s12, 3\ns_lshr_b32 s20, s13, 2\ns_add_u32 s21, s19, s20\ns_mul_i32 s21, s21, 40960')
    def st(f):
        for i in range(5):
            a(f's_add_u32 s20, s21, {WS_H1F + i*8192}')
            a(f'buffer_store_dwordx4 v[{164+4*i}:{167+4*i}], v10, s[8:11], s20 offen{f}')
    store2(a, st)
    a('s_waitcnt vmcnt(0)')
    a.raw('    ; MARK 1')
    Lw1 = a.newlabel('H_W1'); Lst = a.newlabel('H_ST')
    a(f's_cmp_eq_u32 s3, 1\ns_cbranch_scc1 {Lw1}')
    lds_spin(a, 4, 1)
    a(f's_lshl_b32 s22, s12, 7\ns_add_u32 s22, s22, {FL_H}\ns_lshl_b32 s20, s13, 2\ns_add_u32 s20, s20, s22\nv_mov_b32 v18, s20\nv_mov_b32 v19, 1\ns_mov_b64 exec, 1')
    store2(a, lambda f: a(f'global_store_dword v18, v19, s[4:5]{f}'))
    a('s_mov_b64 exec, -1')
    a('v_and_b32 v18, 31, v2\nv_lshlrev_b32 v18, 2, v18\nv_add_u32 v18, s22, v18')
    poll(a, 'v18')
    a(f's_branch {Lst}')
    a.label(Lw1)
    lds_arrive(a, 4)
    a.label(Lst)
    def st2(f):
        for i in range(5):
            a(f's_add_u32 s20, s21, {WS_XF + i*8192}')
            a(f'buffer_store_dwordx4 v[{X+4*i}:{X+3+4*i}], v10, s[8:11], s20 offen{f}')
    if not OPT.get('noxf'): store2(a, st2)
    a(f's_branch {Lend}')
    a.label(Lw23)
    if OPT.get('tlbwarm'):
        a('v_lshlrev_b32 v9, 21, v2\ns_mov_b64 exec, 0x3ffffff')
        a('buffer_load_dword v255, v9, s[8:11], 0 offen')
        a('s_mov_b64 exec, 3')
        a('global_load_dword v255, v9, s[6:7]')
        a('s_mov_b64 exec, 1')
        for r in (36, 38, 40): a(f'global_load_dword v255, v9, s[{r}:{r+1}]')
        a('s_mov_b64 exec, -1')
    if OPT.get('h_touch', 1):
        a(f's_mul_i32 s20, s12, 327680\ns_mul_i32 s21, s13, 10240\ns_add_u32 s20, s20, s21\ns_sub_u32 s21, s3, 2\ns_mul_i32 s21, s21, 5120\ns_add_u32 s20, s20, s21\ns_add_u32 s20, s20, {WS_H1F}')
        touch(a, 8, 9, 255, 20, 40)
    if OPT.get('kv_touch'):
        a(f's_mul_i32 s20, s12, {KVH_STRIDE}\ns_mul_i32 s21, s13, 20480\ns_add_u32 s20, s20, s21\ns_sub_u32 s21, s3, 2\ns_mul_i32 s21, s21, 10240\ns_add_u32 s20, s20, s21\ns_add_u32 s20, s20, {WS_KVH}')
        touch(a, 8, 9, 255, 20, 80)
    a(f's_mul_i32 s20, s13, 81920\ns_sub_u32 s21, s3, 2\ns_lshl_b32 s21, s21, 12\ns_add_u32 s20, s20, s21\ns_add_u32 s20, s20, {WS_WQKV}')
    PB = OPT.get('a_preB', 10)
    for i in range(PB):
        a(f's_add_u32 m0, s21, {i*8192}')
        for q in range(4): a(f'buffer_load_dwordx4 v3, s[8:11], s20 offen offset:{q*1024} lds')
        if i < PB-1: a('s_add_u32 s20, s20, 8192')
    L3 = a.newlabel('H_T3')
    a(f's_cmp_eq_u32 s3, 3\ns_cbranch_scc0 {L3}')
    a('s_mul_i32 s20, s13, 20\ns_add_u32 s20, s20, 320\nv_add_u32 v10, s20, v2\nv_lshlrev_b32 v11, 4, v10')
    for p in range(4):
        a(f's_mov_b32 s20, {WS_MODP + p*15360}')
        a(f'buffer_load_dwordx4 v[{44+4*p}:{47+4*p}], v11, s[8:11], s20 offen')
    a.label(L3)
    a('s_waitcnt vmcnt(0)')
    L4 = a.newlabel('H_T4')
    a(f's_cmp_eq_u32 s3, 3\ns_cbranch_scc0 {L4}')
    fin_mod(a, 44)
    a('v_mul_u32_u24 v12, 410, v10\nv_lshrrev_b32 v12, 16, v12')
    a('v_mul_u32_u24 v13, 160, v12\nv_sub_u32 v13, v10, v13')
    cperm_pos_bytes(a, 13, 14, 15)
    a('v_mul_u32_u24 v15, 1280, v12\nv_add_u32 v14, v14, v15')
    a('v_cmp_eq_u32 vcc, 4, v12\nv_cndmask_b32_e64 v12, 0, 1.0, vcc')
    round_pack(a, 44, 12, 48)
    a(f's_lshl_b32 s20, s12, 13\ns_add_u32 s20, s20, {WS_MODF}')
    a('s_mov_b32 exec_lo, 0xfffff\ns_mov_b32 exec_hi, 0')
    a('buffer_store_dwordx2 v[48:49], v14, s[8:11], s20 offen sc1')
    a('s_mov_b64 exec, -1')
    a.label(L4)
    a.label(Lend)
    a.raw('    ; MARK 19')
    a('s_setprio 0')
    a('s_waitcnt lgkmcnt(0)\ns_barrier')
    a(f'v_mov_b32 v18, {LFAST}\nds_read_b32 v19, v18\ns_waitcnt lgkmcnt(0)\nv_readfirstlane_b32 s14, v19')
    a.raw('    ; MARK 2')


def phase_start(a):
    Lx = a.newlabel('S_XT')
    a('s_getreg_b32 s15, hwreg(HW_REG_XCC_ID, 0, 4)\ns_add_u32 s15, s15, 1')
    a(f's_cmp_lg_u32 s3, 1\ns_cbranch_scc1 {Lx}')
    a(f's_lshl_b32 s19, s12, 7\ns_lshl_b32 s20, s13, 2\ns_add_u32 s19, s19, s20\ns_add_u32 s19, s19, {FL_XT}')
    a('v_mov_b32 v18, s19\nv_mov_b32 v19, s15\ns_mov_b64 exec, 1')
    a('global_store_dword v18, v19, s[4:5] sc1')
    a('s_mov_b64 exec, -1')
    a.label(Lx)
    a('s_mul_i32 s20, s13, 20\ns_mul_i32 s21, s3, 5\ns_add_u32 s20, s20, s21\ns_add_u32 s20, s20, 320\nv_add_u32 v140, s20, v2\nv_lshlrev_b32 v141, 4, v140')
    for p in range(4):
        a(f's_mov_b32 s20, {WS_MODP + p*15360}')
        a(f'buffer_load_dwordx4 v[{144+4*p}:{147+4*p}], v141, s[8:11], s20 offen')
    a.raw('    ; MARK 2')


def a_side():
    b = Asm(); items = []
    def item():
        items.append('\n'.join(l.strip() for l in b.lines)); b.lines = []
    b('v_and_b32 v6, 31, v2\nv_lshrrev_b32 v7, 5, v2'); item()
    b(f'v_lshlrev_b32 v8, 4, v0\nv_add_u32 v8, {LK + 5*4096}, v8'); item()
    b('v_mov_b32 v12, 0\nv_mov_b32 v13, 0'); item()
    b('v_mov_b32 v14, 0\nv_mov_b32 v15, 0'); item()
    Lb = b.newlabel('A_NB')
    nb = f2u(NEG) >> 16
    b(f's_cmp_lg_u32 s12, 0\ns_cbranch_scc1 {Lb}\nv_mov_b32 v9, {nb}\nv_cmp_gt_u32 vcc, 128, v0\ns_nop 1\nv_cndmask_b32 v12, 0, v9, vcc\nv_mov_b32 v14, v12')
    b.label(Lb); b('ds_write_b128 v8, v[12:15]'); item()
    b('v_mov_b32 v12, 0x3f803f80\nv_mov_b32 v13, 0x3f803f80'); item()
    b('v_mov_b32 v14, 0x3f803f80\nv_mov_b32 v15, 0x3f803f80'); item()
    b(f'v_lshlrev_b32 v8, 4, v0\nv_add_u32 v8, {LONES}, v8'); item()
    b('ds_write_b128 v8, v[12:15]\ns_mov_b64 exec, 0xffff\ns_cmp_eq_u32 s3, 0\ns_cselect_b64 exec, exec, 0') if False else None
    b('ds_write_b128 v8, v[12:15]'); item()
    Lo = b.newlabel('A_NO')
    b(f's_cmp_lg_u32 s3, 0\ns_cbranch_scc1 {Lo}\ns_mov_b64 exec, 0xffff\nds_write_b128 v8, v[12:15] offset:4096\ns_mov_b64 exec, -1'); b.label(Lo); item()
    Lz = b.newlabel('A_NZ')
    b(f's_cmp_lg_u32 s12, 0\ns_cbranch_scc1 {Lz}')
    b('v_mov_b32 v12, 0\nv_mov_b32 v13, 0\nv_mov_b32 v14, 0\nv_mov_b32 v15, 0')
    b('v_and_b32 v8, 127, v0\nv_lshlrev_b32 v8, 4, v8\nv_lshrrev_b32 v9, 7, v0')
    b(f'v_mul_u32_u24 v10, 4096, v9\nv_add_u32 v10, v10, v8\nv_add_u32 v10, {LK}, v10')
    for gg in (0, 2): b(f'ds_write_b128 v10, v[12:15] offset:{gg*4096}')
    b(f'v_mul_u32_u24 v11, 4128, v9\nv_add_u32 v11, v11, v8\nv_add_u32 v11, {LV}, v11')
    for gg in (0, 2): b(f'ds_write_b128 v11, v[12:15] offset:{gg*4128}')
    Lz2 = b.newlabel('A_NZ2')
    b(f's_cmp_ge_u32 s3, 2\ns_cbranch_scc1 {Lz2}\nds_write_b128 v10, v[12:15] offset:{4*4096}\nds_write_b128 v11, v[12:15] offset:{4*4128}')
    b.label(Lz2); b.label(Lz); item()
    b(f'v_mul_u32_u24 v8, 4096, v7\nv_add_u32 v8, {LK}, v8'); item()
    b(f'v_mul_u32_u24 v9, 4128, v7\nv_add_u32 v9, {LV}, v9'); item()
    b(f'v_mov_b32 v10, {LK + 4*4096}\nv_mov_b32 v11, {LV + 4*4128}'); item()
    b('v_cmp_eq_u32 vcc, 1, v7'); item()
    b('v_cndmask_b32 v10, v10, v11, vcc'); item()
    b(f's_mul_i32 s31, s12, {KVH_STRIDE}\ns_mul_i32 s29, s13, 20480\ns_add_u32 s31, s31, s29\ns_add_u32 s31, s31, {WS_KVH}'); item()
    b(f'v_lshlrev_b32 v11, 11, v7\nv_mov_b32 v12, {4*2048}'); item()
    b(f'v_mov_b32 v13, {9*2048}'); item()
    b('v_cndmask_b32 v12, v12, v13, vcc'); item()
    for tb in range(2):
        b(f's_sub_u32 s29, s{20+tb}, s19\ns_lshl_b32 s29, s29, 5\nv_add_u32 v{14+tb}, s29, v6'); item()
        b(f'v_lshlrev_b32 v{14+tb}, 3, v{14+tb}'); item()
    return items

def modf_side():
    b = Asm()
    fin_mod(b, 144)
    b('v_mul_u32_u24 v142, 410, v140\nv_lshrrev_b32 v142, 16, v142')
    b('v_mul_u32_u24 v143, 160, v142\nv_sub_u32 v143, v140, v143')
    cperm_pos_bytes(b, 143, 160, 161)
    b('v_mul_u32_u24 v161, 1280, v142\nv_add_u32 v160, v160, v161')
    b('v_cmp_eq_u32 vcc, 4, v142\ns_nop 1\nv_cndmask_b32_e64 v142, 0, 1.0, vcc')
    round_pack(b, 144, 142, 148)
    b(f's_lshl_b32 s29, s12, 13\ns_add_u32 s29, s29, {WS_MODF}')
    out = [l.strip() for l in b.lines]
    out.append('s_mov_b64 exec, 31\nbuffer_store_dwordx2 v[148:149], v160, s[8:11], s29 offen sc1\ns_mov_b64 exec, -1')
    return out

ACC_A = 40
QF = 224
OPT = dict(a_pre=3, a_pace=2, a_ahead=5, a_sc=' sc1', a_preB=5, bg=0, lnk0=0, noxf=1, at_probe=5, at_fetch=6, k0st=' sc1')
def phase_a(a):
    vm = Vm(a)
    a('s_lshl_b32 s19, s12, 3\ns_add_u32 s20, s19, s3\ns_sub_u32 s21, 7, s3\ns_add_u32 s21, s19, s21')
    a(f's_mul_i32 s22, s20, 40960\ns_add_u32 s22, s22, {WS_H1F}\ns_mul_i32 s23, s21, 40960\ns_add_u32 s23, s23, {WS_H1F}')
    def opsA(c):
        ops = []
        for tb in range(2):
            ops.append((f's_add_u32 s{24+tb}, s{22+tb}, {c*4096}', False))
            for q in range(4):
                f = (2*(4*c + q) + tb) % 64
                ops.append((f'buffer_load_dwordx4 a[{4*f}:{4*f+3}], v3, s[8:11], s{24+tb} offen offset:{q*1024}{OPT["a_sc"]}', True))
        return ops
    a('v_add_u32 v5, 0x10000, v3')
    def read_frag(ks, ct, r):
        off = (ks*2 + ct)*1024
        return f'ds_read_b128 v[{r}:{r+3}], v{3 if off < 65536 else 5} offset:{off % 65536}'
    def mfmas(ks, ct, r, first):
        out = []
        for tb in range(2):
            d = ACC_A + (tb*2 + ct)*16; f = (2*ks + tb) % 64
            out.append(f'v_mfma_f32_32x32x16_bf16 v[{d}:{d+15}], v[{r}:{r+3}], a[{4*f}:{4*f+3}], ' + ('0' if first else f'v[{d}:{d+15}]'))
        return out
    PB = OPT.get('a_preB', 10)
    a(f's_mul_i32 s26, s13, 81920\ns_lshl_b32 s27, s3, 11\ns_add_u32 s26, s26, s27\ns_add_u32 s26, s26, {WS_WQKV}')
    def opsB(c):
        return [(f's_add_u32 m0, s27, {c*8192}', False), (f's_add_u32 s28, s26, {c*8192}', False),
                ('buffer_load_dwordx4 v3, s[8:11], s28 offen lds', True), ('buffer_load_dwordx4 v3, s[8:11], s28 offen offset:1024 lds', True)]
    side = ['s_nop 0']*8 + a_side()
    if OPT.get('lnk0', 1):
        side = side + modf_side()
    gemm2(a, vm, 40, 4, 2, opsA, opsB, PB, read_frag, mfmas, 16, pd=2, pre=OPT['a_pre'], pace=OPT['a_pace'], ahead=OPT['a_ahead'], barriers=(PB < 10), side=side)
    a.raw('    ; MARK 3')
    for tb in range(2):
        P = 120 + 10*tb
        quads = [(0, 0), (0, 1), (0, 2), (0, 3), (1, 0)]
        for i, (ct, q) in enumerate(quads):
            d = ACC_A + (tb*2 + ct)*16 + 4*q
            a(f'v_cvt_pk_bf16_f32 v{P+2*i}, v{d}, v{d+1}\nv_cvt_pk_bf16_f32 v{P+2*i+1}, v{d+2}, v{d+3}')
        Ls = a.newlabel('A_NS')
        tk = 14 + tb
        a(f's_cmp_eq_u32 s12, 7\ns_cbranch_scc1 {Ls}')
        a(f'v_add_u32 v21, v11, v{tk}\nv_add_u32 v22, v12, v{tk}')
        a(f'buffer_store_dwordx2 v[{P}:{P+1}], v21, s[8:11], s31 offen sc1')
        a(f's_add_u32 s25, s31, {2*2048}\nbuffer_store_dwordx2 v[{P+2}:{P+3}], v21, s[8:11], s25 offen sc1')
        a(f'buffer_store_dwordx2 v[{P+4}:{P+5}], v22, s[8:11], s31 offen sc1')
        a(f's_add_u32 s25, s31, {5*2048}\nbuffer_store_dwordx2 v[{P+6}:{P+7}], v21, s[8:11], s25 offen sc1')
        a(f's_add_u32 s25, s31, {7*2048}\nbuffer_store_dwordx2 v[{P+8}:{P+9}], v21, s[8:11], s25 offen sc1')
        a.label(Ls)
    a('s_mov_b32 s24, s31\nv_cmp_eq_u32 vcc, 1, v7')
    for tb in range(2):
        P = 120 + 10*tb; tk = 14 + tb
        a(f'v_add_u32 v20, 2048, v{tk}')
        a(f'v_add_u32 v21, v8, v20\nds_write_b64 v21, v[{P}:{P+1}]\nds_write_b64 v21, v[{P+2}:{P+3}] offset:8192')
        a(f'v_add_u32 v22, v10, v20\nds_write_b64 v22, v[{P+4}:{P+5}]')
        a(f'v_add_u32 v23, v9, v20\nds_write_b64 v23, v[{P+6}:{P+7}]\nds_write_b64 v23, v[{P+8}:{P+9}] offset:{2*4128}')
        Q = QF + 8*tb
        for i, q in enumerate((1, 2, 3)):
            d = ACC_A + (tb*2 + 1)*16 + 4*q
            a(f'v_cvt_pk_bf16_f32 v{Q+2*i}, v{d}, v{d+1}\nv_cvt_pk_bf16_f32 v{Q+2*i+1}, v{d+2}, v{d+3}')
        a(f'v_mov_b32 v21, 0x3f80\nv_cndmask_b32 v{Q+4}, v{Q+4}, v21, vcc\nv_cndmask_b32_e64 v{Q+5}, v{Q+5}, 0, vcc\nv_mov_b32 v{Q+6}, 0\nv_mov_b32 v{Q+7}, 0')
    a('s_waitcnt lgkmcnt(0)\ns_barrier')
    a.raw('    ; MARK 4')

def o_offsets(a):
    a(f's_lshl_b32 s19, s12, 3\ns_add_u32 s20, s19, s3\ns_sub_u32 s21, 7, s3\ns_add_u32 s21, s21, s19\ns_mul_i32 s20, s20, 40960\ns_mul_i32 s21, s21, 40960')
    a(f's_lshl_b32 s22, s13, 10\ns_add_u32 s22, s22, {KP_O}\ns_add_u32 s36, s20, s22\ns_add_u32 s37, s21, s22')
    a(f's_lshr_b32 s23, s13, 2\ns_add_u32 s23, s23, 32\ns_lshl_b32 s23, s23, 10\ns_bfe_u32 s22, s13, 0x10001\ns_lshl_b32 s22, s22, 9\ns_add_u32 s23, s23, s22\ns_and_b32 s22, s13, 1\ns_lshl_b32 s22, s22, 3\ns_add_u32 s23, s23, s22\ns_add_u32 s23, s23, {KP_O}')
    a('s_add_u32 s38, s20, s23\ns_add_u32 s39, s21, s23')

def phase_b(a):
    assert not OPT.get('bg')
    o_offsets(a)
    import sys as _sys
    from kp_attn import attention
    attention(a, _sys.modules[__name__])
    a.raw('    ; MARK 6')
    def st(f):
        for tb in range(2):
            R = 240 + 6*tb
            a(f'buffer_store_dwordx4 v[{R}:{R+3}], v3, s[8:11], s{36+tb} offen{f}')
        a('s_mov_b32 exec_hi, 0')
        for tb in range(2):
            R = 240 + 6*tb
            a(f'buffer_store_dwordx2 v[{R+4}:{R+5}], v3, s[8:11], s{38+tb} offen{f}')
        a('s_mov_b64 exec, -1')
    store2(a, st)
    gbar_pre(a, FL_O)
    a('s_waitcnt vmcnt(0)')
    gbar(a, FL_O, also_set=FL_BG)
    a.raw('    ; MARK 7')

def kp_kernel(upto='E'):
    a = Asm()
    a('s_cmp_ge_u32 s2, 256\ns_cbranch_scc1 KP_END')
    a(f's_load_dwordx2 s[4:5], s[0:1], {KA_WS}')
    a(f's_load_dwordx2 s[6:7], s[0:1], {KA_OUT}')
    a(f's_load_dwordx2 s[16:17], s[0:1], {KA_X}')
    a(f's_load_dwordx4 s[36:39], s[0:1], {KA_WG}')
    ka40 = KA_X if OPT.get('noxf') else KA_WD
    a(f's_load_dwordx2 s[40:41], s[0:1], {ka40}')
    wave_id(a, 3, 1)
    a('v_and_b32 v2, 63, v0\nv_lshlrev_b32 v3, 4, v2')
    if OPT.get('perm_roles'): a('s_lshr_b32 s12, s2, 5\ns_and_b32 s13, s2, 31\ns_mov_b32 s14, 0')
    else: a('s_and_b32 s12, s2, 7\ns_lshr_b32 s13, s2, 3\ns_mov_b32 s14, 0')
    a('s_waitcnt lgkmcnt(0)')
    ws_rebase(a, 4)
    srd(a, 8, 4, 5, 0, WS_END)
    if OPT.get('lnk0', 1):
        OPT['a_preB'] = OPT.get('a_preB0', 0)
        phase_start(a)
    else: phase_h(a)
    def hoist(nxt):
        b = Asm(); nxt(b)
        k = 0
        if OPT.get('hoist', 1):
            while True:
                t = b.lines[k].strip()
                if t.startswith(('buffer_', 'global_', 'ds_', 's_waitcnt', 's_barrier', 's_cbranch', 's_branch', ';')) or t.endswith(':') or 'exec' in t or t.startswith('v_accvgpr'): break
                k += 1
            last_bar = max(i for i, l in enumerate(a.lines) if l.strip() == 's_barrier')
            first_bar = max(i for i, l in enumerate(a.lines[:last_bar]) if l.strip() == 's_barrier')
            w = max(i for i, l in enumerate(a.lines[:first_bar]) if l.strip() == 's_waitcnt vmcnt(0)')
            a.lines[w:w] = b.lines[:k]
        a.lines += b.lines[k:]
    if upto != 'H':
        phase_a(a)
        phase_b(a)
    if upto not in ('H', 'B'):
        from kp2 import phase_c, phase_d, phase_e
        hoist(phase_c)
        if upto != 'C':
            hoist(phase_d)
            if upto != 'D': hoist(phase_e)
    a.label('KP_END')
    a('s_endpgm')
    a.label('KP_CODE_END')
    return dict(name='kp_kernel', body=a.text(), grid=256, block=256, lds=163840, vgpr=256, agpr=256, sgpr=44, sgpr_real=96)
```

```python
from common import *
from kp import store2, gbar, gbar_pre, poll, poll_bg, OPT, WS_H2F, KP_O, KP_X1

def BSC(): return ' sc1' if OPT.get('bg', 1) and OPT.get('b_sc1', 1) else ''
LX = 102400

def roles80(a):
    a('s_and_b32 s26, s3, 1\ns_lshr_b32 s27, s3, 1\ns_lshr_b32 s15, s13, 2')
    a('s_lshl_b32 s29, s12, 3\ns_and_b32 s19, s13, 3\ns_lshl_b32 s19, s19, 1\ns_add_u32 s29, s29, s19\ns_add_u32 s29, s29, s26')

def main80(a, vm, nks_total, ws_act, ws_w, nslot, preB, ACC, WB, barriers, pre, pace, ahead, tr=False, side=None, before=None):
    nks = nks_total//2; npair = nks//2; nchunk = nks//4
    half_bytes = nslot*10240
    a(f's_and_b32 s22, s29, 7\ns_mul_i32 s22, s22, {nks_total}\ns_mul_i32 s19, s27, {nks}\ns_add_u32 s22, s22, s19\ns_lshl_b32 s22, s22, 10')
    a(f's_add_u32 s19, s12, 7\ns_and_b32 s19, s19, 7\ns_mul_i32 s19, s19, {KVH_STRIDE}\ns_add_u32 s22, s22, s19\ns_add_u32 s22, s22, {ws_act}')
    a(f's_mul_i32 s23, s15, {2*npair}\ns_mul_i32 s19, s27, {npair}\ns_add_u32 s23, s23, s19\ns_add_u32 s23, s23, s26\ns_mul_i32 s23, s23, 5120\ns_add_u32 s23, s23, {ws_w}')
    a(f's_mul_i32 s30, s27, {half_bytes}\ns_mul_i32 s19, s26, 5120\ns_add_u32 s30, s30, s19')
    a(f's_mul_i32 s19, s27, {half_bytes}\nv_add_u32 v4, s19, v3')
    a('v_lshrrev_b32 v5, 5, v2\nv_lshlrev_b32 v5, 8, v5\nv_and_b32 v6, 15, v2\nv_lshl_add_u32 v5, v6, 4, v5\nv_add_u32 v5, s19, v5\nv_add_u32 v5, 4096, v5')
    def rot(c, mul, base, dst):
        return [(f's_add_u32 s33, s35, {c}', False), (f's_sub_u32 s21, s33, {nchunk}', False), (f's_cmp_ge_u32 s33, {nchunk}', False),
                ('s_cselect_b32 s33, s21, s33', False), (f's_mul_i32 s33, s33, {mul}', False), (f's_add_u32 s{dst}, s{base}, s33', False)]
    def opsB(c):
        slot = c % nslot
        if OPT.get('e_noB'): return [('s_nop 0', True)]
        ops = [(f's_add_u32 m0, s30, {slot*10240}', False)] + rot(c, 10240, 23, 24)
        for q in range(4): ops.append((f'buffer_load_dwordx4 v3, s[8:11], s24 offen offset:{q*1024}{BSC()} lds', True))
        ops += [(f's_add_u32 m0, s30, {slot*10240 + 4096}', False), (f's_add_u32 s24, s24, 4096', False)]
        ops.append((f'buffer_load_dwordx4 v3, s[8:11], s24 offen{BSC()} lds', True))
        return ops
    TA = OPT.get('e_ta', 0)
    if TA:
        a('s_and_b32 s19, s13, 3\ns_lshl_b32 s19, s19, 2\ns_add_u32 s19, s19, s3\ns_mul_i32 s19, s19, 10\ns_cmp_ge_u32 s19, 80\ns_cselect_b32 s20, 1, 0')
        a(f's_mul_i32 s21, s20, 80\ns_sub_u32 s19, s19, s21\ns_lshl_b32 s19, s19, 7\ns_mul_i32 s20, s20, {npair*5120}\ns_add_u32 s19, s19, s20\ns_mul_i32 s20, s15, {2*npair*5120}\ns_add_u32 s19, s19, s20\ns_add_u32 s34, s19, {ws_w}')
        a('v_lshlrev_b32 v9, 7, v2')
    def opsT(c):
        if not TA or c >= nchunk: return []
        return [(f's_add_u32 s20, s34, {c*10240}', False), ('s_mov_b64 exec, 0x3ff\nbuffer_load_dword v10, v9, s[8:11], s20 offen\ns_mov_b64 exec, -1', True)]
    def opsA(c):
        ops = sum((opsT(k) for k in range(preB, preB + TA)), []) if c == 0 else opsT(preB + TA - 1 + c)
        ops = ops + rot(c, 4096, 22, 25)
        if OPT.get('e_noA') and c >= 2: return [('s_nop 0', True)]
        for q in range(4):
            ks = 4*c + q
            ops.append((f'buffer_load_dwordx4 a[{4*ks}:{4*ks+3}], v3, s[8:11], s25 offen offset:{q*1024} sc1', True))
        return ops
    if tr:
        a('v_lshrrev_b32 v6, 5, v2\nv_lshlrev_b32 v6, 2, v6\nv_bfe_u32 v4, v2, 2, 2\nv_add_u32 v6, v6, v4\nv_and_b32 v4, 3, v2\nv_lshlrev_b32 v4, 3, v4')
        a('v_lshl_add_u32 v5, v6, 5, v4\nv_lshl_add_u32 v4, v6, 6, v4\nv_bfe_u32 v6, v2, 4, 1\nv_lshl_add_u32 v4, v6, 5, v4')
        a(f's_mul_i32 s19, s27, {half_bytes}\nv_add_u32 v4, s19, v4\nv_add_u32 v5, s19, v5\nv_add_u32 v5, 4096, v5')
    def read_frag(ks, ct, r):
        c = ks // 4; slot = c % nslot
        base = slot*10240 + ((ks >> 1) & 1)*5120
        if tr:
            if ct < 2:
                o = base + (ks & 1)*2048 + ct*1024
                return f'ds_read_b64_tr_b16 v[{r}:{r+1}], v4 offset:{o}\nds_read_b64_tr_b16 v[{r+2}:{r+3}], v4 offset:{o+512}'
            o = base + (ks & 1)*512
            return f'ds_read_b64_tr_b16 v[{r}:{r+1}], v5 offset:{o}\nds_read_b64_tr_b16 v[{r+2}:{r+3}], v5 offset:{o+256}'
        if ct < 2: return f'ds_read_b128 v[{r}:{r+3}], v4 offset:{base + (ks & 1)*2048 + ct*1024}'
        return f'ds_read_b128 v[{r}:{r+3}], v5 offset:{base + (ks & 1)*512}'
    def mfmas(ks, ct, r, first):
        d = ACC + 16*ct
        if OPT.get('e_nomfma'): return ['s_nop 0']
        return [f'v_mfma_f32_32x32x16_bf16 v[{d}:{d+15}], v[{r}:{r+3}], a[{4*ks}:{4*ks+3}], ' + ('0' if first else f'v[{d}:{d+15}]')]
    if before: before()
    gemm2(a, vm, nks, 4, 3, opsA, opsB, preB, read_frag, mfmas, WB, pd=2, pre=pre, nslot=nslot, pace=pace, ahead=ahead, barriers=barriers, nlgkm=(2 if tr else 1), side=side)

def exchange80(a, ACC, T, region):
    def q(i): return ACC + 4*i
    L1 = a.newlabel('X_KH1'); L2 = a.newlabel('X_W')
    a(f's_mul_i32 s19, s3, 6144\ns_add_u32 s19, s19, {region}\nv_add_u32 v6, s19, v3')
    a(f's_cmp_eq_u32 s27, 1\ns_cbranch_scc1 {L1}')
    for i in range(6, 10): a(f'ds_write_b128 v6, v[{q(i)}:{q(i)+3}] offset:{(i-6)*1024}')
    a(f's_branch {L2}')
    a.label(L1)
    for i in range(6): a(f'ds_write_b128 v6, v[{q(i)}:{q(i)+3}] offset:{i*1024}')
    a.label(L2)
    a('s_waitcnt lgkmcnt(0)\ns_barrier')
    a(f's_xor_b32 s19, s3, 2\ns_mul_i32 s19, s19, 6144\ns_add_u32 s19, s19, {region}\nv_add_u32 v6, s19, v3')
    L3 = a.newlabel('X_R1'); L4 = a.newlabel('X_RD')
    a(f's_cmp_eq_u32 s27, 1\ns_cbranch_scc1 {L3}')
    for i in range(6): a(f'ds_read_b128 v[{T+4*i}:{T+4*i+3}], v6 offset:{i*1024}')
    for i in range(6):
        a(f's_waitcnt lgkmcnt({5-i})')
        for e in range(4): a(f'v_add_f32 v{q(i)+e}, v{q(i)+e}, v{T+4*i+e}')
    a(f's_branch {L4}')
    a.label(L3)
    for i in range(4): a(f'ds_read_b128 v[{T+4*i}:{T+4*i+3}], v6 offset:{i*1024}')
    for i in range(4):
        a(f's_waitcnt lgkmcnt({3-i})')
        for e in range(4): a(f'v_add_f32 v{q(i)+e}, v{q(6+i)+e}, v{T+4*i+e}')
    a.label(L4)

def prefetch_blocks(a, nblk, gbase_sgpr, contiguous=True, lds_map=None):
    L = a.newlabel('PF_N')
    per = (nblk + 2)//3
    a(f's_cmp_eq_u32 s3, 0\ns_cbranch_scc1 {L}')
    a(f's_sub_u32 s19, s3, 1\ns_mul_i32 s19, s19, {per*1024}\ns_add_u32 s20, s{gbase_sgpr}, s19')
    for i in range(per):
        if i % 4 == 0:
            a(f's_add_u32 m0, s19, {i*1024}')
            if i: a('s_add_u32 s20, s20, 4096')
        guard = (2*per + i >= nblk)
        if guard:
            L2 = a.newlabel('PF_S'); a(f's_cmp_eq_u32 s3, 3\ns_cbranch_scc1 {L2}')
        a(f'buffer_load_dwordx4 v3, s[8:11], s20 offen offset:{(i%4)*1024}{BSC()} lds')
        if guard: a.label(L2)
    a.label(L)
    return per

def wait_stores(a, npf):
    L1 = a.newlabel('WS_A'); L2 = a.newlabel('WS_B')
    a(f's_cmp_eq_u32 s3, 0\ns_cbranch_scc1 {L1}')
    a(f's_waitcnt vmcnt({npf})')
    a(f's_branch {L2}')
    a.label(L1)
    a('s_waitcnt vmcnt(0)')
    a.label(L2)

def phase_c(a):
    vm = Vm(a)
    roles80(a)
    ACC = 64; WB = 16
    XR = 112; GA = 124; A2 = 136; SB = 148
    a('s_mul_i32 s28, s15, 5\ns_mul_i32 s19, s27, 3\ns_add_u32 s28, s28, s19')
    a('s_mul_i32 s31, s29, 40\ns_add_u32 s31, s31, s28\ns_lshl_b32 s31, s31, 10')
    a('v_lshrrev_b32 v7, 5, v2\nv_lshlrev_b32 v7, 4, v7')
    a(f's_lshl_b32 s32, s28, 5\ns_lshl_b32 s19, s12, 13\ns_add_u32 s32, s32, s19\ns_add_u32 s32, s32, {WS_MODF}')
    def extra_ops():
        ops = []
        if not OPT.get('noxf'):
            ops = [(f's_add_u32 s19, s31, {WS_XF}', False)]
            for i in range(3): ops.append((f'buffer_load_dwordx4 v[{XR+4*i}:{XR+4*i+3}], v3, s[8:11], s19 offen offset:{i*1024} sc1', True))
        for seg, R in ((2, GA), (4, A2), (3, SB)):
            ops.append((f's_add_u32 s19, s32, {seg*1280}', False))
            for i in range(3): ops.append((f'buffer_load_dwordx4 v[{R+4*i}:{R+4*i+3}], v7, s[8:11], s19 offen offset:{i*32} sc1', True))
        return ops
    nks = 20
    a(f's_mul_i32 s22, s29, 40\ns_mul_i32 s19, s27, {nks}\ns_add_u32 s22, s22, s19\ns_lshl_b32 s22, s22, 10\ns_add_u32 s22, s22, {KP_O}')
    half_bytes = 5*10240
    a(f's_mul_i32 s19, s27, {half_bytes}\nv_add_u32 v4, s19, v3')
    a('v_lshrrev_b32 v5, 5, v2\nv_lshlrev_b32 v5, 8, v5\nv_and_b32 v6, 15, v2\nv_lshl_add_u32 v5, v6, 4, v5\nv_add_u32 v5, s19, v5\nv_add_u32 v5, 4096, v5')
    def opsA(c):
        ops = [(f's_add_u32 s25, s22, {c*4096}', False)]
        for q in range(4):
            ks = 4*c + q
            ops.append((f'buffer_load_dwordx4 a[{4*ks}:{4*ks+3}], v3, s[8:11], s25 offen offset:{q*1024} sc1', True))
        return ops
    def read_frag(ks, ct, r):
        base = (ks//4)*10240 + ((ks >> 1) & 1)*5120
        if ct < 2: return f'ds_read_b128 v[{r}:{r+3}], v4 offset:{base + (ks & 1)*2048 + ct*1024}'
        return f'ds_read_b128 v[{r}:{r+3}], v5 offset:{base + (ks & 1)*512}'
    def mfmas(ks, ct, r, first):
        d = ACC + 16*ct
        return [f'v_mfma_f32_32x32x16_bf16 v[{d}:{d+15}], v[{r}:{r+3}], a[{4*ks}:{4*ks+3}], ' + ('0' if first else f'v[{d}:{d+15}]')]
    CF = OPT.get('cfast', 1) and OPT.get('noxf')
    X1 = 160
    PK = 184; PH = 196
    if CF:
        XF = 112; GF = 136
        side = []
        for i in range(12):
            side += [f'v_accvgpr_read_b32 v10, a{144+i}', f'v_lshlrev_b32 v{XF+2*i}, 16, v10', f'v_and_b32 v{XF+2*i+1}, 0xffff0000, v10',
                     f'v_accvgpr_read_b32 v11, a{156+i}', f'v_lshlrev_b32 v{GF+2*i}, 16, v11', f'v_and_b32 v{GF+2*i+1}, 0xffff0000, v11']
        side = [side[2*k] + '\n' + side[2*k+1] for k in range(len(side)//2)]
        gemm2(a, vm, nks, 4, 3, opsA, None, 99, read_frag, mfmas, WB, pd=2, pre=OPT.get('c_pre', 2), pace=1, ahead=5, barriers=False, side=side)
    else:
        if OPT.get('noxf'):
            for i in range(12): a(f'v_accvgpr_read_b32 v{XR+i}, a{144+i}')
        opsA2 = lambda c: opsA(c) + (extra_ops() if c == 4 else [])
        gemm2(a, vm, nks, 4, 3, opsA2, None, 99, read_frag, mfmas, WB, pd=2, pre=OPT.get('c_pre', 2), pace=1, ahead=5, barriers=False)
    a.raw('    ; MARK 10')
    exchange80(a, ACC, 16, LX)
    L = a.newlabel('C_F2')
    if CF:
        def frag1(i):
            for p in range(4):
                d = ACC + 8*i + 2*p; q = 4*i + p; lo = X1 + 2*q
                a(f'v_fma_f32 v12, v{GF+2*q}, v{d}, v{XF+2*q}\nv_fma_f32 v13, v{GF+2*q+1}, v{d+1}, v{XF+2*q+1}')
                a(f'v_cvt_pk_bf16_f32 v{PK+q}, v12, v13')
                a(f'v_lshlrev_b32 v{lo}, 16, v{PK+q}\nv_and_b32 v{lo+1}, 0xffff0000, v{PK+q}')
                if q == 0: a(f'v_pk_add_f32 v[8:9], v[{lo}:{lo+1}], 0 op_sel_hi:[1,0]\nv_pk_mul_f32 v[10:11], v[{lo}:{lo+1}], v[{lo}:{lo+1}]') if False else a(f'v_mov_b32 v8, v{lo}\nv_mov_b32 v9, v{lo+1}\nv_pk_mul_f32 v[10:11], v[{lo}:{lo+1}], v[{lo}:{lo+1}]')
                else: a(f'v_pk_add_f32 v[8:9], v[8:9], v[{lo}:{lo+1}]\nv_pk_fma_f32 v[10:11], v[{lo}:{lo+1}], v[{lo}:{lo+1}], v[10:11]')
        frag1(0); frag1(1)
        a(f's_cmp_eq_u32 s27, 1\ns_cbranch_scc1 {L}')
        frag1(2)
        a.label(L)
        a('v_add_f32 v8, v8, v9\nv_add_f32 v9, v10, v11')
    else:
        a('v_mov_b32 v8, 0\nv_mov_b32 v9, 0')
        def frag1(i):
            for p in range(4):
                d = ACC + 8*i + 2*p; x = XR + 4*i + p; g = GA + 4*i + p
                a(f'v_lshlrev_b32 v10, 16, v{x}\nv_lshlrev_b32 v11, 16, v{g}\nv_fma_f32 v12, v11, v{d}, v10')
                a(f'v_and_b32 v10, 0xffff0000, v{x}\nv_and_b32 v11, 0xffff0000, v{g}\nv_fma_f32 v13, v11, v{d+1}, v10')
                a(f'v_cvt_pk_bf16_f32 v{PK+4*i+p}, v12, v13')
                lo = X1 + 8*i + 2*p
                a(f'v_lshlrev_b32 v{lo}, 16, v{PK+4*i+p}\nv_and_b32 v{lo+1}, 0xffff0000, v{PK+4*i+p}')
                a(f'v_add_f32 v8, v8, v{lo}\nv_fmac_f32 v9, v{lo}, v{lo}\nv_add_f32 v8, v8, v{lo+1}\nv_fmac_f32 v9, v{lo+1}, v{lo+1}')
        frag1(0); frag1(1)
        a(f's_cmp_eq_u32 s27, 1\ns_cbranch_scc1 {L}')
        frag1(2)
        a.label(L)
    a('v_mov_b32 v10, v8\nv_mov_b32 v11, v9')
    a('v_permlane32_swap_b32 v8, v10\nv_permlane32_swap_b32 v9, v11')
    a('v_add_f32 v8, v8, v10\nv_add_f32 v9, v9, v11')
    a(f's_lshl_b32 s19, s29, 4\ns_lshl_b32 s20, s15, 1\ns_add_u32 s19, s19, s20\ns_add_u32 s19, s19, s27\ns_lshl_b32 s33, s19, 8\ns_add_u32 s33, s33, {WS_STAT}')
    a('v_lshlrev_b32 v10, 3, v2')
    def st1(f):
        a('s_mov_b32 exec_hi, 0')
        a(f'buffer_store_dwordx2 v[8:9], v10, s[8:11], s33 offen{f}')
        a('s_mov_b64 exec, -1')
        for i in range(3 if not OPT.get('noxf') else 0):
            Ls = None
            if i == 2:
                Ls = a.newlabel('C_S2'); a(f's_cmp_eq_u32 s27, 1\ns_cbranch_scc1 {Ls}')
            a(f's_add_u32 s19, s31, {KP_X1 + i*1024}\nbuffer_store_dwordx4 v[{PK+4*i}:{PK+4*i+3}], v3, s[8:11], s19 offen{f}')
            if Ls: a.label(Ls)
    store2(a, st1)
    a(f's_lshr_b32 s34, s13, 1\ns_mul_i32 s34, s34, 245760\ns_add_u32 s34, s34, {WS_WGU}')
    if OPT.get('d_rotg'): a('s_mul_i32 s19, s12, 24576\ns_add_u32 s34, s34, s19')
    else: a(f's_and_b32 s19, s13, 1\ns_mul_i32 s19, s19, {5*24576*OPT.get("d_rot", 0)}\ns_add_u32 s34, s34, s19')
    gbar_pre(a, FL_C)
    a('s_waitcnt vmcnt(0)')
    a.raw('    ; MARK 11')
    gbar(a, FL_C, during=((lambda: poll_bg(a)) if OPT.get('bg', 1) else None))
    a.raw('    ; MARK 12')
    ST = 64 if CF else 16
    a('v_and_b32 v10, 31, v2\nv_lshrrev_b32 v11, 5, v2\nv_lshlrev_b32 v12, 3, v10\nv_lshl_add_u32 v12, v11, 11, v12')
    a(f's_lshl_b32 s19, s29, 12\ns_add_u32 s19, s19, {WS_STAT}')
    for i in range(8): a(f'buffer_load_dwordx2 v[{ST+2*i}:{ST+2*i+1}], v12, s[8:11], s19 offen offset:{i*256} sc1')
    if CF:
        AF = 16; SF = 40
        for i in range(12):
            a(f'v_accvgpr_read_b32 v10, a{168+i}\nv_accvgpr_read_b32 v11, a{180+i}')
            a(f'v_lshlrev_b32 v{AF+2*i}, 16, v10\nv_and_b32 v{AF+2*i+1}, 0xffff0000, v10\nv_lshlrev_b32 v{SF+2*i}, 16, v11\nv_and_b32 v{SF+2*i+1}, 0xffff0000, v11')
    a('s_waitcnt vmcnt(0)')
    for i in range(1, 8): a(f'v_pk_add_f32 v[{ST}:{ST+1}], v[{ST}:{ST+1}], v[{ST+2*i}:{ST+2*i+1}]')
    a(f'v_mov_b32 v10, v{ST}\nv_mov_b32 v11, v{ST+1}')
    a(f'v_permlane32_swap_b32 v{ST}, v10\nv_permlane32_swap_b32 v{ST+1}, v11')
    a(f'v_add_f32 v10, v{ST}, v10\nv_add_f32 v11, v{ST+1}, v11')
    inv = hex(f2u(1.0/640))
    a(f'v_mul_f32 v10, {inv}, v10\nv_mul_f32 v11, {inv}, v11\nv_fma_f32 v11, -v10, v10, v11\nv_max_f32 v11, 0, v11\nv_add_f32 v11, {hex(f2u(1e-5))}, v11\nv_rsq_f32 v11, v11')
    L = a.newlabel('C_H2')
    if CF:
        a('v_sub_f32 v12, 0, v10\nv_mov_b32 v14, v11\nv_mov_b32 v15, v11\nv_mov_b32 v13, v12')
        def frag2(i):
            for p in range(4):
                q = 4*i + p; lo = X1 + 2*q
                a(f'v_pk_mul_f32 v[{AF+2*q}:{AF+2*q+1}], v[{AF+2*q}:{AF+2*q+1}], v[14:15]')
                a(f'v_pk_fma_f32 v[{SF+2*q}:{SF+2*q+1}], v[{AF+2*q}:{AF+2*q+1}], v[12:13], v[{SF+2*q}:{SF+2*q+1}]')
                a(f'v_pk_fma_f32 v[{lo}:{lo+1}], v[{lo}:{lo+1}], v[{AF+2*q}:{AF+2*q+1}], v[{SF+2*q}:{SF+2*q+1}]')
                a(f'v_cvt_pk_bf16_f32 v{PH+q}, v{lo}, v{lo+1}')
    else:
        def frag2(i):
            for p in range(4):
                lo = X1 + 8*i + 2*p; s2 = A2 + 4*i + p; sb = SB + 4*i + p
                a(f'v_sub_f32 v{lo}, v{lo}, v10\nv_sub_f32 v{lo+1}, v{lo+1}, v10\nv_mul_f32 v{lo}, v{lo}, v11\nv_mul_f32 v{lo+1}, v{lo+1}, v11')
                a(f'v_lshlrev_b32 v12, 16, v{s2}\nv_lshlrev_b32 v13, 16, v{sb}\nv_fma_f32 v{lo}, v{lo}, v12, v13')
                a(f'v_and_b32 v12, 0xffff0000, v{s2}\nv_and_b32 v13, 0xffff0000, v{sb}\nv_fma_f32 v{lo+1}, v{lo+1}, v12, v13')
                a(f'v_cvt_pk_bf16_f32 v{PH+4*i+p}, v{lo}, v{lo+1}')
    frag2(0); frag2(1)
    a(f's_cmp_eq_u32 s27, 1\ns_cbranch_scc1 {L}')
    frag2(2)
    a.label(L)
    def st2(f):
        for i in range(3):
            Ls = None
            if i == 2:
                Ls = a.newlabel('C_S3'); a(f's_cmp_eq_u32 s27, 1\ns_cbranch_scc1 {Ls}')
            a(f's_add_u32 s19, s31, {WS_H2F + i*1024}\nbuffer_store_dwordx4 v[{PH+4*i}:{PH+4*i+3}], v3, s[8:11], s19 offen{f}')
            if Ls: a.label(Ls)
    store2(a, st2)
    gbar_pre(a, FL_UT)
    a('s_waitcnt vmcnt(0)')
    a.raw('    ; MARK 13')
    gbar(a, FL_UT, during=(lambda: prefetch_blocks(a, 24*OPT.get('d_preB', 1), 34)) if OPT.get('d_preB', 1) else None)
    a.raw('    ; MARK 8')

def phase_d(a):
    vm = Vm(a)
    NSLOT = 6; CB = 24576
    a('s_lshr_b32 s15, s13, 1\ns_and_b32 s19, s13, 1\ns_lshl_b32 s19, s19, 2\ns_lshl_b32 s29, s12, 3\ns_add_u32 s29, s29, s19\ns_add_u32 s29, s29, s3')
    a(f's_mul_i32 s22, s29, 40960\ns_add_u32 s22, s22, {WS_H2F}')
    a(f's_mul_i32 s23, s15, 245760\ns_mul_i32 s30, s3, 6144\ns_add_u32 s23, s23, s30\ns_add_u32 s23, s23, {WS_WGU}')
    R = OPT.get('d_rot', 0)
    a(f's_and_b32 s19, s13, 1\ns_mul_i32 s20, s19, {5*CB*R}\ns_sub_u32 s27, s23, s20\ns_add_u32 s23, s23, s20\ns_mul_i32 s20, s19, {5*4096*R}\ns_sub_u32 s26, s22, s20\ns_add_u32 s22, s22, s20')
    def drot(c, mul, base, dst):
        return [(f's_add_u32 s33, s12, {c}', False), ('s_sub_u32 s21, s33, 10', False), ('s_cmp_ge_u32 s33, 10', False),
                ('s_cselect_b32 s33, s21, s33', False), (f's_mul_i32 s33, s33, {mul}', False), (f's_add_u32 s{dst}, s{base}, s33', False)]
    def opsB(c):
        slot = c % NSLOT
        if OPT.get('d_noB'): return [('s_nop 0', True)]
        if OPT.get('d_rotg'):
            ops = [(f's_add_u32 m0, s30, {slot*CB}', False)] + drot(c, CB, 23, 24)
        else:
            ops = [(f's_add_u32 m0, s30, {slot*CB}', False), (f's_add_u32 s24, s{23 if c < 5 else 27}, {c*CB}', False)]
        NT = ' nt' if OPT.get('d_nt') else ''
        for q in range(4): ops.append((f'buffer_load_dwordx4 v3, s[8:11], s24 offen offset:{q*1024}{BSC()}{NT} lds', True))
        ops += [(f's_add_u32 m0, s30, {slot*CB + 4096}', False), ('s_add_u32 s24, s24, 4096', False)]
        for q in range(2): ops.append((f'buffer_load_dwordx4 v3, s[8:11], s24 offen offset:{q*1024}{BSC()}{NT} lds', True))
        return ops
    TA = OPT.get('d_ta', 0); PB = OPT.get('d_preB', 1)
    if TA:
        a(f's_and_b32 s19, s13, 1\ns_lshl_b32 s19, s19, 2\ns_add_u32 s19, s19, s3\ns_mul_i32 s19, s19, {24*128}\ns_mul_i32 s20, s15, 245760\ns_add_u32 s19, s19, s20\ns_add_u32 s34, s19, {WS_WGU}')
        a('v_lshlrev_b32 v9, 7, v2')
    def opsT(c):
        if not TA or c >= 10: return []
        return [(f's_add_u32 s20, s34, {c*CB}', False), ('s_mov_b64 exec, 0xffffff\nbuffer_load_dword v10, v9, s[8:11], s20 offen\ns_mov_b64 exec, -1', True)]
    WT = OPT.get('d_wdtouch', 0)
    if WT:
        a(f's_mul_i32 s35, s13, 61440\ns_mul_i32 s19, s3, 1536\ns_add_u32 s35, s35, s19\ns_add_u32 s35, s35, {WS_WD}\nv_lshlrev_b32 v9, 7, v2')
    def opsW(c):
        if not WT: return []
        return [(f's_add_u32 s20, s35, {c*6144}', False), ('s_mov_b64 exec, 0xfff\nbuffer_load_dword v255, v9, s[8:11], s20 offen\ns_mov_b64 exec, -1', True)]
    def opsA(c):
        ops = sum((opsT(k) for k in range(PB, PB + TA)), []) if c == 0 else opsT(PB + TA - 1 + c)
        ops = opsW(c) + ops
        if OPT.get('d_rotg'): ops = ops + drot(c, 4096, 22, 25)
        else: ops = ops + [(f's_add_u32 s25, s{22 if c < 5 else 26}, {c*4096}', False)]
        for q in range(4):
            ks = 4*c + q
            ops.append((f'buffer_load_dwordx4 a[{4*ks}:{4*ks+3}], v3, s[8:11], s25 offen offset:{q*1024} sc1', True))
        return ops
    ACC = 88
    TR = bool(OPT.get('bg', 1))
    def read_frag(ks, ct, r):
        off = ((ks//4) % NSLOT)*CB + ((ks & 3)*6 + ct)*1024
        if TR:
            return f'ds_read_b64_tr_b16 v[{r}:{r+1}], v{4 + off//65536} offset:{off % 65536}\nds_read_b64_tr_b16 v[{r+2}:{r+3}], v{4 + off//65536} offset:{off % 65536 + 512}'
        return f'ds_read_b128 v[{r}:{r+3}], v{4 + off//65536} offset:{off % 65536}'
    if TR:
        a('v_lshrrev_b32 v6, 5, v2\nv_lshlrev_b32 v6, 2, v6\nv_bfe_u32 v4, v2, 2, 2\nv_add_u32 v6, v6, v4\nv_and_b32 v4, 3, v2\nv_lshlrev_b32 v4, 3, v4')
        a('v_lshl_add_u32 v4, v6, 6, v4\nv_bfe_u32 v6, v2, 4, 1\nv_lshl_add_u32 v4, v6, 5, v4')
        a('v_add_u32 v5, 0x10000, v4\nv_add_u32 v6, 0x20000, v4')
    else:
        a('v_mov_b32 v4, v3\nv_add_u32 v5, 0x10000, v3\nv_add_u32 v6, 0x20000, v3')
    def mfmas(ks, ct, r, first):
        d = ACC + 16*ct
        if OPT.get('d_nomfma'): return ['s_nop 7']
        return [f'v_mfma_f32_32x32x16_bf16 v[{d}:{d+15}], v[{r}:{r+3}], a[{4*ks}:{4*ks+3}], ' + ('0' if first else f'v[{d}:{d+15}]')]
    gemm2(a, vm, 40, 4, 6, opsA, opsB, OPT.get('d_preB', 1), read_frag, mfmas, 16, pd=(1 if TR else 2), pre=OPT.get('d_pre', 2), nslot=NSLOT, pace=OPT.get('d_pace', 2), ahead=OPT.get('d_ahead', 4), barriers=True, nlgkm=(2 if TR else 1))
    a.raw('    ; MARK 14')
    a(f's_and_b32 s22, s29, 7\ns_mul_i32 s22, s22, 96\ns_mul_i32 s19, s15, 6\ns_add_u32 s22, s22, s19\ns_lshl_b32 s22, s22, 10')
    a(f's_add_u32 s19, s12, 7\ns_and_b32 s19, s19, 7\ns_mul_i32 s19, s19, {KVH_STRIDE}\ns_add_u32 s22, s22, s19\ns_add_u32 s22, s22, {WS_KVH}')
    for ct in range(3):
        for q in range(4):
            g = ACC + 16*ct + 4*q; u = ACC + 16*(3+ct) + 4*q
            a(f'v_pk_mul_f32 v[{g}:{g+1}], v[{g}:{g+1}], v[{u}:{u+1}]\nv_pk_mul_f32 v[{g+2}:{g+3}], v[{g+2}:{g+3}], v[{u+2}:{u+3}]')
            o = 16 + 8*ct + 2*q
            a(f'v_cvt_pk_bf16_f32 v{o}, v{g}, v{g+1}\nv_cvt_pk_bf16_f32 v{o+1}, v{g+2}, v{g+3}')
    def st(f):
        for k in range(6):
            if k == 4: a('s_add_u32 s22, s22, 4096')
            a(f'buffer_store_dwordx4 v[{16+4*k}:{19+4*k}], v3, s[8:11], s22 offen offset:{(k % 4)*1024}{f}')
    store2(a, st)
    a(f's_lshr_b32 s15, s13, 2\ns_mul_i32 s34, s15, {48*5120}\ns_add_u32 s34, s34, {WS_WD}')
    if OPT.get('e_rotg', 1): a('s_mul_i32 s19, s12, 10240\ns_add_u32 s34, s34, s19')
    else: a(f's_and_b32 s19, s13, 3\ns_mul_i32 s19, s19, {3*10240*OPT.get("e_rot", 0)}\ns_add_u32 s34, s34, s19')
    def out_touch():
        pass
    def pf_wd():
      a('s_sub_u32 s19, s3, 1\ns_mul_i32 s19, s19, 20')
      for i in range(20):
          if i in (0, 10):
              a(f's_add_u32 s20, s19, {i}\ns_cmp_ge_u32 s20, 30\ns_cselect_b32 s21, 1, 0\ns_mul_i32 s25, s21, 30\ns_sub_u32 s20, s20, s25\ns_lshl_b32 s20, s20, 10')
              a(f's_mul_i32 s25, s21, {24*5120}\ns_add_u32 s25, s25, s20\ns_add_u32 s25, s25, s34\ns_mul_i32 s21, s21, 61440\ns_add_u32 s21, s21, s20')
          k = i % 10
          if k % 4 == 0:
              a(f's_add_u32 m0, s21, {k*1024}')
              if k: a('s_add_u32 s25, s25, 4096')
          a(f'buffer_load_dwordx4 v3, s[8:11], s25 offen offset:{(k % 4)*1024}{BSC()} lds')
    gbar_pre(a, FL_D)
    a('s_waitcnt vmcnt(0)')
    a.raw('    ; MARK 15')
    gbar(a, FL_D, during=pf_wd)
    a.raw('    ; MARK 16')

def phase_e(a):
    vm = Vm(a)
    roles80(a)
    srd(a, 36, 6, 7, 0, ACT_BYTES)
    ACC = 64; WB = 16; XR = 112; GB = 124
    a('s_mul_i32 s28, s15, 5\ns_mul_i32 s19, s27, 3\ns_add_u32 s28, s28, s19')
    a('s_mul_i32 s31, s29, 40\ns_add_u32 s31, s31, s28\ns_lshl_b32 s31, s31, 10')
    a('v_lshrrev_b32 v7, 5, v2\nv_lshlrev_b32 v7, 4, v7')
    a(f's_lshl_b32 s32, s28, 5\ns_lshl_b32 s19, s12, 13\ns_add_u32 s19, s19, s32\ns_add_u32 s19, s19, {WS_MODF + 5*1280}')
    a('s_mov_b32 s42, s19')
    gb_loads = lambda: [vm.issue(f'buffer_load_dwordx4 v[{GB+4*i}:{GB+4*i+3}], v7, s[8:11], s42 offen offset:{i*32} sc1', 'x') for i in range(3)]
    if OPT.get('noxf'): XR = 184
    else:
        a(f's_add_u32 s19, s31, {KP_X1}')
        for i in range(3): vm.issue(f'buffer_load_dwordx4 v[{XR+4*i}:{XR+4*i+3}], v3, s[8:11], s19 offen offset:{i*1024} sc1', 'x')
    XF = 136; GF = 196
    eside = []
    for i in range(12):
        eside += [f'v_lshlrev_b32 v{XF+2*i}, 16, v{XR+i}\nv_and_b32 v{XF+2*i+1}, 0xffff0000, v{XR+i}',
                  f'v_lshlrev_b32 v{GF+2*i}, 16, v{GB+i}\nv_and_b32 v{GF+2*i+1}, 0xffff0000, v{GB+i}']
    if OPT.get('wbl2'):
        Lwb = a.newlabel('E_WB')
        a(f's_cmp_lg_u32 s13, {OPT.get("wbl2_j", 0)}\ns_cbranch_scc1 {Lwb}\ns_cmp_lg_u32 s3, 0\ns_cbranch_scc1 {Lwb}')
        a('buffer_wbl2 sc1')
        a.label(Lwb)
    if OPT.get('e_rotg', 1): a('s_mov_b32 s35, s12')
    else: a('s_and_b32 s35, s13, 3\ns_mul_i32 s35, s35, ' + str(3*OPT.get('e_rot', 0)))
    main80(a, vm, 96, WS_KVH, WS_WD, 6, 3, ACC, WB, True, OPT.get('e_pre', 2), OPT.get('e_pace', 1), OPT.get('e_ahead', 4), tr=bool(OPT.get('bg', 1)), side=eside, before=gb_loads)
    a.raw('    ; MARK 17')
    exchange80(a, ACC, 16, 122880)
    a('v_and_b32 v8, 31, v2\ns_lshl_b32 s19, s29, 5\nv_add_u32 v8, s19, v8\nv_mul_u32_u24 v8, 1280, v8\nv_add_u32 v8, v8, v7')
    L = a.newlabel('E_F2')
    def frag(i):
        for p in range(4):
            d = ACC + 8*i + 2*p; q = 4*i + p
            a(f'v_pk_fma_f32 v[{d}:{d+1}], v[{GF+2*q}:{GF+2*q+1}], v[{d}:{d+1}], v[{XF+2*q}:{XF+2*q+1}]')
            a(f'v_cvt_pk_bf16_f32 v{16+4*i+p}, v{d}, v{d+1}')
        b = 16 + 4*i
        a(f'v_permlane32_swap_b32 v{b}, v{b+2}\nv_permlane32_swap_b32 v{b+1}, v{b+3}')
        a(f'buffer_store_dwordx4 v[{b}:{b+3}], v8, s[36:39], s32 offen offset:{i*32}' + OPT.get('out_fl', ''))
    frag(0); frag(1)
    a(f's_cmp_eq_u32 s27, 1\ns_cbranch_scc1 {L}')
    frag(2)
    a.label(L)
```

```python
from common import *
import math

SPIN = 2000000
LH = 81920
LFAST = LH + 2560
LK = 114176
LV = LK + 24576
LONES = 159488
LFAST2 = 110592
NEG = -30000.0
KP_O = WS_H1F
WS_H2F = WS_H1F
KP_X1 = WS_XF

def store2(a, text_fn):
    L1 = a.newlabel('ST_S'); L2 = a.newlabel('ST_E')
    a(f's_cmp_eq_u32 s14, 0\ns_cbranch_scc1 {L1}')
    text_fn('')
    a(f's_branch {L2}')
    a.label(L1)
    text_fn(' sc1')
    a.label(L2)

def poll(a, vaddr, cond_reg='v20', sbase='s[4:5]', n=1, spin=None, pipe=False):
    L = a.newlabel('POLL'); Lo = a.newlabel('POLLX')
    a(f's_mov_b32 s18, {spin or SPIN}')
    if pipe:
        a(f'global_load_dword v252, {vaddr}, {sbase} sc1\ns_nop 7\nglobal_load_dword v253, {vaddr}, {sbase} sc1\ns_nop 7')
        a.label(L)
        for x, y in ((254, 252), (252, 253), (253, 254)):
            a(f'global_load_dword v{x}, {vaddr}, {sbase} sc1\ns_waitcnt vmcnt(2)\nv_cmp_eq_u32 vcc, 0, v{y}\ns_cbranch_vccz {Lo}')
        a(f's_sub_u32 s18, s18, 1\ns_cmp_lg_u32 s18, 0\ns_cbranch_scc1 {L}')
        a.label(Lo)
        return
    a.label(L)
    a(f's_sub_u32 s18, s18, 1\ns_cmp_eq_u32 s18, 0\ns_cbranch_scc1 {Lo}')
    a(f'global_load_dword {cond_reg}, {vaddr}, {sbase} sc1')
    a('s_waitcnt vmcnt(0)')
    a(f'v_cmp_eq_u32 vcc, 0, {cond_reg}')
    a(f's_cbranch_vccnz {L}')
    a.label(Lo)

def poll_bg(a):
    L = a.newlabel('PBG'); Lo = a.newlabel('PBGX'); Ls = a.newlabel('PBGS')
    a(f's_cmp_lg_u32 s3, 1\ns_cbranch_scc1 {Ls}')
    a(f'v_add_u32 v18, {FL_BG}, v3\ns_mov_b32 s18, {SPIN}')
    a.label(L)
    a(f's_sub_u32 s18, s18, 1\ns_cmp_eq_u32 s18, 0\ns_cbranch_scc1 {Lo}')
    a('global_load_dwordx4 v[20:23], v18, s[4:5] sc1\ns_waitcnt vmcnt(0)')
    a('v_min_u32 v20, v20, v21\nv_min_u32 v22, v22, v23\nv_min_u32 v20, v20, v22\nv_cmp_eq_u32 vcc, 0, v20')
    a(f's_cbranch_vccnz {L}')
    a.label(Lo)
    a.label(Ls)

def gbar_pre(a, flag):
    a(f's_lshl_b32 s19, s12, 7\ns_add_u32 s19, s19, {flag}\ns_lshl_b32 s20, s13, 2\ns_add_u32 s20, s20, s19')
    a('v_mov_b32 v250, s20\nv_and_b32 v251, 31, v2\nv_lshlrev_b32 v251, 2, v251\nv_add_u32 v251, s19, v251\nv_mov_b32 v249, 1')

def gbar(a, flag, local=True, during=None, also_set=None):
    L = a.newlabel('GB'); Ld = a.newlabel('GBD')
    a('s_barrier')
    a(f's_cmp_lg_u32 s3, 0\ns_cbranch_scc1 {Ld if during else L}')
    a('s_mov_b64 exec, 1')
    store2(a, lambda f: a(f'global_store_dword v250, v249, s[4:5]{f}'))
    if also_set is not None and OPT.get('bg'):
        a(f's_lshl_b32 s20, s2, 2\ns_add_u32 s20, s20, {also_set}\nv_mov_b32 v250, s20\nglobal_store_dword v250, v249, s[4:5] sc1')
    a('s_mov_b64 exec, -1')
    poll(a, 'v251', pipe=True)
    if during:
        a(f's_branch {L}')
        a.label(Ld)
        during()
    a.label(L)
    a('s_barrier')

def fin_mod(a, base, nq_valid_exec=None):
    for e in (0, 2):
        a(f'v_pk_add_f32 v[{base+e}:{base+e+1}], v[{base+e}:{base+e+1}], v[{base+4+e}:{base+5+e}]\nv_pk_add_f32 v[{base+8+e}:{base+9+e}], v[{base+8+e}:{base+9+e}], v[{base+12+e}:{base+13+e}]')
    for e in (0, 2):
        a(f'v_pk_add_f32 v[{base+e}:{base+e+1}], v[{base+e}:{base+e+1}], v[{base+8+e}:{base+9+e}]')

def round_pack(a, base, vone, out):
    a(f'v_cvt_pk_bf16_f32 v{out}, v{base}, v{base+1}\nv_cvt_pk_bf16_f32 v{out+1}, v{base+2}, v{base+3}')
    a(f'v_lshlrev_b32 v{base}, 16, v{out}\nv_and_b32 v{base+1}, 0xffff0000, v{out}\nv_lshlrev_b32 v{base+2}, 16, v{out+1}\nv_and_b32 v{base+3}, 0xffff0000, v{out+1}')
    for e in range(4): a(f'v_add_f32 v{base+e}, v{base+e}, v{vone}')
    a(f'v_cvt_pk_bf16_f32 v{out}, v{base}, v{base+1}\nv_cvt_pk_bf16_f32 v{out+1}, v{base+2}, v{base+3}')

def cperm_pos_bytes(a, vcol4, out, tmp):
    a(f'v_lshrrev_b32 v{out}, 2, v{vcol4}\nv_lshlrev_b32 v{out}, 5, v{out}')
    a(f'v_and_b32 v{tmp}, 1, v{vcol4}\nv_lshl_add_u32 v{out}, v{tmp}, 4, v{out}')
    a(f'v_bfe_u32 v{tmp}, v{vcol4}, 1, 1\nv_lshl_add_u32 v{out}, v{tmp}, 3, v{out}')

LHF = 81920
LFAST = LHF + 5120


def round4(a, base, vone):
    t = base + 4
    for rep in range(2):
        a(f'v_cvt_pk_bf16_f32 v{t}, v{base}, v{base+1}\nv_cvt_pk_bf16_f32 v{t+1}, v{base+2}, v{base+3}')
        a(f'v_lshlrev_b32 v{base}, 16, v{t}\nv_and_b32 v{base+1}, 0xffff0000, v{t}\nv_lshlrev_b32 v{base+2}, 16, v{t+1}\nv_and_b32 v{base+3}, 0xffff0000, v{t+1}')
        if rep == 0:
            for e in range(4): a(f'v_add_f32 v{base+e}, v{base+e}, v{vone}')

def bg_setup(a):
    a('s_lshl_b32 s30, s2, 1')
    a('v_lshrrev_b32 v14, 3, v2\nv_and_b32 v15, 7, v2')
    Ld = a.newlabel('BG_D'); Le = a.newlabel('BG_E')
    a(f's_cmp_ge_u32 s2, 160\ns_cbranch_scc1 {Ld}')
    a(f's_lshr_b32 s19, s30, 3\ns_mul_i32 s43, s19, 49152\ns_and_b32 s20, s30, 3\ns_mul_i32 s20, s20, 768\ns_add_u32 s43, s43, s20')
    a('s_bitcmp1_b32 s30, 2\ns_cselect_b32 s32, s38, s36\ns_cselect_b32 s33, s39, s37')
    a(f's_and_b32 s20, s30, 3\ns_mul_i32 s31, s20, {4*40*6144}\ns_mul_i32 s19, s19, 6144\ns_add_u32 s31, s31, s19\ns_bfe_u32 s19, s30, 0x10002\ns_mul_i32 s19, s19, 3072\ns_add_u32 s31, s31, s19\ns_add_u32 s31, s31, {WS_WGU}')
    a('v_mul_u32_u24 v8, 3072, v14\nv_lshl_add_u32 v8, v15, 4, v8')
    a('v_lshlrev_b32 v14, 6, v14\nv_and_b32 v11, 3, v15\nv_lshl_add_u32 v14, v11, 4, v14\nv_lshrrev_b32 v11, 2, v15')
    a(f'v_mul_u32_u24 v15, {40*6144 - 2048}, v11\nv_add_u32 v15, v15, v14\nv_lshl_add_u32 v14, v11, 10, v14')
    a(f's_branch {Le}')
    a.label(Ld)
    a(f's_sub_u32 s30, s30, 320\ns_lshr_b32 s19, s30, 1\ns_mul_i32 s43, s19, 20480')
    a('s_mov_b32 s32, s40\ns_mov_b32 s33, s41')
    a(f's_lshr_b32 s31, s30, 2\ns_mul_i32 s31, s31, 5120\ns_add_u32 s31, s31, {WS_WD}\ns_and_b32 s30, s19, 1')
    a('v_mul_u32_u24 v8, 1280, v14\nv_lshl_add_u32 v8, v15, 4, v8')
    a.label(Le)
    a('s_mov_b32 s34, 1966080\ns_mov_b32 s35, 0x20000')

def bg_plan(w):
    gu = [(i, rh, m) for i in range(2) for m in range(6) for rh in range(2)]
    dn = [(i, rh, m) for i in range(2) for m in range(5) for rh in range(2)]
    g = gu[w-1::3]; d = dn[w-1::3]
    return [(g[k], d[k] if k < len(d) else None) for k in range(8)]

def bg_load(k, gu, dn):
    i, rh, m = gu
    return (f's_add_u32 s19, s43, {i*768 + rh*8*3072}\nbuffer_load_dwordx4 a[{4*k}:{4*k+3}], v8, s[32:35], s19 offen offset:{128*m}',
            (f's_add_u32 s19, s43, {dn[0]*640 + dn[1]*8*1280}\nbuffer_load_dwordx4 a[{4*k}:{4*k+3}], v8, s[32:35], s19 offen offset:{128*dn[2]}' if dn
             else f'buffer_load_dwordx4 a[{4*k}:{4*k+3}], v8, s[32:35], s43 offen'))

def bg_store(k, gu, dn):
    i, rh, m = gu
    b = 2*m
    off = i*4*40*6144 + (b//3)*40*6144 + (b % 3)*1024 + rh*512
    tg = f's_add_u32 s23, s31, {off}\nbuffer_store_dwordx4 a[{4*k}:{4*k+3}], v{15 if (b % 3) == 2 else 14}, s[8:11], s23 offen sc1'
    if dn is None: return tg, 's_nop 0'
    i, rh, m = dn
    t = f'v_add_u32 v11, {8*m}, v15\nv_mul_u32_u24 v12, 6554, v11\nv_lshrrev_b32 v12, 16, v12\nv_mul_u32_u24 v8, 10, v12\nv_sub_u32 v11, v11, v8'
    t += f'\nv_mul_u32_u24 v12, {48*5}, v12\nv_lshlrev_b32 v12, 10, v12'
    t += f'\ns_lshl_b32 s19, s30, 11\ns_add_u32 s19, s19, {rh*512}\ns_lshl_b32 s23, s30, 9\ns_add_u32 s23, s23, {4096 + rh*256}'
    t += '\nv_cmp_lt_u32 s[20:21], 7, v11\nv_and_b32 v8, 3, v11\nv_lshlrev_b32 v8, 4, v8\nv_lshrrev_b32 v11, 2, v11\nv_lshlrev_b32 v11, 10, v11'
    t += '\nv_lshl_add_u32 v11, v14, 6, v11\nv_add_u32 v11, s19, v11\nv_add_u32 v12, v12, v8\nv_lshlrev_b32 v8, 5, v14\nv_add_u32 v8, s23, v8\nv_cndmask_b32_e64 v11, v11, v8, s[20:21]\nv_add_u32 v12, v12, v11'
    t += f'\ns_add_u32 s23, s31, {i*4*48*5120}\nbuffer_store_dwordx4 a[{4*k}:{4*k+3}], v12, s[8:11], s23 offen sc1'
    return tg, t

LSYNC = LFAST + 16
def lds_arrive(a, off):
    a(f'v_mov_b32 v18, {LSYNC + off}\nv_mov_b32 v19, 1\ns_mov_b64 exec, 1\nds_add_u32 v18, v19\ns_mov_b64 exec, -1')
def lds_spin(a, off, n):
    L = a.newlabel('LSP'); Lo = a.newlabel('LSPX')
    a(f'v_mov_b32 v18, {LSYNC + off}\ns_mov_b32 s18, {SPIN}')
    a.label(L)
    a(f's_sub_u32 s18, s18, 1\ns_cmp_eq_u32 s18, 0\ns_cbranch_scc1 {Lo}')
    a(f'ds_read_b32 v19, v18\ns_waitcnt lgkmcnt(0)\nv_readfirstlane_b32 s19, v19\ns_cmp_lt_u32 s19, {n}\ns_cbranch_scc1 {L}')
    a.label(Lo)

def lds_spin_keep(a, off, n):
    L = a.newlabel('LSP'); Lo = a.newlabel('LSPX')
    a(f'v_mov_b32 v18, {LSYNC + off}\ns_mov_b32 s18, {SPIN}')
    a.label(L)
    a(f's_sub_u32 s18, s18, 1\ns_cmp_eq_u32 s18, 0\ns_cbranch_scc1 {Lo}')
    a(f'ds_read_b32 v19, v18\ns_waitcnt lgkmcnt(0)\nv_readfirstlane_b32 s24, v19\ns_cmp_lt_u32 s24, {n}\ns_cbranch_scc1 {L}')
    a.label(Lo)

def phase_h(a):
    a('s_barrier')
    Lw23 = a.newlabel('H_W23'); Lend = a.newlabel('H_END')
    a(f's_cmp_ge_u32 s3, 2\ns_cbranch_scc1 {Lw23}')
    a('s_setprio 3')
    a('v_lshrrev_b32 v5, 4, v2\nv_and_b32 v4, 15, v2')
    a('s_lshl_b32 s19, s12, 8\ns_lshl_b32 s20, s13, 3\ns_add_u32 s19, s19, s20\ns_lshl_b32 s20, s3, 2\ns_add_u32 s19, s19, s20')
    a('v_add_u32 v5, s19, v5')
    a('v_lshrrev_b32 v7, 1, v4\nv_and_b32 v8, 1, v4')
    a(f's_mul_i32 s21, s3, 2560\ns_add_u32 s21, s21, {WS_MODP}')
    for p in range(4):
        for r in range(3):
            a(f'buffer_load_dwordx4 v[{24+16*r+4*p}:{27+16*r+4*p}], v3, s[8:11], s21 offen offset:{r*1024}')
        if p < 3: a('s_add_u32 s21, s21, 15360')
    srd(a, 24, 16, 17, 0, ACT_BYTES)
    a('v_mul_u32_u24 v6, 1280, v5\nv_lshl_add_u32 v6, v7, 5, v6\nv_lshl_add_u32 v6, v8, 3, v6')
    for i in range(5):
        a(f'buffer_load_dwordx2 v[{192+4*i}:{193+4*i}], v6, s[24:27], 0 offen offset:{i*256}')
        a(f'buffer_load_dwordx2 v[{194+4*i}:{195+4*i}], v6, s[24:27], 0 offen offset:{i*256+16}')
    Lx = a.newlabel('H_XT'); Lx2 = a.newlabel('H_XT2')
    a('s_getreg_b32 s15, hwreg(HW_REG_XCC_ID, 0, 4)\ns_add_u32 s15, s15, 1')
    a(f's_cmp_lg_u32 s3, 1\ns_cbranch_scc1 {Lx}')
    a(f's_lshl_b32 s19, s12, 7\ns_lshl_b32 s20, s13, 2\ns_add_u32 s19, s19, s20\ns_add_u32 s19, s19, {FL_XT}')
    a('v_mov_b32 v18, s19\nv_mov_b32 v19, s15\ns_mov_b64 exec, 1')
    a('global_store_dword v18, v19, s[4:5] sc1')
    a('s_mov_b64 exec, -1')
    a('s_waitcnt vmcnt(11)')
    a(f's_branch {Lx2}')
    a.label(Lx)
    a('s_waitcnt vmcnt(10)')
    a.label(Lx2)
    a.raw('    ; MARK 0')
    a('v_lshrrev_b32 v14, 2, v2\nv_lshlrev_b32 v14, 6, v14\nv_and_b32 v15, 1, v2\nv_lshl_add_u32 v14, v15, 5, v14\nv_bfe_u32 v15, v2, 1, 1\nv_lshl_add_u32 v14, v15, 4, v14')
    a(f's_mul_i32 s20, s3, 2560\ns_add_u32 s20, s20, {LHF}\nv_add_u32 v14, s20, v14')
    a('s_cmp_eq_u32 s3, 1\ns_cselect_b32 s20, 1.0, 0\nv_mov_b32 v12, s20')
    for r in range(3):
        b = 24 + 16*r
        fin_mod(a, b); round4(a, b, 12)
        if r == 2: a('s_mov_b32 exec_hi, 0')
        a(f'ds_write_b128 v14, v[{b}:{b+3}] offset:{r*1024}')
        if r == 2: a('s_mov_b64 exec, -1')
    a('s_waitcnt lgkmcnt(0)')
    lds_arrive(a, 0)
    X = 192; F = 124
    a('s_waitcnt vmcnt(0)')
    a(f's_lshl_b32 s19, s12, 7\ns_add_u32 s19, s19, {FL_XT}\nv_and_b32 v22, 31, v2\nv_lshlrev_b32 v22, 2, v22\nv_add_u32 v22, s19, v22')
    a('global_load_dword v20, v22, s[4:5] sc1')
    for i in range(20):
        a(f'v_lshlrev_b32 v{F+2*i}, 16, v{X+i}\nv_and_b32 v{F+1+2*i}, 0xffff0000, v{X+i}')
    a(f'v_pk_add_f32 v[12:13], v[{F}:{F+1}], v[{F+2}:{F+3}]\nv_pk_add_f32 v[14:15], v[{F+4}:{F+5}], v[{F+6}:{F+7}]')
    for i in range(4, 20, 2):
        a(f'v_pk_add_f32 v[12:13], v[12:13], v[{F+2*i}:{F+2*i+1}]\nv_pk_add_f32 v[14:15], v[14:15], v[{F+2*i+2}:{F+2*i+3}]')
    a('v_pk_add_f32 v[12:13], v[12:13], v[14:15]\nv_add_f32 v12, v12, v13')
    for rot in (8, 4, 2, 1):
        a(f'v_add_f32_dpp v12, v12, v12 row_ror:{rot} row_mask:0xf bank_mask:0xf')
    a(f'v_mul_f32 v12, {hex(f2u(-1.0/640))}, v12\nv_mov_b32 v13, v12')
    for i in range(20): a(f'v_pk_add_f32 v[{F+2*i}:{F+2*i+1}], v[{F+2*i}:{F+2*i+1}], v[12:13]')
    a(f'v_pk_mul_f32 v[14:15], v[{F}:{F+1}], v[{F}:{F+1}]\nv_pk_mul_f32 v[16:17], v[{F+2}:{F+3}], v[{F+2}:{F+3}]')
    for i in range(2, 20, 2):
        a(f'v_pk_fma_f32 v[14:15], v[{F+2*i}:{F+2*i+1}], v[{F+2*i}:{F+2*i+1}], v[14:15]\nv_pk_fma_f32 v[16:17], v[{F+2*i+2}:{F+2*i+3}], v[{F+2*i+2}:{F+2*i+3}], v[16:17]')
    a('v_pk_add_f32 v[14:15], v[14:15], v[16:17]\nv_add_f32 v14, v14, v15')
    for rot in (8, 4, 2, 1):
        a(f'v_add_f32_dpp v14, v14, v14 row_ror:{rot} row_mask:0xf bank_mask:0xf')
    a(f'v_mov_b32 v15, {hex(f2u(1e-5))}\nv_fmac_f32 v15, {hex(f2u(1.0/640))}, v14\nv_rsq_f32 v14, v15')
    a('v_mov_b32 v15, v14')
    Lp = a.newlabel('H_XP'); Lpo = a.newlabel('H_XPO')
    a(f's_waitcnt vmcnt(0)\nv_cmp_eq_u32 vcc, 0, v20\ns_cbranch_vccz {Lpo}')
    poll(a, 'v22')
    a.label(Lpo)
    a('v_cmp_ne_u32 vcc, s15, v20\ns_cmp_eq_u64 vcc, 0\ns_cselect_b32 s14, 1, 0')
    a(f'v_mov_b32 v18, {LFAST}\nv_mov_b32 v19, s14\nds_write_b32 v18, v19\ns_waitcnt lgkmcnt(0)')
    lds_arrive(a, 8)
    lds_spin(a, 0, 2)
    a(f'v_lshlrev_b32 v9, 5, v4\nv_add_u32 v9, {LHF}, v9')
    A1 = 24; SA = 64
    for i in range(5):
        for hh in range(2):
            a(f'ds_read_b128 v[{A1+8*i+4*hh}:{A1+8*i+4*hh+3}], v9 offset:{2560 + i*512 + 16*hh}')
            a(f'ds_read_b128 v[{SA+8*i+4*hh}:{SA+8*i+4*hh+3}], v9 offset:{i*512 + 16*hh}')
    for i in range(20): a(f'v_pk_mul_f32 v[{F+2*i}:{F+2*i+1}], v[{F+2*i}:{F+2*i+1}], v[14:15]')
    for i in range(5):
        a(f's_waitcnt lgkmcnt({min(15, 16 - 4*i)})')
        for k in range(4*i, 4*i+4):
            a(f'v_pk_fma_f32 v[{F+2*k}:{F+2*k+1}], v[{F+2*k}:{F+2*k+1}], v[{A1+2*k}:{A1+2*k+1}], v[{SA+2*k}:{SA+2*k+1}]')
            a(f'v_cvt_pk_bf16_f32 v{164+k}, v{F+2*k}, v{F+2*k+1}')
    a('v_and_b32 v10, 31, v5\nv_lshlrev_b32 v10, 4, v10\nv_lshl_add_u32 v10, v7, 10, v10\nv_lshl_add_u32 v10, v8, 9, v10')
    a('s_lshl_b32 s19, s12, 3\ns_lshr_b32 s20, s13, 2\ns_add_u32 s21, s19, s20\ns_mul_i32 s21, s21, 40960')
    def st(f):
        for i in range(5):
            a(f's_add_u32 s20, s21, {WS_H1F + i*8192}')
            a(f'buffer_store_dwordx4 v[{164+4*i}:{167+4*i}], v10, s[8:11], s20 offen{f}')
    store2(a, st)
    a(f's_lshl_b32 s22, s12, 7\ns_add_u32 s22, s22, {FL_H}\ns_lshl_b32 s20, s13, 2\ns_add_u32 s20, s20, s22\nv_mov_b32 v250, s20\nv_mov_b32 v249, 1')
    a('v_and_b32 v251, 31, v2\nv_lshlrev_b32 v251, 2, v251\nv_add_u32 v251, s22, v251')
    if OPT.get('noxf'): a_setup(a)
    a('s_waitcnt vmcnt(0)')
    a.raw('    ; MARK 1')
    Lw1 = a.newlabel('H_W1'); Lst = a.newlabel('H_ST')
    a(f's_cmp_eq_u32 s3, 1\ns_cbranch_scc1 {Lw1}')
    lds_spin_keep(a, 4, 1)
    a('s_mov_b64 exec, 1')
    store2(a, lambda f: a(f'global_store_dword v250, v249, s[4:5]{f}'))
    a('s_mov_b64 exec, -1')
    poll(a, 'v251', pipe=True)
    a(f's_branch {Lst}')
    a.label(Lw1)
    lds_arrive(a, 4)
    a.label(Lst)
    def st2(f):
        for i in range(5):
            a(f's_add_u32 s20, s21, {WS_XF + i*8192}')
            a(f'buffer_store_dwordx4 v[{X+4*i}:{X+3+4*i}], v10, s[8:11], s20 offen{f}')
    if not OPT.get('noxf'): store2(a, st2)
    a(f's_branch {Lend}')
    a.label(Lw23)
    if OPT.get('tlbwarm'):
        a('v_lshlrev_b32 v9, 21, v2\ns_mov_b64 exec, 0x3ffffff')
        a('buffer_load_dword v255, v9, s[8:11], 0 offen')
        a('s_mov_b64 exec, 3')
        a('global_load_dword v255, v9, s[6:7]')
        a('s_mov_b64 exec, 1')
        for r in (36, 38, 40): a(f'global_load_dword v255, v9, s[{r}:{r+1}]')
        a('s_mov_b64 exec, -1')
    if OPT.get('h_touch', 1):
        a(f's_mul_i32 s20, s12, 327680\ns_mul_i32 s21, s13, 10240\ns_add_u32 s20, s20, s21\ns_sub_u32 s21, s3, 2\ns_mul_i32 s21, s21, 5120\ns_add_u32 s20, s20, s21\ns_add_u32 s20, s20, {WS_H1F}')
        touch(a, 8, 9, 255, 20, 40)
    if OPT.get('kv_touch'):
        a(f's_mul_i32 s20, s12, {KVH_STRIDE}\ns_mul_i32 s21, s13, 20480\ns_add_u32 s20, s20, s21\ns_sub_u32 s21, s3, 2\ns_mul_i32 s21, s21, 10240\ns_add_u32 s20, s20, s21\ns_add_u32 s20, s20, {WS_KVH}')
        touch(a, 8, 9, 255, 20, 80)
    a(f's_mul_i32 s20, s13, 81920\ns_sub_u32 s21, s3, 2\ns_lshl_b32 s21, s21, 12\ns_add_u32 s20, s20, s21\ns_add_u32 s20, s20, {WS_WQKV}')
    PB = OPT.get('a_preB', 10)
    for i in range(PB):
        a(f's_add_u32 m0, s21, {i*8192}')
        for q in range(4): a(f'buffer_load_dwordx4 v3, s[8:11], s20 offen offset:{q*1024} lds')
        if i < PB-1: a('s_add_u32 s20, s20, 8192')
    L3 = a.newlabel('H_T3')
    a(f's_cmp_eq_u32 s3, 3\ns_cbranch_scc0 {L3}')
    a('s_mul_i32 s20, s13, 20\ns_add_u32 s20, s20, 320\nv_add_u32 v10, s20, v2\nv_lshlrev_b32 v11, 4, v10')
    for p in range(4):
        a(f's_mov_b32 s20, {WS_MODP + p*15360}')
        a(f'buffer_load_dwordx4 v[{44+4*p}:{47+4*p}], v11, s[8:11], s20 offen')
    a.label(L3)
    a('s_waitcnt vmcnt(0)')
    L4 = a.newlabel('H_T4')
    a(f's_cmp_eq_u32 s3, 3\ns_cbranch_scc0 {L4}')
    fin_mod(a, 44)
    a('v_mul_u32_u24 v12, 410, v10\nv_lshrrev_b32 v12, 16, v12')
    a('v_mul_u32_u24 v13, 160, v12\nv_sub_u32 v13, v10, v13')
    cperm_pos_bytes(a, 13, 14, 15)
    a('v_mul_u32_u24 v15, 1280, v12\nv_add_u32 v14, v14, v15')
    a('v_cmp_eq_u32 vcc, 4, v12\nv_cndmask_b32_e64 v12, 0, 1.0, vcc')
    round_pack(a, 44, 12, 48)
    a(f's_lshl_b32 s20, s12, 13\ns_add_u32 s20, s20, {WS_MODF}')
    a('s_mov_b32 exec_lo, 0xfffff\ns_mov_b32 exec_hi, 0')
    a('buffer_store_dwordx2 v[48:49], v14, s[8:11], s20 offen sc1')
    a('s_mov_b64 exec, -1')
    a.label(L4)
    lds_spin_keep(a, 8, 1)
    a(f'v_mov_b32 v18, {LFAST}\nds_read_b32 v19, v18\ns_waitcnt lgkmcnt(0)\nv_readfirstlane_b32 s14, v19')
    a_setup(a)
    a.label(Lend)
    a.raw('    ; MARK 19')
    a('s_setprio 0')
    a('s_waitcnt lgkmcnt(0)\ns_barrier')
    a.raw('    ; MARK 2')


def phase_start(a):
    Lx = a.newlabel('S_XT')
    a('s_getreg_b32 s15, hwreg(HW_REG_XCC_ID, 0, 4)\ns_add_u32 s15, s15, 1')
    a(f's_cmp_lg_u32 s3, 1\ns_cbranch_scc1 {Lx}')
    a(f's_lshl_b32 s19, s12, 7\ns_lshl_b32 s20, s13, 2\ns_add_u32 s19, s19, s20\ns_add_u32 s19, s19, {FL_XT}')
    a('v_mov_b32 v18, s19\nv_mov_b32 v19, s15\ns_mov_b64 exec, 1')
    a('global_store_dword v18, v19, s[4:5] sc1')
    a('s_mov_b64 exec, -1')
    a.label(Lx)
    a('s_mul_i32 s20, s13, 20\ns_mul_i32 s21, s3, 5\ns_add_u32 s20, s20, s21\ns_add_u32 s20, s20, 320\nv_add_u32 v140, s20, v2\nv_lshlrev_b32 v141, 4, v140')
    for p in range(4):
        a(f's_mov_b32 s20, {WS_MODP + p*15360}')
        a(f'buffer_load_dwordx4 v[{144+4*p}:{147+4*p}], v141, s[8:11], s20 offen')
    a.raw('    ; MARK 2')


def a_side():
    b = Asm(); items = []
    def item():
        items.append('\n'.join(l.strip() for l in b.lines)); b.lines = []
    b('v_and_b32 v6, 31, v2\nv_lshrrev_b32 v7, 5, v2'); item()
    b(f'v_lshlrev_b32 v8, 4, v0\nv_add_u32 v8, {LK + 5*4096}, v8'); item()
    b('v_mov_b32 v12, 0\nv_mov_b32 v13, 0'); item()
    b('v_mov_b32 v14, 0\nv_mov_b32 v15, 0'); item()
    Lb = b.newlabel('A_NB')
    nb = f2u(NEG) >> 16
    b(f's_cmp_lg_u32 s12, 0\ns_cbranch_scc1 {Lb}\nv_mov_b32 v9, {nb}\nv_cmp_gt_u32 vcc, 128, v0\ns_nop 1\nv_cndmask_b32 v12, 0, v9, vcc\nv_mov_b32 v14, v12')
    b.label(Lb); b('ds_write_b128 v8, v[12:15]'); item()
    b('v_mov_b32 v12, 0x3f803f80\nv_mov_b32 v13, 0x3f803f80'); item()
    b('v_mov_b32 v14, 0x3f803f80\nv_mov_b32 v15, 0x3f803f80'); item()
    b(f'v_lshlrev_b32 v8, 4, v0\nv_add_u32 v8, {LONES}, v8'); item()
    b('ds_write_b128 v8, v[12:15]\ns_mov_b64 exec, 0xffff\ns_cmp_eq_u32 s3, 0\ns_cselect_b64 exec, exec, 0') if False else None
    b('ds_write_b128 v8, v[12:15]'); item()
    Lo = b.newlabel('A_NO')
    b(f's_cmp_lg_u32 s3, 0\ns_cbranch_scc1 {Lo}\ns_mov_b64 exec, 0xffff\nds_write_b128 v8, v[12:15] offset:4096\ns_mov_b64 exec, -1'); b.label(Lo); item()
    Lz = b.newlabel('A_NZ')
    b(f's_cmp_lg_u32 s12, 0\ns_cbranch_scc1 {Lz}')
    b('v_mov_b32 v12, 0\nv_mov_b32 v13, 0\nv_mov_b32 v14, 0\nv_mov_b32 v15, 0')
    b('v_and_b32 v8, 127, v0\nv_lshlrev_b32 v8, 4, v8\nv_lshrrev_b32 v9, 7, v0')
    b(f'v_mul_u32_u24 v10, 4096, v9\nv_add_u32 v10, v10, v8\nv_add_u32 v10, {LK}, v10')
    for gg in (0, 2): b(f'ds_write_b128 v10, v[12:15] offset:{gg*4096}')
    b(f'v_mul_u32_u24 v11, 4128, v9\nv_add_u32 v11, v11, v8\nv_add_u32 v11, {LV}, v11')
    for gg in (0, 2): b(f'ds_write_b128 v11, v[12:15] offset:{gg*4128}')
    Lz2 = b.newlabel('A_NZ2')
    b(f's_cmp_ge_u32 s3, 2\ns_cbranch_scc1 {Lz2}\nds_write_b128 v10, v[12:15] offset:{4*4096}\nds_write_b128 v11, v[12:15] offset:{4*4128}')
    b.label(Lz2); b.label(Lz); item()
    b(f'v_mul_u32_u24 v8, 4096, v7\nv_add_u32 v8, {LK}, v8'); item()
    b(f'v_mul_u32_u24 v9, 4128, v7\nv_add_u32 v9, {LV}, v9'); item()
    b(f'v_mov_b32 v10, {LK + 4*4096}\nv_mov_b32 v11, {LV + 4*4128}'); item()
    b('v_cmp_eq_u32 vcc, 1, v7'); item()
    b('v_cndmask_b32 v10, v10, v11, vcc'); item()
    b(f's_mul_i32 s31, s12, {KVH_STRIDE}\ns_mul_i32 s29, s13, 20480\ns_add_u32 s31, s31, s29\ns_add_u32 s31, s31, {WS_KVH}'); item()
    b(f'v_lshlrev_b32 v11, 11, v7\nv_mov_b32 v12, {4*2048}'); item()
    b(f'v_mov_b32 v13, {9*2048}'); item()
    b('v_cndmask_b32 v12, v12, v13, vcc'); item()
    for tb in range(2):
        b(f's_sub_u32 s29, s{20+tb}, s19\ns_lshl_b32 s29, s29, 5\nv_add_u32 v{14+tb}, s29, v6'); item()
        b(f'v_lshlrev_b32 v{14+tb}, 3, v{14+tb}'); item()
    return items

def modf_side():
    b = Asm()
    fin_mod(b, 144)
    b('v_mul_u32_u24 v142, 410, v140\nv_lshrrev_b32 v142, 16, v142')
    b('v_mul_u32_u24 v143, 160, v142\nv_sub_u32 v143, v140, v143')
    cperm_pos_bytes(b, 143, 160, 161)
    b('v_mul_u32_u24 v161, 1280, v142\nv_add_u32 v160, v160, v161')
    b('v_cmp_eq_u32 vcc, 4, v142\ns_nop 1\nv_cndmask_b32_e64 v142, 0, 1.0, vcc')
    round_pack(b, 144, 142, 148)
    b(f's_lshl_b32 s29, s12, 13\ns_add_u32 s29, s29, {WS_MODF}')
    out = [l.strip() for l in b.lines]
    out.append('s_mov_b64 exec, 31\nbuffer_store_dwordx2 v[148:149], v160, s[8:11], s29 offen sc1\ns_mov_b64 exec, -1')
    return out

ACC_A = 40
QF = 224
OPT = dict(a_pre=3, a_pace=2, a_ahead=5, a_sc=' sc1', a_preB=5, bg=0, lnk0=0, noxf=1, at_probe=5, at_fetch=6, k0st=' sc1')
def a_setup(a):
    a('s_lshl_b32 s19, s12, 3\ns_add_u32 s20, s19, s3\ns_sub_u32 s21, 7, s3\ns_add_u32 s21, s19, s21')
    a(f's_mul_i32 s22, s20, 40960\ns_add_u32 s22, s22, {WS_H1F}\ns_mul_i32 s23, s21, 40960\ns_add_u32 s23, s23, {WS_H1F}')
    a(f's_mul_i32 s26, s13, 81920\ns_lshl_b32 s27, s3, 11\ns_add_u32 s26, s26, s27\ns_add_u32 s26, s26, {WS_WQKV}')
    a('v_add_u32 v5, 0x10000, v3')

def phase_a(a):
    vm = Vm(a)
    if OPT.get('lnk0'): a_setup(a)
    def opsA(c):
        ops = []
        for tb in range(2):
            ops.append((f's_add_u32 s{24+tb}, s{22+tb}, {c*4096}', False))
            for q in range(4):
                f = (2*(4*c + q) + tb) % 64
                ops.append((f'buffer_load_dwordx4 a[{4*f}:{4*f+3}], v3, s[8:11], s{24+tb} offen offset:{q*1024}{OPT["a_sc"]}', True))
        return ops
    def read_frag(ks, ct, r):
        off = (ks*2 + ct)*1024
        return f'ds_read_b128 v[{r}:{r+3}], v{3 if off < 65536 else 5} offset:{off % 65536}'
    def mfmas(ks, ct, r, first):
        out = []
        for tb in range(2):
            d = ACC_A + (tb*2 + ct)*16; f = (2*ks + tb) % 64
            out.append(f'v_mfma_f32_32x32x16_bf16 v[{d}:{d+15}], v[{r}:{r+3}], a[{4*f}:{4*f+3}], ' + ('0' if first else f'v[{d}:{d+15}]'))
        return out
    PB = OPT.get('a_preB', 10)
    def opsB(c):
        return [(f's_add_u32 m0, s27, {c*8192}', False), (f's_add_u32 s28, s26, {c*8192}', False),
                ('buffer_load_dwordx4 v3, s[8:11], s28 offen lds', True), ('buffer_load_dwordx4 v3, s[8:11], s28 offen offset:1024 lds', True)]
    side = ['s_nop 0']*8 + a_side()
    if OPT.get('lnk0', 1):
        side = side + modf_side()
    gemm2(a, vm, 40, 4, 2, opsA, opsB, PB, read_frag, mfmas, 16, pd=2, pre=OPT['a_pre'], pace=OPT['a_pace'], ahead=OPT['a_ahead'], barriers=(PB < 10), side=side, lead=OPT.get('a_lead', 0))
    a.raw('    ; MARK 3')
    for tb in range(2):
        P = 120 + 10*tb
        quads = [(0, 0), (0, 1), (0, 2), (0, 3), (1, 0)]
        for i, (ct, q) in enumerate(quads):
            d = ACC_A + (tb*2 + ct)*16 + 4*q
            a(f'v_cvt_pk_bf16_f32 v{P+2*i}, v{d}, v{d+1}\nv_cvt_pk_bf16_f32 v{P+2*i+1}, v{d+2}, v{d+3}')
        Ls = a.newlabel('A_NS')
        tk = 14 + tb
        a(f's_cmp_eq_u32 s12, 7\ns_cbranch_scc1 {Ls}')
        a(f'v_add_u32 v21, v11, v{tk}\nv_add_u32 v22, v12, v{tk}')
        a(f'buffer_store_dwordx2 v[{P}:{P+1}], v21, s[8:11], s31 offen sc1')
        a(f's_add_u32 s25, s31, {2*2048}\nbuffer_store_dwordx2 v[{P+2}:{P+3}], v21, s[8:11], s25 offen sc1')
        a(f'buffer_store_dwordx2 v[{P+4}:{P+5}], v22, s[8:11], s31 offen sc1')
        a(f's_add_u32 s25, s31, {5*2048}\nbuffer_store_dwordx2 v[{P+6}:{P+7}], v21, s[8:11], s25 offen sc1')
        a(f's_add_u32 s25, s31, {7*2048}\nbuffer_store_dwordx2 v[{P+8}:{P+9}], v21, s[8:11], s25 offen sc1')
        a.label(Ls)
    a('s_mov_b32 s24, s31\nv_cmp_eq_u32 vcc, 1, v7')
    for tb in range(2):
        P = 120 + 10*tb; tk = 14 + tb
        a(f'v_add_u32 v20, 2048, v{tk}')
        a(f'v_add_u32 v21, v8, v20\nds_write_b64 v21, v[{P}:{P+1}]\nds_write_b64 v21, v[{P+2}:{P+3}] offset:8192')
        a(f'v_add_u32 v22, v10, v20\nds_write_b64 v22, v[{P+4}:{P+5}]')
        a(f'v_add_u32 v23, v9, v20\nds_write_b64 v23, v[{P+6}:{P+7}]\nds_write_b64 v23, v[{P+8}:{P+9}] offset:{2*4128}')
        Q = QF + 8*tb
        for i, q in enumerate((1, 2, 3)):
            d = ACC_A + (tb*2 + 1)*16 + 4*q
            a(f'v_cvt_pk_bf16_f32 v{Q+2*i}, v{d}, v{d+1}\nv_cvt_pk_bf16_f32 v{Q+2*i+1}, v{d+2}, v{d+3}')
        a(f'v_mov_b32 v21, 0x3f80\nv_cndmask_b32 v{Q+4}, v{Q+4}, v21, vcc\nv_cndmask_b32_e64 v{Q+5}, v{Q+5}, 0, vcc\nv_mov_b32 v{Q+6}, 0\nv_mov_b32 v{Q+7}, 0')
    a('s_waitcnt lgkmcnt(0)\ns_barrier')
    a.raw('    ; MARK 4')

def o_offsets(a):
    a(f's_lshl_b32 s19, s12, 3\ns_add_u32 s20, s19, s3\ns_sub_u32 s21, 7, s3\ns_add_u32 s21, s21, s19\ns_mul_i32 s20, s20, 40960\ns_mul_i32 s21, s21, 40960')
    a(f's_lshl_b32 s22, s13, 10\ns_add_u32 s22, s22, {KP_O}\ns_add_u32 s36, s20, s22\ns_add_u32 s37, s21, s22')
    a(f's_lshr_b32 s23, s13, 2\ns_add_u32 s23, s23, 32\ns_lshl_b32 s23, s23, 10\ns_bfe_u32 s22, s13, 0x10001\ns_lshl_b32 s22, s22, 9\ns_add_u32 s23, s23, s22\ns_and_b32 s22, s13, 1\ns_lshl_b32 s22, s22, 3\ns_add_u32 s23, s23, s22\ns_add_u32 s23, s23, {KP_O}')
    a('s_add_u32 s38, s20, s23\ns_add_u32 s39, s21, s23')

def phase_b(a):
    assert not OPT.get('bg')
    o_offsets(a)
    import sys as _sys
    from kp_attn import attention
    attention(a, _sys.modules[__name__])
    a.raw('    ; MARK 6')
    def st(f):
        for tb in range(2):
            R = 240 + 6*tb
            a(f'buffer_store_dwordx4 v[{R}:{R+3}], v3, s[8:11], s{36+tb} offen{f}')
        a('s_mov_b32 exec_hi, 0')
        for tb in range(2):
            R = 240 + 6*tb
            a(f'buffer_store_dwordx2 v[{R+4}:{R+5}], v3, s[8:11], s{38+tb} offen{f}')
        a('s_mov_b64 exec, -1')
    store2(a, st)
    gbar_pre(a, FL_O)
    a('s_waitcnt vmcnt(0)')
    gbar(a, FL_O, also_set=FL_BG)
    a.raw('    ; MARK 7')

def kp_kernel(upto='E'):
    a = Asm()
    a('s_cmp_ge_u32 s2, 256\ns_cbranch_scc1 KP_END')
    a(f's_load_dwordx2 s[4:5], s[0:1], {KA_WS}')
    a(f's_load_dwordx2 s[6:7], s[0:1], {KA_OUT}')
    a(f's_load_dwordx2 s[16:17], s[0:1], {KA_X}')
    if OPT.get('bg'): a(f's_load_dwordx4 s[36:39], s[0:1], {KA_WG}')
    ka40 = KA_X if OPT.get('noxf') else KA_WD
    a(f's_load_dwordx2 s[40:41], s[0:1], {ka40}')
    wave_id(a, 3, 1)
    a('v_and_b32 v2, 63, v0\nv_lshlrev_b32 v3, 4, v2')
    if not OPT.get('lnk0'): a(f'v_mov_b32 v18, {LSYNC}\nv_mov_b32 v20, 0\nv_mov_b32 v21, 0\nv_mov_b32 v22, 0\nv_mov_b32 v23, 0\nds_write_b128 v18, v[20:23]')
    if OPT.get('perm_roles'): a('s_lshr_b32 s12, s2, 5\ns_and_b32 s13, s2, 31\ns_mov_b32 s14, 0')
    else: a('s_and_b32 s12, s2, 7\ns_lshr_b32 s13, s2, 3\ns_mov_b32 s14, 0')
    a('s_waitcnt lgkmcnt(0)')
    ws_rebase(a, 4)
    srd(a, 8, 4, 5, 0, WS_END)
    if OPT.get('lnk0', 1):
        OPT['a_preB'] = OPT.get('a_preB0', 0)
        phase_start(a)
    else: phase_h(a)
    def hoist(nxt):
        b = Asm(); nxt(b)
        k = 0
        if OPT.get('hoist', 1):
            while True:
                t = b.lines[k].strip()
                if t.startswith(('buffer_', 'global_', 'ds_', 's_waitcnt', 's_barrier', 's_cbranch', 's_branch', ';')) or t.endswith(':') or 'exec' in t or t.startswith('v_accvgpr'): break
                k += 1
            last_bar = max(i for i, l in enumerate(a.lines) if l.strip() == 's_barrier')
            first_bar = max(i for i, l in enumerate(a.lines[:last_bar]) if l.strip() == 's_barrier')
            w = max(i for i, l in enumerate(a.lines[:first_bar]) if l.strip() == 's_waitcnt vmcnt(0)')
            a.lines[w:w] = b.lines[:k]
        a.lines += b.lines[k:]
    if upto != 'H':
        phase_a(a)
        phase_b(a)
    if upto not in ('H', 'B'):
        from kp2 import phase_c, phase_d, phase_e
        hoist(phase_c)
        if upto != 'C':
            hoist(phase_d)
            if upto != 'D': hoist(phase_e)
    a.label('KP_END')
    a('s_endpgm')
    a.label('KP_CODE_END')
    return dict(name='kp_kernel', body=a.text(), grid=256, block=256, lds=163840, vgpr=256, agpr=256, sgpr=44, sgpr_real=96)
```

```python
from common import *
from kp import store2, gbar, gbar_pre, poll, poll_bg, OPT, WS_H2F, KP_O, KP_X1

def BSC(): return ' sc1' if OPT.get('bg', 1) and OPT.get('b_sc1', 1) else ''
LX = 102400

def roles80(a):
    a('s_and_b32 s26, s3, 1\ns_lshr_b32 s27, s3, 1\ns_lshr_b32 s15, s13, 2')
    a('s_lshl_b32 s29, s12, 3\ns_and_b32 s19, s13, 3\ns_lshl_b32 s19, s19, 1\ns_add_u32 s29, s29, s19\ns_add_u32 s29, s29, s26')

def main80(a, vm, nks_total, ws_act, ws_w, nslot, preB, ACC, WB, barriers, pre, pace, ahead, tr=False, side=None, before=None):
    nks = nks_total//2; npair = nks//2; nchunk = nks//4
    half_bytes = nslot*10240
    a(f's_and_b32 s22, s29, 7\ns_mul_i32 s22, s22, {nks_total}\ns_mul_i32 s19, s27, {nks}\ns_add_u32 s22, s22, s19\ns_lshl_b32 s22, s22, 10')
    a(f's_add_u32 s19, s12, 7\ns_and_b32 s19, s19, 7\ns_mul_i32 s19, s19, {KVH_STRIDE}\ns_add_u32 s22, s22, s19\ns_add_u32 s22, s22, {ws_act}')
    a(f's_mul_i32 s23, s15, {2*npair}\ns_mul_i32 s19, s27, {npair}\ns_add_u32 s23, s23, s19\ns_add_u32 s23, s23, s26\ns_mul_i32 s23, s23, 5120\ns_add_u32 s23, s23, {ws_w}')
    a(f's_mul_i32 s30, s27, {half_bytes}\ns_mul_i32 s19, s26, 5120\ns_add_u32 s30, s30, s19')
    a(f's_mul_i32 s19, s27, {half_bytes}\nv_add_u32 v4, s19, v3')
    a('v_lshrrev_b32 v5, 5, v2\nv_lshlrev_b32 v5, 8, v5\nv_and_b32 v6, 15, v2\nv_lshl_add_u32 v5, v6, 4, v5\nv_add_u32 v5, s19, v5\nv_add_u32 v5, 4096, v5')
    def rot(c, mul, base, dst):
        return [(f's_add_u32 s33, s35, {c}', False), (f's_sub_u32 s21, s33, {nchunk}', False), (f's_cmp_ge_u32 s33, {nchunk}', False),
                ('s_cselect_b32 s33, s21, s33', False), (f's_mul_i32 s33, s33, {mul}', False), (f's_add_u32 s{dst}, s{base}, s33', False)]
    def opsB(c):
        slot = c % nslot
        if OPT.get('e_noB'): return [('s_nop 0', True)]
        ops = [(f's_add_u32 m0, s30, {slot*10240}', False)] + rot(c, 10240, 23, 24)
        for q in range(4): ops.append((f'buffer_load_dwordx4 v3, s[8:11], s24 offen offset:{q*1024}{BSC()} lds', True))
        ops += [(f's_add_u32 m0, s30, {slot*10240 + 4096}', False), (f's_add_u32 s24, s24, 4096', False)]
        ops.append((f'buffer_load_dwordx4 v3, s[8:11], s24 offen{BSC()} lds', True))
        return ops
    TA = OPT.get('e_ta', 0)
    if TA:
        a('s_and_b32 s19, s13, 3\ns_lshl_b32 s19, s19, 2\ns_add_u32 s19, s19, s3\ns_mul_i32 s19, s19, 10\ns_cmp_ge_u32 s19, 80\ns_cselect_b32 s20, 1, 0')
        a(f's_mul_i32 s21, s20, 80\ns_sub_u32 s19, s19, s21\ns_lshl_b32 s19, s19, 7\ns_mul_i32 s20, s20, {npair*5120}\ns_add_u32 s19, s19, s20\ns_mul_i32 s20, s15, {2*npair*5120}\ns_add_u32 s19, s19, s20\ns_add_u32 s34, s19, {ws_w}')
        a('v_lshlrev_b32 v9, 7, v2')
    def opsT(c):
        if not TA or c >= nchunk: return []
        return [(f's_add_u32 s20, s34, {c*10240}', False), ('s_mov_b64 exec, 0x3ff\nbuffer_load_dword v10, v9, s[8:11], s20 offen\ns_mov_b64 exec, -1', True)]
    def opsA(c):
        ops = sum((opsT(k) for k in range(preB, preB + TA)), []) if c == 0 else opsT(preB + TA - 1 + c)
        ops = ops + rot(c, 4096, 22, 25)
        if OPT.get('e_noA') and c >= 2: return [('s_nop 0', True)]
        for q in range(4):
            ks = 4*c + q
            ops.append((f'buffer_load_dwordx4 a[{4*ks}:{4*ks+3}], v3, s[8:11], s25 offen offset:{q*1024} sc1', True))
        return ops
    if tr:
        a('v_lshrrev_b32 v6, 5, v2\nv_lshlrev_b32 v6, 2, v6\nv_bfe_u32 v4, v2, 2, 2\nv_add_u32 v6, v6, v4\nv_and_b32 v4, 3, v2\nv_lshlrev_b32 v4, 3, v4')
        a('v_lshl_add_u32 v5, v6, 5, v4\nv_lshl_add_u32 v4, v6, 6, v4\nv_bfe_u32 v6, v2, 4, 1\nv_lshl_add_u32 v4, v6, 5, v4')
        a(f's_mul_i32 s19, s27, {half_bytes}\nv_add_u32 v4, s19, v4\nv_add_u32 v5, s19, v5\nv_add_u32 v5, 4096, v5')
    def read_frag(ks, ct, r):
        c = ks // 4; slot = c % nslot
        base = slot*10240 + ((ks >> 1) & 1)*5120
        if tr:
            if ct < 2:
                o = base + (ks & 1)*2048 + ct*1024
                return f'ds_read_b64_tr_b16 v[{r}:{r+1}], v4 offset:{o}\nds_read_b64_tr_b16 v[{r+2}:{r+3}], v4 offset:{o+512}'
            o = base + (ks & 1)*512
            return f'ds_read_b64_tr_b16 v[{r}:{r+1}], v5 offset:{o}\nds_read_b64_tr_b16 v[{r+2}:{r+3}], v5 offset:{o+256}'
        if ct < 2: return f'ds_read_b128 v[{r}:{r+3}], v4 offset:{base + (ks & 1)*2048 + ct*1024}'
        return f'ds_read_b128 v[{r}:{r+3}], v5 offset:{base + (ks & 1)*512}'
    def mfmas(ks, ct, r, first):
        d = ACC + 16*ct
        if OPT.get('e_nomfma'): return ['s_nop 0']
        return [f'v_mfma_f32_32x32x16_bf16 v[{d}:{d+15}], v[{r}:{r+3}], a[{4*ks}:{4*ks+3}], ' + ('0' if first else f'v[{d}:{d+15}]')]
    if before: before()
    gemm2(a, vm, nks, 4, 3, opsA, opsB, preB, read_frag, mfmas, WB, pd=2, pre=pre, nslot=nslot, pace=pace, ahead=ahead, barriers=barriers, nlgkm=(2 if tr else 1), side=side, pre_async=preB > 0)

def exchange_side(region):
    return [f's_mul_i32 s19, s3, 6144\ns_add_u32 s19, s19, {region}\nv_add_u32 v12, s19, v3',
            f's_xor_b32 s19, s3, 2\ns_mul_i32 s19, s19, 6144\ns_add_u32 s19, s19, {region}\nv_add_u32 v13, s19, v3']

def exchange80(a, ACC, T):
    def q(i): return ACC + 4*i
    L1 = a.newlabel('X_KH1'); L2 = a.newlabel('X_W')
    a(f's_cmp_eq_u32 s27, 1\ns_cbranch_scc1 {L1}')
    for i in range(6, 10): a(f'ds_write_b128 v12, v[{q(i)}:{q(i)+3}] offset:{(i-6)*1024}')
    a(f's_branch {L2}')
    a.label(L1)
    for i in range(6): a(f'ds_write_b128 v12, v[{q(i)}:{q(i)+3}] offset:{i*1024}')
    a.label(L2)
    a('s_waitcnt lgkmcnt(0)\ns_barrier')
    L3 = a.newlabel('X_R1'); L4 = a.newlabel('X_RD')
    a(f's_cmp_eq_u32 s27, 1\ns_cbranch_scc1 {L3}')
    for i in range(6): a(f'ds_read_b128 v[{T+4*i}:{T+4*i+3}], v13 offset:{i*1024}')
    for i in range(6):
        a(f's_waitcnt lgkmcnt({5-i})')
        for e in (0, 2): a(f'v_pk_add_f32 v[{q(i)+e}:{q(i)+e+1}], v[{q(i)+e}:{q(i)+e+1}], v[{T+4*i+e}:{T+4*i+e+1}]')
    a(f's_branch {L4}')
    a.label(L3)
    for i in range(4): a(f'ds_read_b128 v[{T+4*i}:{T+4*i+3}], v13 offset:{i*1024}')
    for i in range(4):
        a(f's_waitcnt lgkmcnt({3-i})')
        for e in (0, 2): a(f'v_pk_add_f32 v[{q(i)+e}:{q(i)+e+1}], v[{q(6+i)+e}:{q(6+i)+e+1}], v[{T+4*i+e}:{T+4*i+e+1}]')
    a.label(L4)

def prefetch_blocks(a, nblk, gbase_sgpr, contiguous=True, lds_map=None):
    L = a.newlabel('PF_N')
    per = (nblk + 2)//3
    a(f's_cmp_eq_u32 s3, 0\ns_cbranch_scc1 {L}')
    a(f's_sub_u32 s19, s3, 1\ns_mul_i32 s19, s19, {per*1024}\ns_add_u32 s20, s{gbase_sgpr}, s19')
    for i in range(per):
        if i % 4 == 0:
            a(f's_add_u32 m0, s19, {i*1024}')
            if i: a('s_add_u32 s20, s20, 4096')
        guard = (2*per + i >= nblk)
        if guard:
            L2 = a.newlabel('PF_S'); a(f's_cmp_eq_u32 s3, 3\ns_cbranch_scc1 {L2}')
        a(f'buffer_load_dwordx4 v3, s[8:11], s20 offen offset:{(i%4)*1024}{BSC()} lds')
        if guard: a.label(L2)
    a.label(L)
    return per

def wait_stores(a, npf):
    L1 = a.newlabel('WS_A'); L2 = a.newlabel('WS_B')
    a(f's_cmp_eq_u32 s3, 0\ns_cbranch_scc1 {L1}')
    a(f's_waitcnt vmcnt({npf})')
    a(f's_branch {L2}')
    a.label(L1)
    a('s_waitcnt vmcnt(0)')
    a.label(L2)

def phase_c(a):
    vm = Vm(a)
    roles80(a)
    ACC = 64; WB = 16
    XR = 112; GA = 124; A2 = 136; SB = 148
    a('s_mul_i32 s28, s15, 5\ns_mul_i32 s19, s27, 3\ns_add_u32 s28, s28, s19')
    a('s_mul_i32 s31, s29, 40\ns_add_u32 s31, s31, s28\ns_lshl_b32 s31, s31, 10')
    a('v_lshrrev_b32 v7, 5, v2\nv_lshlrev_b32 v7, 4, v7')
    a(f's_lshl_b32 s32, s28, 5\ns_lshl_b32 s19, s12, 13\ns_add_u32 s32, s32, s19\ns_add_u32 s32, s32, {WS_MODF}')
    def extra_ops():
        ops = []
        if not OPT.get('noxf'):
            ops = [(f's_add_u32 s19, s31, {WS_XF}', False)]
            for i in range(3): ops.append((f'buffer_load_dwordx4 v[{XR+4*i}:{XR+4*i+3}], v3, s[8:11], s19 offen offset:{i*1024} sc1', True))
        for seg, R in ((2, GA), (4, A2), (3, SB)):
            ops.append((f's_add_u32 s19, s32, {seg*1280}', False))
            for i in range(3): ops.append((f'buffer_load_dwordx4 v[{R+4*i}:{R+4*i+3}], v7, s[8:11], s19 offen offset:{i*32} sc1', True))
        return ops
    nks = 20
    a(f's_mul_i32 s22, s29, 40\ns_mul_i32 s19, s27, {nks}\ns_add_u32 s22, s22, s19\ns_lshl_b32 s22, s22, 10\ns_add_u32 s22, s22, {KP_O}')
    half_bytes = 5*10240
    a(f's_mul_i32 s19, s27, {half_bytes}\nv_add_u32 v4, s19, v3')
    a('v_lshrrev_b32 v5, 5, v2\nv_lshlrev_b32 v5, 8, v5\nv_and_b32 v6, 15, v2\nv_lshl_add_u32 v5, v6, 4, v5\nv_add_u32 v5, s19, v5\nv_add_u32 v5, 4096, v5')
    def opsA(c):
        ops = [(f's_add_u32 s25, s22, {c*4096}', False)]
        for q in range(4):
            ks = 4*c + q
            ops.append((f'buffer_load_dwordx4 a[{4*ks}:{4*ks+3}], v3, s[8:11], s25 offen offset:{q*1024} sc1', True))
        return ops
    def read_frag(ks, ct, r):
        base = (ks//4)*10240 + ((ks >> 1) & 1)*5120
        if ct < 2: return f'ds_read_b128 v[{r}:{r+3}], v4 offset:{base + (ks & 1)*2048 + ct*1024}'
        return f'ds_read_b128 v[{r}:{r+3}], v5 offset:{base + (ks & 1)*512}'
    def mfmas(ks, ct, r, first):
        d = ACC + 16*ct
        return [f'v_mfma_f32_32x32x16_bf16 v[{d}:{d+15}], v[{r}:{r+3}], a[{4*ks}:{4*ks+3}], ' + ('0' if first else f'v[{d}:{d+15}]')]
    CF = OPT.get('cfast', 1) and OPT.get('noxf')
    X1 = 160
    PK = 184; PH = 196
    if CF:
        XF = 112; GF = 136
        side = []
        for i in range(12):
            side += [f'v_accvgpr_read_b32 v10, a{144+i}', f'v_lshlrev_b32 v{XF+2*i}, 16, v10', f'v_and_b32 v{XF+2*i+1}, 0xffff0000, v10',
                     f'v_accvgpr_read_b32 v11, a{156+i}', f'v_lshlrev_b32 v{GF+2*i}, 16, v11', f'v_and_b32 v{GF+2*i+1}, 0xffff0000, v11']
        side = [side[2*k] + '\n' + side[2*k+1] for k in range(len(side)//2)]
        side += exchange_side(LX)
        side += [f's_lshl_b32 s19, s29, 4\ns_lshl_b32 s20, s15, 1\ns_add_u32 s19, s19, s20\ns_add_u32 s19, s19, s27', f's_lshl_b32 s33, s19, 8\ns_add_u32 s33, s33, {WS_STAT}\nv_lshlrev_b32 v14, 3, v2',
                 'v_and_b32 v10, 31, v2\nv_lshrrev_b32 v11, 5, v2', 'v_lshlrev_b32 v15, 3, v10\nv_lshl_add_u32 v15, v11, 11, v15', f's_lshl_b32 s42, s29, 12\ns_add_u32 s42, s42, {WS_STAT}']
        gemm2(a, vm, nks, 4, 3, opsA, None, 99, read_frag, mfmas, WB, pd=2, pre=OPT.get('c_pre', 2), pace=1, ahead=5, barriers=False, side=side)
    else:
        if OPT.get('noxf'):
            for i in range(12): a(f'v_accvgpr_read_b32 v{XR+i}, a{144+i}')
        opsA2 = lambda c: opsA(c) + (extra_ops() if c == 4 else [])
        gemm2(a, vm, nks, 4, 3, opsA2, None, 99, read_frag, mfmas, WB, pd=2, pre=OPT.get('c_pre', 2), pace=1, ahead=5, barriers=False)
    a.raw('    ; MARK 10')
    if not CF:
        for t in exchange_side(LX): a(t)
    exchange80(a, ACC, 16)
    L = a.newlabel('C_F2')
    if CF:
        def frag1(i):
            for p in range(4):
                d = ACC + 8*i + 2*p; q = 4*i + p; lo = X1 + 2*q
                a(f'v_fma_f32 v12, v{GF+2*q}, v{d}, v{XF+2*q}\nv_fma_f32 v13, v{GF+2*q+1}, v{d+1}, v{XF+2*q+1}')
                a(f'v_cvt_pk_bf16_f32 v{PK+q}, v12, v13')
                a(f'v_lshlrev_b32 v{lo}, 16, v{PK+q}\nv_and_b32 v{lo+1}, 0xffff0000, v{PK+q}')
                if q == 0: a(f'v_pk_add_f32 v[8:9], v[{lo}:{lo+1}], 0 op_sel_hi:[1,0]\nv_pk_mul_f32 v[10:11], v[{lo}:{lo+1}], v[{lo}:{lo+1}]') if False else a(f'v_mov_b32 v8, v{lo}\nv_mov_b32 v9, v{lo+1}\nv_pk_mul_f32 v[10:11], v[{lo}:{lo+1}], v[{lo}:{lo+1}]')
                else: a(f'v_pk_add_f32 v[8:9], v[8:9], v[{lo}:{lo+1}]\nv_pk_fma_f32 v[10:11], v[{lo}:{lo+1}], v[{lo}:{lo+1}], v[10:11]')
        frag1(0); frag1(1)
        a(f's_cmp_eq_u32 s27, 1\ns_cbranch_scc1 {L}')
        frag1(2)
        a.label(L)
        a('v_add_f32 v8, v8, v9\nv_add_f32 v9, v10, v11')
    else:
        a('v_mov_b32 v8, 0\nv_mov_b32 v9, 0')
        def frag1(i):
            for p in range(4):
                d = ACC + 8*i + 2*p; x = XR + 4*i + p; g = GA + 4*i + p
                a(f'v_lshlrev_b32 v10, 16, v{x}\nv_lshlrev_b32 v11, 16, v{g}\nv_fma_f32 v12, v11, v{d}, v10')
                a(f'v_and_b32 v10, 0xffff0000, v{x}\nv_and_b32 v11, 0xffff0000, v{g}\nv_fma_f32 v13, v11, v{d+1}, v10')
                a(f'v_cvt_pk_bf16_f32 v{PK+4*i+p}, v12, v13')
                lo = X1 + 8*i + 2*p
                a(f'v_lshlrev_b32 v{lo}, 16, v{PK+4*i+p}\nv_and_b32 v{lo+1}, 0xffff0000, v{PK+4*i+p}')
                a(f'v_add_f32 v8, v8, v{lo}\nv_fmac_f32 v9, v{lo}, v{lo}\nv_add_f32 v8, v8, v{lo+1}\nv_fmac_f32 v9, v{lo+1}, v{lo+1}')
        frag1(0); frag1(1)
        a(f's_cmp_eq_u32 s27, 1\ns_cbranch_scc1 {L}')
        frag1(2)
        a.label(L)
    a('v_mov_b32 v10, v8\nv_mov_b32 v11, v9')
    a('v_permlane32_swap_b32 v8, v10\nv_permlane32_swap_b32 v9, v11')
    a('v_add_f32 v8, v8, v10\nv_add_f32 v9, v9, v11')
    if not CF:
        a(f's_lshl_b32 s19, s29, 4\ns_lshl_b32 s20, s15, 1\ns_add_u32 s19, s19, s20\ns_add_u32 s19, s19, s27\ns_lshl_b32 s33, s19, 8\ns_add_u32 s33, s33, {WS_STAT}')
        a('v_lshlrev_b32 v14, 3, v2')
    def st1(f):
        a('s_mov_b32 exec_hi, 0')
        a(f'buffer_store_dwordx2 v[8:9], v14, s[8:11], s33 offen{f}')
        a('s_mov_b64 exec, -1')
        for i in range(3 if not OPT.get('noxf') else 0):
            Ls = None
            if i == 2:
                Ls = a.newlabel('C_S2'); a(f's_cmp_eq_u32 s27, 1\ns_cbranch_scc1 {Ls}')
            a(f's_add_u32 s19, s31, {KP_X1 + i*1024}\nbuffer_store_dwordx4 v[{PK+4*i}:{PK+4*i+3}], v3, s[8:11], s19 offen{f}')
            if Ls: a.label(Ls)
    store2(a, st1)
    a(f's_lshr_b32 s34, s13, 1\ns_mul_i32 s34, s34, 245760\ns_add_u32 s34, s34, {WS_WGU}')
    if OPT.get('d_rotg'): a('s_mul_i32 s19, s12, 24576\ns_add_u32 s34, s34, s19')
    else: a(f's_and_b32 s19, s13, 1\ns_mul_i32 s19, s19, {5*24576*OPT.get("d_rot", 0)}\ns_add_u32 s34, s34, s19')
    gbar_pre(a, FL_C)
    a('s_waitcnt vmcnt(0)')
    a.raw('    ; MARK 11')
    gbar(a, FL_C, during=((lambda: poll_bg(a)) if OPT.get('bg', 1) else None))
    a.raw('    ; MARK 12')
    ST = 64 if CF else 16
    if not CF:
        a('v_and_b32 v10, 31, v2\nv_lshrrev_b32 v11, 5, v2\nv_lshlrev_b32 v15, 3, v10\nv_lshl_add_u32 v15, v11, 11, v15')
        a(f's_lshl_b32 s42, s29, 12\ns_add_u32 s42, s42, {WS_STAT}')
    for i in range(8): a(f'buffer_load_dwordx2 v[{ST+2*i}:{ST+2*i+1}], v15, s[8:11], s42 offen offset:{i*256} sc1')
    if CF:
        AF = 16; SF = 40
        for i in range(12):
            a(f'v_accvgpr_read_b32 v10, a{168+i}\nv_accvgpr_read_b32 v11, a{180+i}')
            a(f'v_lshlrev_b32 v{AF+2*i}, 16, v10\nv_and_b32 v{AF+2*i+1}, 0xffff0000, v10\nv_lshlrev_b32 v{SF+2*i}, 16, v11\nv_and_b32 v{SF+2*i+1}, 0xffff0000, v11')
    a('s_waitcnt vmcnt(0)')
    for i in range(1, 8): a(f'v_pk_add_f32 v[{ST}:{ST+1}], v[{ST}:{ST+1}], v[{ST+2*i}:{ST+2*i+1}]')
    a(f'v_mov_b32 v10, v{ST}\nv_mov_b32 v11, v{ST+1}')
    a(f'v_permlane32_swap_b32 v{ST}, v10\nv_permlane32_swap_b32 v{ST+1}, v11')
    a(f'v_add_f32 v10, v{ST}, v10\nv_add_f32 v11, v{ST+1}, v11')
    inv = hex(f2u(1.0/640))
    a(f'v_mul_f32 v10, {inv}, v10\nv_mul_f32 v11, {inv}, v11\nv_fma_f32 v11, -v10, v10, v11\nv_max_f32 v11, 0, v11\nv_add_f32 v11, {hex(f2u(1e-5))}, v11\nv_rsq_f32 v11, v11')
    L = a.newlabel('C_H2')
    if CF:
        a('v_sub_f32 v12, 0, v10\nv_mov_b32 v14, v11\nv_mov_b32 v15, v11\nv_mov_b32 v13, v12')
        def frag2(i):
            for p in range(4):
                q = 4*i + p; lo = X1 + 2*q
                a(f'v_pk_mul_f32 v[{AF+2*q}:{AF+2*q+1}], v[{AF+2*q}:{AF+2*q+1}], v[14:15]')
                a(f'v_pk_fma_f32 v[{SF+2*q}:{SF+2*q+1}], v[{AF+2*q}:{AF+2*q+1}], v[12:13], v[{SF+2*q}:{SF+2*q+1}]')
                a(f'v_pk_fma_f32 v[{lo}:{lo+1}], v[{lo}:{lo+1}], v[{AF+2*q}:{AF+2*q+1}], v[{SF+2*q}:{SF+2*q+1}]')
                a(f'v_cvt_pk_bf16_f32 v{PH+q}, v{lo}, v{lo+1}')
    else:
        def frag2(i):
            for p in range(4):
                lo = X1 + 8*i + 2*p; s2 = A2 + 4*i + p; sb = SB + 4*i + p
                a(f'v_sub_f32 v{lo}, v{lo}, v10\nv_sub_f32 v{lo+1}, v{lo+1}, v10\nv_mul_f32 v{lo}, v{lo}, v11\nv_mul_f32 v{lo+1}, v{lo+1}, v11')
                a(f'v_lshlrev_b32 v12, 16, v{s2}\nv_lshlrev_b32 v13, 16, v{sb}\nv_fma_f32 v{lo}, v{lo}, v12, v13')
                a(f'v_and_b32 v12, 0xffff0000, v{s2}\nv_and_b32 v13, 0xffff0000, v{sb}\nv_fma_f32 v{lo+1}, v{lo+1}, v12, v13')
                a(f'v_cvt_pk_bf16_f32 v{PH+4*i+p}, v{lo}, v{lo+1}')
    frag2(0); frag2(1)
    a(f's_cmp_eq_u32 s27, 1\ns_cbranch_scc1 {L}')
    frag2(2)
    a.label(L)
    def st2(f):
        for i in range(3):
            Ls = None
            if i == 2:
                Ls = a.newlabel('C_S3'); a(f's_cmp_eq_u32 s27, 1\ns_cbranch_scc1 {Ls}')
            a(f's_add_u32 s19, s31, {WS_H2F + i*1024}\nbuffer_store_dwordx4 v[{PH+4*i}:{PH+4*i+3}], v3, s[8:11], s19 offen{f}')
            if Ls: a.label(Ls)
    store2(a, st2)
    gbar_pre(a, FL_UT)
    a('s_waitcnt vmcnt(0)')
    a.raw('    ; MARK 13')
    gbar(a, FL_UT, during=(lambda: prefetch_blocks(a, 24*OPT.get('d_preB', 1), 34)) if OPT.get('d_preB', 1) else None)
    a.raw('    ; MARK 8')

def phase_d(a):
    vm = Vm(a)
    NSLOT = 6; CB = 24576
    a('s_lshr_b32 s15, s13, 1\ns_and_b32 s19, s13, 1\ns_lshl_b32 s19, s19, 2\ns_lshl_b32 s29, s12, 3\ns_add_u32 s29, s29, s19\ns_add_u32 s29, s29, s3')
    a(f's_mul_i32 s22, s29, 40960\ns_add_u32 s22, s22, {WS_H2F}')
    a(f's_mul_i32 s23, s15, 245760\ns_mul_i32 s30, s3, 6144\ns_add_u32 s23, s23, s30\ns_add_u32 s23, s23, {WS_WGU}')
    R = OPT.get('d_rot', 0)
    a(f's_and_b32 s19, s13, 1\ns_mul_i32 s20, s19, {5*CB*R}\ns_sub_u32 s27, s23, s20\ns_add_u32 s23, s23, s20\ns_mul_i32 s20, s19, {5*4096*R}\ns_sub_u32 s26, s22, s20\ns_add_u32 s22, s22, s20')
    def drot(c, mul, base, dst):
        return [(f's_add_u32 s33, s12, {c}', False), ('s_sub_u32 s21, s33, 10', False), ('s_cmp_ge_u32 s33, 10', False),
                ('s_cselect_b32 s33, s21, s33', False), (f's_mul_i32 s33, s33, {mul}', False), (f's_add_u32 s{dst}, s{base}, s33', False)]
    def opsB(c):
        slot = c % NSLOT
        if OPT.get('d_noB'): return [('s_nop 0', True)]
        if OPT.get('d_rotg'):
            ops = [(f's_add_u32 m0, s30, {slot*CB}', False)] + drot(c, CB, 23, 24)
        else:
            ops = [(f's_add_u32 m0, s30, {slot*CB}', False), (f's_add_u32 s24, s{23 if c < 5 else 27}, {c*CB}', False)]
        NT = ' nt' if OPT.get('d_nt') else ''
        for q in range(4): ops.append((f'buffer_load_dwordx4 v3, s[8:11], s24 offen offset:{q*1024}{BSC()}{NT} lds', True))
        ops += [(f's_add_u32 m0, s30, {slot*CB + 4096}', False), ('s_add_u32 s24, s24, 4096', False)]
        for q in range(2): ops.append((f'buffer_load_dwordx4 v3, s[8:11], s24 offen offset:{q*1024}{BSC()}{NT} lds', True))
        return ops
    TA = OPT.get('d_ta', 0); PB = OPT.get('d_preB', 1)
    if TA:
        a(f's_and_b32 s19, s13, 1\ns_lshl_b32 s19, s19, 2\ns_add_u32 s19, s19, s3\ns_mul_i32 s19, s19, {24*128}\ns_mul_i32 s20, s15, 245760\ns_add_u32 s19, s19, s20\ns_add_u32 s34, s19, {WS_WGU}')
        a('v_lshlrev_b32 v9, 7, v2')
    def opsT(c):
        if not TA or c >= 10: return []
        return [(f's_add_u32 s20, s34, {c*CB}', False), ('s_mov_b64 exec, 0xffffff\nbuffer_load_dword v10, v9, s[8:11], s20 offen\ns_mov_b64 exec, -1', True)]
    WT = OPT.get('d_wdtouch', 0)
    if WT:
        a(f's_mul_i32 s35, s13, 61440\ns_mul_i32 s19, s3, 1536\ns_add_u32 s35, s35, s19\ns_add_u32 s35, s35, {WS_WD}\nv_lshlrev_b32 v9, 7, v2')
    def opsW(c):
        if not WT: return []
        return [(f's_add_u32 s20, s35, {c*6144}', False), ('s_mov_b64 exec, 0xfff\nbuffer_load_dword v255, v9, s[8:11], s20 offen\ns_mov_b64 exec, -1', True)]
    def opsA(c):
        ops = sum((opsT(k) for k in range(PB, PB + TA)), []) if c == 0 else opsT(PB + TA - 1 + c)
        ops = opsW(c) + ops
        if OPT.get('d_rotg'): ops = ops + drot(c, 4096, 22, 25)
        else: ops = ops + [(f's_add_u32 s25, s{22 if c < 5 else 26}, {c*4096}', False)]
        for q in range(4):
            ks = 4*c + q
            ops.append((f'buffer_load_dwordx4 a[{4*ks}:{4*ks+3}], v3, s[8:11], s25 offen offset:{q*1024} sc1', True))
        return ops
    ACC = 88
    TR = bool(OPT.get('bg', 1))
    def read_frag(ks, ct, r):
        off = ((ks//4) % NSLOT)*CB + ((ks & 3)*6 + ct)*1024
        if TR:
            return f'ds_read_b64_tr_b16 v[{r}:{r+1}], v{4 + off//65536} offset:{off % 65536}\nds_read_b64_tr_b16 v[{r+2}:{r+3}], v{4 + off//65536} offset:{off % 65536 + 512}'
        return f'ds_read_b128 v[{r}:{r+3}], v{4 + off//65536} offset:{off % 65536}'
    if TR:
        a('v_lshrrev_b32 v6, 5, v2\nv_lshlrev_b32 v6, 2, v6\nv_bfe_u32 v4, v2, 2, 2\nv_add_u32 v6, v6, v4\nv_and_b32 v4, 3, v2\nv_lshlrev_b32 v4, 3, v4')
        a('v_lshl_add_u32 v4, v6, 6, v4\nv_bfe_u32 v6, v2, 4, 1\nv_lshl_add_u32 v4, v6, 5, v4')
        a('v_add_u32 v5, 0x10000, v4\nv_add_u32 v6, 0x20000, v4')
    else:
        a('v_mov_b32 v4, v3\nv_add_u32 v5, 0x10000, v3\nv_add_u32 v6, 0x20000, v3')
    def mfmas(ks, ct, r, first):
        d = ACC + 16*ct
        if OPT.get('d_nomfma'): return ['s_nop 7']
        return [f'v_mfma_f32_32x32x16_bf16 v[{d}:{d+15}], v[{r}:{r+3}], a[{4*ks}:{4*ks+3}], ' + ('0' if first else f'v[{d}:{d+15}]')]
    dside = ['s_and_b32 s31, s29, 7\ns_mul_i32 s31, s31, 96', 's_mul_i32 s19, s15, 6\ns_add_u32 s31, s31, s19\ns_lshl_b32 s31, s31, 10',
             f's_add_u32 s19, s12, 7\ns_and_b32 s19, s19, 7\ns_mul_i32 s19, s19, {KVH_STRIDE}', f's_add_u32 s31, s31, s19\ns_add_u32 s31, s31, {WS_KVH}\ns_add_u32 s32, s31, 4096',
             f's_lshr_b32 s19, s13, 2\ns_mul_i32 s34, s19, {48*5120}\ns_add_u32 s34, s34, {WS_WD}', 's_mul_i32 s19, s12, 10240\ns_add_u32 s34, s34, s19']
    assert OPT.get('e_rotg', 1) and not OPT.get('d_ta')
    gemm2(a, vm, 40, 4, 6, opsA, opsB, OPT.get('d_preB', 1), read_frag, mfmas, 16, pd=(1 if TR else 2), pre=OPT.get('d_pre', 2), nslot=NSLOT, pace=OPT.get('d_pace', 2), ahead=OPT.get('d_ahead', 4), barriers=True, nlgkm=(2 if TR else 1), side=dside, lead=OPT.get('d_lead', 0), pre_async=bool(OPT.get('d_preB', 1)))
    a.raw('    ; MARK 14')
    for ct in range(3):
        for q in range(4):
            g = ACC + 16*ct + 4*q; u = ACC + 16*(3+ct) + 4*q
            a(f'v_pk_mul_f32 v[{g}:{g+1}], v[{g}:{g+1}], v[{u}:{u+1}]\nv_pk_mul_f32 v[{g+2}:{g+3}], v[{g+2}:{g+3}], v[{u+2}:{u+3}]')
            o = 16 + 8*ct + 2*q
            a(f'v_cvt_pk_bf16_f32 v{o}, v{g}, v{g+1}\nv_cvt_pk_bf16_f32 v{o+1}, v{g+2}, v{g+3}')
    def st(f):
        for k in range(6):
            a(f'buffer_store_dwordx4 v[{16+4*k}:{19+4*k}], v3, s[8:11], s{31 + k//4} offen offset:{(k % 4)*1024}{f}')
    store2(a, st)
    def out_touch():
        pass
    def pf_wd():
      a('s_sub_u32 s19, s3, 1\ns_mul_i32 s19, s19, 20')
      for i in range(20):
          if i in (0, 10):
              a(f's_add_u32 s20, s19, {i}\ns_cmp_ge_u32 s20, 30\ns_cselect_b32 s21, 1, 0\ns_mul_i32 s25, s21, 30\ns_sub_u32 s20, s20, s25\ns_lshl_b32 s20, s20, 10')
              a(f's_mul_i32 s25, s21, {24*5120}\ns_add_u32 s25, s25, s20\ns_add_u32 s25, s25, s34\ns_mul_i32 s21, s21, 61440\ns_add_u32 s21, s21, s20')
          k = i % 10
          if k % 4 == 0:
              a(f's_add_u32 m0, s21, {k*1024}')
              if k: a('s_add_u32 s25, s25, 4096')
          a(f'buffer_load_dwordx4 v3, s[8:11], s25 offen offset:{(k % 4)*1024}{BSC()} lds')
    gbar_pre(a, FL_D)
    a('s_waitcnt vmcnt(0)')
    a.raw('    ; MARK 15')
    gbar(a, FL_D, during=pf_wd)
    a.raw('    ; MARK 16')

def phase_e(a):
    vm = Vm(a)
    roles80(a)
    srd(a, 36, 6, 7, 0, ACT_BYTES)
    ACC = 64; WB = 16; XR = 112; GB = 124
    a('s_mul_i32 s28, s15, 5\ns_mul_i32 s19, s27, 3\ns_add_u32 s28, s28, s19')
    a('s_mul_i32 s31, s29, 40\ns_add_u32 s31, s31, s28\ns_lshl_b32 s31, s31, 10')
    a('v_lshrrev_b32 v7, 5, v2\nv_lshlrev_b32 v7, 4, v7')
    a(f's_lshl_b32 s32, s28, 5\ns_lshl_b32 s19, s12, 13\ns_add_u32 s19, s19, s32\ns_add_u32 s19, s19, {WS_MODF + 5*1280}')
    a('s_mov_b32 s42, s19')
    gb_loads = lambda: [vm.issue(f'buffer_load_dwordx4 v[{GB+4*i}:{GB+4*i+3}], v7, s[8:11], s42 offen offset:{i*32} sc1', 'x') for i in range(3)]
    if OPT.get('noxf'): XR = 184
    else:
        a(f's_add_u32 s19, s31, {KP_X1}')
        for i in range(3): vm.issue(f'buffer_load_dwordx4 v[{XR+4*i}:{XR+4*i+3}], v3, s[8:11], s19 offen offset:{i*1024} sc1', 'x')
    XF = 136; GF = 196
    eside = []
    for i in range(12):
        eside += [f'v_lshlrev_b32 v{XF+2*i}, 16, v{XR+i}\nv_and_b32 v{XF+2*i+1}, 0xffff0000, v{XR+i}',
                  f'v_lshlrev_b32 v{GF+2*i}, 16, v{GB+i}\nv_and_b32 v{GF+2*i+1}, 0xffff0000, v{GB+i}']
    eside += exchange_side(122880)
    eside += ['v_and_b32 v8, 31, v2\ns_lshl_b32 s19, s29, 5\nv_add_u32 v8, s19, v8', 'v_mul_u32_u24 v8, 1280, v8\nv_add_u32 v8, v8, v7']
    if OPT.get('wbl2'):
        Lwb = a.newlabel('E_WB')
        a(f's_cmp_lg_u32 s13, {OPT.get("wbl2_j", 0)}\ns_cbranch_scc1 {Lwb}\ns_cmp_lg_u32 s3, 0\ns_cbranch_scc1 {Lwb}')
        a('buffer_wbl2 sc1')
        a.label(Lwb)
    if OPT.get('e_rotg', 1): a('s_mov_b32 s35, s12')
    else: a('s_and_b32 s35, s13, 3\ns_mul_i32 s35, s35, ' + str(3*OPT.get('e_rot', 0)))
    main80(a, vm, 96, WS_KVH, WS_WD, 6, 3, ACC, WB, True, OPT.get('e_pre', 2), OPT.get('e_pace', 1), OPT.get('e_ahead', 4), tr=bool(OPT.get('bg', 1)), side=eside, before=gb_loads)
    a.raw('    ; MARK 17')
    exchange80(a, ACC, 16)
    L = a.newlabel('E_F2')
    def frag(i):
        for p in range(4):
            d = ACC + 8*i + 2*p; q = 4*i + p
            a(f'v_pk_fma_f32 v[{d}:{d+1}], v[{GF+2*q}:{GF+2*q+1}], v[{d}:{d+1}], v[{XF+2*q}:{XF+2*q+1}]')
            a(f'v_cvt_pk_bf16_f32 v{16+4*i+p}, v{d}, v{d+1}')
        b = 16 + 4*i
        a(f'v_permlane32_swap_b32 v{b}, v{b+2}\nv_permlane32_swap_b32 v{b+1}, v{b+3}')
        a(f'buffer_store_dwordx4 v[{b}:{b+3}], v8, s[36:39], s32 offen offset:{i*32}' + OPT.get('out_fl', ''))
    frag(0); frag(1)
    a(f's_cmp_eq_u32 s27, 1\ns_cbranch_scc1 {L}')
    frag(2)
    a.label(L)
```

```python
import sys, re
sys.path.insert(0, 'work')
from asmlib import *

KA_X, KA_WQKV, KA_WO, KA_BX, KA_WG, KA_WU, KA_WD, KA_C, KA_WMOD, KA_OUT, KA_DBG, KA_WS = [8*i for i in range(12)]
WS_MOD  = 0x0000000
WS_UT   = 0x0004000
WS_STAT = 0x0010000
WS_H1F  = 0x0100000
WS_XF   = 0x0400000
WS_QKV  = 0x0800000
WS_OF   = 0x1000000
WS_A2F  = 0x1400000
WS_X1F  = 0x1800000
WS_HHF  = 0x1C00000
WS_WQKV = 0x2400000
WS_WO   = 0x2800000
WS_WGU  = 0x2C00000
WS_WD   = 0x3000000
WS_MODP = 0x0060000
WS_MODF = 0x0070000
WS_FLAG = 0x0080000
FL_XT, FL_H, FL_KV, FL_O, FL_C, FL_D, FL_UT, FL_BG = [WS_FLAG + 1024*i for i in range(8)]
WS_KVH  = 0x0800000
KVH_STRIDE = 786432
WS_END  = 0x3400000
ACT_BYTES = 2048*640*2
SRD3 = 0x20000
WSB = [0]
def ws_rebase(a, lo):
    if WSB[0]: a(f's_add_u32 s{lo}, s{lo}, {WSB[0]}\ns_addc_u32 s{lo+1}, s{lo+1}, 0')

import struct
def f2u(x): return struct.unpack('<I', struct.pack('<f', x))[0]

def srd(a, s, base_lo, base_hi, off, size):
    if off:
        a(f's_add_u32 s{s}, s{base_lo}, {off}\ns_addc_u32 s{s+1}, s{base_hi}, 0')
    else:
        a(f's_mov_b32 s{s}, s{base_lo}\ns_mov_b32 s{s+1}, s{base_hi}')
    a(f's_mov_b32 s{s+2}, {size}\ns_mov_b32 s{s+3}, {SRD3}')

def wave_id(a, sdst, vtmp):
    a(f'v_lshrrev_b32 v{vtmp}, 6, v0')
    a(f'v_readfirstlane_b32 s{sdst}, v{vtmp}')


def touch(a, srd_s, vtmp, vdst, soff_sgpr, nlines, lane='v2'):
    a(f'v_lshlrev_b32 v{vtmp}, 7, {lane}')
    done = 0
    while done < nlines:
        n = min(64, nlines - done)
        if n < 64: a(f's_mov_b64 exec, {hex((1 << n) - 1)}' if n <= 31 else f's_mov_b32 exec_lo, -1\ns_mov_b32 exec_hi, {hex((1 << (n-32)) - 1)}')
        a(f'buffer_load_dword v{vdst}, v{vtmp}, s[{srd_s}:{srd_s+3}], s{soff_sgpr} offen')
        if n < 64: a('s_mov_b64 exec, -1')
        done += n
        if done < nlines: a(f's_add_u32 s{soff_sgpr}, s{soff_sgpr}, 8192')

class Lg:
    def __init__(self, a):
        self.a = a; self.ops = []
    def issue(self, text, tag):
        self.a(text); self.ops.append(tag)
    def wait(self, tag):
        last = max(i for i, t in enumerate(self.ops) if t == tag)
        n = len(self.ops) - 1 - last
        self.a(f's_waitcnt lgkmcnt({min(n, 15)})')

class Vm:
    def __init__(self, a):
        self.a = a; self.ops = []
    def issue(self, text, tag=None):
        self.a(text); self.ops.append(tag)
    def count(self, tags):
        if not isinstance(tags, (list, set)): tags = [tags]
        last = max(i for i, t in enumerate(self.ops) if t in tags)
        n = len(self.ops) - 1 - last
        assert n <= 63, n
        return n
    def wait(self, tags, extra=''):
        self.a(f's_waitcnt vmcnt({self.count(tags)}) {extra}'.strip())

def gemm_loop(a, vm, nks, ck, nct, chunk_ops, read_frag, mfma, wbuf, pd=2, pre=2, nslot=None, pace=2, ahead=5, side=None, nobar=False, nowait=False, noread=False):
    nchunk = (nks + ck - 1)//ck
    ring = nslot is not None and nslot < nchunk
    queue = []
    for c in range(nchunk):
        for t in chunk_ops(c): queue.append((t, c))
    st = dict(have=-1, gap=0)
    def allowed(c):
        if c > st['have'] + ahead: return False
        if ring and c >= nslot and (c - nslot) > st['have'] - 1: return False
        return True
    def emit(n, force_upto=-1):
        k = 0
        while queue:
            (t, isv), c = queue[0]
            if c <= force_upto: pass
            elif k >= n or not allowed(c): break
            queue.pop(0)
            if isv:
                vm.issue(t, ('c', c)); k += 1
            else:
                a(t)
    emit(0, force_upto=pre-1)
    def reg(ks, ct): return wbuf + ((ks % (pd+1))*nct + ct)*4
    def prefetch(ks):
        c = ks // ck
        if c > st['have']:
            assert not (ring and c >= nslot and (c - nslot) > st['have'] - 1 and any(cc <= c for _, cc in queue)), 'ring too small'
            emit(0, force_upto=c)
            vm.wait(('c', c), 'lgkmcnt(0)' if ring else '')
            if not nobar: a('s_barrier')
            st['have'] = c
    for k in range(min(pd, nks)):
        prefetch(k)
        if k == 0: a.raw('    ; MARK 1')
        for ct in range(nct): a(read_frag(k, ct, reg(k, ct)))
    side = list(side or [])
    for ks in range(nks):
        nxt = ks + pd
        if nxt < nks: prefetch(nxt)
        for ct in range(nct):
            later = (nct-1-ct) + nct*len(range(ks+1, min(ks+pd, nks))) + (ct if nxt < nks else 0)
            if not nowait: a(f's_waitcnt lgkmcnt({min(later, 15)})')
            a(mfma(ks, ct, reg(ks, ct), ks == 0))
            if nxt < nks and not noread: a(read_frag(nxt, ct, reg(nxt, ct)))
            st['gap'] += 1
            if st['gap'] >= pace:
                n0 = len(vm.ops); emit(1)
                if len(vm.ops) > n0: st['gap'] = 0
            if side: a(side.pop(0))
    assert not queue
    for t in side: a(t)


def gemm2(a, vm, nks, ck, nct, opsA, opsB, preB, read_frag, mfmas, wbuf, pd=2, pre=2, nslot=None, pace=2, ahead=5,
          barriers=True, side=None, tagp='c', nlgkm=1, pre_async=False, lead=0):
    nchunk = (nks + ck - 1)//ck
    ring = nslot is not None and nslot < nchunk
    need = {}
    for ks in range(nks):
        q = set()
        for ct in range(nct):
            for m in mfmas(ks, ct, wbuf, False):
                q |= set(re.findall(r'a\[(\d+):\d+\]', m))
        need[ks] = q
    queue = []
    for c in range(nchunk):
        if c >= preB:
            for t in opsB(c): queue.append((t, c, 'B', None))
        for t in opsA(c):
            dst = re.match(r'buffer_load_dwordx4 a\[(\d+):', t[0]) if t[1] else None
            ksq = None
            if dst:
                cand = [k for k in range(c*ck, min(nks, (c+1)*ck)) if dst.group(1) in need[k]]
                assert len(cand) == 1, (t, cand)
                ksq = cand[0]
            queue.append((t, c, 'A', ksq))
    st = dict(have=-1, gap=0)
    def allowed(c, kind):
        if c > st['have'] + ahead: return False
        if kind == 'B' and ring and c >= nslot and (c - nslot) > st['have'] - 2: return False
        return True
    def emit(n, force=None):
        k = 0
        while queue:
            (t, isv), c, kind, ksq = queue[0]
            if force is not None and force(): pass
            elif k >= n or not allowed(c, kind): break
            queue.pop(0)
            if isv:
                vm.issue(t, ('B', c) if kind == 'B' else (('K', ksq) if ksq is not None else ('X', c))); k += 1
            else:
                a(t)
    emit(0, force=lambda: queue[0][1] <= pre-1)
    def reg(ks, ct): return wbuf + ((ks % (pd+1))*nct + ct)*4
    def need_chunk(c):
        if c > st['have']:
            for (_t, cc, kind, _k) in queue:
                if cc <= c and kind == 'B' and ring and cc >= nslot: assert (cc - nslot) <= st['have'] - 2, 'ring too small'
            if barriers and c >= preB:
                emit(0, force=lambda: any(cc <= c and kind == 'B' for _t, cc, kind, _k in queue))
                vm.wait(('B', c))
                a('s_barrier')
            elif barriers and c > 0 and ring:
                a('s_barrier')
            st['have'] = c
    def need_act(ks):
        emit(0, force=lambda: any(k == ks for _t, _c, _kd, k in queue))
        if ('K', ks) in vm.ops: vm.wait(('K', ks))
    if pre_async:
        a(f's_waitcnt vmcnt({len(vm.ops)})\ns_barrier')
    for k in range(min(pd, nks)):
        need_chunk(k // ck)
        if k == 0: a.raw('    ; MARK 9')
        for ct in range(nct): a(read_frag(k, ct, reg(k, ct)))
    side = list(side or [])
    for ks in range(nks):
        nxt = ks + pd
        if nxt < nks: need_chunk(nxt // ck)
        need_act(ks)
        for ct in range(nct):
            later = (nct-1-ct) + nct*len(range(ks+1, min(ks+pd, nks))) + (ct if nxt < nks else 0)
            a(f's_waitcnt lgkmcnt({min(later*nlgkm, 15)})')
            ms = mfmas(ks, ct, reg(ks, ct), ks == 0)
            for i, m in enumerate(ms):
                a(m)
                if i == 0 and nxt < nks: a(read_frag(nxt, ct, reg(nxt, ct)))
                st['gap'] += 1
                p = 1 if (lead and queue and queue[0][1] < ks//ck + lead) else pace
                if st['gap'] >= p:
                    n0 = len(vm.ops); emit(1)
                    if len(vm.ops) > n0: st['gap'] = 0
                if side: a(side.pop(0))
    emit(10**9, force=lambda: True)
    assert not queue
    for t in side: a(t)

WS_DIAG = 0x3800000
NMARK = 20
def add_stamps(k, kidx, cyc=False):
    body = k['body']
    name = k['name']
    big = k.get('sgpr', 96) <= 44
    mb = 44 if big else 72
    nm = NMARK if big else 8
    lines = body.split('\n')
    tm = 's_memtime' if cyc else 's_memrealtime'
    out = [f'    {tm} s[94:95]', '    s_memtime s[92:93]']
    for n in range(nm): out.append(f'    s_mov_b32 s{mb+2*n}, 0')
    for l in lines:
        if l.strip() == 's_endpgm': out.append(f'    s_branch {name}_STAMP')
        elif l.strip().startswith('; MARK'):
            n = int(l.strip().split()[2])
            if n < nm: out.append(f'    {tm} s[{mb+2*n}:{mb+2*n+1}]')
        else: out.append(l)
    out.append(f'{name}_STAMP:')
    t = f"""s_mov_b64 exec, -1
    s_waitcnt vmcnt(0) lgkmcnt(0)
    {tm} s[96:97]
    s_memtime s[98:99]
    s_load_dwordx2 s[100:101], s[0:1], {KA_WS}
    s_cmp_ge_u32 s2, {min(k['grid'], 1024)}
    s_cbranch_scc1 {name}_STAMPX
    v_lshrrev_b32 v1, 6, v0
    s_lshl_b32 s90, s2, 3
    v_add_u32 v1, s90, v1
    v_lshlrev_b32 v1, 7, v1
    v_add_u32 v1, {WS_DIAG + kidx*1048576}, v1
    s_waitcnt lgkmcnt(0)
    s_sub_u32 s98, s98, s92"""
    vals = ['s94', 's96', 's98'] + [f's{mb+2*n}' for n in range(nm)]
    vals += ['0']*((-len(vals)) % 4)
    for q in range(len(vals)//4):
        t += '\n' + '\n'.join(f'v_mov_b32 v{2+e}, {vals[4*q+e]}' for e in range(4))
        t += f'\nglobal_store_dwordx4 v1, v[2:5], s[100:101] offset:{16*q}'
    for l in t.split('\n'): out.append('    ' + l.strip())
    out.append(f'{name}_STAMPX:')
    out.append('    s_endpgm')
    k2 = dict(k); k2['body'] = '\n'.join(out); k2['sgpr'] = 102; k2['sgpr_real'] = 102
    return k2
```

```python
from common import *
from kp import store2, gbar, gbar_pre, poll, poll_bg, OPT, WS_H2F, KP_O, KP_X1

def BSC(): return ' sc1' if OPT.get('bg', 1) and OPT.get('b_sc1', 1) else ''
LX = 102400

def roles80(a):
    a('s_and_b32 s26, s3, 1\ns_lshr_b32 s27, s3, 1\ns_lshr_b32 s15, s13, 2')
    a('s_lshl_b32 s29, s12, 3\ns_and_b32 s19, s13, 3\ns_lshl_b32 s19, s19, 1\ns_add_u32 s29, s29, s19\ns_add_u32 s29, s29, s26')

def main80(a, vm, nks_total, ws_act, ws_w, nslot, preB, ACC, WB, barriers, pre, pace, ahead, tr=False, side=None, before=None):
    nks = nks_total//2; npair = nks//2; nchunk = nks//4
    half_bytes = nslot*10240
    a(f's_and_b32 s22, s29, 7\ns_mul_i32 s22, s22, {nks_total}\ns_mul_i32 s19, s27, {nks}\ns_add_u32 s22, s22, s19\ns_lshl_b32 s22, s22, 10')
    a(f's_add_u32 s19, s12, 7\ns_and_b32 s19, s19, 7\ns_mul_i32 s19, s19, {KVH_STRIDE}\ns_add_u32 s22, s22, s19\ns_add_u32 s22, s22, {ws_act}')
    a(f's_mul_i32 s23, s15, {2*npair}\ns_mul_i32 s19, s27, {npair}\ns_add_u32 s23, s23, s19\ns_add_u32 s23, s23, s26\ns_mul_i32 s23, s23, 5120\ns_add_u32 s23, s23, {ws_w}')
    a(f's_mul_i32 s30, s27, {half_bytes}\ns_mul_i32 s19, s26, 5120\ns_add_u32 s30, s30, s19')
    a(f's_mul_i32 s19, s27, {half_bytes}\nv_add_u32 v4, s19, v3')
    a('v_lshrrev_b32 v5, 5, v2\nv_lshlrev_b32 v5, 8, v5\nv_and_b32 v6, 15, v2\nv_lshl_add_u32 v5, v6, 4, v5\nv_add_u32 v5, s19, v5\nv_add_u32 v5, 4096, v5')
    def rot(c, mul, base, dst):
        return [(f's_add_u32 s33, s35, {c}', False), (f's_sub_u32 s21, s33, {nchunk}', False), (f's_cmp_ge_u32 s33, {nchunk}', False),
                ('s_cselect_b32 s33, s21, s33', False), (f's_mul_i32 s33, s33, {mul}', False), (f's_add_u32 s{dst}, s{base}, s33', False)]
    def opsB(c):
        slot = c % nslot
        if OPT.get('e_noB'): return [('s_nop 0', True)]
        ops = [(f's_add_u32 m0, s30, {slot*10240}', False)] + rot(c, 10240, 23, 24)
        for q in range(4): ops.append((f'buffer_load_dwordx4 v3, s[8:11], s24 offen offset:{q*1024}{BSC()} lds', True))
        ops += [(f's_add_u32 m0, s30, {slot*10240 + 4096}', False), (f's_add_u32 s24, s24, 4096', False)]
        ops.append((f'buffer_load_dwordx4 v3, s[8:11], s24 offen{BSC()} lds', True))
        return ops
    TA = OPT.get('e_ta', 0)
    if TA:
        a('s_and_b32 s19, s13, 3\ns_lshl_b32 s19, s19, 2\ns_add_u32 s19, s19, s3\ns_mul_i32 s19, s19, 10\ns_cmp_ge_u32 s19, 80\ns_cselect_b32 s20, 1, 0')
        a(f's_mul_i32 s21, s20, 80\ns_sub_u32 s19, s19, s21\ns_lshl_b32 s19, s19, 7\ns_mul_i32 s20, s20, {npair*5120}\ns_add_u32 s19, s19, s20\ns_mul_i32 s20, s15, {2*npair*5120}\ns_add_u32 s19, s19, s20\ns_add_u32 s34, s19, {ws_w}')
        a('v_lshlrev_b32 v9, 7, v2')
    def opsT(c):
        if not TA or c >= nchunk: return []
        return [(f's_add_u32 s20, s34, {c*10240}', False), ('s_mov_b64 exec, 0x3ff\nbuffer_load_dword v10, v9, s[8:11], s20 offen\ns_mov_b64 exec, -1', True)]
    def opsA(c):
        ops = sum((opsT(k) for k in range(preB, preB + TA)), []) if c == 0 else opsT(preB + TA - 1 + c)
        ops = ops + rot(c, 4096, 22, 25)
        if OPT.get('e_noA') and c >= 2: return [('s_nop 0', True)]
        for q in range(4):
            ks = 4*c + q
            ops.append((f'buffer_load_dwordx4 a[{4*ks}:{4*ks+3}], v3, s[8:11], s25 offen offset:{q*1024} sc1', True))
        return ops
    if tr:
        a('v_lshrrev_b32 v6, 5, v2\nv_lshlrev_b32 v6, 2, v6\nv_bfe_u32 v4, v2, 2, 2\nv_add_u32 v6, v6, v4\nv_and_b32 v4, 3, v2\nv_lshlrev_b32 v4, 3, v4')
        a('v_lshl_add_u32 v5, v6, 5, v4\nv_lshl_add_u32 v4, v6, 6, v4\nv_bfe_u32 v6, v2, 4, 1\nv_lshl_add_u32 v4, v6, 5, v4')
        a(f's_mul_i32 s19, s27, {half_bytes}\nv_add_u32 v4, s19, v4\nv_add_u32 v5, s19, v5\nv_add_u32 v5, 4096, v5')
    def read_frag(ks, ct, r):
        c = ks // 4; slot = c % nslot
        base = slot*10240 + ((ks >> 1) & 1)*5120
        if tr:
            if ct < 2:
                o = base + (ks & 1)*2048 + ct*1024
                return f'ds_read_b64_tr_b16 v[{r}:{r+1}], v4 offset:{o}\nds_read_b64_tr_b16 v[{r+2}:{r+3}], v4 offset:{o+512}'
            o = base + (ks & 1)*512
            return f'ds_read_b64_tr_b16 v[{r}:{r+1}], v5 offset:{o}\nds_read_b64_tr_b16 v[{r+2}:{r+3}], v5 offset:{o+256}'
        if ct < 2: return f'ds_read_b128 v[{r}:{r+3}], v4 offset:{base + (ks & 1)*2048 + ct*1024}'
        return f'ds_read_b128 v[{r}:{r+3}], v5 offset:{base + (ks & 1)*512}'
    def mfmas(ks, ct, r, first):
        d = ACC + 16*ct
        if OPT.get('e_nomfma'): return ['s_nop 0']
        return [f'v_mfma_f32_32x32x16_bf16 v[{d}:{d+15}], v[{r}:{r+3}], a[{4*ks}:{4*ks+3}], ' + ('0' if first else f'v[{d}:{d+15}]')]
    if before: before()
    gemm2(a, vm, nks, 4, 3, opsA, opsB, preB, read_frag, mfmas, WB, pd=2, pre=pre, nslot=nslot, pace=pace, ahead=ahead, barriers=barriers, nlgkm=(2 if tr else 1), side=side, pre_async=preB > 0)

def exchange_side(region):
    return [f's_mul_i32 s19, s3, 6144\ns_add_u32 s19, s19, {region}\nv_add_u32 v12, s19, v3',
            f's_xor_b32 s19, s3, 2\ns_mul_i32 s19, s19, 6144\ns_add_u32 s19, s19, {region}\nv_add_u32 v13, s19, v3']

def exchange80(a, ACC, T):
    def q(i): return ACC + 4*i
    L1 = a.newlabel('X_KH1'); L2 = a.newlabel('X_W')
    a(f's_cmp_eq_u32 s27, 1\ns_cbranch_scc1 {L1}')
    for i in range(6, 10): a(f'ds_write_b128 v12, v[{q(i)}:{q(i)+3}] offset:{(i-6)*1024}')
    a(f's_branch {L2}')
    a.label(L1)
    for i in range(6): a(f'ds_write_b128 v12, v[{q(i)}:{q(i)+3}] offset:{i*1024}')
    a.label(L2)
    a('s_waitcnt lgkmcnt(0)\ns_barrier')
    L3 = a.newlabel('X_R1'); L4 = a.newlabel('X_RD')
    a(f's_cmp_eq_u32 s27, 1\ns_cbranch_scc1 {L3}')
    for i in range(6): a(f'ds_read_b128 v[{T+4*i}:{T+4*i+3}], v13 offset:{i*1024}')
    for i in range(6):
        a(f's_waitcnt lgkmcnt({5-i})')
        for e in (0, 2): a(f'v_pk_add_f32 v[{q(i)+e}:{q(i)+e+1}], v[{q(i)+e}:{q(i)+e+1}], v[{T+4*i+e}:{T+4*i+e+1}]')
    a(f's_branch {L4}')
    a.label(L3)
    for i in range(4): a(f'ds_read_b128 v[{T+4*i}:{T+4*i+3}], v13 offset:{i*1024}')
    for i in range(4):
        a(f's_waitcnt lgkmcnt({3-i})')
        for e in (0, 2): a(f'v_pk_add_f32 v[{q(i)+e}:{q(i)+e+1}], v[{q(6+i)+e}:{q(6+i)+e+1}], v[{T+4*i+e}:{T+4*i+e+1}]')
    a.label(L4)

def prefetch_blocks(a, nblk, gbase_sgpr, contiguous=True, lds_map=None):
    L = a.newlabel('PF_N')
    per = (nblk + 2)//3
    a(f's_cmp_eq_u32 s3, 0\ns_cbranch_scc1 {L}')
    a(f's_sub_u32 s19, s3, 1\ns_mul_i32 s19, s19, {per*1024}\ns_add_u32 s20, s{gbase_sgpr}, s19')
    for i in range(per):
        if i % 4 == 0:
            a(f's_add_u32 m0, s19, {i*1024}')
            if i: a('s_add_u32 s20, s20, 4096')
        guard = (2*per + i >= nblk)
        if guard:
            L2 = a.newlabel('PF_S'); a(f's_cmp_eq_u32 s3, 3\ns_cbranch_scc1 {L2}')
        a(f'buffer_load_dwordx4 v3, s[8:11], s20 offen offset:{(i%4)*1024}{BSC()} lds')
        if guard: a.label(L2)
    a.label(L)
    return per

def wait_stores(a, npf):
    L1 = a.newlabel('WS_A'); L2 = a.newlabel('WS_B')
    a(f's_cmp_eq_u32 s3, 0\ns_cbranch_scc1 {L1}')
    a(f's_waitcnt vmcnt({npf})')
    a(f's_branch {L2}')
    a.label(L1)
    a('s_waitcnt vmcnt(0)')
    a.label(L2)

def phase_c(a):
    vm = Vm(a)
    roles80(a)
    ACC = 64; WB = 16
    XR = 112; GA = 124; A2 = 136; SB = 148
    a('s_mul_i32 s28, s15, 5\ns_mul_i32 s19, s27, 3\ns_add_u32 s28, s28, s19')
    a('s_mul_i32 s31, s29, 40\ns_add_u32 s31, s31, s28\ns_lshl_b32 s31, s31, 10')
    a('v_lshrrev_b32 v7, 5, v2\nv_lshlrev_b32 v7, 4, v7')
    a(f's_lshl_b32 s32, s28, 5\ns_lshl_b32 s19, s12, 13\ns_add_u32 s32, s32, s19\ns_add_u32 s32, s32, {WS_MODF}')
    def extra_ops():
        ops = []
        if not OPT.get('noxf'):
            ops = [(f's_add_u32 s19, s31, {WS_XF}', False)]
            for i in range(3): ops.append((f'buffer_load_dwordx4 v[{XR+4*i}:{XR+4*i+3}], v3, s[8:11], s19 offen offset:{i*1024} sc1', True))
        for seg, R in ((2, GA), (4, A2), (3, SB)):
            ops.append((f's_add_u32 s19, s32, {seg*1280}', False))
            for i in range(3): ops.append((f'buffer_load_dwordx4 v[{R+4*i}:{R+4*i+3}], v7, s[8:11], s19 offen offset:{i*32} sc1', True))
        return ops
    nks = 20
    a(f's_mul_i32 s22, s29, 40\ns_mul_i32 s19, s27, {nks}\ns_add_u32 s22, s22, s19\ns_lshl_b32 s22, s22, 10\ns_add_u32 s22, s22, {KP_O}')
    half_bytes = 5*10240
    a(f's_mul_i32 s19, s27, {half_bytes}\nv_add_u32 v4, s19, v3')
    a('v_lshrrev_b32 v5, 5, v2\nv_lshlrev_b32 v5, 8, v5\nv_and_b32 v6, 15, v2\nv_lshl_add_u32 v5, v6, 4, v5\nv_add_u32 v5, s19, v5\nv_add_u32 v5, 4096, v5')
    def opsA(c):
        ops = [(f's_add_u32 s25, s22, {c*4096}', False)]
        for q in range(4):
            ks = 4*c + q
            ops.append((f'buffer_load_dwordx4 a[{4*ks}:{4*ks+3}], v3, s[8:11], s25 offen offset:{q*1024} sc1', True))
        return ops
    def read_frag(ks, ct, r):
        base = (ks//4)*10240 + ((ks >> 1) & 1)*5120
        if ct < 2: return f'ds_read_b128 v[{r}:{r+3}], v4 offset:{base + (ks & 1)*2048 + ct*1024}'
        return f'ds_read_b128 v[{r}:{r+3}], v5 offset:{base + (ks & 1)*512}'
    def mfmas(ks, ct, r, first):
        d = ACC + 16*ct
        return [f'v_mfma_f32_32x32x16_bf16 v[{d}:{d+15}], v[{r}:{r+3}], a[{4*ks}:{4*ks+3}], ' + ('0' if first else f'v[{d}:{d+15}]')]
    CF = OPT.get('cfast', 1) and OPT.get('noxf')
    X1 = 160
    PK = 184; PH = 196
    if CF:
        XF = 112; GF = 136
        side = []
        for i in range(12):
            side += [f'v_accvgpr_read_b32 v10, a{144+i}', f'v_lshlrev_b32 v{XF+2*i}, 16, v10', f'v_and_b32 v{XF+2*i+1}, 0xffff0000, v10',
                     f'v_accvgpr_read_b32 v11, a{156+i}', f'v_lshlrev_b32 v{GF+2*i}, 16, v11', f'v_and_b32 v{GF+2*i+1}, 0xffff0000, v11']
        side = [side[2*k] + '\n' + side[2*k+1] for k in range(len(side)//2)]
        side += exchange_side(LX)
        side += [f's_lshl_b32 s19, s29, 4\ns_lshl_b32 s20, s15, 1\ns_add_u32 s19, s19, s20\ns_add_u32 s19, s19, s27', f's_lshl_b32 s33, s19, 8\ns_add_u32 s33, s33, {WS_STAT}\nv_lshlrev_b32 v14, 3, v2',
                 'v_and_b32 v10, 31, v2\nv_lshrrev_b32 v11, 5, v2', 'v_lshlrev_b32 v15, 3, v10\nv_lshl_add_u32 v15, v11, 11, v15', f's_lshl_b32 s42, s29, 12\ns_add_u32 s42, s42, {WS_STAT}']
        gemm2(a, vm, nks, 4, 3, opsA, None, 99, read_frag, mfmas, WB, pd=2, pre=OPT.get('c_pre', 2), pace=1, ahead=5, barriers=False, side=side)
    else:
        if OPT.get('noxf'):
            for i in range(12): a(f'v_accvgpr_read_b32 v{XR+i}, a{144+i}')
        opsA2 = lambda c: opsA(c) + (extra_ops() if c == 4 else [])
        gemm2(a, vm, nks, 4, 3, opsA2, None, 99, read_frag, mfmas, WB, pd=2, pre=OPT.get('c_pre', 2), pace=1, ahead=5, barriers=False)
    a.raw('    ; MARK 10')
    if not CF:
        for t in exchange_side(LX): a(t)
    exchange80(a, ACC, 16)
    L = a.newlabel('C_F2')
    if CF:
        def frag1(i):
            for p in range(4):
                d = ACC + 8*i + 2*p; q = 4*i + p; lo = X1 + 2*q
                a(f'v_fma_f32 v12, v{GF+2*q}, v{d}, v{XF+2*q}\nv_fma_f32 v13, v{GF+2*q+1}, v{d+1}, v{XF+2*q+1}')
                a(f'v_cvt_pk_bf16_f32 v{PK+q}, v12, v13')
                a(f'v_lshlrev_b32 v{lo}, 16, v{PK+q}\nv_and_b32 v{lo+1}, 0xffff0000, v{PK+q}')
                if q == 0: a(f'v_pk_add_f32 v[8:9], v[{lo}:{lo+1}], 0 op_sel_hi:[1,0]\nv_pk_mul_f32 v[10:11], v[{lo}:{lo+1}], v[{lo}:{lo+1}]') if False else a(f'v_mov_b32 v8, v{lo}\nv_mov_b32 v9, v{lo+1}\nv_pk_mul_f32 v[10:11], v[{lo}:{lo+1}], v[{lo}:{lo+1}]')
                else: a(f'v_pk_add_f32 v[8:9], v[8:9], v[{lo}:{lo+1}]\nv_pk_fma_f32 v[10:11], v[{lo}:{lo+1}], v[{lo}:{lo+1}], v[10:11]')
        frag1(0); frag1(1)
        a(f's_cmp_eq_u32 s27, 1\ns_cbranch_scc1 {L}')
        frag1(2)
        a.label(L)
        a('v_add_f32 v8, v8, v9\nv_add_f32 v9, v10, v11')
    else:
        a('v_mov_b32 v8, 0\nv_mov_b32 v9, 0')
        def frag1(i):
            for p in range(4):
                d = ACC + 8*i + 2*p; x = XR + 4*i + p; g = GA + 4*i + p
                a(f'v_lshlrev_b32 v10, 16, v{x}\nv_lshlrev_b32 v11, 16, v{g}\nv_fma_f32 v12, v11, v{d}, v10')
                a(f'v_and_b32 v10, 0xffff0000, v{x}\nv_and_b32 v11, 0xffff0000, v{g}\nv_fma_f32 v13, v11, v{d+1}, v10')
                a(f'v_cvt_pk_bf16_f32 v{PK+4*i+p}, v12, v13')
                lo = X1 + 8*i + 2*p
                a(f'v_lshlrev_b32 v{lo}, 16, v{PK+4*i+p}\nv_and_b32 v{lo+1}, 0xffff0000, v{PK+4*i+p}')
                a(f'v_add_f32 v8, v8, v{lo}\nv_fmac_f32 v9, v{lo}, v{lo}\nv_add_f32 v8, v8, v{lo+1}\nv_fmac_f32 v9, v{lo+1}, v{lo+1}')
        frag1(0); frag1(1)
        a(f's_cmp_eq_u32 s27, 1\ns_cbranch_scc1 {L}')
        frag1(2)
        a.label(L)
    a('v_mov_b32 v10, v8\nv_mov_b32 v11, v9')
    a('v_permlane32_swap_b32 v8, v10\nv_permlane32_swap_b32 v9, v11')
    a('v_add_f32 v8, v8, v10\nv_add_f32 v9, v9, v11')
    if not CF:
        a(f's_lshl_b32 s19, s29, 4\ns_lshl_b32 s20, s15, 1\ns_add_u32 s19, s19, s20\ns_add_u32 s19, s19, s27\ns_lshl_b32 s33, s19, 8\ns_add_u32 s33, s33, {WS_STAT}')
        a('v_lshlrev_b32 v14, 3, v2')
    def st1(f):
        a('s_mov_b32 exec_hi, 0')
        a(f'buffer_store_dwordx2 v[8:9], v14, s[8:11], s33 offen{f}')
        a('s_mov_b64 exec, -1')
        for i in range(3 if not OPT.get('noxf') else 0):
            Ls = None
            if i == 2:
                Ls = a.newlabel('C_S2'); a(f's_cmp_eq_u32 s27, 1\ns_cbranch_scc1 {Ls}')
            a(f's_add_u32 s19, s31, {KP_X1 + i*1024}\nbuffer_store_dwordx4 v[{PK+4*i}:{PK+4*i+3}], v3, s[8:11], s19 offen{f}')
            if Ls: a.label(Ls)
    store2(a, st1)
    a(f's_lshr_b32 s34, s13, 1\ns_mul_i32 s34, s34, 245760\ns_add_u32 s34, s34, {WS_WGU}')
    if OPT.get('d_rotg'): a('s_mul_i32 s19, s12, 24576\ns_add_u32 s34, s34, s19')
    else: a(f's_and_b32 s19, s13, 1\ns_mul_i32 s19, s19, {5*24576*OPT.get("d_rot", 0)}\ns_add_u32 s34, s34, s19')
    gbar_pre(a, FL_C)
    a('s_waitcnt vmcnt(0)')
    a.raw('    ; MARK 11')
    gbar(a, FL_C, during=((lambda: poll_bg(a)) if OPT.get('bg', 1) else None))
    a.raw('    ; MARK 12')
    ST = 64 if CF else 16
    if not CF:
        a('v_and_b32 v10, 31, v2\nv_lshrrev_b32 v11, 5, v2\nv_lshlrev_b32 v15, 3, v10\nv_lshl_add_u32 v15, v11, 11, v15')
        a(f's_lshl_b32 s42, s29, 12\ns_add_u32 s42, s42, {WS_STAT}')
    for i in range(8): a(f'buffer_load_dwordx2 v[{ST+2*i}:{ST+2*i+1}], v15, s[8:11], s42 offen offset:{i*256} sc1')
    if CF:
        AF = 16; SF = 40
        for i in range(12):
            a(f'v_accvgpr_read_b32 v10, a{168+i}\nv_accvgpr_read_b32 v11, a{180+i}')
            a(f'v_lshlrev_b32 v{AF+2*i}, 16, v10\nv_and_b32 v{AF+2*i+1}, 0xffff0000, v10\nv_lshlrev_b32 v{SF+2*i}, 16, v11\nv_and_b32 v{SF+2*i+1}, 0xffff0000, v11')
    a('s_waitcnt vmcnt(0)')
    for i in range(1, 8): a(f'v_pk_add_f32 v[{ST}:{ST+1}], v[{ST}:{ST+1}], v[{ST+2*i}:{ST+2*i+1}]')
    a(f'v_mov_b32 v10, v{ST}\nv_mov_b32 v11, v{ST+1}')
    a(f'v_permlane32_swap_b32 v{ST}, v10\nv_permlane32_swap_b32 v{ST+1}, v11')
    a(f'v_add_f32 v10, v{ST}, v10\nv_add_f32 v11, v{ST+1}, v11')
    inv = hex(f2u(1.0/640))
    a(f'v_mul_f32 v10, {inv}, v10\nv_mul_f32 v11, {inv}, v11\nv_fma_f32 v11, -v10, v10, v11\nv_max_f32 v11, 0, v11\nv_add_f32 v11, {hex(f2u(1e-5))}, v11\nv_rsq_f32 v11, v11')
    L = a.newlabel('C_H2')
    if CF:
        a('v_sub_f32 v12, 0, v10\nv_mov_b32 v14, v11\nv_mov_b32 v15, v11\nv_mov_b32 v13, v12')
        def frag2(i):
            for p in range(4):
                q = 4*i + p; lo = X1 + 2*q
                a(f'v_pk_mul_f32 v[{AF+2*q}:{AF+2*q+1}], v[{AF+2*q}:{AF+2*q+1}], v[14:15]')
                a(f'v_pk_fma_f32 v[{SF+2*q}:{SF+2*q+1}], v[{AF+2*q}:{AF+2*q+1}], v[12:13], v[{SF+2*q}:{SF+2*q+1}]')
                a(f'v_pk_fma_f32 v[{lo}:{lo+1}], v[{lo}:{lo+1}], v[{AF+2*q}:{AF+2*q+1}], v[{SF+2*q}:{SF+2*q+1}]')
                a(f'v_cvt_pk_bf16_f32 v{PH+q}, v{lo}, v{lo+1}')
    else:
        def frag2(i):
            for p in range(4):
                lo = X1 + 8*i + 2*p; s2 = A2 + 4*i + p; sb = SB + 4*i + p
                a(f'v_sub_f32 v{lo}, v{lo}, v10\nv_sub_f32 v{lo+1}, v{lo+1}, v10\nv_mul_f32 v{lo}, v{lo}, v11\nv_mul_f32 v{lo+1}, v{lo+1}, v11')
                a(f'v_lshlrev_b32 v12, 16, v{s2}\nv_lshlrev_b32 v13, 16, v{sb}\nv_fma_f32 v{lo}, v{lo}, v12, v13')
                a(f'v_and_b32 v12, 0xffff0000, v{s2}\nv_and_b32 v13, 0xffff0000, v{sb}\nv_fma_f32 v{lo+1}, v{lo+1}, v12, v13')
                a(f'v_cvt_pk_bf16_f32 v{PH+4*i+p}, v{lo}, v{lo+1}')
    def st2(f):
        for i in range(3):
            Ls = None
            if i == 2:
                Ls = a.newlabel('C_S3'); a(f's_cmp_eq_u32 s27, 1\ns_cbranch_scc1 {Ls}')
            frag2(i)
            a(f's_add_u32 s19, s31, {WS_H2F + i*1024}\nbuffer_store_dwordx4 v[{PH+4*i}:{PH+4*i+3}], v3, s[8:11], s19 offen{f}')
            if Ls: a.label(Ls)
    store2(a, st2)
    gbar_pre(a, FL_UT)
    a('s_waitcnt vmcnt(0)')
    a.raw('    ; MARK 13')
    gbar(a, FL_UT, during=(lambda: prefetch_blocks(a, 24*OPT.get('d_preB', 1), 34)) if OPT.get('d_preB', 1) else None)
    a.raw('    ; MARK 8')

def phase_d(a):
    vm = Vm(a)
    NSLOT = 6; CB = 24576
    a('s_lshr_b32 s15, s13, 1\ns_and_b32 s19, s13, 1\ns_lshl_b32 s19, s19, 2\ns_lshl_b32 s29, s12, 3\ns_add_u32 s29, s29, s19\ns_add_u32 s29, s29, s3')
    a(f's_mul_i32 s22, s29, 40960\ns_add_u32 s22, s22, {WS_H2F}')
    a(f's_mul_i32 s23, s15, 245760\ns_mul_i32 s30, s3, 6144\ns_add_u32 s23, s23, s30\ns_add_u32 s23, s23, {WS_WGU}')
    R = OPT.get('d_rot', 0)
    a(f's_and_b32 s19, s13, 1\ns_mul_i32 s20, s19, {5*CB*R}\ns_sub_u32 s27, s23, s20\ns_add_u32 s23, s23, s20\ns_mul_i32 s20, s19, {5*4096*R}\ns_sub_u32 s26, s22, s20\ns_add_u32 s22, s22, s20')
    def drot(c, mul, base, dst):
        return [(f's_add_u32 s33, s12, {c}', False), ('s_sub_u32 s21, s33, 10', False), ('s_cmp_ge_u32 s33, 10', False),
                ('s_cselect_b32 s33, s21, s33', False), (f's_mul_i32 s33, s33, {mul}', False), (f's_add_u32 s{dst}, s{base}, s33', False)]
    def opsB(c):
        slot = c % NSLOT
        if OPT.get('d_noB'): return [('s_nop 0', True)]
        if OPT.get('d_rotg'):
            ops = [(f's_add_u32 m0, s30, {slot*CB}', False)] + drot(c, CB, 23, 24)
        else:
            ops = [(f's_add_u32 m0, s30, {slot*CB}', False), (f's_add_u32 s24, s{23 if c < 5 else 27}, {c*CB}', False)]
        NT = ' nt' if OPT.get('d_nt') else ''
        for q in range(4): ops.append((f'buffer_load_dwordx4 v3, s[8:11], s24 offen offset:{q*1024}{BSC()}{NT} lds', True))
        ops += [(f's_add_u32 m0, s30, {slot*CB + 4096}', False), ('s_add_u32 s24, s24, 4096', False)]
        for q in range(2): ops.append((f'buffer_load_dwordx4 v3, s[8:11], s24 offen offset:{q*1024}{BSC()}{NT} lds', True))
        return ops
    TA = OPT.get('d_ta', 0); PB = OPT.get('d_preB', 1)
    if TA:
        a(f's_and_b32 s19, s13, 1\ns_lshl_b32 s19, s19, 2\ns_add_u32 s19, s19, s3\ns_mul_i32 s19, s19, {24*128}\ns_mul_i32 s20, s15, 245760\ns_add_u32 s19, s19, s20\ns_add_u32 s34, s19, {WS_WGU}')
        a('v_lshlrev_b32 v9, 7, v2')
    def opsT(c):
        if not TA or c >= 10: return []
        return [(f's_add_u32 s20, s34, {c*CB}', False), ('s_mov_b64 exec, 0xffffff\nbuffer_load_dword v10, v9, s[8:11], s20 offen\ns_mov_b64 exec, -1', True)]
    WT = OPT.get('d_wdtouch', 0)
    if WT:
        a(f's_mul_i32 s35, s13, 61440\ns_mul_i32 s19, s3, 1536\ns_add_u32 s35, s35, s19\ns_add_u32 s35, s35, {WS_WD}\nv_lshlrev_b32 v9, 7, v2')
    def opsW(c):
        if not WT: return []
        return [(f's_add_u32 s20, s35, {c*6144}', False), ('s_mov_b64 exec, 0xfff\nbuffer_load_dword v255, v9, s[8:11], s20 offen\ns_mov_b64 exec, -1', True)]
    def opsA(c):
        ops = sum((opsT(k) for k in range(PB, PB + TA)), []) if c == 0 else opsT(PB + TA - 1 + c)
        ops = opsW(c) + ops
        if OPT.get('d_rotg'): ops = ops + drot(c, 4096, 22, 25)
        else: ops = ops + [(f's_add_u32 s25, s{22 if c < 5 else 26}, {c*4096}', False)]
        for q in range(4):
            ks = 4*c + q
            ops.append((f'buffer_load_dwordx4 a[{4*ks}:{4*ks+3}], v3, s[8:11], s25 offen offset:{q*1024} sc1', True))
        return ops
    ACC = 88
    TR = bool(OPT.get('bg', 1))
    def read_frag(ks, ct, r):
        off = ((ks//4) % NSLOT)*CB + ((ks & 3)*6 + ct)*1024
        if TR:
            return f'ds_read_b64_tr_b16 v[{r}:{r+1}], v{4 + off//65536} offset:{off % 65536}\nds_read_b64_tr_b16 v[{r+2}:{r+3}], v{4 + off//65536} offset:{off % 65536 + 512}'
        return f'ds_read_b128 v[{r}:{r+3}], v{4 + off//65536} offset:{off % 65536}'
    if TR:
        a('v_lshrrev_b32 v6, 5, v2\nv_lshlrev_b32 v6, 2, v6\nv_bfe_u32 v4, v2, 2, 2\nv_add_u32 v6, v6, v4\nv_and_b32 v4, 3, v2\nv_lshlrev_b32 v4, 3, v4')
        a('v_lshl_add_u32 v4, v6, 6, v4\nv_bfe_u32 v6, v2, 4, 1\nv_lshl_add_u32 v4, v6, 5, v4')
        a('v_add_u32 v5, 0x10000, v4\nv_add_u32 v6, 0x20000, v4')
    else:
        a('v_mov_b32 v4, v3\nv_add_u32 v5, 0x10000, v3\nv_add_u32 v6, 0x20000, v3')
    def mfmas(ks, ct, r, first):
        d = ACC + 16*ct
        if OPT.get('d_nomfma'): return ['s_nop 7']
        return [f'v_mfma_f32_32x32x16_bf16 v[{d}:{d+15}], v[{r}:{r+3}], a[{4*ks}:{4*ks+3}], ' + ('0' if first else f'v[{d}:{d+15}]')]
    dside = ['s_and_b32 s31, s29, 7\ns_mul_i32 s31, s31, 96', 's_mul_i32 s19, s15, 6\ns_add_u32 s31, s31, s19\ns_lshl_b32 s31, s31, 10',
             f's_add_u32 s19, s12, 7\ns_and_b32 s19, s19, 7\ns_mul_i32 s19, s19, {KVH_STRIDE}', f's_add_u32 s31, s31, s19\ns_add_u32 s31, s31, {WS_KVH}\ns_add_u32 s32, s31, 4096',
             f's_lshr_b32 s19, s13, 2\ns_mul_i32 s34, s19, {48*5120}\ns_add_u32 s34, s34, {WS_WD}', 's_mul_i32 s19, s12, 10240\ns_add_u32 s34, s34, s19']
    assert OPT.get('e_rotg', 1) and not OPT.get('d_ta')
    gemm2(a, vm, 40, 4, 6, opsA, opsB, OPT.get('d_preB', 1), read_frag, mfmas, 16, pd=(1 if TR else 2), pre=OPT.get('d_pre', 2), nslot=NSLOT, pace=OPT.get('d_pace', 2), ahead=OPT.get('d_ahead', 4), barriers=True, nlgkm=(2 if TR else 1), side=dside, lead=OPT.get('d_lead', 0), pre_async=bool(OPT.get('d_preB', 1)))
    a.raw('    ; MARK 14')
    def st(f):
        for ct in range(3):
            for q in range(4):
                g = ACC + 16*ct + 4*q; u = ACC + 16*(3+ct) + 4*q
                a(f'v_pk_mul_f32 v[{g}:{g+1}], v[{g}:{g+1}], v[{u}:{u+1}]\nv_pk_mul_f32 v[{g+2}:{g+3}], v[{g+2}:{g+3}], v[{u+2}:{u+3}]')
                o = 16 + 8*ct + 2*q
                a(f'v_cvt_pk_bf16_f32 v{o}, v{g}, v{g+1}\nv_cvt_pk_bf16_f32 v{o+1}, v{g+2}, v{g+3}')
                if q & 1:
                    k = 2*ct + (q >> 1)
                    a(f'buffer_store_dwordx4 v[{16+4*k}:{19+4*k}], v3, s[8:11], s{31 + k//4} offen offset:{(k % 4)*1024}{f}')
    store2(a, st)
    def out_touch():
        pass
    def pf_wd():
      a('s_sub_u32 s19, s3, 1\ns_mul_i32 s19, s19, 20')
      for i in range(20):
          if i in (0, 10):
              a(f's_add_u32 s20, s19, {i}\ns_cmp_ge_u32 s20, 30\ns_cselect_b32 s21, 1, 0\ns_mul_i32 s25, s21, 30\ns_sub_u32 s20, s20, s25\ns_lshl_b32 s20, s20, 10')
              a(f's_mul_i32 s25, s21, {24*5120}\ns_add_u32 s25, s25, s20\ns_add_u32 s25, s25, s34\ns_mul_i32 s21, s21, 61440\ns_add_u32 s21, s21, s20')
          k = i % 10
          if k % 4 == 0:
              a(f's_add_u32 m0, s21, {k*1024}')
              if k: a('s_add_u32 s25, s25, 4096')
          a(f'buffer_load_dwordx4 v3, s[8:11], s25 offen offset:{(k % 4)*1024}{BSC()} lds')
    gbar_pre(a, FL_D)
    a('s_waitcnt vmcnt(0)')
    a.raw('    ; MARK 15')
    gbar(a, FL_D, during=pf_wd)
    a.raw('    ; MARK 16')

def phase_e(a):
    vm = Vm(a)
    roles80(a)
    srd(a, 36, 6, 7, 0, ACT_BYTES)
    ACC = 64; WB = 16; XR = 112; GB = 124
    a('s_mul_i32 s28, s15, 5\ns_mul_i32 s19, s27, 3\ns_add_u32 s28, s28, s19')
    a('s_mul_i32 s31, s29, 40\ns_add_u32 s31, s31, s28\ns_lshl_b32 s31, s31, 10')
    a('v_lshrrev_b32 v7, 5, v2\nv_lshlrev_b32 v7, 4, v7')
    a(f's_lshl_b32 s32, s28, 5\ns_lshl_b32 s19, s12, 13\ns_add_u32 s19, s19, s32\ns_add_u32 s19, s19, {WS_MODF + 5*1280}')
    a('s_mov_b32 s42, s19')
    gb_loads = lambda: [vm.issue(f'buffer_load_dwordx4 v[{GB+4*i}:{GB+4*i+3}], v7, s[8:11], s42 offen offset:{i*32} sc1', 'x') for i in range(3)]
    if OPT.get('noxf'): XR = 184
    else:
        a(f's_add_u32 s19, s31, {KP_X1}')
        for i in range(3): vm.issue(f'buffer_load_dwordx4 v[{XR+4*i}:{XR+4*i+3}], v3, s[8:11], s19 offen offset:{i*1024} sc1', 'x')
    XF = 136; GF = 196
    eside = []
    for i in range(12):
        eside += [f'v_lshlrev_b32 v{XF+2*i}, 16, v{XR+i}\nv_and_b32 v{XF+2*i+1}, 0xffff0000, v{XR+i}',
                  f'v_lshlrev_b32 v{GF+2*i}, 16, v{GB+i}\nv_and_b32 v{GF+2*i+1}, 0xffff0000, v{GB+i}']
    eside += exchange_side(122880)
    eside += ['v_and_b32 v8, 31, v2\ns_lshl_b32 s19, s29, 5\nv_add_u32 v8, s19, v8', 'v_mul_u32_u24 v8, 1280, v8\nv_add_u32 v8, v8, v7']
    if OPT.get('wbl2'):
        Lwb = a.newlabel('E_WB')
        a(f's_cmp_lg_u32 s13, {OPT.get("wbl2_j", 0)}\ns_cbranch_scc1 {Lwb}\ns_cmp_lg_u32 s3, 0\ns_cbranch_scc1 {Lwb}')
        a('buffer_wbl2 sc1')
        a.label(Lwb)
    if OPT.get('e_rotg', 1): a('s_mov_b32 s35, s12')
    else: a('s_and_b32 s35, s13, 3\ns_mul_i32 s35, s35, ' + str(3*OPT.get('e_rot', 0)))
    main80(a, vm, 96, WS_KVH, WS_WD, 6, 3, ACC, WB, True, OPT.get('e_pre', 2), OPT.get('e_pace', 1), OPT.get('e_ahead', 4), tr=bool(OPT.get('bg', 1)), side=eside, before=gb_loads)
    a.raw('    ; MARK 17')
    exchange80(a, ACC, 16)
    L = a.newlabel('E_F2')
    def frag(i):
        for p in range(4):
            d = ACC + 8*i + 2*p; q = 4*i + p
            a(f'v_pk_fma_f32 v[{d}:{d+1}], v[{GF+2*q}:{GF+2*q+1}], v[{d}:{d+1}], v[{XF+2*q}:{XF+2*q+1}]')
            a(f'v_cvt_pk_bf16_f32 v{16+4*i+p}, v{d}, v{d+1}')
        b = 16 + 4*i
        a(f'v_permlane32_swap_b32 v{b}, v{b+2}\nv_permlane32_swap_b32 v{b+1}, v{b+3}')
        a(f'buffer_store_dwordx4 v[{b}:{b+3}], v8, s[36:39], s32 offen offset:{i*32}' + OPT.get('out_fl', ''))
    frag(0); frag(1)
    a(f's_cmp_eq_u32 s27, 1\ns_cbranch_scc1 {L}')
    frag(2)
    a.label(L)
```

```python
from common import *
import math

SPIN = 2000000
LH = 81920
LFAST = LH + 2560
LK = 114176
LV = LK + 24576
LONES = 159488
LFAST2 = 110592
NEG = -30000.0
KP_O = WS_H1F
WS_H2F = WS_H1F
KP_X1 = WS_XF

def store2(a, text_fn):
    L1 = a.newlabel('ST_S'); L2 = a.newlabel('ST_E')
    a(f's_cmp_eq_u32 s14, 0\ns_cbranch_scc1 {L1}')
    text_fn('')
    a(f's_branch {L2}')
    a.label(L1)
    text_fn(' sc1')
    a.label(L2)

def poll(a, vaddr, cond_reg='v20', sbase='s[4:5]', n=1, spin=None, pipe=False):
    L = a.newlabel('POLL'); Lo = a.newlabel('POLLX')
    a(f's_mov_b32 s18, {spin or SPIN}')
    if pipe:
        a(f'global_load_dword v252, {vaddr}, {sbase} sc1\ns_nop 7\nglobal_load_dword v253, {vaddr}, {sbase} sc1\ns_nop 7')
        a.label(L)
        for x, y in ((254, 252), (252, 253), (253, 254)):
            a(f'global_load_dword v{x}, {vaddr}, {sbase} sc1\ns_waitcnt vmcnt(2)\nv_cmp_eq_u32 vcc, 0, v{y}\ns_cbranch_vccz {Lo}')
        a(f's_sub_u32 s18, s18, 1\ns_cmp_lg_u32 s18, 0\ns_cbranch_scc1 {L}')
        a.label(Lo)
        return
    a.label(L)
    a(f's_sub_u32 s18, s18, 1\ns_cmp_eq_u32 s18, 0\ns_cbranch_scc1 {Lo}')
    a(f'global_load_dword {cond_reg}, {vaddr}, {sbase} sc1')
    a('s_waitcnt vmcnt(0)')
    a(f'v_cmp_eq_u32 vcc, 0, {cond_reg}')
    a(f's_cbranch_vccnz {L}')
    a.label(Lo)

def poll_bg(a):
    L = a.newlabel('PBG'); Lo = a.newlabel('PBGX'); Ls = a.newlabel('PBGS')
    a(f's_cmp_lg_u32 s3, 1\ns_cbranch_scc1 {Ls}')
    a(f'v_add_u32 v18, {FL_BG}, v3\ns_mov_b32 s18, {SPIN}')
    a.label(L)
    a(f's_sub_u32 s18, s18, 1\ns_cmp_eq_u32 s18, 0\ns_cbranch_scc1 {Lo}')
    a('global_load_dwordx4 v[20:23], v18, s[4:5] sc1\ns_waitcnt vmcnt(0)')
    a('v_min_u32 v20, v20, v21\nv_min_u32 v22, v22, v23\nv_min_u32 v20, v20, v22\nv_cmp_eq_u32 vcc, 0, v20')
    a(f's_cbranch_vccnz {L}')
    a.label(Lo)
    a.label(Ls)

def gbar_pre(a, flag):
    a(f's_lshl_b32 s19, s12, 7\ns_add_u32 s19, s19, {flag}\ns_lshl_b32 s20, s13, 2\ns_add_u32 s20, s20, s19')
    a('v_mov_b32 v250, s20\nv_and_b32 v251, 31, v2\nv_lshlrev_b32 v251, 2, v251\nv_add_u32 v251, s19, v251\nv_mov_b32 v249, 1')

def gbar(a, flag, local=True, during=None, also_set=None):
    L = a.newlabel('GB'); Ld = a.newlabel('GBD')
    a('s_barrier')
    a(f's_cmp_lg_u32 s3, 0\ns_cbranch_scc1 {Ld if during else L}')
    a('s_mov_b64 exec, 1')
    store2(a, lambda f: a(f'global_store_dword v250, v249, s[4:5]{f}'))
    if also_set is not None and OPT.get('bg'):
        a(f's_lshl_b32 s20, s2, 2\ns_add_u32 s20, s20, {also_set}\nv_mov_b32 v250, s20\nglobal_store_dword v250, v249, s[4:5] sc1')
    a('s_mov_b64 exec, -1')
    poll(a, 'v251', pipe=True)
    if during:
        a(f's_branch {L}')
        a.label(Ld)
        during()
    a.label(L)
    a('s_barrier')

def fin_mod(a, base, nq_valid_exec=None):
    for e in (0, 2):
        a(f'v_pk_add_f32 v[{base+e}:{base+e+1}], v[{base+e}:{base+e+1}], v[{base+4+e}:{base+5+e}]\nv_pk_add_f32 v[{base+8+e}:{base+9+e}], v[{base+8+e}:{base+9+e}], v[{base+12+e}:{base+13+e}]')
    for e in (0, 2):
        a(f'v_pk_add_f32 v[{base+e}:{base+e+1}], v[{base+e}:{base+e+1}], v[{base+8+e}:{base+9+e}]')

def round_pack(a, base, vone, out):
    a(f'v_cvt_pk_bf16_f32 v{out}, v{base}, v{base+1}\nv_cvt_pk_bf16_f32 v{out+1}, v{base+2}, v{base+3}')
    a(f'v_lshlrev_b32 v{base}, 16, v{out}\nv_and_b32 v{base+1}, 0xffff0000, v{out}\nv_lshlrev_b32 v{base+2}, 16, v{out+1}\nv_and_b32 v{base+3}, 0xffff0000, v{out+1}')
    for e in range(4): a(f'v_add_f32 v{base+e}, v{base+e}, v{vone}')
    a(f'v_cvt_pk_bf16_f32 v{out}, v{base}, v{base+1}\nv_cvt_pk_bf16_f32 v{out+1}, v{base+2}, v{base+3}')

def cperm_pos_bytes(a, vcol4, out, tmp):
    a(f'v_lshrrev_b32 v{out}, 2, v{vcol4}\nv_lshlrev_b32 v{out}, 5, v{out}')
    a(f'v_and_b32 v{tmp}, 1, v{vcol4}\nv_lshl_add_u32 v{out}, v{tmp}, 4, v{out}')
    a(f'v_bfe_u32 v{tmp}, v{vcol4}, 1, 1\nv_lshl_add_u32 v{out}, v{tmp}, 3, v{out}')

LHF = 81920
LFAST = LHF + 5120


def round4(a, base, vone):
    t = base + 4
    for rep in range(2):
        a(f'v_cvt_pk_bf16_f32 v{t}, v{base}, v{base+1}\nv_cvt_pk_bf16_f32 v{t+1}, v{base+2}, v{base+3}')
        a(f'v_lshlrev_b32 v{base}, 16, v{t}\nv_and_b32 v{base+1}, 0xffff0000, v{t}\nv_lshlrev_b32 v{base+2}, 16, v{t+1}\nv_and_b32 v{base+3}, 0xffff0000, v{t+1}')
        if rep == 0:
            for e in range(4): a(f'v_add_f32 v{base+e}, v{base+e}, v{vone}')

def bg_setup(a):
    a('s_lshl_b32 s30, s2, 1')
    a('v_lshrrev_b32 v14, 3, v2\nv_and_b32 v15, 7, v2')
    Ld = a.newlabel('BG_D'); Le = a.newlabel('BG_E')
    a(f's_cmp_ge_u32 s2, 160\ns_cbranch_scc1 {Ld}')
    a(f's_lshr_b32 s19, s30, 3\ns_mul_i32 s43, s19, 49152\ns_and_b32 s20, s30, 3\ns_mul_i32 s20, s20, 768\ns_add_u32 s43, s43, s20')
    a('s_bitcmp1_b32 s30, 2\ns_cselect_b32 s32, s38, s36\ns_cselect_b32 s33, s39, s37')
    a(f's_and_b32 s20, s30, 3\ns_mul_i32 s31, s20, {4*40*6144}\ns_mul_i32 s19, s19, 6144\ns_add_u32 s31, s31, s19\ns_bfe_u32 s19, s30, 0x10002\ns_mul_i32 s19, s19, 3072\ns_add_u32 s31, s31, s19\ns_add_u32 s31, s31, {WS_WGU}')
    a('v_mul_u32_u24 v8, 3072, v14\nv_lshl_add_u32 v8, v15, 4, v8')
    a('v_lshlrev_b32 v14, 6, v14\nv_and_b32 v11, 3, v15\nv_lshl_add_u32 v14, v11, 4, v14\nv_lshrrev_b32 v11, 2, v15')
    a(f'v_mul_u32_u24 v15, {40*6144 - 2048}, v11\nv_add_u32 v15, v15, v14\nv_lshl_add_u32 v14, v11, 10, v14')
    a(f's_branch {Le}')
    a.label(Ld)
    a(f's_sub_u32 s30, s30, 320\ns_lshr_b32 s19, s30, 1\ns_mul_i32 s43, s19, 20480')
    a('s_mov_b32 s32, s40\ns_mov_b32 s33, s41')
    a(f's_lshr_b32 s31, s30, 2\ns_mul_i32 s31, s31, 5120\ns_add_u32 s31, s31, {WS_WD}\ns_and_b32 s30, s19, 1')
    a('v_mul_u32_u24 v8, 1280, v14\nv_lshl_add_u32 v8, v15, 4, v8')
    a.label(Le)
    a('s_mov_b32 s34, 1966080\ns_mov_b32 s35, 0x20000')

def bg_plan(w):
    gu = [(i, rh, m) for i in range(2) for m in range(6) for rh in range(2)]
    dn = [(i, rh, m) for i in range(2) for m in range(5) for rh in range(2)]
    g = gu[w-1::3]; d = dn[w-1::3]
    return [(g[k], d[k] if k < len(d) else None) for k in range(8)]

def bg_load(k, gu, dn):
    i, rh, m = gu
    return (f's_add_u32 s19, s43, {i*768 + rh*8*3072}\nbuffer_load_dwordx4 a[{4*k}:{4*k+3}], v8, s[32:35], s19 offen offset:{128*m}',
            (f's_add_u32 s19, s43, {dn[0]*640 + dn[1]*8*1280}\nbuffer_load_dwordx4 a[{4*k}:{4*k+3}], v8, s[32:35], s19 offen offset:{128*dn[2]}' if dn
             else f'buffer_load_dwordx4 a[{4*k}:{4*k+3}], v8, s[32:35], s43 offen'))

def bg_store(k, gu, dn):
    i, rh, m = gu
    b = 2*m
    off = i*4*40*6144 + (b//3)*40*6144 + (b % 3)*1024 + rh*512
    tg = f's_add_u32 s23, s31, {off}\nbuffer_store_dwordx4 a[{4*k}:{4*k+3}], v{15 if (b % 3) == 2 else 14}, s[8:11], s23 offen sc1'
    if dn is None: return tg, 's_nop 0'
    i, rh, m = dn
    t = f'v_add_u32 v11, {8*m}, v15\nv_mul_u32_u24 v12, 6554, v11\nv_lshrrev_b32 v12, 16, v12\nv_mul_u32_u24 v8, 10, v12\nv_sub_u32 v11, v11, v8'
    t += f'\nv_mul_u32_u24 v12, {48*5}, v12\nv_lshlrev_b32 v12, 10, v12'
    t += f'\ns_lshl_b32 s19, s30, 11\ns_add_u32 s19, s19, {rh*512}\ns_lshl_b32 s23, s30, 9\ns_add_u32 s23, s23, {4096 + rh*256}'
    t += '\nv_cmp_lt_u32 s[20:21], 7, v11\nv_and_b32 v8, 3, v11\nv_lshlrev_b32 v8, 4, v8\nv_lshrrev_b32 v11, 2, v11\nv_lshlrev_b32 v11, 10, v11'
    t += '\nv_lshl_add_u32 v11, v14, 6, v11\nv_add_u32 v11, s19, v11\nv_add_u32 v12, v12, v8\nv_lshlrev_b32 v8, 5, v14\nv_add_u32 v8, s23, v8\nv_cndmask_b32_e64 v11, v11, v8, s[20:21]\nv_add_u32 v12, v12, v11'
    t += f'\ns_add_u32 s23, s31, {i*4*48*5120}\nbuffer_store_dwordx4 a[{4*k}:{4*k+3}], v12, s[8:11], s23 offen sc1'
    return tg, t

LSYNC = LFAST + 16
def lds_arrive(a, off):
    a(f'v_mov_b32 v18, {LSYNC + off}\nv_mov_b32 v19, 1\ns_mov_b64 exec, 1\nds_add_u32 v18, v19\ns_mov_b64 exec, -1')
def lds_spin(a, off, n):
    L = a.newlabel('LSP'); Lo = a.newlabel('LSPX')
    a(f'v_mov_b32 v18, {LSYNC + off}\ns_mov_b32 s18, {SPIN}')
    a.label(L)
    a(f's_sub_u32 s18, s18, 1\ns_cmp_eq_u32 s18, 0\ns_cbranch_scc1 {Lo}')
    a(f'ds_read_b32 v19, v18\ns_waitcnt lgkmcnt(0)\nv_readfirstlane_b32 s19, v19\ns_cmp_lt_u32 s19, {n}\ns_cbranch_scc1 {L}')
    a.label(Lo)

def lds_spin_keep(a, off, n):
    L = a.newlabel('LSP'); Lo = a.newlabel('LSPX')
    a(f'v_mov_b32 v18, {LSYNC + off}\ns_mov_b32 s18, {SPIN}')
    a.label(L)
    a(f's_sub_u32 s18, s18, 1\ns_cmp_eq_u32 s18, 0\ns_cbranch_scc1 {Lo}')
    a(f'ds_read_b32 v19, v18\ns_waitcnt lgkmcnt(0)\nv_readfirstlane_b32 s24, v19\ns_cmp_lt_u32 s24, {n}\ns_cbranch_scc1 {L}')
    a.label(Lo)

def phase_h(a):
    a('s_barrier')
    Lw23 = a.newlabel('H_W23'); Lend = a.newlabel('H_END')
    a(f's_cmp_ge_u32 s3, 2\ns_cbranch_scc1 {Lw23}')
    a('s_setprio 3')
    a('s_getreg_b32 s15, hwreg(HW_REG_XCC_ID, 0, 4)\ns_add_u32 s15, s15, 1')
    a('v_lshrrev_b32 v5, 4, v2\nv_and_b32 v4, 15, v2')
    a('s_lshl_b32 s19, s12, 8\ns_lshl_b32 s20, s13, 3\ns_add_u32 s19, s19, s20\ns_lshl_b32 s20, s3, 2\ns_add_u32 s19, s19, s20')
    a('v_add_u32 v5, s19, v5')
    a('v_lshrrev_b32 v7, 1, v4\nv_and_b32 v8, 1, v4')
    a(f's_mul_i32 s21, s3, 2560\ns_add_u32 s21, s21, {WS_MODP}')
    for p in range(4):
        for r in range(3):
            a(f'buffer_load_dwordx4 v[{24+16*r+4*p}:{27+16*r+4*p}], v3, s[8:11], s21 offen offset:{r*1024}')
        if p < 3: a('s_add_u32 s21, s21, 15360')
    srd(a, 24, 16, 17, 0, ACT_BYTES)
    a('v_mul_u32_u24 v6, 1280, v5\nv_lshl_add_u32 v6, v7, 5, v6\nv_lshl_add_u32 v6, v8, 3, v6')
    for i in range(5):
        a(f'buffer_load_dwordx2 v[{192+4*i}:{193+4*i}], v6, s[24:27], 0 offen offset:{i*256}')
        a(f'buffer_load_dwordx2 v[{194+4*i}:{195+4*i}], v6, s[24:27], 0 offen offset:{i*256+16}')
    a('s_waitcnt vmcnt(10)')
    a.raw('    ; MARK 0')
    a('v_lshrrev_b32 v14, 2, v2\nv_lshlrev_b32 v14, 6, v14\nv_and_b32 v15, 1, v2\nv_lshl_add_u32 v14, v15, 5, v14\nv_bfe_u32 v15, v2, 1, 1\nv_lshl_add_u32 v14, v15, 4, v14')
    a(f's_mul_i32 s20, s3, 2560\ns_add_u32 s20, s20, {LHF}\nv_add_u32 v14, s20, v14')
    a('s_cmp_eq_u32 s3, 1\ns_cselect_b32 s20, 1.0, 0\nv_mov_b32 v12, s20')
    for r in range(3):
        b = 24 + 16*r
        fin_mod(a, b); round4(a, b, 12)
        if r == 2: a('s_mov_b32 exec_hi, 0')
        a(f'ds_write_b128 v14, v[{b}:{b+3}] offset:{r*1024}')
        if r == 2: a('s_mov_b64 exec, -1')
    a('s_waitcnt lgkmcnt(0)')
    lds_arrive(a, 0)
    X = 192; F = 124
    a('s_waitcnt vmcnt(0)')
    a(f's_lshl_b32 s19, s12, 7\ns_add_u32 s19, s19, {FL_XT}\nv_and_b32 v22, 31, v2\nv_lshlrev_b32 v22, 2, v22\nv_add_u32 v22, s19, v22')
    a('global_load_dword v20, v22, s[4:5] sc1')
    for i in range(20):
        a(f'v_lshlrev_b32 v{F+2*i}, 16, v{X+i}\nv_and_b32 v{F+1+2*i}, 0xffff0000, v{X+i}')
    a(f'v_pk_add_f32 v[12:13], v[{F}:{F+1}], v[{F+2}:{F+3}]\nv_pk_add_f32 v[14:15], v[{F+4}:{F+5}], v[{F+6}:{F+7}]')
    for i in range(4, 20, 2):
        a(f'v_pk_add_f32 v[12:13], v[12:13], v[{F+2*i}:{F+2*i+1}]\nv_pk_add_f32 v[14:15], v[14:15], v[{F+2*i+2}:{F+2*i+3}]')
    a('v_pk_add_f32 v[12:13], v[12:13], v[14:15]\nv_add_f32 v12, v12, v13')
    for rot in (8, 4, 2, 1):
        a(f'v_add_f32_dpp v12, v12, v12 row_ror:{rot} row_mask:0xf bank_mask:0xf')
    a(f'v_mul_f32 v12, {hex(f2u(-1.0/640))}, v12\nv_mov_b32 v13, v12')
    for i in range(20): a(f'v_pk_add_f32 v[{F+2*i}:{F+2*i+1}], v[{F+2*i}:{F+2*i+1}], v[12:13]')
    a(f'v_pk_mul_f32 v[14:15], v[{F}:{F+1}], v[{F}:{F+1}]\nv_pk_mul_f32 v[16:17], v[{F+2}:{F+3}], v[{F+2}:{F+3}]')
    for i in range(2, 20, 2):
        a(f'v_pk_fma_f32 v[14:15], v[{F+2*i}:{F+2*i+1}], v[{F+2*i}:{F+2*i+1}], v[14:15]\nv_pk_fma_f32 v[16:17], v[{F+2*i+2}:{F+2*i+3}], v[{F+2*i+2}:{F+2*i+3}], v[16:17]')
    a('v_pk_add_f32 v[14:15], v[14:15], v[16:17]\nv_add_f32 v14, v14, v15')
    for rot in (8, 4, 2, 1):
        a(f'v_add_f32_dpp v14, v14, v14 row_ror:{rot} row_mask:0xf bank_mask:0xf')
    a(f'v_mov_b32 v15, {hex(f2u(1e-5))}\nv_fmac_f32 v15, {hex(f2u(1.0/640))}, v14\nv_rsq_f32 v14, v15')
    a('v_mov_b32 v15, v14')
    lds_spin(a, 0, 2)
    a(f'v_lshlrev_b32 v9, 5, v4\nv_add_u32 v9, {LHF}, v9')
    A1 = 24; SA = 64
    for i in range(5):
        for hh in range(2):
            a(f'ds_read_b128 v[{A1+8*i+4*hh}:{A1+8*i+4*hh+3}], v9 offset:{2560 + i*512 + 16*hh}')
            a(f'ds_read_b128 v[{SA+8*i+4*hh}:{SA+8*i+4*hh+3}], v9 offset:{i*512 + 16*hh}')
    for i in range(20): a(f'v_pk_mul_f32 v[{F+2*i}:{F+2*i+1}], v[{F+2*i}:{F+2*i+1}], v[14:15]')
    for i in range(5):
        a(f's_waitcnt lgkmcnt({min(15, 16 - 4*i)})')
        for k in range(4*i, 4*i+4):
            a(f'v_pk_fma_f32 v[{F+2*k}:{F+2*k+1}], v[{F+2*k}:{F+2*k+1}], v[{A1+2*k}:{A1+2*k+1}], v[{SA+2*k}:{SA+2*k+1}]')
            a(f'v_cvt_pk_bf16_f32 v{164+k}, v{F+2*k}, v{F+2*k+1}')
    a('v_and_b32 v10, 31, v5\nv_lshlrev_b32 v10, 4, v10\nv_lshl_add_u32 v10, v7, 10, v10\nv_lshl_add_u32 v10, v8, 9, v10')
    a('s_lshl_b32 s19, s12, 3\ns_lshr_b32 s20, s13, 2\ns_add_u32 s21, s19, s20\ns_mul_i32 s21, s21, 40960')
    Lp = a.newlabel('H_XP'); Lpo = a.newlabel('H_XPO')
    a(f's_waitcnt vmcnt(0)\nv_cmp_eq_u32 vcc, 0, v20\ns_cbranch_vccz {Lpo}')
    poll(a, 'v22')
    a.label(Lpo)
    a('v_cmp_ne_u32 vcc, s15, v20\ns_cmp_eq_u64 vcc, 0\ns_cselect_b32 s14, 1, 0')
    a(f'v_mov_b32 v18, {LFAST}\nv_mov_b32 v19, s14\nds_write_b32 v18, v19\ns_waitcnt lgkmcnt(0)')
    lds_arrive(a, 8)
    def st(f):
        for i in range(5):
            a(f's_add_u32 s20, s21, {WS_H1F + i*8192}')
            a(f'buffer_store_dwordx4 v[{164+4*i}:{167+4*i}], v10, s[8:11], s20 offen{f}')
    store2(a, st)
    a(f's_lshl_b32 s22, s12, 7\ns_add_u32 s22, s22, {FL_H}\ns_lshl_b32 s20, s13, 2\ns_add_u32 s20, s20, s22\nv_mov_b32 v250, s20\nv_mov_b32 v249, 1')
    a('v_and_b32 v251, 31, v2\nv_lshlrev_b32 v251, 2, v251\nv_add_u32 v251, s22, v251')
    if OPT.get('noxf'): a_setup(a)
    a('s_waitcnt vmcnt(0)')
    a.raw('    ; MARK 1')
    Lw1 = a.newlabel('H_W1'); Lst = a.newlabel('H_ST')
    a(f's_cmp_eq_u32 s3, 1\ns_cbranch_scc1 {Lw1}')
    lds_spin_keep(a, 4, 1)
    a('s_mov_b64 exec, 1')
    store2(a, lambda f: a(f'global_store_dword v250, v249, s[4:5]{f}'))
    a('s_mov_b64 exec, -1')
    poll(a, 'v251', pipe=True)
    a(f's_branch {Lst}')
    a.label(Lw1)
    lds_arrive(a, 4)
    a.label(Lst)
    def st2(f):
        for i in range(5):
            a(f's_add_u32 s20, s21, {WS_XF + i*8192}')
            a(f'buffer_store_dwordx4 v[{X+4*i}:{X+3+4*i}], v10, s[8:11], s20 offen{f}')
    if not OPT.get('noxf'): store2(a, st2)
    a(f's_branch {Lend}')
    a.label(Lw23)
    Lx = a.newlabel('H_XT')
    a('s_getreg_b32 s15, hwreg(HW_REG_XCC_ID, 0, 4)\ns_add_u32 s15, s15, 1')
    a(f's_cmp_lg_u32 s3, 2\ns_cbranch_scc1 {Lx}')
    a(f's_lshl_b32 s19, s12, 7\ns_lshl_b32 s20, s13, 2\ns_add_u32 s19, s19, s20\ns_add_u32 s19, s19, {FL_XT}')
    a('v_mov_b32 v18, s19\nv_mov_b32 v19, s15\ns_mov_b64 exec, 1')
    a('global_store_dword v18, v19, s[4:5] sc1')
    a('s_mov_b64 exec, -1')
    a.label(Lx)
    if OPT.get('tlbwarm'):
        a('v_lshlrev_b32 v9, 21, v2\ns_mov_b64 exec, 0x3ffffff')
        a('buffer_load_dword v255, v9, s[8:11], 0 offen')
        a('s_mov_b64 exec, 3')
        a('global_load_dword v255, v9, s[6:7]')
        a('s_mov_b64 exec, 1')
        for r in (36, 38, 40): a(f'global_load_dword v255, v9, s[{r}:{r+1}]')
        a('s_mov_b64 exec, -1')
    if OPT.get('h_touch', 1):
        a(f's_mul_i32 s20, s12, 327680\ns_mul_i32 s21, s13, 10240\ns_add_u32 s20, s20, s21\ns_sub_u32 s21, s3, 2\ns_mul_i32 s21, s21, 5120\ns_add_u32 s20, s20, s21\ns_add_u32 s20, s20, {WS_H1F}')
        touch(a, 8, 9, 255, 20, 40)
    if OPT.get('kv_touch'):
        a(f's_mul_i32 s20, s12, {KVH_STRIDE}\ns_mul_i32 s21, s13, 20480\ns_add_u32 s20, s20, s21\ns_sub_u32 s21, s3, 2\ns_mul_i32 s21, s21, 10240\ns_add_u32 s20, s20, s21\ns_add_u32 s20, s20, {WS_KVH}')
        touch(a, 8, 9, 255, 20, 80)
    a(f's_mul_i32 s20, s13, 81920\ns_sub_u32 s21, s3, 2\ns_lshl_b32 s21, s21, 12\ns_add_u32 s20, s20, s21\ns_add_u32 s20, s20, {WS_WQKV}')
    PB = OPT.get('a_preB', 10)
    for i in range(PB):
        a(f's_add_u32 m0, s21, {i*8192}')
        for q in range(4): a(f'buffer_load_dwordx4 v3, s[8:11], s20 offen offset:{q*1024} lds')
        if i < PB-1: a('s_add_u32 s20, s20, 8192')
    L3 = a.newlabel('H_T3')
    a(f's_cmp_eq_u32 s3, 3\ns_cbranch_scc0 {L3}')
    a('s_mul_i32 s20, s13, 20\ns_add_u32 s20, s20, 320\nv_add_u32 v10, s20, v2\nv_lshlrev_b32 v11, 4, v10')
    for p in range(4):
        a(f's_mov_b32 s20, {WS_MODP + p*15360}')
        a(f'buffer_load_dwordx4 v[{44+4*p}:{47+4*p}], v11, s[8:11], s20 offen')
    a.label(L3)
    a('s_waitcnt vmcnt(0)')
    L4 = a.newlabel('H_T4')
    a(f's_cmp_eq_u32 s3, 3\ns_cbranch_scc0 {L4}')
    fin_mod(a, 44)
    a('v_mul_u32_u24 v12, 410, v10\nv_lshrrev_b32 v12, 16, v12')
    a('v_mul_u32_u24 v13, 160, v12\nv_sub_u32 v13, v10, v13')
    cperm_pos_bytes(a, 13, 14, 15)
    a('v_mul_u32_u24 v15, 1280, v12\nv_add_u32 v14, v14, v15')
    a('v_cmp_eq_u32 vcc, 4, v12\nv_cndmask_b32_e64 v12, 0, 1.0, vcc')
    round_pack(a, 44, 12, 48)
    a(f's_lshl_b32 s20, s12, 13\ns_add_u32 s20, s20, {WS_MODF}')
    a('s_mov_b32 exec_lo, 0xfffff\ns_mov_b32 exec_hi, 0')
    a('buffer_store_dwordx2 v[48:49], v14, s[8:11], s20 offen sc1')
    a('s_mov_b64 exec, -1')
    a.label(L4)
    lds_spin_keep(a, 8, 1)
    a(f'v_mov_b32 v18, {LFAST}\nds_read_b32 v19, v18\ns_waitcnt lgkmcnt(0)\nv_readfirstlane_b32 s14, v19')
    a_setup(a)
    a.label(Lend)
    a.raw('    ; MARK 19')
    a('s_setprio 0')
    a('s_waitcnt lgkmcnt(0)\ns_barrier')
    a.raw('    ; MARK 2')


def phase_start(a):
    Lx = a.newlabel('S_XT')
    a('s_getreg_b32 s15, hwreg(HW_REG_XCC_ID, 0, 4)\ns_add_u32 s15, s15, 1')
    a(f's_cmp_lg_u32 s3, 1\ns_cbranch_scc1 {Lx}')
    a(f's_lshl_b32 s19, s12, 7\ns_lshl_b32 s20, s13, 2\ns_add_u32 s19, s19, s20\ns_add_u32 s19, s19, {FL_XT}')
    a('v_mov_b32 v18, s19\nv_mov_b32 v19, s15\ns_mov_b64 exec, 1')
    a('global_store_dword v18, v19, s[4:5] sc1')
    a('s_mov_b64 exec, -1')
    a.label(Lx)
    a('s_mul_i32 s20, s13, 20\ns_mul_i32 s21, s3, 5\ns_add_u32 s20, s20, s21\ns_add_u32 s20, s20, 320\nv_add_u32 v140, s20, v2\nv_lshlrev_b32 v141, 4, v140')
    for p in range(4):
        a(f's_mov_b32 s20, {WS_MODP + p*15360}')
        a(f'buffer_load_dwordx4 v[{144+4*p}:{147+4*p}], v141, s[8:11], s20 offen')
    a.raw('    ; MARK 2')


def a_side():
    b = Asm(); items = []
    def item():
        items.append('\n'.join(l.strip() for l in b.lines)); b.lines = []
    b('v_and_b32 v6, 31, v2\nv_lshrrev_b32 v7, 5, v2'); item()
    b(f'v_lshlrev_b32 v8, 4, v0\nv_add_u32 v8, {LK + 5*4096}, v8'); item()
    b('v_mov_b32 v12, 0\nv_mov_b32 v13, 0'); item()
    b('v_mov_b32 v14, 0\nv_mov_b32 v15, 0'); item()
    Lb = b.newlabel('A_NB')
    nb = f2u(NEG) >> 16
    b(f's_cmp_lg_u32 s12, 0\ns_cbranch_scc1 {Lb}\nv_mov_b32 v9, {nb}\nv_cmp_gt_u32 vcc, 128, v0\ns_nop 1\nv_cndmask_b32 v12, 0, v9, vcc\nv_mov_b32 v14, v12')
    b.label(Lb); b('ds_write_b128 v8, v[12:15]'); item()
    b('v_mov_b32 v12, 0x3f803f80\nv_mov_b32 v13, 0x3f803f80'); item()
    b('v_mov_b32 v14, 0x3f803f80\nv_mov_b32 v15, 0x3f803f80'); item()
    b(f'v_lshlrev_b32 v8, 4, v0\nv_add_u32 v8, {LONES}, v8'); item()
    b('ds_write_b128 v8, v[12:15]\ns_mov_b64 exec, 0xffff\ns_cmp_eq_u32 s3, 0\ns_cselect_b64 exec, exec, 0') if False else None
    b('ds_write_b128 v8, v[12:15]'); item()
    Lo = b.newlabel('A_NO')
    b(f's_cmp_lg_u32 s3, 0\ns_cbranch_scc1 {Lo}\ns_mov_b64 exec, 0xffff\nds_write_b128 v8, v[12:15] offset:4096\ns_mov_b64 exec, -1'); b.label(Lo); item()
    Lz = b.newlabel('A_NZ')
    b(f's_cmp_lg_u32 s12, 0\ns_cbranch_scc1 {Lz}')
    b('v_mov_b32 v12, 0\nv_mov_b32 v13, 0\nv_mov_b32 v14, 0\nv_mov_b32 v15, 0')
    b('v_and_b32 v8, 127, v0\nv_lshlrev_b32 v8, 4, v8\nv_lshrrev_b32 v9, 7, v0')
    b(f'v_mul_u32_u24 v10, 4096, v9\nv_add_u32 v10, v10, v8\nv_add_u32 v10, {LK}, v10')
    for gg in (0, 2): b(f'ds_write_b128 v10, v[12:15] offset:{gg*4096}')
    b(f'v_mul_u32_u24 v11, 4128, v9\nv_add_u32 v11, v11, v8\nv_add_u32 v11, {LV}, v11')
    for gg in (0, 2): b(f'ds_write_b128 v11, v[12:15] offset:{gg*4128}')
    Lz2 = b.newlabel('A_NZ2')
    b(f's_cmp_ge_u32 s3, 2\ns_cbranch_scc1 {Lz2}\nds_write_b128 v10, v[12:15] offset:{4*4096}\nds_write_b128 v11, v[12:15] offset:{4*4128}')
    b.label(Lz2); b.label(Lz); item()
    b(f'v_mul_u32_u24 v8, 4096, v7\nv_add_u32 v8, {LK}, v8'); item()
    b(f'v_mul_u32_u24 v9, 4128, v7\nv_add_u32 v9, {LV}, v9'); item()
    b(f'v_mov_b32 v10, {LK + 4*4096}\nv_mov_b32 v11, {LV + 4*4128}'); item()
    b('v_cmp_eq_u32 vcc, 1, v7'); item()
    b('v_cndmask_b32 v10, v10, v11, vcc'); item()
    b(f's_mul_i32 s31, s12, {KVH_STRIDE}\ns_mul_i32 s29, s13, 20480\ns_add_u32 s31, s31, s29\ns_add_u32 s31, s31, {WS_KVH}'); item()
    b(f'v_lshlrev_b32 v11, 11, v7\nv_mov_b32 v12, {4*2048}'); item()
    b(f'v_mov_b32 v13, {9*2048}'); item()
    b('v_cndmask_b32 v12, v12, v13, vcc'); item()
    for tb in range(2):
        b(f's_sub_u32 s29, s{20+tb}, s19\ns_lshl_b32 s29, s29, 5\nv_add_u32 v{14+tb}, s29, v6'); item()
        b(f'v_lshlrev_b32 v{14+tb}, 3, v{14+tb}'); item()
    return items

def modf_side():
    b = Asm()
    fin_mod(b, 144)
    b('v_mul_u32_u24 v142, 410, v140\nv_lshrrev_b32 v142, 16, v142')
    b('v_mul_u32_u24 v143, 160, v142\nv_sub_u32 v143, v140, v143')
    cperm_pos_bytes(b, 143, 160, 161)
    b('v_mul_u32_u24 v161, 1280, v142\nv_add_u32 v160, v160, v161')
    b('v_cmp_eq_u32 vcc, 4, v142\ns_nop 1\nv_cndmask_b32_e64 v142, 0, 1.0, vcc')
    round_pack(b, 144, 142, 148)
    b(f's_lshl_b32 s29, s12, 13\ns_add_u32 s29, s29, {WS_MODF}')
    out = [l.strip() for l in b.lines]
    out.append('s_mov_b64 exec, 31\nbuffer_store_dwordx2 v[148:149], v160, s[8:11], s29 offen sc1\ns_mov_b64 exec, -1')
    return out

ACC_A = 40
QF = 224
OPT = dict(a_pre=3, a_pace=2, a_ahead=5, a_sc=' sc1', a_preB=5, bg=0, lnk0=0, noxf=1, at_probe=5, at_fetch=6, k0st=' sc1')
def a_setup(a):
    a('s_lshl_b32 s19, s12, 3\ns_add_u32 s20, s19, s3\ns_sub_u32 s21, 7, s3\ns_add_u32 s21, s19, s21')
    a(f's_mul_i32 s22, s20, 40960\ns_add_u32 s22, s22, {WS_H1F}\ns_mul_i32 s23, s21, 40960\ns_add_u32 s23, s23, {WS_H1F}')
    a(f's_mul_i32 s26, s13, 81920\ns_lshl_b32 s27, s3, 11\ns_add_u32 s26, s26, s27\ns_add_u32 s26, s26, {WS_WQKV}')
    a('v_add_u32 v5, 0x10000, v3')

def phase_a(a):
    vm = Vm(a)
    if OPT.get('lnk0'): a_setup(a)
    def opsA(c):
        ops = []
        for tb in range(2):
            ops.append((f's_add_u32 s{24+tb}, s{22+tb}, {c*4096}', False))
            for q in range(4):
                f = (2*(4*c + q) + tb) % 64
                ops.append((f'buffer_load_dwordx4 a[{4*f}:{4*f+3}], v3, s[8:11], s{24+tb} offen offset:{q*1024}{OPT["a_sc"]}', True))
        return ops
    def read_frag(ks, ct, r):
        off = (ks*2 + ct)*1024
        return f'ds_read_b128 v[{r}:{r+3}], v{3 if off < 65536 else 5} offset:{off % 65536}'
    def mfmas(ks, ct, r, first):
        out = []
        for tb in range(2):
            d = ACC_A + (tb*2 + ct)*16; f = (2*ks + tb) % 64
            out.append(f'v_mfma_f32_32x32x16_bf16 v[{d}:{d+15}], v[{r}:{r+3}], a[{4*f}:{4*f+3}], ' + ('0' if first else f'v[{d}:{d+15}]'))
        return out
    PB = OPT.get('a_preB', 10)
    def opsB(c):
        return [(f's_add_u32 m0, s27, {c*8192}', False), (f's_add_u32 s28, s26, {c*8192}', False),
                ('buffer_load_dwordx4 v3, s[8:11], s28 offen lds', True), ('buffer_load_dwordx4 v3, s[8:11], s28 offen offset:1024 lds', True)]
    side = ['s_nop 0']*8 + a_side()
    if OPT.get('lnk0', 1):
        side = side + modf_side()
    gemm2(a, vm, 40, 4, 2, opsA, opsB, PB, read_frag, mfmas, 16, pd=2, pre=OPT['a_pre'], pace=OPT['a_pace'], ahead=OPT['a_ahead'], barriers=(PB < 10), side=side, lead=OPT.get('a_lead', 0))
    a.raw('    ; MARK 3')
    for tb in range(2):
        P = 120 + 10*tb
        quads = [(0, 0), (0, 1), (0, 2), (0, 3), (1, 0)]
        for i, (ct, q) in enumerate(quads):
            d = ACC_A + (tb*2 + ct)*16 + 4*q
            a(f'v_cvt_pk_bf16_f32 v{P+2*i}, v{d}, v{d+1}\nv_cvt_pk_bf16_f32 v{P+2*i+1}, v{d+2}, v{d+3}')
        Ls = a.newlabel('A_NS')
        tk = 14 + tb
        a(f's_cmp_eq_u32 s12, 7\ns_cbranch_scc1 {Ls}')
        a(f'v_add_u32 v21, v11, v{tk}\nv_add_u32 v22, v12, v{tk}')
        a(f'buffer_store_dwordx2 v[{P}:{P+1}], v21, s[8:11], s31 offen sc1')
        a(f's_add_u32 s25, s31, {2*2048}\nbuffer_store_dwordx2 v[{P+2}:{P+3}], v21, s[8:11], s25 offen sc1')
        a(f'buffer_store_dwordx2 v[{P+4}:{P+5}], v22, s[8:11], s31 offen sc1')
        a(f's_add_u32 s25, s31, {5*2048}\nbuffer_store_dwordx2 v[{P+6}:{P+7}], v21, s[8:11], s25 offen sc1')
        a(f's_add_u32 s25, s31, {7*2048}\nbuffer_store_dwordx2 v[{P+8}:{P+9}], v21, s[8:11], s25 offen sc1')
        a.label(Ls)
    a('s_mov_b32 s24, s31\nv_cmp_eq_u32 vcc, 1, v7')
    for tb in range(2):
        P = 120 + 10*tb; tk = 14 + tb
        a(f'v_add_u32 v20, 2048, v{tk}')
        a(f'v_add_u32 v21, v8, v20\nds_write_b64 v21, v[{P}:{P+1}]\nds_write_b64 v21, v[{P+2}:{P+3}] offset:8192')
        a(f'v_add_u32 v22, v10, v20\nds_write_b64 v22, v[{P+4}:{P+5}]')
        a(f'v_add_u32 v23, v9, v20\nds_write_b64 v23, v[{P+6}:{P+7}]\nds_write_b64 v23, v[{P+8}:{P+9}] offset:{2*4128}')
        Q = QF + 8*tb
        for i, q in enumerate((1, 2, 3)):
            d = ACC_A + (tb*2 + 1)*16 + 4*q
            a(f'v_cvt_pk_bf16_f32 v{Q+2*i}, v{d}, v{d+1}\nv_cvt_pk_bf16_f32 v{Q+2*i+1}, v{d+2}, v{d+3}')
        a(f'v_mov_b32 v21, 0x3f80\nv_cndmask_b32 v{Q+4}, v{Q+4}, v21, vcc\nv_cndmask_b32_e64 v{Q+5}, v{Q+5}, 0, vcc\nv_mov_b32 v{Q+6}, 0\nv_mov_b32 v{Q+7}, 0')
    a('s_waitcnt lgkmcnt(0)\ns_barrier')
    a.raw('    ; MARK 4')

def o_offsets(a):
    a(f's_lshl_b32 s19, s12, 3\ns_add_u32 s20, s19, s3\ns_sub_u32 s21, 7, s3\ns_add_u32 s21, s21, s19\ns_mul_i32 s20, s20, 40960\ns_mul_i32 s21, s21, 40960')
    a(f's_lshl_b32 s22, s13, 10\ns_add_u32 s22, s22, {KP_O}\ns_add_u32 s36, s20, s22\ns_add_u32 s37, s21, s22')
    a(f's_lshr_b32 s23, s13, 2\ns_add_u32 s23, s23, 32\ns_lshl_b32 s23, s23, 10\ns_bfe_u32 s22, s13, 0x10001\ns_lshl_b32 s22, s22, 9\ns_add_u32 s23, s23, s22\ns_and_b32 s22, s13, 1\ns_lshl_b32 s22, s22, 3\ns_add_u32 s23, s23, s22\ns_add_u32 s23, s23, {KP_O}')
    a('s_add_u32 s38, s20, s23\ns_add_u32 s39, s21, s23')

def phase_b(a):
    assert not OPT.get('bg')
    o_offsets(a)
    import sys as _sys
    from kp_attn import attention
    attention(a, _sys.modules[__name__])
    a.raw('    ; MARK 6')
    def st(f):
        for tb in range(2):
            R = 240 + 6*tb
            a(f'buffer_store_dwordx4 v[{R}:{R+3}], v3, s[8:11], s{36+tb} offen{f}')
        a('s_mov_b32 exec_hi, 0')
        for tb in range(2):
            R = 240 + 6*tb
            a(f'buffer_store_dwordx2 v[{R+4}:{R+5}], v3, s[8:11], s{38+tb} offen{f}')
        a('s_mov_b64 exec, -1')
    store2(a, st)
    gbar_pre(a, FL_O)
    a('s_waitcnt vmcnt(0)')
    gbar(a, FL_O, also_set=FL_BG)
    a.raw('    ; MARK 7')

def kp_kernel(upto='E'):
    a = Asm()
    a('s_cmp_ge_u32 s2, 256\ns_cbranch_scc1 KP_END')
    a(f's_load_dwordx2 s[4:5], s[0:1], {KA_WS}')
    a(f's_load_dwordx2 s[6:7], s[0:1], {KA_OUT}')
    a(f's_load_dwordx2 s[16:17], s[0:1], {KA_X}')
    if OPT.get('bg'): a(f's_load_dwordx4 s[36:39], s[0:1], {KA_WG}')
    ka40 = KA_X if OPT.get('noxf') else KA_WD
    a(f's_load_dwordx2 s[40:41], s[0:1], {ka40}')
    wave_id(a, 3, 1)
    a('v_and_b32 v2, 63, v0\nv_lshlrev_b32 v3, 4, v2')
    if not OPT.get('lnk0'): a(f'v_mov_b32 v18, {LSYNC}\nv_mov_b32 v20, 0\nv_mov_b32 v21, 0\nv_mov_b32 v22, 0\nv_mov_b32 v23, 0\nds_write_b128 v18, v[20:23]')
    if OPT.get('perm_roles'): a('s_lshr_b32 s12, s2, 5\ns_and_b32 s13, s2, 31\ns_mov_b32 s14, 0')
    else: a('s_and_b32 s12, s2, 7\ns_lshr_b32 s13, s2, 3\ns_mov_b32 s14, 0')
    a('s_waitcnt lgkmcnt(0)')
    ws_rebase(a, 4)
    srd(a, 8, 4, 5, 0, WS_END)
    if OPT.get('lnk0', 1):
        OPT['a_preB'] = OPT.get('a_preB0', 0)
        phase_start(a)
    else: phase_h(a)
    def hoist(nxt):
        b = Asm(); nxt(b)
        k = 0
        if OPT.get('hoist', 1):
            while True:
                t = b.lines[k].strip()
                if t.startswith(('buffer_', 'global_', 'ds_', 's_waitcnt', 's_barrier', 's_cbranch', 's_branch', ';')) or t.endswith(':') or 'exec' in t or t.startswith('v_accvgpr'): break
                k += 1
            last_bar = max(i for i, l in enumerate(a.lines) if l.strip() == 's_barrier')
            first_bar = max(i for i, l in enumerate(a.lines[:last_bar]) if l.strip() == 's_barrier')
            w = max(i for i, l in enumerate(a.lines[:first_bar]) if l.strip() == 's_waitcnt vmcnt(0)')
            a.lines[w:w] = b.lines[:k]
        a.lines += b.lines[k:]
    if upto != 'H':
        phase_a(a)
        phase_b(a)
    if upto not in ('H', 'B'):
        from kp2 import phase_c, phase_d, phase_e
        hoist(phase_c)
        if upto != 'C':
            hoist(phase_d)
            if upto != 'D': hoist(phase_e)
    a.label('KP_END')
    a('s_endpgm')
    a.label('KP_CODE_END')
    return dict(name='kp_kernel', body=a.text(), grid=256, block=256, lds=163840, vgpr=256, agpr=256, sgpr=44, sgpr_real=96)
```

```python
from common import *
import math

SPIN = 2000000
LH = 81920
LFAST = LH + 2560
LK = 114176
LV = LK + 24576
LONES = 159488
LFAST2 = 110592
NEG = -30000.0
KP_O = WS_H1F
WS_H2F = WS_H1F
KP_X1 = WS_XF

def store2(a, text_fn):
    L1 = a.newlabel('ST_S'); L2 = a.newlabel('ST_E')
    a(f's_cmp_eq_u32 s14, 0\ns_cbranch_scc1 {L1}')
    text_fn('')
    a(f's_branch {L2}')
    a.label(L1)
    text_fn(' sc1')
    a.label(L2)

def poll(a, vaddr, cond_reg='v20', sbase='s[4:5]', n=1, spin=None, pipe=False):
    L = a.newlabel('POLL'); Lo = a.newlabel('POLLX')
    a(f's_mov_b32 s18, {spin or SPIN}')
    if pipe:
        a(f'global_load_dword v252, {vaddr}, {sbase} sc1\ns_nop 7\nglobal_load_dword v253, {vaddr}, {sbase} sc1\ns_nop 7')
        a.label(L)
        for x, y in ((254, 252), (252, 253), (253, 254)):
            a(f'global_load_dword v{x}, {vaddr}, {sbase} sc1\ns_waitcnt vmcnt(2)\nv_cmp_eq_u32 vcc, 0, v{y}\ns_cbranch_vccz {Lo}')
        a(f's_sub_u32 s18, s18, 1\ns_cmp_lg_u32 s18, 0\ns_cbranch_scc1 {L}')
        a.label(Lo)
        return
    a.label(L)
    a(f's_sub_u32 s18, s18, 1\ns_cmp_eq_u32 s18, 0\ns_cbranch_scc1 {Lo}')
    a(f'global_load_dword {cond_reg}, {vaddr}, {sbase} sc1')
    a('s_waitcnt vmcnt(0)')
    a(f'v_cmp_eq_u32 vcc, 0, {cond_reg}')
    a(f's_cbranch_vccnz {L}')
    a.label(Lo)

def poll_bg(a):
    L = a.newlabel('PBG'); Lo = a.newlabel('PBGX'); Ls = a.newlabel('PBGS')
    a(f's_cmp_lg_u32 s3, 1\ns_cbranch_scc1 {Ls}')
    a(f'v_add_u32 v18, {FL_BG}, v3\ns_mov_b32 s18, {SPIN}')
    a.label(L)
    a(f's_sub_u32 s18, s18, 1\ns_cmp_eq_u32 s18, 0\ns_cbranch_scc1 {Lo}')
    a('global_load_dwordx4 v[20:23], v18, s[4:5] sc1\ns_waitcnt vmcnt(0)')
    a('v_min_u32 v20, v20, v21\nv_min_u32 v22, v22, v23\nv_min_u32 v20, v20, v22\nv_cmp_eq_u32 vcc, 0, v20')
    a(f's_cbranch_vccnz {L}')
    a.label(Lo)
    a.label(Ls)

def gbar_pre(a, flag):
    a(f's_lshl_b32 s19, s12, 7\ns_add_u32 s19, s19, {flag}\ns_lshl_b32 s20, s13, 2\ns_add_u32 s20, s20, s19')
    a('v_mov_b32 v250, s20\nv_and_b32 v251, 31, v2\nv_lshlrev_b32 v251, 2, v251\nv_add_u32 v251, s19, v251\nv_mov_b32 v249, 1')

def gbar(a, flag, local=True, during=None, also_set=None):
    L = a.newlabel('GB'); Ld = a.newlabel('GBD')
    a('s_barrier')
    a(f's_cmp_lg_u32 s3, 0\ns_cbranch_scc1 {Ld if during else L}')
    a('s_mov_b64 exec, 1')
    store2(a, lambda f: a(f'global_store_dword v250, v249, s[4:5]{f}'))
    if also_set is not None and OPT.get('bg'):
        a(f's_lshl_b32 s20, s2, 2\ns_add_u32 s20, s20, {also_set}\nv_mov_b32 v250, s20\nglobal_store_dword v250, v249, s[4:5] sc1')
    a('s_mov_b64 exec, -1')
    poll(a, 'v251', pipe=True)
    if during:
        a(f's_branch {L}')
        a.label(Ld)
        during()
    a.label(L)
    a('s_barrier')

def fin_mod(a, base, nq_valid_exec=None):
    for e in (0, 2):
        a(f'v_pk_add_f32 v[{base+e}:{base+e+1}], v[{base+e}:{base+e+1}], v[{base+4+e}:{base+5+e}]\nv_pk_add_f32 v[{base+8+e}:{base+9+e}], v[{base+8+e}:{base+9+e}], v[{base+12+e}:{base+13+e}]')
    for e in (0, 2):
        a(f'v_pk_add_f32 v[{base+e}:{base+e+1}], v[{base+e}:{base+e+1}], v[{base+8+e}:{base+9+e}]')

def round_pack(a, base, vone, out):
    a(f'v_cvt_pk_bf16_f32 v{out}, v{base}, v{base+1}\nv_cvt_pk_bf16_f32 v{out+1}, v{base+2}, v{base+3}')
    a(f'v_lshlrev_b32 v{base}, 16, v{out}\nv_and_b32 v{base+1}, 0xffff0000, v{out}\nv_lshlrev_b32 v{base+2}, 16, v{out+1}\nv_and_b32 v{base+3}, 0xffff0000, v{out+1}')
    for e in range(4): a(f'v_add_f32 v{base+e}, v{base+e}, v{vone}')
    a(f'v_cvt_pk_bf16_f32 v{out}, v{base}, v{base+1}\nv_cvt_pk_bf16_f32 v{out+1}, v{base+2}, v{base+3}')

def cperm_pos_bytes(a, vcol4, out, tmp):
    a(f'v_lshrrev_b32 v{out}, 2, v{vcol4}\nv_lshlrev_b32 v{out}, 5, v{out}')
    a(f'v_and_b32 v{tmp}, 1, v{vcol4}\nv_lshl_add_u32 v{out}, v{tmp}, 4, v{out}')
    a(f'v_bfe_u32 v{tmp}, v{vcol4}, 1, 1\nv_lshl_add_u32 v{out}, v{tmp}, 3, v{out}')

LHF = 81920
LFAST = LHF + 5120


def round4(a, base, vone):
    t = base + 4
    for rep in range(2):
        a(f'v_cvt_pk_bf16_f32 v{t}, v{base}, v{base+1}\nv_cvt_pk_bf16_f32 v{t+1}, v{base+2}, v{base+3}')
        a(f'v_lshlrev_b32 v{base}, 16, v{t}\nv_and_b32 v{base+1}, 0xffff0000, v{t}\nv_lshlrev_b32 v{base+2}, 16, v{t+1}\nv_and_b32 v{base+3}, 0xffff0000, v{t+1}')
        if rep == 0:
            for e in range(4): a(f'v_add_f32 v{base+e}, v{base+e}, v{vone}')

def bg_setup(a):
    a('s_lshl_b32 s30, s2, 1')
    a('v_lshrrev_b32 v14, 3, v2\nv_and_b32 v15, 7, v2')
    Ld = a.newlabel('BG_D'); Le = a.newlabel('BG_E')
    a(f's_cmp_ge_u32 s2, 160\ns_cbranch_scc1 {Ld}')
    a(f's_lshr_b32 s19, s30, 3\ns_mul_i32 s43, s19, 49152\ns_and_b32 s20, s30, 3\ns_mul_i32 s20, s20, 768\ns_add_u32 s43, s43, s20')
    a('s_bitcmp1_b32 s30, 2\ns_cselect_b32 s32, s38, s36\ns_cselect_b32 s33, s39, s37')
    a(f's_and_b32 s20, s30, 3\ns_mul_i32 s31, s20, {4*40*6144}\ns_mul_i32 s19, s19, 6144\ns_add_u32 s31, s31, s19\ns_bfe_u32 s19, s30, 0x10002\ns_mul_i32 s19, s19, 3072\ns_add_u32 s31, s31, s19\ns_add_u32 s31, s31, {WS_WGU}')
    a('v_mul_u32_u24 v8, 3072, v14\nv_lshl_add_u32 v8, v15, 4, v8')
    a('v_lshlrev_b32 v14, 6, v14\nv_and_b32 v11, 3, v15\nv_lshl_add_u32 v14, v11, 4, v14\nv_lshrrev_b32 v11, 2, v15')
    a(f'v_mul_u32_u24 v15, {40*6144 - 2048}, v11\nv_add_u32 v15, v15, v14\nv_lshl_add_u32 v14, v11, 10, v14')
    a(f's_branch {Le}')
    a.label(Ld)
    a(f's_sub_u32 s30, s30, 320\ns_lshr_b32 s19, s30, 1\ns_mul_i32 s43, s19, 20480')
    a('s_mov_b32 s32, s40\ns_mov_b32 s33, s41')
    a(f's_lshr_b32 s31, s30, 2\ns_mul_i32 s31, s31, 5120\ns_add_u32 s31, s31, {WS_WD}\ns_and_b32 s30, s19, 1')
    a('v_mul_u32_u24 v8, 1280, v14\nv_lshl_add_u32 v8, v15, 4, v8')
    a.label(Le)
    a('s_mov_b32 s34, 1966080\ns_mov_b32 s35, 0x20000')

def bg_plan(w):
    gu = [(i, rh, m) for i in range(2) for m in range(6) for rh in range(2)]
    dn = [(i, rh, m) for i in range(2) for m in range(5) for rh in range(2)]
    g = gu[w-1::3]; d = dn[w-1::3]
    return [(g[k], d[k] if k < len(d) else None) for k in range(8)]

def bg_load(k, gu, dn):
    i, rh, m = gu
    return (f's_add_u32 s19, s43, {i*768 + rh*8*3072}\nbuffer_load_dwordx4 a[{4*k}:{4*k+3}], v8, s[32:35], s19 offen offset:{128*m}',
            (f's_add_u32 s19, s43, {dn[0]*640 + dn[1]*8*1280}\nbuffer_load_dwordx4 a[{4*k}:{4*k+3}], v8, s[32:35], s19 offen offset:{128*dn[2]}' if dn
             else f'buffer_load_dwordx4 a[{4*k}:{4*k+3}], v8, s[32:35], s43 offen'))

def bg_store(k, gu, dn):
    i, rh, m = gu
    b = 2*m
    off = i*4*40*6144 + (b//3)*40*6144 + (b % 3)*1024 + rh*512
    tg = f's_add_u32 s23, s31, {off}\nbuffer_store_dwordx4 a[{4*k}:{4*k+3}], v{15 if (b % 3) == 2 else 14}, s[8:11], s23 offen sc1'
    if dn is None: return tg, 's_nop 0'
    i, rh, m = dn
    t = f'v_add_u32 v11, {8*m}, v15\nv_mul_u32_u24 v12, 6554, v11\nv_lshrrev_b32 v12, 16, v12\nv_mul_u32_u24 v8, 10, v12\nv_sub_u32 v11, v11, v8'
    t += f'\nv_mul_u32_u24 v12, {48*5}, v12\nv_lshlrev_b32 v12, 10, v12'
    t += f'\ns_lshl_b32 s19, s30, 11\ns_add_u32 s19, s19, {rh*512}\ns_lshl_b32 s23, s30, 9\ns_add_u32 s23, s23, {4096 + rh*256}'
    t += '\nv_cmp_lt_u32 s[20:21], 7, v11\nv_and_b32 v8, 3, v11\nv_lshlrev_b32 v8, 4, v8\nv_lshrrev_b32 v11, 2, v11\nv_lshlrev_b32 v11, 10, v11'
    t += '\nv_lshl_add_u32 v11, v14, 6, v11\nv_add_u32 v11, s19, v11\nv_add_u32 v12, v12, v8\nv_lshlrev_b32 v8, 5, v14\nv_add_u32 v8, s23, v8\nv_cndmask_b32_e64 v11, v11, v8, s[20:21]\nv_add_u32 v12, v12, v11'
    t += f'\ns_add_u32 s23, s31, {i*4*48*5120}\nbuffer_store_dwordx4 a[{4*k}:{4*k+3}], v12, s[8:11], s23 offen sc1'
    return tg, t

LSYNC = LFAST + 16
def lds_arrive(a, off):
    a(f'v_mov_b32 v18, {LSYNC + off}\nv_mov_b32 v19, 1\ns_mov_b64 exec, 1\nds_add_u32 v18, v19\ns_mov_b64 exec, -1')
def lds_spin(a, off, n):
    L = a.newlabel('LSP'); Lo = a.newlabel('LSPX')
    a(f'v_mov_b32 v18, {LSYNC + off}\ns_mov_b32 s18, {SPIN}')
    a.label(L)
    a(f's_sub_u32 s18, s18, 1\ns_cmp_eq_u32 s18, 0\ns_cbranch_scc1 {Lo}')
    a(f'ds_read_b32 v19, v18\ns_waitcnt lgkmcnt(0)\nv_readfirstlane_b32 s19, v19\ns_cmp_lt_u32 s19, {n}\ns_cbranch_scc1 {L}')
    a.label(Lo)

def lds_spin_keep(a, off, n):
    L = a.newlabel('LSP'); Lo = a.newlabel('LSPX')
    a(f'v_mov_b32 v18, {LSYNC + off}\ns_mov_b32 s18, {SPIN}')
    a.label(L)
    a(f's_sub_u32 s18, s18, 1\ns_cmp_eq_u32 s18, 0\ns_cbranch_scc1 {Lo}')
    a(f'ds_read_b32 v19, v18\ns_waitcnt lgkmcnt(0)\nv_readfirstlane_b32 s24, v19\ns_cmp_lt_u32 s24, {n}\ns_cbranch_scc1 {L}')
    a.label(Lo)

def phase_h(a):
    a('s_barrier')
    Lw23 = a.newlabel('H_W23'); Lend = a.newlabel('H_END')
    a(f's_cmp_ge_u32 s3, 2\ns_cbranch_scc1 {Lw23}')
    a('s_setprio 3')
    a('s_getreg_b32 s15, hwreg(HW_REG_XCC_ID, 0, 4)\ns_add_u32 s15, s15, 1')
    a('v_lshrrev_b32 v5, 4, v2\nv_and_b32 v4, 15, v2')
    a('s_lshl_b32 s19, s12, 8\ns_lshl_b32 s20, s13, 3\ns_add_u32 s19, s19, s20\ns_lshl_b32 s20, s3, 2\ns_add_u32 s19, s19, s20')
    a('v_add_u32 v5, s19, v5')
    a('v_lshrrev_b32 v7, 1, v4\nv_and_b32 v8, 1, v4')
    a(f's_mul_i32 s21, s3, 2560\ns_add_u32 s21, s21, {WS_MODP}')
    for p in range(4):
        for r in range(3):
            a(f'buffer_load_dwordx4 v[{24+16*r+4*p}:{27+16*r+4*p}], v3, s[8:11], s21 offen offset:{r*1024}')
        if p < 3: a('s_add_u32 s21, s21, 15360')
    srd(a, 24, 16, 17, 0, ACT_BYTES)
    a('v_mul_u32_u24 v6, 1280, v5\nv_lshl_add_u32 v6, v7, 5, v6\nv_lshl_add_u32 v6, v8, 3, v6')
    for i in range(5):
        a(f'buffer_load_dwordx2 v[{192+4*i}:{193+4*i}], v6, s[24:27], 0 offen offset:{i*256}')
        a(f'buffer_load_dwordx2 v[{194+4*i}:{195+4*i}], v6, s[24:27], 0 offen offset:{i*256+16}')
    a('s_waitcnt vmcnt(10)')
    a.raw('    ; MARK 0')
    a('v_lshrrev_b32 v14, 2, v2\nv_lshlrev_b32 v14, 6, v14\nv_and_b32 v15, 1, v2\nv_lshl_add_u32 v14, v15, 5, v14\nv_bfe_u32 v15, v2, 1, 1\nv_lshl_add_u32 v14, v15, 4, v14')
    a(f's_mul_i32 s20, s3, 2560\ns_add_u32 s20, s20, {LHF}\nv_add_u32 v14, s20, v14')
    a('s_cmp_eq_u32 s3, 1\ns_cselect_b32 s20, 1.0, 0\nv_mov_b32 v12, s20')
    for r in range(3):
        b = 24 + 16*r
        fin_mod(a, b); round4(a, b, 12)
        if r == 2: a('s_mov_b32 exec_hi, 0')
        a(f'ds_write_b128 v14, v[{b}:{b+3}] offset:{r*1024}')
        if r == 2: a('s_mov_b64 exec, -1')
    a('s_waitcnt lgkmcnt(0)')
    lds_arrive(a, 0)
    if OPT.get('hmarks'): a.raw('    ; MARK 10')
    X = 192; F = 124
    a('s_waitcnt vmcnt(0)')
    if OPT.get('hmarks'): a.raw('    ; MARK 11')
    a(f's_lshl_b32 s19, s12, 7\ns_add_u32 s19, s19, {FL_XT}\nv_and_b32 v22, 31, v2\nv_lshlrev_b32 v22, 2, v22\nv_add_u32 v22, s19, v22')
    a('global_load_dword v20, v22, s[4:5] sc1')
    for i in range(20):
        a(f'v_lshlrev_b32 v{F+2*i}, 16, v{X+i}\nv_and_b32 v{F+1+2*i}, 0xffff0000, v{X+i}')
    a(f'v_pk_add_f32 v[12:13], v[{F}:{F+1}], v[{F+2}:{F+3}]\nv_pk_add_f32 v[14:15], v[{F+4}:{F+5}], v[{F+6}:{F+7}]')
    for i in range(4, 20, 2):
        a(f'v_pk_add_f32 v[12:13], v[12:13], v[{F+2*i}:{F+2*i+1}]\nv_pk_add_f32 v[14:15], v[14:15], v[{F+2*i+2}:{F+2*i+3}]')
    a('v_pk_add_f32 v[12:13], v[12:13], v[14:15]\nv_add_f32 v12, v12, v13')
    for rot in (8, 4, 2, 1):
        a(f'v_add_f32_dpp v12, v12, v12 row_ror:{rot} row_mask:0xf bank_mask:0xf')
    a(f'v_mul_f32 v12, {hex(f2u(-1.0/640))}, v12\nv_mov_b32 v13, v12')
    for i in range(20): a(f'v_pk_add_f32 v[{F+2*i}:{F+2*i+1}], v[{F+2*i}:{F+2*i+1}], v[12:13]')
    a(f'v_pk_mul_f32 v[14:15], v[{F}:{F+1}], v[{F}:{F+1}]\nv_pk_mul_f32 v[16:17], v[{F+2}:{F+3}], v[{F+2}:{F+3}]')
    for i in range(2, 20, 2):
        a(f'v_pk_fma_f32 v[14:15], v[{F+2*i}:{F+2*i+1}], v[{F+2*i}:{F+2*i+1}], v[14:15]\nv_pk_fma_f32 v[16:17], v[{F+2*i+2}:{F+2*i+3}], v[{F+2*i+2}:{F+2*i+3}], v[16:17]')
    a('v_pk_add_f32 v[14:15], v[14:15], v[16:17]\nv_add_f32 v14, v14, v15')
    for rot in (8, 4, 2, 1):
        a(f'v_add_f32_dpp v14, v14, v14 row_ror:{rot} row_mask:0xf bank_mask:0xf')
    a(f'v_mov_b32 v15, {hex(f2u(1e-5))}\nv_fmac_f32 v15, {hex(f2u(1.0/640))}, v14\nv_rsq_f32 v14, v15')
    a('v_mov_b32 v15, v14')
    if OPT.get('hmarks'): a.raw('    ; MARK 12')
    lds_spin(a, 0, 2)
    if OPT.get('hmarks'): a.raw('    ; MARK 13')
    a(f'v_lshlrev_b32 v9, 5, v4\nv_add_u32 v9, {LHF}, v9')
    A1 = 24; SA = 64
    for i in range(5):
        for hh in range(2):
            a(f'ds_read_b128 v[{A1+8*i+4*hh}:{A1+8*i+4*hh+3}], v9 offset:{2560 + i*512 + 16*hh}')
            a(f'ds_read_b128 v[{SA+8*i+4*hh}:{SA+8*i+4*hh+3}], v9 offset:{i*512 + 16*hh}')
    for i in range(20): a(f'v_pk_mul_f32 v[{F+2*i}:{F+2*i+1}], v[{F+2*i}:{F+2*i+1}], v[14:15]')
    for i in range(5):
        a(f's_waitcnt lgkmcnt({min(15, 16 - 4*i)})')
        for k in range(4*i, 4*i+4):
            a(f'v_pk_fma_f32 v[{F+2*k}:{F+2*k+1}], v[{F+2*k}:{F+2*k+1}], v[{A1+2*k}:{A1+2*k+1}], v[{SA+2*k}:{SA+2*k+1}]')
            a(f'v_cvt_pk_bf16_f32 v{164+k}, v{F+2*k}, v{F+2*k+1}')
    a('v_and_b32 v10, 31, v5\nv_lshlrev_b32 v10, 4, v10\nv_lshl_add_u32 v10, v7, 10, v10\nv_lshl_add_u32 v10, v8, 9, v10')
    a('s_lshl_b32 s19, s12, 3\ns_lshr_b32 s20, s13, 2\ns_add_u32 s21, s19, s20\ns_mul_i32 s21, s21, 40960')
    if OPT.get('hmarks'): a.raw('    ; MARK 14')
    def st(f):
        for i in range(5):
            a(f's_add_u32 s20, s21, {WS_H1F + i*8192}')
            a(f'buffer_store_dwordx4 v[{164+4*i}:{167+4*i}], v10, s[8:11], s20 offen{f}')
    st('')
    if OPT.get('hmarks'): a.raw('    ; MARK 15')
    a(f's_lshl_b32 s22, s12, 7\ns_add_u32 s22, s22, {FL_H}\ns_lshl_b32 s20, s13, 2\ns_add_u32 s20, s20, s22\nv_mov_b32 v250, s20\nv_mov_b32 v249, 1')
    a('v_and_b32 v251, 31, v2\nv_lshlrev_b32 v251, 2, v251\nv_add_u32 v251, s22, v251')
    a('s_mov_b32 s25, s21')
    a_setup(a)
    a('s_waitcnt vmcnt(0)')
    Lp = a.newlabel('H_XP'); Lpo = a.newlabel('H_XPO'); Lfs = a.newlabel('H_FS')
    a(f'v_cmp_eq_u32 vcc, 0, v20\ns_cbranch_vccz {Lpo}')
    poll(a, 'v22')
    a.label(Lpo)
    a('v_cmp_ne_u32 vcc, s15, v20\ns_cmp_eq_u64 vcc, 0\ns_cselect_b32 s14, 1, 0')
    a(f'v_mov_b32 v18, {LFAST}\nv_mov_b32 v19, s14\nds_write_b32 v18, v19')
    a(f's_cmp_eq_u32 s14, 1\ns_cbranch_scc1 {Lfs}')
    for i in range(5):
        a(f's_add_u32 s24, s25, {WS_H1F + i*8192}')
        a(f'buffer_store_dwordx4 v[{164+4*i}:{167+4*i}], v10, s[8:11], s24 offen sc1')
    a('s_waitcnt vmcnt(0)')
    a.label(Lfs)
    a('s_waitcnt lgkmcnt(0)')
    lds_arrive(a, 8)
    a.raw('    ; MARK 1')
    Lw1 = a.newlabel('H_W1'); Lst = a.newlabel('H_ST')
    a(f's_cmp_eq_u32 s3, 1\ns_cbranch_scc1 {Lw1}')
    lds_spin_keep(a, 4, 1)
    a('s_mov_b64 exec, 1')
    store2(a, lambda f: a(f'global_store_dword v250, v249, s[4:5]{f}'))
    a('s_mov_b64 exec, -1')
    poll(a, 'v251', pipe=True)
    a(f's_branch {Lst}')
    a.label(Lw1)
    lds_arrive(a, 4)
    a.label(Lst)
    def st2(f):
        for i in range(5):
            a(f's_add_u32 s20, s21, {WS_XF + i*8192}')
            a(f'buffer_store_dwordx4 v[{X+4*i}:{X+3+4*i}], v10, s[8:11], s20 offen{f}')
    if not OPT.get('noxf'): store2(a, st2)
    a(f's_branch {Lend}')
    a.label(Lw23)
    Lx = a.newlabel('H_XT')
    a('s_getreg_b32 s15, hwreg(HW_REG_XCC_ID, 0, 4)\ns_add_u32 s15, s15, 1')
    a(f's_cmp_lg_u32 s3, 2\ns_cbranch_scc1 {Lx}')
    a(f's_lshl_b32 s19, s12, 7\ns_lshl_b32 s20, s13, 2\ns_add_u32 s19, s19, s20\ns_add_u32 s19, s19, {FL_XT}')
    a('v_mov_b32 v18, s19\nv_mov_b32 v19, s15\ns_mov_b64 exec, 1')
    a('global_store_dword v18, v19, s[4:5] sc1')
    a('s_mov_b64 exec, -1')
    a.label(Lx)
    if OPT.get('tlbwarm'):
        a('v_lshlrev_b32 v9, 21, v2\ns_mov_b64 exec, 0x3ffffff')
        a('buffer_load_dword v255, v9, s[8:11], 0 offen')
        a('s_mov_b64 exec, 3')
        a('global_load_dword v255, v9, s[6:7]')
        a('s_mov_b64 exec, 1')
        for r in (36, 38, 40): a(f'global_load_dword v255, v9, s[{r}:{r+1}]')
        a('s_mov_b64 exec, -1')
    if OPT.get('h_touch', 1):
        a(f's_mul_i32 s20, s12, 327680\ns_mul_i32 s21, s13, 10240\ns_add_u32 s20, s20, s21\ns_sub_u32 s21, s3, 2\ns_mul_i32 s21, s21, 5120\ns_add_u32 s20, s20, s21\ns_add_u32 s20, s20, {WS_H1F}')
        touch(a, 8, 9, 255, 20, 40)
    if OPT.get('kv_touch'):
        a(f's_mul_i32 s20, s12, {KVH_STRIDE}\ns_mul_i32 s21, s13, 20480\ns_add_u32 s20, s20, s21\ns_sub_u32 s21, s3, 2\ns_mul_i32 s21, s21, 10240\ns_add_u32 s20, s20, s21\ns_add_u32 s20, s20, {WS_KVH}')
        touch(a, 8, 9, 255, 20, 80)
    a(f's_mul_i32 s20, s13, 81920\ns_sub_u32 s21, s3, 2\ns_lshl_b32 s21, s21, 12\ns_add_u32 s20, s20, s21\ns_add_u32 s20, s20, {WS_WQKV}')
    PB = OPT.get('a_preB', 10)
    for i in range(PB):
        a(f's_add_u32 m0, s21, {i*8192}')
        for q in range(4): a(f'buffer_load_dwordx4 v3, s[8:11], s20 offen offset:{q*1024} lds')
        if i < PB-1: a('s_add_u32 s20, s20, 8192')
    L3 = a.newlabel('H_T3')
    a(f's_cmp_eq_u32 s3, 3\ns_cbranch_scc0 {L3}')
    a('s_mul_i32 s20, s13, 20\ns_add_u32 s20, s20, 320\nv_add_u32 v10, s20, v2\nv_lshlrev_b32 v11, 4, v10')
    for p in range(4):
        a(f's_mov_b32 s20, {WS_MODP + p*15360}')
        a(f'buffer_load_dwordx4 v[{44+4*p}:{47+4*p}], v11, s[8:11], s20 offen')
    a.label(L3)
    a('s_waitcnt vmcnt(0)')
    L4 = a.newlabel('H_T4')
    a(f's_cmp_eq_u32 s3, 3\ns_cbranch_scc0 {L4}')
    fin_mod(a, 44)
    a('v_mul_u32_u24 v12, 410, v10\nv_lshrrev_b32 v12, 16, v12')
    a('v_mul_u32_u24 v13, 160, v12\nv_sub_u32 v13, v10, v13')
    cperm_pos_bytes(a, 13, 14, 15)
    a('v_mul_u32_u24 v15, 1280, v12\nv_add_u32 v14, v14, v15')
    a('v_cmp_eq_u32 vcc, 4, v12\nv_cndmask_b32_e64 v12, 0, 1.0, vcc')
    round_pack(a, 44, 12, 48)
    a(f's_lshl_b32 s20, s12, 13\ns_add_u32 s20, s20, {WS_MODF}')
    a('s_mov_b32 exec_lo, 0xfffff\ns_mov_b32 exec_hi, 0')
    a('buffer_store_dwordx2 v[48:49], v14, s[8:11], s20 offen sc1')
    a('s_mov_b64 exec, -1')
    a.label(L4)
    lds_spin_keep(a, 8, 1)
    a(f'v_mov_b32 v18, {LFAST}\nds_read_b32 v19, v18\ns_waitcnt lgkmcnt(0)\nv_readfirstlane_b32 s14, v19')
    a_setup(a)
    a.label(Lend)
    a.raw('    ; MARK 19')
    a('s_setprio 0')
    a('s_waitcnt lgkmcnt(0)\ns_barrier')
    a.raw('    ; MARK 2')


def phase_start(a):
    Lx = a.newlabel('S_XT')
    a('s_getreg_b32 s15, hwreg(HW_REG_XCC_ID, 0, 4)\ns_add_u32 s15, s15, 1')
    a(f's_cmp_lg_u32 s3, 1\ns_cbranch_scc1 {Lx}')
    a(f's_lshl_b32 s19, s12, 7\ns_lshl_b32 s20, s13, 2\ns_add_u32 s19, s19, s20\ns_add_u32 s19, s19, {FL_XT}')
    a('v_mov_b32 v18, s19\nv_mov_b32 v19, s15\ns_mov_b64 exec, 1')
    a('global_store_dword v18, v19, s[4:5] sc1')
    a('s_mov_b64 exec, -1')
    a.label(Lx)
    a('s_mul_i32 s20, s13, 20\ns_mul_i32 s21, s3, 5\ns_add_u32 s20, s20, s21\ns_add_u32 s20, s20, 320\nv_add_u32 v140, s20, v2\nv_lshlrev_b32 v141, 4, v140')
    for p in range(4):
        a(f's_mov_b32 s20, {WS_MODP + p*15360}')
        a(f'buffer_load_dwordx4 v[{144+4*p}:{147+4*p}], v141, s[8:11], s20 offen')
    a.raw('    ; MARK 2')


def a_side():
    b = Asm(); items = []
    def item():
        items.append('\n'.join(l.strip() for l in b.lines)); b.lines = []
    b('v_and_b32 v6, 31, v2\nv_lshrrev_b32 v7, 5, v2'); item()
    b(f'v_lshlrev_b32 v8, 4, v0\nv_add_u32 v8, {LK + 5*4096}, v8'); item()
    b('v_mov_b32 v12, 0\nv_mov_b32 v13, 0'); item()
    b('v_mov_b32 v14, 0\nv_mov_b32 v15, 0'); item()
    Lb = b.newlabel('A_NB')
    nb = f2u(NEG) >> 16
    b(f's_cmp_lg_u32 s12, 0\ns_cbranch_scc1 {Lb}\nv_mov_b32 v9, {nb}\nv_cmp_gt_u32 vcc, 128, v0\ns_nop 1\nv_cndmask_b32 v12, 0, v9, vcc\nv_mov_b32 v14, v12')
    b.label(Lb); b('ds_write_b128 v8, v[12:15]'); item()
    b('v_mov_b32 v12, 0x3f803f80\nv_mov_b32 v13, 0x3f803f80'); item()
    b('v_mov_b32 v14, 0x3f803f80\nv_mov_b32 v15, 0x3f803f80'); item()
    b(f'v_lshlrev_b32 v8, 4, v0\nv_add_u32 v8, {LONES}, v8'); item()
    b('ds_write_b128 v8, v[12:15]\ns_mov_b64 exec, 0xffff\ns_cmp_eq_u32 s3, 0\ns_cselect_b64 exec, exec, 0') if False else None
    b('ds_write_b128 v8, v[12:15]'); item()
    Lo = b.newlabel('A_NO')
    b(f's_cmp_lg_u32 s3, 0\ns_cbranch_scc1 {Lo}\ns_mov_b64 exec, 0xffff\nds_write_b128 v8, v[12:15] offset:4096\ns_mov_b64 exec, -1'); b.label(Lo); item()
    Lz = b.newlabel('A_NZ')
    b(f's_cmp_lg_u32 s12, 0\ns_cbranch_scc1 {Lz}')
    b('v_mov_b32 v12, 0\nv_mov_b32 v13, 0\nv_mov_b32 v14, 0\nv_mov_b32 v15, 0')
    b('v_and_b32 v8, 127, v0\nv_lshlrev_b32 v8, 4, v8\nv_lshrrev_b32 v9, 7, v0')
    b(f'v_mul_u32_u24 v10, 4096, v9\nv_add_u32 v10, v10, v8\nv_add_u32 v10, {LK}, v10')
    for gg in (0, 2): b(f'ds_write_b128 v10, v[12:15] offset:{gg*4096}')
    b(f'v_mul_u32_u24 v11, 4128, v9\nv_add_u32 v11, v11, v8\nv_add_u32 v11, {LV}, v11')
    for gg in (0, 2): b(f'ds_write_b128 v11, v[12:15] offset:{gg*4128}')
    Lz2 = b.newlabel('A_NZ2')
    b(f's_cmp_ge_u32 s3, 2\ns_cbranch_scc1 {Lz2}\nds_write_b128 v10, v[12:15] offset:{4*4096}\nds_write_b128 v11, v[12:15] offset:{4*4128}')
    b.label(Lz2); b.label(Lz); item()
    b(f'v_mul_u32_u24 v8, 4096, v7\nv_add_u32 v8, {LK}, v8'); item()
    b(f'v_mul_u32_u24 v9, 4128, v7\nv_add_u32 v9, {LV}, v9'); item()
    b(f'v_mov_b32 v10, {LK + 4*4096}\nv_mov_b32 v11, {LV + 4*4128}'); item()
    b('v_cmp_eq_u32 vcc, 1, v7'); item()
    b('v_cndmask_b32 v10, v10, v11, vcc'); item()
    b(f's_mul_i32 s31, s12, {KVH_STRIDE}\ns_mul_i32 s29, s13, 20480\ns_add_u32 s31, s31, s29\ns_add_u32 s31, s31, {WS_KVH}'); item()
    b(f'v_lshlrev_b32 v11, 11, v7\nv_mov_b32 v12, {4*2048}'); item()
    b(f'v_mov_b32 v13, {9*2048}'); item()
    b('v_cndmask_b32 v12, v12, v13, vcc'); item()
    for tb in range(2):
        b(f's_sub_u32 s29, s{20+tb}, s19\ns_lshl_b32 s29, s29, 5\nv_add_u32 v{14+tb}, s29, v6'); item()
        b(f'v_lshlrev_b32 v{14+tb}, 3, v{14+tb}'); item()
    return items

def modf_side():
    b = Asm()
    fin_mod(b, 144)
    b('v_mul_u32_u24 v142, 410, v140\nv_lshrrev_b32 v142, 16, v142')
    b('v_mul_u32_u24 v143, 160, v142\nv_sub_u32 v143, v140, v143')
    cperm_pos_bytes(b, 143, 160, 161)
    b('v_mul_u32_u24 v161, 1280, v142\nv_add_u32 v160, v160, v161')
    b('v_cmp_eq_u32 vcc, 4, v142\ns_nop 1\nv_cndmask_b32_e64 v142, 0, 1.0, vcc')
    round_pack(b, 144, 142, 148)
    b(f's_lshl_b32 s29, s12, 13\ns_add_u32 s29, s29, {WS_MODF}')
    out = [l.strip() for l in b.lines]
    out.append('s_mov_b64 exec, 31\nbuffer_store_dwordx2 v[148:149], v160, s[8:11], s29 offen sc1\ns_mov_b64 exec, -1')
    return out

ACC_A = 40
QF = 224
OPT = dict(a_pre=3, a_pace=2, a_ahead=5, a_sc=' sc1', a_preB=5, bg=0, lnk0=0, noxf=1, at_probe=5, at_fetch=6, k0st=' sc1')
def a_setup(a):
    a('s_lshl_b32 s19, s12, 3\ns_add_u32 s20, s19, s3\ns_sub_u32 s21, 7, s3\ns_add_u32 s21, s19, s21')
    a(f's_mul_i32 s22, s20, 40960\ns_add_u32 s22, s22, {WS_H1F}\ns_mul_i32 s23, s21, 40960\ns_add_u32 s23, s23, {WS_H1F}')
    a(f's_mul_i32 s26, s13, 81920\ns_lshl_b32 s27, s3, 11\ns_add_u32 s26, s26, s27\ns_add_u32 s26, s26, {WS_WQKV}')
    a('v_add_u32 v5, 0x10000, v3')

def phase_a(a):
    vm = Vm(a)
    if OPT.get('lnk0'): a_setup(a)
    def opsA(c):
        ops = []
        for tb in range(2):
            ops.append((f's_add_u32 s{24+tb}, s{22+tb}, {c*4096}', False))
            for q in range(4):
                f = (2*(4*c + q) + tb) % 64
                ops.append((f'buffer_load_dwordx4 a[{4*f}:{4*f+3}], v3, s[8:11], s{24+tb} offen offset:{q*1024}{OPT["a_sc"]}', True))
        return ops
    def read_frag(ks, ct, r):
        off = (ks*2 + ct)*1024
        return f'ds_read_b128 v[{r}:{r+3}], v{3 if off < 65536 else 5} offset:{off % 65536}'
    def mfmas(ks, ct, r, first):
        out = []
        for tb in range(2):
            d = ACC_A + (tb*2 + ct)*16; f = (2*ks + tb) % 64
            out.append(f'v_mfma_f32_32x32x16_bf16 v[{d}:{d+15}], v[{r}:{r+3}], a[{4*f}:{4*f+3}], ' + ('0' if first else f'v[{d}:{d+15}]'))
        return out
    PB = OPT.get('a_preB', 10)
    def opsB(c):
        return [(f's_add_u32 m0, s27, {c*8192}', False), (f's_add_u32 s28, s26, {c*8192}', False),
                ('buffer_load_dwordx4 v3, s[8:11], s28 offen lds', True), ('buffer_load_dwordx4 v3, s[8:11], s28 offen offset:1024 lds', True)]
    side = ['s_nop 0']*8 + a_side()
    if OPT.get('lnk0', 1):
        side = side + modf_side()
    gemm2(a, vm, 40, 4, 2, opsA, opsB, PB, read_frag, mfmas, 16, pd=2, pre=OPT['a_pre'], pace=OPT['a_pace'], ahead=OPT['a_ahead'], barriers=(PB < 10), side=side, lead=OPT.get('a_lead', 0))
    a.raw('    ; MARK 3')
    for tb in range(2):
        P = 120 + 10*tb
        quads = [(0, 0), (0, 1), (0, 2), (0, 3), (1, 0)]
        for i, (ct, q) in enumerate(quads):
            d = ACC_A + (tb*2 + ct)*16 + 4*q
            a(f'v_cvt_pk_bf16_f32 v{P+2*i}, v{d}, v{d+1}\nv_cvt_pk_bf16_f32 v{P+2*i+1}, v{d+2}, v{d+3}')
        Ls = a.newlabel('A_NS')
        tk = 14 + tb
        a(f's_cmp_eq_u32 s12, 7\ns_cbranch_scc1 {Ls}')
        a(f'v_add_u32 v21, v11, v{tk}\nv_add_u32 v22, v12, v{tk}')
        a(f'buffer_store_dwordx2 v[{P}:{P+1}], v21, s[8:11], s31 offen sc1')
        a(f's_add_u32 s25, s31, {2*2048}\nbuffer_store_dwordx2 v[{P+2}:{P+3}], v21, s[8:11], s25 offen sc1')
        a(f'buffer_store_dwordx2 v[{P+4}:{P+5}], v22, s[8:11], s31 offen sc1')
        a(f's_add_u32 s25, s31, {5*2048}\nbuffer_store_dwordx2 v[{P+6}:{P+7}], v21, s[8:11], s25 offen sc1')
        a(f's_add_u32 s25, s31, {7*2048}\nbuffer_store_dwordx2 v[{P+8}:{P+9}], v21, s[8:11], s25 offen sc1')
        a.label(Ls)
    a('s_mov_b32 s24, s31\nv_cmp_eq_u32 vcc, 1, v7')
    for tb in range(2):
        P = 120 + 10*tb; tk = 14 + tb
        a(f'v_add_u32 v20, 2048, v{tk}')
        a(f'v_add_u32 v21, v8, v20\nds_write_b64 v21, v[{P}:{P+1}]\nds_write_b64 v21, v[{P+2}:{P+3}] offset:8192')
        a(f'v_add_u32 v22, v10, v20\nds_write_b64 v22, v[{P+4}:{P+5}]')
        a(f'v_add_u32 v23, v9, v20\nds_write_b64 v23, v[{P+6}:{P+7}]\nds_write_b64 v23, v[{P+8}:{P+9}] offset:{2*4128}')
        Q = QF + 8*tb
        for i, q in enumerate((1, 2, 3)):
            d = ACC_A + (tb*2 + 1)*16 + 4*q
            a(f'v_cvt_pk_bf16_f32 v{Q+2*i}, v{d}, v{d+1}\nv_cvt_pk_bf16_f32 v{Q+2*i+1}, v{d+2}, v{d+3}')
        a(f'v_mov_b32 v21, 0x3f80\nv_cndmask_b32 v{Q+4}, v{Q+4}, v21, vcc\nv_cndmask_b32_e64 v{Q+5}, v{Q+5}, 0, vcc\nv_mov_b32 v{Q+6}, 0\nv_mov_b32 v{Q+7}, 0')
    a('s_waitcnt lgkmcnt(0)\ns_barrier')
    a.raw('    ; MARK 4')

def o_offsets(a):
    a(f's_lshl_b32 s19, s12, 3\ns_add_u32 s20, s19, s3\ns_sub_u32 s21, 7, s3\ns_add_u32 s21, s21, s19\ns_mul_i32 s20, s20, 40960\ns_mul_i32 s21, s21, 40960')
    a(f's_lshl_b32 s22, s13, 10\ns_add_u32 s22, s22, {KP_O}\ns_add_u32 s36, s20, s22\ns_add_u32 s37, s21, s22')
    a(f's_lshr_b32 s23, s13, 2\ns_add_u32 s23, s23, 32\ns_lshl_b32 s23, s23, 10\ns_bfe_u32 s22, s13, 0x10001\ns_lshl_b32 s22, s22, 9\ns_add_u32 s23, s23, s22\ns_and_b32 s22, s13, 1\ns_lshl_b32 s22, s22, 3\ns_add_u32 s23, s23, s22\ns_add_u32 s23, s23, {KP_O}')
    a('s_add_u32 s38, s20, s23\ns_add_u32 s39, s21, s23')

def phase_b(a):
    assert not OPT.get('bg')
    o_offsets(a)
    import sys as _sys
    from kp_attn import attention
    attention(a, _sys.modules[__name__])
    a.raw('    ; MARK 6')
    def st(f):
        for tb in range(2):
            R = 240 + 6*tb
            a(f'buffer_store_dwordx4 v[{R}:{R+3}], v3, s[8:11], s{36+tb} offen{f}')
        a('s_mov_b32 exec_hi, 0')
        for tb in range(2):
            R = 240 + 6*tb
            a(f'buffer_store_dwordx2 v[{R+4}:{R+5}], v3, s[8:11], s{38+tb} offen{f}')
        a('s_mov_b64 exec, -1')
    store2(a, st)
    gbar_pre(a, FL_O)
    a('s_waitcnt vmcnt(0)')
    gbar(a, FL_O, also_set=FL_BG)
    a.raw('    ; MARK 7')

def kp_kernel(upto='E'):
    a = Asm()
    a('s_cmp_ge_u32 s2, 256\ns_cbranch_scc1 KP_END')
    a(f's_load_dwordx2 s[4:5], s[0:1], {KA_WS}')
    a(f's_load_dwordx2 s[6:7], s[0:1], {KA_OUT}')
    a(f's_load_dwordx2 s[16:17], s[0:1], {KA_X}')
    if OPT.get('bg'): a(f's_load_dwordx4 s[36:39], s[0:1], {KA_WG}')
    ka40 = KA_X if OPT.get('noxf') else KA_WD
    a(f's_load_dwordx2 s[40:41], s[0:1], {ka40}')
    wave_id(a, 3, 1)
    a('v_and_b32 v2, 63, v0\nv_lshlrev_b32 v3, 4, v2')
    if not OPT.get('lnk0'): a(f'v_mov_b32 v18, {LSYNC}\nv_mov_b32 v20, 0\nv_mov_b32 v21, 0\nv_mov_b32 v22, 0\nv_mov_b32 v23, 0\nds_write_b128 v18, v[20:23]')
    if OPT.get('perm_roles'): a('s_lshr_b32 s12, s2, 5\ns_and_b32 s13, s2, 31\ns_mov_b32 s14, 0')
    else: a('s_and_b32 s12, s2, 7\ns_lshr_b32 s13, s2, 3\ns_mov_b32 s14, 0')
    a('s_waitcnt lgkmcnt(0)')
    ws_rebase(a, 4)
    srd(a, 8, 4, 5, 0, WS_END)
    if OPT.get('lnk0', 1):
        OPT['a_preB'] = OPT.get('a_preB0', 0)
        phase_start(a)
    else: phase_h(a)
    def hoist(nxt):
        b = Asm(); nxt(b)
        k = 0
        if OPT.get('hoist', 1):
            while True:
                t = b.lines[k].strip()
                if t.startswith(('buffer_', 'global_', 'ds_', 's_waitcnt', 's_barrier', 's_cbranch', 's_branch', ';')) or t.endswith(':') or 'exec' in t or t.startswith('v_accvgpr'): break
                k += 1
            last_bar = max(i for i, l in enumerate(a.lines) if l.strip() == 's_barrier')
            first_bar = max(i for i, l in enumerate(a.lines[:last_bar]) if l.strip() == 's_barrier')
            w = max(i for i, l in enumerate(a.lines[:first_bar]) if l.strip() == 's_waitcnt vmcnt(0)')
            a.lines[w:w] = b.lines[:k]
        a.lines += b.lines[k:]
    if upto != 'H':
        phase_a(a)
        phase_b(a)
    if upto not in ('H', 'B'):
        from kp2 import phase_c, phase_d, phase_e
        hoist(phase_c)
        if upto != 'C':
            hoist(phase_d)
            if upto != 'D': hoist(phase_e)
    a.label('KP_END')
    a('s_endpgm')
    a.label('KP_CODE_END')
    return dict(name='kp_kernel', body=a.text(), grid=256, block=256, lds=163840, vgpr=256, agpr=256, sgpr=44, sgpr_real=96)
```
